```python
import torch

def _softmax(x, axis=-1):
    return torch.softmax(x, dim=axis)
def _gelu(x):
    return torch.nn.functional.gelu(x, approximate="tanh")
def _silu(x):
    return torch.nn.functional.silu(x)
def _sigmoid(x):
    return torch.sigmoid(x)
def _layernorm(x, axis=-1, eps=1e-5):
    m = x.mean(dim=axis, keepdim=True)
    v = x.var(dim=axis, keepdim=True, unbiased=False)
    return (x - m) / torch.sqrt(v + eps)
def _scatter_add(tgt, idx, src, axis=0):
    return tgt.clone().index_add_(axis, idx, src)
def _segment_sum(src, seg, n):
    out = torch.zeros((n,) + src.shape[1:], dtype=src.dtype)
    return out.index_add_(0, seg, src)
def _pad(x, pw):
    flat = tuple(v for pair in reversed(pw) for v in pair)
    return torch.nn.functional.pad(x, flat)

kernel_name = 'gated_mix__sliding_local_dilated__linear_kernel_hedgehog__prompt'

def setup_inputs():

    _w = (lambda a: (lambda t: t.to(torch.bfloat16) if t.is_floating_point() else t)(torch.as_tensor(a)))
    def _A_setup():
        B, S, D = 1, 2048, 448
        return {
            "x": _w((lambda *s: torch.randn(*s, dtype=torch.bfloat16) * 0.05)(B, S, D)),
            "wqkv": _w((lambda *s: torch.randn(*s, dtype=torch.bfloat16) * 0.8)(D, 3 * D)),
            "wo": _w((lambda *s: torch.randn(*s, dtype=torch.bfloat16) * 0.05)(D, D)),
        }
    _A_in = _A_setup()

    def _B_setup():
        B, S, D, H = 1, 2048, 448, 16
        Dh = D // H
        return {
            "x": _w((lambda *s: torch.randn(*s, dtype=torch.bfloat16) * 0.05)(B, S, D)),
            "wqkv": _w((lambda *s: torch.randn(*s, dtype=torch.bfloat16) * 1.6)(D, 3 * D)),
            "w_phi": _w((lambda *s: torch.randn(*s, dtype=torch.bfloat16) * 1.6)(H, Dh, Dh) * (Dh ** -0.5)),
            "wo": _w((lambda *s: torch.randn(*s, dtype=torch.bfloat16) * 0.2)(D, D)),
        }
    _B_in = _B_setup()

    return {
        "A_x": _A_in["x"],
        "A_wqkv": _A_in["wqkv"],
        "A_wo": _A_in["wo"],
        "B_x": _B_in["x"],
        "B_wqkv": _B_in["wqkv"],
        "B_w_phi": _B_in["w_phi"],
        "B_wo": _B_in["wo"],
        "gate_w": _w((lambda *s: torch.randn(*s, dtype=torch.bfloat16) * 0.05)(448) * 16.0),
    }

def reference(A_x, A_wqkv, A_wo, B_x, B_wqkv, B_w_phi, B_wo, gate_w):
    def _A_ref(x, wqkv, wo):
        B, S, D = x.shape
        H = 16; Dh = D // H
        W, dil = 8, 2
        qkv = (lambda x, *d: x.permute(*d))((x @ wqkv).reshape(B, S, 3, H, Dh), 2, 0, 3, 1, 4)
        q, k, v = qkv[0], qkv[1], qkv[2]
        scale = Dh ** -0.5
        pos = torch.arange(S)
        off = torch.arange(W) * dil
        idx = pos[:, None] - off[None, :]
        mask = idx >= 0
        idx_c = torch.where(mask, idx, 0).reshape(-1)
        kg = k[:, :, idx_c, :].reshape(B, H, S, W, Dh)
        vg = v[:, :, idx_c, :].reshape(B, H, S, W, Dh)
        logits = torch.einsum("bhsd,bhswd->bhsw", q, kg) * scale
        logits = torch.where(mask[None, None, :, :], logits, -1e9)
        attn = _softmax(logits, axis=-1)
        o = torch.einsum("bhsw,bhswd->bhsd", attn, vg)
        return (lambda x, *d: x.permute(*d))(o, 0, 2, 1, 3).reshape(B, S, D) @ wo

    def _B_ref(x, wqkv, w_phi, wo):
        B, S, D = x.shape
        H = 16; Dh = D // H
        qkv = (lambda x, *d: x.permute(*d))((x @ wqkv).reshape(B, S, 3, H, Dh), 2, 0, 3, 1, 4)
        q, k, v = qkv[0], qkv[1], qkv[2]
        pq = torch.einsum("bhsd,hdf->bhsf", q, w_phi)
        pk = torch.einsum("bhsd,hdf->bhsf", k, w_phi)
        phi_q = torch.concatenate([_softmax(pq, axis=-1), _softmax(-pq, axis=-1)], axis=-1)
        phi_k = torch.concatenate([_softmax(pk, axis=-1), _softmax(-pk, axis=-1)], axis=-1)
        kv = torch.einsum("bhsf,bhsd->bhfd", phi_k, v)
        z  = torch.einsum("bhsf->bhf", phi_k)
        num = torch.einsum("bhqf,bhfd->bhqd", phi_q, kv)
        den = torch.einsum("bhqf,bhf->bhq", phi_q, z)[..., None] + 1e-6
        o = num / den
        return (lambda x, *d: x.permute(*d))(o, 0, 2, 1, 3).reshape(B, S, D) @ wo

    x = A_x
    g = _sigmoid((x * gate_w).sum(-1, keepdims=True))
    a = _A_ref(x, A_wqkv, A_wo)
    b = _B_ref(x, B_wqkv, B_w_phi, B_wo)
    return g * a + (1 - g) * b
```

```python
import re

TRANS = ("v_exp_f32", "v_log_f32", "v_rcp_f32", "v_rsq_f32", "v_sqrt_f32", "v_sin_f32", "v_cos_f32")
_REG = re.compile(r"\b([vs])(?:(\d+)\b|\[(\d+):(\d+)\])")


def regs_of(op):
    out = []
    for m in _REG.finditer(op):
        k = m.group(1)
        if m.group(2) is not None:
            out.append((k, int(m.group(2))))
        else:
            out += [(k, i) for i in range(int(m.group(3)), int(m.group(4)) + 1)]
    if re.search(r"\bvcc\b", op):
        out.append(("s", 106)); out.append(("s", 107))
    if re.search(r"\bm0\b", op):
        out.append(("m0", 0))
    return out


def split_ops(s):
    ops, depth, cur = [], 0, ""
    for ch in s:
        if ch in "[(":
            depth += 1
        if ch in "])":
            depth -= 1
        if ch == "," and depth == 0:
            ops.append(cur.strip()); cur = ""
        else:
            cur += ch
    if cur.strip():
        ops.append(cur.strip())
    return ops


class Ins:
    def __init__(self, text, tag=None):
        self.text = text
        self.tag = tag
        t = text.split(";")[0].strip()
        parts = t.split(None, 1)
        self.opc = parts[0]
        rest = parts[1] if len(parts) > 1 else ""
        ops = split_ops(rest)
        self.ops = ops
        o = self.opc
        self.kind = "other"
        self.dst, self.src = [], []
        self.srcC = []
        self.dpp = any(w in rest for w in ("row_shr", "row_shl", "row_ror", "quad_perm", "row_bcast", "row_mirror", "row_half_mirror"))
        if o.startswith("v_mfma"):
            self.kind = "mfma"
            self.dst = regs_of(ops[0]); self.srcAB = regs_of(ops[1]) + regs_of(ops[2]); self.srcC = regs_of(ops[3])
            self.src = self.srcAB + self.srcC
        elif o.startswith("v_permlane"):
            self.kind = "permlane"
            self.dst = regs_of(ops[0]) + regs_of(ops[1]); self.src = list(self.dst)
        elif o.startswith("v_"):
            self.kind = "trans" if o.replace("_e32", "").replace("_e64", "") in TRANS else "valu"
            self.dst = regs_of(ops[0])
            srcs = ops[1:]
            if o.startswith(("v_add_co", "v_sub_co", "v_addc_co", "v_subb_co")):
                self.dst += regs_of(ops[1]); srcs = ops[2:]
            for s_ in srcs:
                self.src += regs_of(s_)
            if o.startswith(("v_fmac", "v_dot2c", "v_pk_fmac")):
                self.src += regs_of(ops[0])
            if o.startswith("v_cndmask") and len(ops) == 3:
                self.src += regs_of("vcc")
        elif o.startswith("ds_read") or o.startswith("ds_bpermute") or o.startswith("ds_swizzle"):
            self.kind = "dsr"
            self.dst = regs_of(ops[0])
            for s_ in ops[1:]:
                self.src += regs_of(s_)
        elif o.startswith("ds_"):
            self.kind = "dsw"
            for s_ in ops:
                self.src += regs_of(s_)
        elif o.startswith("buffer_load") or o.startswith("global_load"):
            if re.search(r"\blds\b", rest) or "_lds_" in o:
                self.kind = "dma"
                for s_ in ops:
                    self.src += regs_of(s_)
                self.src.append(("m0", 0))
            else:
                self.kind = "vld"
                self.dst = regs_of(ops[0])
                for s_ in ops[1:]:
                    self.src += regs_of(s_)
        elif o.startswith("buffer_store") or o.startswith("global_store") or o.startswith("buffer_atomic"):
            self.kind = "vst"
            for s_ in ops:
                self.src += regs_of(s_)
            self.wide = o.endswith("x4") or o.endswith("x3")
            self.data = regs_of(ops[0])
        elif o.startswith("s_"):
            self.kind = "salu"
            if o.startswith(("s_cmp", "s_cbranch", "s_branch", "s_waitcnt", "s_nop", "s_barrier", "s_sleep", "s_setprio", "s_endpgm")):
                for s_ in ops:
                    self.src += regs_of(s_)
                if "vcc" in o:
                    self.src += regs_of("vcc")
            else:
                self.dst = regs_of(ops[0]) if ops else []
                for s_ in ops[1:]:
                    self.src += regs_of(s_)


class Emitter:
    MFMA_RAW = 8
    def __init__(self):
        self.out = []
        self.pos = 0
        self.clear_haz()
        self.vmq = []
        self.lgq = []
        self.nins = 0

    def clear_haz(self):
        self.w_valu = {}; self.w_mfma = {}; self.r_mfmaC = {}; self.w_trans = {}
        self.w_vsgpr = {}; self.w_m0 = -100; self.st_data = {}
        self.mfma_dst_range = {}

    def raw(self, text):
        self.out.append(text)

    def comment(self, text):
        self.out.append("    ; " + text)

    def _put(self, text, states=1):
        self.out.append("    " + text)
        self.pos += states
        self.nins += 1

    def nop(self, n):
        while n > 0:
            k = min(n, 16)
            self._put(f"s_nop {k-1}", k)
            n -= k

    def flush_haz(self):
        need = 0
        for d, n in ((self.w_valu, 2), (self.w_mfma, self.MFMA_RAW), (self.r_mfmaC, 3), (self.w_trans, 1), (self.w_vsgpr, 5), (self.st_data, 2)):
            for p in d.values():
                need = max(need, n - (self.pos - p - 1))
        need = max(need, 1 - (self.pos - self.w_m0 - 1))
        if need > 0:
            self.nop(need)
        self.clear_haz()

    def label(self, name):
        self.flush_haz()
        self.out.append(name + ":")

    def wait(self, vm=None, lgkm=None):
        s = []
        if vm is not None:
            vm = min(vm, 63)
            if len(self.vmq) > vm:
                s.append(f"vmcnt({vm})"); self.vmq = self.vmq[len(self.vmq) - vm:] if vm else []
        if lgkm is not None:
            lgkm = min(lgkm, 15)
            if len(self.lgq) > lgkm:
                s.append(f"lgkmcnt({lgkm})"); self.lgq = self.lgq[len(self.lgq) - lgkm:] if lgkm else []
        if s:
            self._put("s_waitcnt " + " ".join(s))

    def force_wait(self, vm=None, lgkm=None):
        s = []
        if vm is not None:
            s.append(f"vmcnt({vm})"); self.vmq = self.vmq[len(self.vmq) - vm:] if vm else []
        if lgkm is not None:
            s.append(f"lgkmcnt({lgkm})"); self.lgq = self.lgq[len(self.lgq) - lgkm:] if lgkm else []
        self._put("s_waitcnt " + " ".join(s))

    def wait_tag(self, tag):
        idx = [i for i, e in enumerate(self.vmq) if e["tag"] == tag]
        if idx:
            self.wait(vm=len(self.vmq) - 1 - idx[-1])

    def barrier(self, lgkm0=True):
        if lgkm0:
            self.wait(lgkm=0)
        self._put("s_barrier")

    def __call__(self, text, tag=None):
        if isinstance(text, (list, tuple)):
            for t in text:
                if isinstance(t, tuple):
                    self(t[0], tag=t[1])
                elif callable(t):
                    t(self)
                else:
                    self(t)
            return
        I = Ins(text, tag)
        touched = set(r for r in I.src + I.dst if r[0] == "v")
        vmN = None
        for i, e in enumerate(self.vmq):
            if e["dst"] & touched:
                vmN = len(self.vmq) - 1 - i
        lgN = None
        for i, e in enumerate(self.lgq):
            if e["dst"] & touched:
                lgN = len(self.lgq) - 1 - i
        if vmN is not None or lgN is not None:
            self.wait(vm=vmN, lgkm=lgN)
        if I.kind in ("dsr", "dsw") and len(self.lgq) >= 15:
            self.wait(lgkm=11)
        need = 0
        def chk(d, regs, n):
            nonlocal need
            for r in regs:
                if r in d:
                    need = max(need, n - (self.pos - d[r] - 1))
        k = I.kind
        vsrc = [r for r in I.src if r[0] == "v"]
        ssrc = [r for r in I.src if r[0] == "s"]
        vdst = [r for r in I.dst if r[0] == "v"]
        if k == "mfma":
            chk(self.w_valu, vsrc, 2)
            chk(self.w_mfma, I.srcAB, self.MFMA_RAW)
            for r in I.srcC:
                if r in self.w_mfma and self.mfma_dst_range.get(r) != tuple(I.srcC):
                    need = max(need, 6 - (self.pos - self.w_mfma[r] - 1))
            for r in vdst:
                if r in self.w_mfma and self.mfma_dst_range.get(r) != tuple(I.dst):
                    need = max(need, 6 - (self.pos - self.w_mfma[r] - 1))
        elif k in ("valu", "trans", "permlane"):
            chk(self.w_mfma, vsrc + vdst, self.MFMA_RAW)
            chk(self.r_mfmaC, vdst, 3)
            chk(self.st_data, vdst, 2)
            chk(self.w_vsgpr, ssrc, 2)
            if k == "permlane" or I.dpp:
                chk(self.w_valu, vsrc, 2)
            if k != "trans":
                chk(self.w_trans, vsrc, 1)
            if I.opc.startswith(("v_readfirstlane", "v_readlane")):
                chk(self.w_valu, vsrc, 1)
        elif k in ("dsr", "dsw", "vld", "vst", "dma"):
            chk(self.w_mfma, vsrc + vdst, self.MFMA_RAW)
            chk(self.st_data, vdst, 1)
            if k in ("vld", "vst", "dma"):
                chk(self.w_vsgpr, ssrc, 5)
            if k == "dma":
                need = max(need, 1 - (self.pos - self.w_m0 - 1))
        elif k == "salu":
            chk(self.w_vsgpr, ssrc, 1)
        if need > 0:
            self.nop(need)
        p = self.pos
        self._put(text)
        if k == "mfma":
            for r in vdst:
                self.w_mfma[r] = p; self.mfma_dst_range[r] = tuple(I.dst)
                self.w_valu.pop(r, None); self.w_trans.pop(r, None)
            for r in I.srcC:
                self.r_mfmaC[r] = p
        elif k in ("valu", "trans", "permlane"):
            for r in vdst:
                self.w_valu[r] = p
                self.w_mfma.pop(r, None)
                if k == "trans":
                    self.w_trans[r] = p
                else:
                    self.w_trans.pop(r, None)
            for r in I.dst:
                if r[0] == "s":
                    self.w_vsgpr[r] = p
        elif k == "salu":
            for r in I.dst:
                if r[0] == "m0":
                    self.w_m0 = p
                self.w_vsgpr.pop(r, None)
        if k in ("vld", "vst", "dma"):
            self.vmq.append({"dst": set(vdst), "tag": tag})
            assert len(self.vmq) <= 63, "too many outstanding VM ops"
            if k == "vst" and I.wide:
                for r in I.data:
                    self.st_data[r] = p
            if k == "vld":
                for r in vdst:
                    self.w_valu.pop(r, None); self.w_mfma.pop(r, None); self.w_trans.pop(r, None)
        if k in ("dsr", "dsw"):
            self.lgq.append({"dst": set(vdst), "tag": tag})
            if k == "dsr":
                for r in vdst:
                    self.w_valu.pop(r, None); self.w_mfma.pop(r, None); self.w_trans.pop(r, None)

    def text(self):
        return "\n".join(self.out) + "\n"


def vr(base, n=1):
    return f"v{base}" if n == 1 else f"v[{base}:{base+n-1}]"


def sr(base, n=1):
    return f"s{base}" if n == 1 else f"s[{base}:{base+n-1}]"


def interleave(a, b):
    if not b:
        return list(a)
    if not a:
        return list(b)
    out = []
    na, nb = len(a), len(b)
    j = 0
    for i, x in enumerate(a):
        out.append(x)
        tgt = (i + 1) * nb // na
        while j < tgt:
            out.append(b[j]); j += 1
    out += b[j:]
    return out
```

```python
import sys, struct, math
from asmlib import *

NAME = "gated_mix__sliding_local_dilated__linear_kernel_hedgehog__prompt"
OPT = dict(stamps=0, round_final=1, groups0="0,1,2,3,4,5,6", groups1="0,1,2,3,4,5,6", groups2="0,1,2,3,4,5,6")
for a in sys.argv[2:]:
    k, v = a.split("=")
    OPT[k] = int(v) if v.lstrip("-").isdigit() else v

SEGB = 50176
RG = [0, SEGB, 2 * SEGB]
EOFF = 3 * SEGB
LDS_BYTES = 163840
PHI_STRIDE, V_STRIDE = 264, 72
VB = [128 * PHI_STRIDE, EOFF]
WPH = EOFF + 9216
KVF = EOFF
XB3 = 115200
WS_OA, WS_OB, WS_KVP, WS_G, WS_ST = 0, 2 << 20, 4 << 20, 5 << 20, 8 << 20
WS_BYTES = 16 << 20
SPIN_MAX = 30000

def f2u(x): return struct.unpack("<I", struct.pack("<f", x))[0]
LOG2E = f2u(1.4426950408889634)
SCALE = f2u(28 ** -0.5)

SX, SW, SWS, SDBG, SAUX, SWOA, SWOB, SOUT = 8, 12, 16, 20, 24, 28, 32, 36
sRB, sHP, sBR, sWV, sT, sCT, sJ, sT0, sT1, sM0 = 40, 41, 42, 43, 44, 45, 46, 47, 48, 49
sMASK = 50
sG3 = 66
sL2E, sSCL, sSPIN, sT2 = 68, 69, 70, 71
sKA = 72
sSTAMP = 72

vLANE, vL16, vG = 0, 1, 2
vT0 = 3
vXOFF, vWOFF, vTR, vL16B, vPADB, vOOFF = 4, 5, 6, 9, 10, 11
vA0, vA1, vA2, vA3 = 12, 13, 14, 15
X = 16
ACC = [72, 88, 104]
WF = 120
WP = 152
TMP = 168
XH, ACCH = 168, 224

E = Emitter()
nstamp = [0]

def stamp(E, idx):
    if OPT["stamps"]:
        E(f"s_memrealtime {sr(sSTAMP + 2 * idx, 2)}")

def srd(E, d, lo, nbytes):
    E(f"s_mov_b32 s{d}, s{lo}")
    E(f"s_and_b32 s{d+1}, s{lo+1}, 0xffff")
    E(f"s_mov_b32 s{d+2}, {nbytes}")
    E(f"s_mov_b32 s{d+3}, 0x20000")

def dual_reduce(a, b, t, op):
    return [
        f"v_permlane32_swap_b32 v{a}, v{b}",
        f"{op} v{a}, v{a}, v{b}",
        f"v_mov_b32 v{t}, v{a}",
        f"v_permlane16_swap_b32 v{a}, v{t}",
        f"{op} v{a}, v{a}, v{t}",
        f"v_mov_b32 v{b}, v{a}",
        f"v_permlane32_swap_b32 v{a}, v{b}",
    ]

def round_pairs(src, dst, n, tmp):
    out = []
    for i in range(0, n, 2):
        out.append(f"v_cvt_pk_bf16_f32 v{tmp + i // 2}, v{src + i}, v{src + i + 1}")
    for i in range(0, n, 2):
        out.append(f"v_lshlrev_b32 v{dst + i}, 16, v{tmp + i // 2}")
        out.append(f"v_and_b32 v{dst + i + 1}, 0xffff0000, v{tmp + i // 2}")
    return out

def prologue(E):
    E("s_cmp_ge_u32 s2, 256")
    E("s_cbranch_scc1 L_end")
    E(f"s_load_dwordx16 {sr(sKA, 16)}, s[0:1], 0")
    E(f"s_load_dwordx4 {sr(sKA + 16, 4)}, s[0:1], 64")
    E(f"s_load_dwordx2 {sr(sKA + 20, 2)}, s[0:1], 80")
    E(f"v_lshrrev_b32 v{vT0}, 6, v0")
    E(f"v_and_b32 v{vLANE}, 63, v0")
    E(f"v_readfirstlane_b32 s{sWV}, v{vT0}")
    E(f"s_and_b32 s{sT0}, s2, 7")
    E(f"s_lshr_b32 s{sJ}, s2, 3")
    E(f"s_lshr_b32 s{sBR}, s{sJ}, 4")
    E(f"s_and_b32 s{sRB}, s{sT0}, 3")
    E(f"s_lshl_b32 s{sRB}, s{sRB}, 2")
    E(f"s_bfe_u32 s{sT1}, s{sJ}, 0x20002")
    E(f"s_add_u32 s{sRB}, s{sRB}, s{sT1}")
    E(f"s_lshr_b32 s{sHP}, s{sT0}, 2")
    E(f"s_lshl_b32 s{sHP}, s{sHP}, 2")
    E(f"s_and_b32 s{sT1}, s{sJ}, 3")
    E(f"s_add_u32 s{sHP}, s{sHP}, s{sT1}")
    E(f"s_mul_i32 s{sT1}, s{sJ}, 37")
    E(f"s_lshr_b32 s{sT1}, s{sT1}, 8")
    E(f"s_lshl_b32 s{sT}, s{sT0}, 2")
    E(f"s_add_u32 s{sT}, s{sT}, s{sT1}")
    E(f"s_mul_i32 s{sT1}, s{sT1}, 7")
    E(f"s_sub_u32 s{sCT}, s{sJ}, s{sT1}")
    for j in range(32):
        assert (j * 37) >> 8 == j // 7
    E(f"v_and_b32 v{vL16}, 15, v{vLANE}")
    E(f"v_lshrrev_b32 v{vG}, 4, v{vLANE}")
    E(f"v_lshlrev_b32 v{vL16B}, 4, v{vLANE}")
    E(f"s_lshl_b32 s{sT0}, s{sRB}, 7")
    E(f"s_lshl_b32 s{sT1}, s{sWV}, 4")
    E(f"s_add_u32 s{sT0}, s{sT0}, s{sT1}")
    E(f"v_add_u32 v{vT0}, s{sT0}, v{vL16}")
    E(f"v_mul_u32_u24 v{vXOFF}, 896, v{vT0}")
    E(f"v_lshl_add_u32 v{vXOFF}, v{vG}, 4, v{vXOFF}")
    t0, t1, t2, t3 = TMP, TMP + 1, TMP + 2, TMP + 3
    E(f"s_lshl_b32 s{sT1}, s{sWV}, 6")
    E(f"v_add_u32 v{t0}, s{sT1}, v{vLANE}")
    E(f"v_mul_u32_u24 v{t1}, 9363, v{t0}")
    E(f"v_lshrrev_b32 v{t1}, 16, v{t1}")
    for q in range(512):
        assert (q * 9363) >> 16 == q // 7
    E(f"v_mul_u32_u24 v{t2}, 7, v{t1}")
    E(f"v_sub_u32 v{t2}, v{t0}, v{t2}")
    E(f"v_and_b32 v{t0}, 0x38, v{t1}")
    E(f"v_and_b32 v{t3}, 1, v{t1}")
    E(f"v_lshl_add_u32 v{t0}, v{t3}, 2, v{t0}")
    E(f"v_bfe_u32 v{t3}, v{t1}, 1, 2")
    E(f"v_add_u32 v{t0}, v{t0}, v{t3}")
    E(f"v_mul_u32_u24 v{vWOFF}, 2688, v{t0}")
    E(f"v_lshl_add_u32 v{vWOFF}, v{t2}, 4, v{vWOFF}")
    E(f"s_mul_i32 s{sT1}, s{sHP}, 112")
    E(f"v_add_u32 v{vWOFF}, s{sT1}, v{vWOFF}")
    E(f"s_lshl_b32 s{sM0}, s{sWV}, 10")
    E(f"v_bfe_u32 v{t0}, v{vLANE}, 2, 2")
    E(f"v_and_b32 v{t1}, 3, v{vLANE}")
    E(f"v_lshlrev_b32 v{t2}, 3, v{vG}")
    E(f"v_lshl_add_u32 v{t2}, v{t0}, 1, v{t2}")
    E(f"v_mul_u32_u24 v{t2}, 112, v{t2}")
    E(f"v_lshl_add_u32 v{vTR}, v{t1}, 3, v{t2}")
    E(f"v_add_u32 v{vTR+1}, {RG[1]}, v{vTR}")
    E(f"v_add_u32 v{vTR+2}, {RG[2]}, v{vTR}")
    E(f"s_lshl_b32 s{sT0}, s{sRB}, 3")
    E(f"s_add_u32 s{sT0}, s{sT0}, s{sWV}")
    E(f"s_lshl_b32 s{sT0}, s{sT0}, 14")
    E(f"s_lshl_b32 s{sT1}, s{sHP}, 11")
    E(f"s_add_u32 s{sT0}, s{sT0}, s{sT1}")
    E(f"s_lshl_b32 s{sT1}, s{sBR}, 21")
    E(f"s_add_u32 s{sT0}, s{sT0}, s{sT1}")
    E(f"v_add_u32 v{vOOFF}, s{sT0}, v{vL16B}")
    E(f"s_mov_b32 s{sG3}, 0")
    E(f"s_mov_b32 s{sG3+1}, 0xffff0000")
    E(f"s_mov_b32 s{sL2E}, {LOG2E:#x}")
    E(f"s_mov_b32 s{sSCL}, {SCALE:#x}")
    E.force_wait(lgkm=0)
    K = sKA
    srd(E, SX, K + 0, 2048 * 896)
    E(f"s_cmp_eq_u32 s{sBR}, 0")
    E(f"s_cselect_b32 s{sT0}, s{K+2}, s{K+8}")
    E(f"s_cselect_b32 s{sT1}, s{K+3}, s{K+9}")
    srd(E, SW, sT0, 448 * 2688)
    E(f"s_mov_b32 s{sT2}, 25088")
    E(f"s_cmp_eq_u32 s{sBR}, 0")
    E(f"s_cselect_b32 s{sT0}, s{K+14}, s{K+10}")
    E(f"s_cselect_b32 s{sT1}, s{K+15}, s{K+11}")
    E(f"s_cselect_b32 s{sT2}, 896, s{sT2}")
    E(f"s_mov_b32 s{SAUX}, s{sT0}")
    E(f"s_and_b32 s{SAUX+1}, s{sT1}, 0xffff")
    E(f"s_mov_b32 s{SAUX+2}, s{sT2}")
    E(f"s_mov_b32 s{SAUX+3}, 0x20000")
    srd(E, SWS, K + 20, WS_BYTES)
    srd(E, SWOA, K + 4, 448 * 896)
    srd(E, SWOB, K + 12, 448 * 896)
    srd(E, SOUT, K + 16, 2048 * 896)
    srd(E, SDBG, K + 18, 256)
    stamp(E, 0)

def xload(t, base=X, voff=vXOFF):
    return (f"buffer_load_dwordx4 {vr(base + 4 * t, 4)}, v{voff}, {sr(SX, 4)}, 0 offen offset:{64 * t}", None)

def wdma(slot, segcol, m):
    return [
        f"s_add_u32 m0, s{sM0}, {RG[slot] + 7168 * m}",
        f"s_mov_b32 s{sT0}, {m * 64 * 2688 + segcol * 896}",
        (f"buffer_load_dwordx4 v{vWOFF}, {sr(SW, 4)}, s{sT0} offen lds", f"D{slot}_{m}"),
    ]

def gemm_item(slot, m, transposed, first, halo=False):
    out = []
    reads, mf = [], []
    for tt in range(2):
        t = 2 * m + tt
        rd, mm = [], []
        for hh in range(2):
            for c in range(2):
                ti = hh * 2 + c
                wf = WF + 16 * tt + 4 * ti
                for j in range(2):
                    rd.append(f"ds_read_b64_tr_b16 {vr(wf + 2 * j, 2)}, v{vTR + slot} offset:{3584 * t + 112 * j + 56 * hh + 32 * c}")
                acc = ACC[slot] + 4 * ti
                cin = "0" if (first and tt == 0) else vr(acc, 4)
                a, b = (vr(wf, 4), vr(X + 4 * t, 4)) if transposed else (vr(X + 4 * t, 4), vr(wf, 4))
                mm.append(f"v_mfma_f32_16x16x32_bf16 {vr(acc, 4)}, {a}, {b}, {cin}")
                if halo:
                    acc = ACCH + 16 * slot + 4 * ti
                    cin = "0" if (first and tt == 0) else vr(acc, 4)
                    a, b = (vr(wf, 4), vr(XH + 4 * t, 4)) if transposed else (vr(XH + 4 * t, 4), vr(wf, 4))
                    mm.append(f"v_mfma_f32_16x16x32_bf16 {vr(acc, 4)}, {a}, {b}, {cin}")
        reads.append(rd); mf.append(mm)
    out += reads[0] + reads[1] + mf[0] + mf[1]
    return out

def parse_groups(s):
    ends = [int(x) for x in str(s).split(",")]
    out, st = [], 0
    for e in ends:
        out.append(list(range(st, e + 1))); st = e + 1
    assert st == 7
    return out

def gemm_seg(E, slot, transposed, aux, halo=False, pre_last_barrier=None, after_first_barrier=None):
    groups = parse_groups(OPT[f"groups{slot}"])
    for gi, grp in enumerate(groups):
        if not aux:
            E.wait_tag(f"D{slot}_{grp[-1]}")
        if gi == len(groups) - 1 and pre_last_barrier:
            pre_last_barrier(E)
        E.barrier()
        if gi == 0 and after_first_barrier:
            after_first_barrier(E)
        for m in grp:
            E(gemm_item(slot, m, transposed, first=(m == 0), halo=halo))

def clear_stores(E, tmp, voff, n, imm0=0):
    for i in range(n):
        E(f"buffer_store_dwordx4 {vr(tmp, 4)}, v{voff}, {sr(SWS, 4)}, 0 offen offset:{imm0 + 1024 * i} sc1")

def flag_store(E, val):
    t0, t1 = vA2, vA3
    E(f"s_lshl_b32 s{sT0}, s{sRB}, 4")
    E(f"s_lshl_b32 s{sT1}, s{sBR}, 3")
    E(f"s_add_u32 s{sT0}, s{sT0}, s{sT1}")
    E(f"s_add_u32 s{sT0}, s{sT0}, s{sHP}")
    E(f"v_mov_b32 v{t0}, s{sT0}")
    E(f"v_mov_b32 v{t1}, {val}")
    E("s_mov_b64 exec, 1")
    E(f"buffer_store_byte v{t1}, v{t0}, {sr(SDBG, 4)}, 0 offen sc1")
    E("s_mov_b64 exec, -1")

lblc = [0]
def newlabel(p):
    lblc[0] += 1
    return f"L_{p}_{lblc[0]}"

def pack_op(acc, dst, zero_pad=True):
    out = [f"v_cvt_pk_bf16_f32 v{dst + i}, v{acc + 2 * i}, v{acc + 2 * i + 1}" for i in range(4)]
    if zero_pad:
        out += [f"v_cndmask_b32 v{dst + 2}, v{dst + 2}, 0, {sr(sG3, 2)}", f"v_cndmask_b32 v{dst + 3}, v{dst + 3}, 0, {sr(sG3, 2)}"]
    return out

def phi_path(slot, outreg, tmp):
    streams = []
    for hh in range(2):
        T = tmp + 36 * hh
        op, P, pk, Ep, Em = T, T + 4, T, T + 12, T + 20
        mx, mn, t, mx1, mn1, sp, sm = T + 28, T + 29, T + 30, T + 31, T + 32, T + 33, T + 34
        o = []
        o += pack_op(ACC[slot] + 8 * hh, op)
        for ft in range(2):
            o.append(f"v_mfma_f32_16x16x32_bf16 {vr(P + 4 * ft, 4)}, {vr(WP + 8 * hh + 4 * ft, 4)}, {vr(op, 4)}, 0")
        o += round_pairs(P, P, 8, pk)
        o.append(f"v_max3_f32 v{mx}, v{P}, v{P+1}, v{P+2}")
        o.append(f"v_max3_f32 v{mn}, -v{P}, -v{P+1}, -v{P+2}")
        o.append(f"v_max3_f32 v{mx}, v{mx}, v{P+3}, v{P+4}")
        o.append(f"v_max3_f32 v{mn}, v{mn}, -v{P+3}, -v{P+4}")
        o.append(f"v_max3_f32 v{mx}, v{mx}, v{P+5}, v{P+6}")
        o.append(f"v_max3_f32 v{mn}, v{mn}, -v{P+5}, -v{P+6}")
        o.append(f"v_max_f32 v{mx}, v{mx}, v{P+7}")
        o.append(f"v_max_f32 v{mn}, v{mn}, -v{P+7}")
        o += dual_reduce(mx, mn, t, "v_max_f32")
        o.append(f"v_mul_f32 v{mx}, s{sL2E}, v{mx}")
        o.append(f"v_mul_f32 v{mn}, s{sL2E}, v{mn}")
        o.append(f"v_add_f32 v{mx1}, v{mx}, v{vPADB}")
        o.append(f"v_add_f32 v{mn1}, v{mn}, v{vPADB}")
        for i in range(8):
            o.append(f"v_fma_f32 v{Ep+i}, v{P+i}, s{sL2E}, -v{mx if i < 4 else mx1}")
            o.append(f"v_fma_f32 v{Em+i}, -v{P+i}, s{sL2E}, -v{mn if i < 4 else mn1}")
        for i in range(8):
            o.append(f"v_exp_f32 v{Ep+i}, v{Ep+i}")
            o.append(f"v_exp_f32 v{Em+i}, v{Em+i}")
        o.append(f"v_add_f32 v{sp}, v{Ep}, v{Ep+1}")
        o.append(f"v_add_f32 v{sm}, v{Em}, v{Em+1}")
        for i in range(2, 8):
            o.append(f"v_add_f32 v{sp}, v{sp}, v{Ep+i}")
            o.append(f"v_add_f32 v{sm}, v{sm}, v{Em+i}")
        o += dual_reduce(sp, sm, t, "v_add_f32")
        o.append(f"v_rcp_f32 v{sp}, v{sp}")
        o.append(f"v_rcp_f32 v{sm}, v{sm}")
        for i in range(8):
            o.append(f"v_mul_f32 v{Ep+i}, v{Ep+i}, v{sp}")
            o.append(f"v_mul_f32 v{Em+i}, v{Em+i}, v{sm}")
        for i in range(4):
            o.append(f"v_cvt_pk_bf16_f32 v{outreg + 8 * hh + i}, v{Ep + 2 * i}, v{Ep + 2 * i + 1}")
            o.append(f"v_cvt_pk_bf16_f32 v{outreg + 8 * hh + 4 + i}, v{Em + 2 * i}, v{Em + 2 * i + 1}")
        streams.append(o)
    return interleave(streams[0], streams[1])

def poll_loop(E, loads, regs, name, tmp):
    L = newlabel(name); Ld = newlabel(name + "d")
    E.wait(vm=0)
    E(f"s_mov_b32 s{sSPIN}, 0")
    E.label(L)
    E(loads)
    E.force_wait(vm=0)
    rs = list(regs)
    E(f"v_max_u32 v{tmp}, v{rs[0]}, v{rs[1]}") if len(rs) > 1 else E(f"v_mov_b32 v{tmp}, v{rs[0]}")
    rest = rs[2:]
    while len(rest) >= 2:
        E(f"v_max3_u32 v{tmp}, v{tmp}, v{rest[0]}, v{rest[1]}"); rest = rest[2:]
    if rest:
        E(f"v_max_u32 v{tmp}, v{tmp}, v{rest[0]}")
    E(f"v_cmp_eq_u32 vcc, -1, v{tmp}")
    E(f"s_cbranch_vccz {Ld}")
    E(f"s_add_u32 s{sSPIN}, s{sSPIN}, 1")
    E(f"s_cmp_lt_u32 s{sSPIN}, {SPIN_MAX}")
    E(f"s_cbranch_scc0 {Ld}")
    E("s_sleep 2")
    E(f"s_branch {L}")
    E.label(Ld)

def wo_dma(E):
    t0, t1, t2 = vA0, vA1, vA2
    E(f"v_lshrrev_b32 v{t0}, 3, v{vLANE}")
    E(f"v_bfe_u32 v{t1}, v{vLANE}, 4, 2")
    E(f"v_lshlrev_b32 v{t1}, 1, v{t1}")
    E(f"v_and_b32 v{t2}, 7, v{vLANE}")
    E(f"v_xor_b32 v{t1}, v{t1}, v{t2}")
    E(f"v_mul_u32_u24 v{t0}, 896, v{t0}")
    E(f"v_lshl_add_u32 v{t0}, v{t1}, 4, v{t0}")
    E(f"s_lshl_b32 s{sT1}, s{sCT}, 7")
    E(f"s_mul_i32 s{sT2}, s{sWV}, {8 * 896}")
    E(f"s_add_u32 s{sT1}, s{sT1}, s{sT2}")
    E(f"v_add_u32 v{t0}, s{sT1}, v{t0}")
    for br in range(2):
        for i in range(7):
            E(f"s_add_u32 m0, s{sM0}, {br * 57344 + i * 8192}")
            E(f"s_mov_b32 s{sT0}, {i * 64 * 896}")
            E(f"buffer_load_dwordx4 v{t0}, {sr(SWOA if br == 0 else SWOB, 4)}, s{sT0} offen lds", tag="WO")

def phase1_B(E, aux):
    PHI, TMPK = 240, TMP
    ones = PHI
    for i in range(4):
        E(f"v_mov_b32 v{ones + i}, -1")
    if not aux:
        for m in range(7):
            E([xload(2 * m), xload(2 * m + 1)]); E(wdma(0, 1, m))
        for m in range(7):
            E(wdma(1, 2, m))
        for m in range(7):
            E(wdma(2, 0, m))
    else:
        for t in range(14):
            E([xload(t)])
        E(f"s_mul_i32 s{sT1}, s{sHP}, 3136")
        E(f"v_add_u32 v{vA0}, s{sT1}, v{vL16B}")
        for i in range(4):
            E(f"s_mov_b32 m0, {WPH + 1024 * i}")
            E(f"s_mov_b32 s{sT0}, {1024 * i}")
            E(f"buffer_load_dwordx4 v{vA0}, {sr(SAUX, 4)}, s{sT0} offen lds", tag="WPH")
        E(f"s_lshl_b32 s{sT0}, s{sHP}, 4")
        E(f"s_add_u32 s{sT0}, s{sT0}, s{sRB}")
        E(f"s_lshl_b32 s{sT0}, s{sT0}, 13")
        E(f"s_add_u32 s{sT0}, s{sT0}, {WS_KVP}")
        E(f"v_add_u32 v{vA1}, s{sT0}, v{vL16B}")
        E(f"v_add_u32 v{vA2}, 4096, v{vA1}")
        clear_stores(E, ones, vA1, 4)
        clear_stores(E, ones, vA2, 4)
    clear_stores(E, ones, vOOFF, 2)
    E(f"v_mov_b32 v{vPADB}, 0")
    E(f"v_mov_b32 v{TMP}, 0x7149f2ca")
    E(f"v_cndmask_b32 v{vPADB}, v{vPADB}, v{TMP}, {sr(sG3, 2)}")
    def pre_last0(E):
        if aux:
            E.wait_tag("WPH")
    gemm_seg(E, 0, True, aux, pre_last_barrier=pre_last0)
    stamp(E, 1)
    if aux:
        E.wait(vm=0)
        flag_store(E, 1)
    t0, t1, t2 = TMP, TMP + 1, TMP + 2
    E(f"v_bfe_u32 v{t0}, v{vLANE}, 2, 2")
    E(f"v_lshl_add_u32 v{t0}, v{vG}, 2, v{t0}")
    E(f"v_mul_u32_u24 v{t0}, 56, v{t0}")
    E(f"v_add_u32 v{t0}, {WPH}, v{t0}")
    E(f"v_and_b32 v{t1}, 3, v{vLANE}")
    E(f"v_min_u32 v{t2}, 2, v{t1}")
    E(f"v_lshl_add_u32 v{t1}, v{t1}, 3, v{t0}")
    E(f"v_lshl_add_u32 v{t2}, v{t2}, 3, v{t0}")
    for hh in range(2):
        for ft in range(2):
            for j in range(2):
                E(f"ds_read_b64_tr_b16 {vr(WP + 8 * hh + 4 * ft + 2 * j, 2)}, v{t1 if ft == 0 else t2} offset:{1568 * hh + 896 * j + 32 * ft}")
    for hh in range(2):
        for ft in range(2):
            for i in (2, 3):
                r = WP + 8 * hh + 4 * ft + i
                E(f"v_cndmask_b32 v{r}, v{r}, 0, {sr(sG3, 2)}")
    bodyk = phi_path(0, PHI, TMPK)
    E(bodyk)
    stamp(E, 2)
    def after_first1(E):
        E(f"s_lshl_b32 s{sT0}, s{sWV}, 4")
        E(f"v_add_u32 v{vA0}, s{sT0}, v{vL16}")
        E(f"v_mul_u32_u24 v{vA1}, {PHI_STRIDE}, v{vA0}")
        E(f"v_lshl_add_u32 v{vA1}, v{vG}, 3, v{vA1}")
        for hh in range(2):
            for sg in range(2):
                for ft in range(2):
                    E(f"ds_write_b64 v{vA1}, {vr(PHI + 8 * hh + 4 * sg + 2 * ft, 2)} offset:{128 * hh + 64 * sg + 32 * ft}")
    gemm_seg(E, 1, True, aux, after_first_barrier=after_first1)
    stamp(E, 3)
    E(f"v_mul_u32_u24 v{vA1}, {V_STRIDE}, v{vA0}")
    E(f"v_lshl_add_u32 v{vA1}, v{vG}, 3, v{vA1}")
    E(f"v_add_u32 v{vA2}, {VB[1]}, v{vA1}")
    E(f"v_mov_b32 v{TMP + 8}, 0x3f80")
    for hh in range(2):
        vp = TMP + 4 * hh
        E(pack_op(ACC[1] + 8 * hh, vp, zero_pad=False))
        E(f"v_cndmask_b32 v{vp + 2}, v{vp + 2}, v{TMP + 8}, {sr(sG3, 2)}")
        E(f"v_cndmask_b32 v{vp + 3}, v{vp + 3}, 0, {sr(sG3, 2)}")
        for dt in range(2):
            if hh == 0:
                E(f"ds_write_b64 v{vA1}, {vr(vp + 2 * dt, 2)} offset:{VB[0] + 32 * dt}")
            else:
                E(f"ds_write_b64 v{vA2}, {vr(vp + 2 * dt, 2)} offset:{32 * dt}")
    t0, t1, t2 = TMP + 10, TMP + 11, TMP + 12
    E(f"v_and_b32 v{t0}, 1, v{vG}")
    E(f"v_lshlrev_b32 v{t0}, 4, v{t0}")
    E(f"v_bfe_u32 v{t1}, v{vLANE}, 2, 2")
    E(f"v_lshl_add_u32 v{t0}, v{t1}, 2, v{t0}")
    E(f"v_lshrrev_b32 v{t1}, 1, v{vG}")
    E(f"v_lshl_add_u32 v{t0}, v{t1}, 1, v{t0}")
    E(f"v_and_b32 v{t1}, 3, v{vLANE}")
    E(f"v_lshlrev_b32 v{t1}, 3, v{t1}")
    E(f"s_lshr_b32 s{sT0}, s{sWV}, 1")
    E(f"s_lshl_b32 s{sT0}, s{sT0}, 6")
    E(f"v_mul_u32_u24 v{vA1}, {PHI_STRIDE}, v{t0}")
    E(f"v_add3_u32 v{vA1}, v{vA1}, v{t1}, s{sT0}")
    E(f"s_lshr_b32 s{sT0}, s{sWV}, 2")
    E(f"s_mul_i32 s{sT0}, s{sT0}, {VB[1] - VB[0]}")
    E(f"s_add_u32 s{sT0}, s{sT0}, {VB[0]}")
    E(f"s_and_b32 s{sT1}, s{sWV}, 1")
    E(f"s_lshl_b32 s{sT1}, s{sT1}, 5")
    E(f"s_add_u32 s{sT0}, s{sT0}, s{sT1}")
    E(f"v_mul_u32_u24 v{vA2}, {V_STRIDE}, v{t0}")
    E(f"v_add3_u32 v{vA2}, v{vA2}, v{t1}, s{sT0}")
    E.barrier()
    KA, KB_, KD = TMP + 16, TMP + 48, TMP + 64
    for ks in range(4):
        for j in range(2):
            E(f"ds_read_b64_tr_b16 {vr(KB_ + 4 * ks + 2 * j, 2)}, v{vA2} offset:{(32 * ks + j) * V_STRIDE}")
        for ft in range(2):
            for j in range(2):
                E(f"ds_read_b64_tr_b16 {vr(KA + 8 * ks + 4 * ft + 2 * j, 2)}, v{vA1} offset:{(32 * ks + j) * PHI_STRIDE + 32 * ft}")
    for ks in range(4):
        for ft in range(2):
            cin = "0" if ks == 0 else vr(KD + 4 * ft, 4)
            E(f"v_mfma_f32_16x16x32_bf16 {vr(KD + 4 * ft, 4)}, {vr(KA + 8 * ks + 4 * ft, 4)}, {vr(KB_ + 4 * ks, 4)}, {cin}")
    E(f"s_lshl_b32 s{sT0}, s{sHP}, 4")
    E(f"s_add_u32 s{sT0}, s{sT0}, s{sRB}")
    E(f"s_lshl_b32 s{sT0}, s{sT0}, 3")
    E(f"s_add_u32 s{sT0}, s{sT0}, s{sWV}")
    E(f"s_lshl_b32 s{sT0}, s{sT0}, 10")
    E(f"s_add_u32 s{sT0}, s{sT0}, {WS_KVP}")
    E(f"v_add_u32 v{vA1}, s{sT0}, v{vL16B}")
    kp = TMP
    E(pack_op(KD, kp, zero_pad=False))
    for i in range(4):
        E(f"v_min_u32 v{kp + i}, -2, v{kp + i}")
    E(f"buffer_store_dwordx4 {vr(kp, 4)}, v{vA1}, {sr(SWS, 4)}, 0 offen sc1")
    stamp(E, 4)
    gemm_seg(E, 2, True, aux)
    stamp(E, 5)
    E(phi_path(2, PHI, TMPK))
    stamp(E, 6)
    E.wait(vm=0)
    if aux:
        L = newlabel("fk"); Ld = newlabel("fkd")
        E(f"s_add_u32 s{sT0}, s{sHP}, 8")
        E(f"v_lshlrev_b32 v{vA2}, 4, v{vL16}")
        E(f"v_add_u32 v{vA2}, s{sT0}, v{vA2}")
        E(f"s_mov_b32 s{sSPIN}, 0")
        E.label(L)
        E(f"buffer_load_ubyte v{vA3}, v{vA2}, {sr(SDBG, 4)}, 0 offen sc1")
        E.force_wait(vm=0)
        E(f"v_and_b32 v{vA3}, 1, v{vA3}")
        E(f"v_cmp_eq_u32 vcc, 0, v{vA3}")
        E(f"s_cbranch_vccz {Ld}")
        E(f"s_add_u32 s{sSPIN}, s{sSPIN}, 1")
        E(f"s_cmp_lt_u32 s{sSPIN}, {SPIN_MAX}")
        E(f"s_cbranch_scc0 {Ld}")
        E("s_sleep 2")
        E(f"s_branch {L}")
        E.label(Ld)
    E.barrier()
    if aux:
        flag_store(E, 3)
    G = X
    E(f"s_lshl_b32 s{sT0}, s{sHP}, 17")
    E(f"s_lshl_b32 s{sT1}, s{sWV}, 10")
    E(f"s_add_u32 s{sT0}, s{sT0}, s{sT1}")
    E(f"s_add_u32 s{sT0}, s{sT0}, {WS_KVP}")
    E(f"v_add_u32 v{vA1}, s{sT0}, v{vL16B}")
    loads = []
    for p in range(16):
        loads.append(f"s_mov_b32 s{sT0}, {8192 * p}")
        loads.append(f"buffer_load_dwordx4 {vr(G + 4 * p, 4)}, v{vA1}, {sr(SWS, 4)}, s{sT0} offen sc1")
    poll_loop(E, loads, range(G, G + 64), "kv", TMP)
    stamp(E, 7)
    wo_dma(E)
    SUM = TMP
    tl, th = TMP + 8, TMP + 9
    for p in range(16):
        for i in range(4):
            r = G + 4 * p + i
            if p == 0:
                E(f"v_lshlrev_b32 v{SUM + 2 * i}, 16, v{r}")
                E(f"v_and_b32 v{SUM + 2 * i + 1}, 0xffff0000, v{r}")
            else:
                E(f"v_lshlrev_b32 v{tl + 2 * (i & 1)}, 16, v{r}")
                E(f"v_and_b32 v{th + 2 * (i & 1)}, 0xffff0000, v{r}")
                E(f"v_add_f32 v{SUM + 2 * i}, v{SUM + 2 * i}, v{tl + 2 * (i & 1)}")
                E(f"v_add_f32 v{SUM + 2 * i + 1}, v{SUM + 2 * i + 1}, v{th + 2 * (i & 1)}")
    kf = TMP + 12
    E(pack_op(SUM, kf, zero_pad=False))
    E(f"s_lshl_b32 s{sT0}, s{sWV}, 10")
    E(f"s_add_u32 s{sT0}, s{sT0}, {KVF}")
    E(f"v_add_u32 v{vA1}, s{sT0}, v{vL16B}")
    E(f"ds_write_b128 v{vA1}, {vr(kf, 4)}")
    E(f"v_add_u32 v{vA1}, {KVF}, v{vL16B}")
    E(f"v_lshlrev_b32 v{vA2}, 8, v{vG}")
    E(f"v_add_u32 v{vA2}, {KVF + 12 * 16}, v{vA2}")
    E.barrier()
    KF = TMP + 16
    ZF = TMP + 48
    for w in range(8):
        E(f"ds_read_b128 {vr(KF + 4 * w, 4)}, v{vA1} offset:{1024 * w}")
    for hh in range(2):
        for sg in range(2):
            E(f"ds_read_b128 {vr(ZF + 8 * hh + 4 * sg, 4)}, v{vA2} offset:{1024 * (4 * hh + 2 * sg + 1)}")
    NUM = X
    for hh in range(2):
        for dt in range(2):
            for sg in range(2):
                d = NUM + 12 * hh + 4 * dt
                E(f"v_mfma_f32_16x16x32_bf16 {vr(d, 4)}, {vr(KF + 4 * (4 * hh + 2 * sg + dt), 4)}, {vr(PHI + 8 * hh + 4 * sg, 4)}, {'0' if sg == 0 else vr(d, 4)}")
        for sg in range(2):
            d = NUM + 12 * hh + 8
            E(f"v_mfma_f32_16x16x32_bf16 {vr(d, 4)}, {vr(ZF + 8 * hh + 4 * sg, 4)}, {vr(PHI + 8 * hh + 4 * sg, 4)}, {'0' if sg == 0 else vr(d, 4)}")
    for hh in range(2):
        n = NUM + 12 * hh; dn = n + 8
        t = X + 32 + 8 * hh
        o = []
        o += round_pairs(n, n, 8, t)
        o.append(f"v_cvt_pk_bf16_f32 v{t + 4}, v{dn}, v{dn}")
        o.append(f"v_lshlrev_b32 v{dn}, 16, v{t + 4}")
        o.append(f"v_add_f32 v{dn}, 0x358637bd, v{dn}")
        o.append(f"v_cvt_pk_bf16_f32 v{t + 4}, v{dn}, v{dn}")
        o.append(f"v_lshlrev_b32 v{dn}, 16, v{t + 4}")
        o.append(f"v_rcp_f32 v{dn}, v{dn}")
        for i in range(8):
            o.append(f"v_mul_f32 v{n + i}, v{n + i}, v{dn}")
        o += pack_op(n, t)
        for i in range(4):
            o.append(f"v_min_u32 v{t + i}, -2, v{t + i}")
        o.append(f"buffer_store_dwordx4 {vr(t, 4)}, v{vOOFF}, {sr(SWS, 4)}, 0 offen offset:{1024 * hh} sc1")
        E(o)
    stamp(E, 8)


def att_masks():
    ms = []
    for tile in range(2):
        for i in range(4):
            m = 0
            for lane in range(64):
                q, g = lane & 15, lane >> 4
                d = q - (4 * g + i) + (16 if tile == 0 else 0)
                if 0 <= d <= 14 and d % 2 == 0:
                    m |= 1 << lane
            ms.append(m)
    return ms

def phase1_A(E, aux):
    ones = WP
    for i in range(4):
        E(f"v_mov_b32 v{ones + i}, -1")
    vGOFF = WP + 4
    if not aux:
        for m in range(7):
            E([xload(2 * m), xload(2 * m + 1)]); E(wdma(0, 1, m))
        for m in range(7):
            E(wdma(1, 2, m))
        for m in range(7):
            E(wdma(2, 0, m))
    else:
        E(f"v_subrev_u32 v{vA0}, {128 * 896}, v{vXOFF}")
        for m in range(7):
            E([xload(2 * m), xload(2 * m, XH, vA0), xload(2 * m + 1), xload(2 * m + 1, XH, vA0)])
        E(f"s_mov_b32 m0, {EOFF}")
        E(f"buffer_load_dwordx4 v{vL16B}, {sr(SAUX, 4)}, 0 offen lds", tag="GATE")
    clear_stores(E, ones, vOOFF, 2)
    E(f"s_lshl_b32 s{sT0}, s{sRB}, 7")
    E(f"s_lshl_b32 s{sT1}, s{sWV}, 4")
    E(f"s_add_u32 s{sT0}, s{sT0}, s{sT1}")
    E(f"s_lshl_b32 s{sT0}, s{sT0}, 2")
    E(f"s_add_u32 s{sT0}, s{sT0}, {WS_G}")
    E(f"s_cmp_eq_u32 s{sWV}, s{sHP}")
    E(f"s_cselect_b32 s{sT0}, s{sT0}, {WS_BYTES}")
    E(f"v_lshl_add_u32 v{vGOFF}, v{vLANE}, 2, s{sT0}")
    E(f"v_mov_b32 v{vGOFF + 1}, {WS_BYTES}")
    E(f"v_cmp_gt_u32 vcc, 16, v{vLANE}")
    E(f"v_cndmask_b32 v{vGOFF}, v{vGOFF + 1}, v{vGOFF}, vcc")
    E(f"buffer_store_dword v{ones}, v{vGOFF}, {sr(SWS, 4)}, 0 offen sc1")
    ms = att_masks()
    E(f"s_or_b32 s{sT0}, s{sRB}, s{sWV}")
    for i, m in enumerate(ms):
        E(f"s_mov_b32 s{sMASK + 2 * i}, {m & 0xffffffff:#x}")
        E(f"s_mov_b32 s{sMASK + 2 * i + 1}, {m >> 32:#x}")
    E(f"s_cmp_eq_u32 s{sT0}, 0")
    for i in range(4):
        E(f"s_cselect_b64 {sr(sMASK + 2 * i, 2)}, 0, {sr(sMASK + 2 * i, 2)}")
    gemm_seg(E, 0, True, aux, halo=aux)
    stamp(E, 1)
    def pre_last1(E):
        if aux:
            E.wait_tag("GATE")
    gemm_seg(E, 1, False, aux, halo=aux, pre_last_barrier=pre_last1)
    stamp(E, 3)
    KO, KPV, VV = XH + 0, XH + 8, XH + 16
    HK, HV = XH + 32, XH + 40
    for hh in range(2):
        E(pack_op(ACC[0] + 8 * hh, KO + 4 * hh))
        for dt in range(2):
            a = ACC[1] + 8 * hh + 4 * dt
            d = VV + 8 * hh + 4 * dt + 2
            E(f"v_cvt_pk_bf16_f32 v{d}, v{a}, v{a + 1}")
            E(f"v_cvt_pk_bf16_f32 v{d + 1}, v{a + 2}, v{a + 3}")
    E(f"s_lshl_b32 s{sT0}, s{sWV}, 12")
    E(f"v_add_u32 v{vA1}, s{sT0}, v{vL16B}")
    E(f"v_lshl_add_u32 v{vA2}, v{vLANE}, 3, s{sT0}")
    if not aux:
        for hh in range(2):
            E(f"ds_write_b128 v{vA1}, {vr(KO + 4 * hh, 4)} offset:{4096 + 1024 * hh}")
            for dt in range(2):
                E(f"ds_write_b64 v{vA2}, {vr(VV + 8 * hh + 4 * dt + 2, 2)} offset:{4096 + 2048 + 1024 * hh + 512 * dt}")
    else:
        E(f"v_lshlrev_b32 v{vA3}, 3, v{vLANE}")
        for hh in range(2):
            E(pack_op(ACCH + 8 * hh, HK + 4 * hh))
            E(f"ds_write_b128 v{vL16B}, {vr(HK + 4 * hh, 4)} offset:{1024 * hh}")
            for dt in range(2):
                a = ACCH + 16 + 8 * hh + 4 * dt
                d = HV + 4 * hh + 2 * dt
                E(f"v_cvt_pk_bf16_f32 v{d}, v{a}, v{a + 1}")
                E(f"v_cvt_pk_bf16_f32 v{d + 1}, v{a + 2}, v{a + 3}")
                E(f"ds_write_b64 v{vA3}, {vr(d, 2)} offset:{2048 + 1024 * hh + 512 * dt}")
    def after_first2(E):
        for hh in range(2):
            E(f"ds_read_b128 {vr(KPV + 4 * hh, 4)}, v{vA1} offset:{1024 * hh}")
            for dt in range(2):
                E(f"ds_read_b64 {vr(VV + 8 * hh + 4 * dt, 2)}, v{vA2} offset:{2048 + 1024 * hh + 512 * dt}")
    gemm_seg(E, 2, True, aux, after_first_barrier=after_first2)
    GL = ACC[0]
    E(f"v_lshlrev_b32 v{vA3}, 4, v{vG}")
    E(f"v_add_u32 v{vA3}, {EOFF}, v{vA3}")
    for half in range(2):
        for t in range(7 * half, 7 * half + 7):
            E(f"ds_read_b128 {vr(WF + 4 * (t % 7), 4)}, v{vA3} offset:{64 * t}")
        for t in range(7 * half, 7 * half + 7):
            E(f"v_mfma_f32_16x16x32_bf16 {vr(GL, 4)}, {vr(WF + 4 * (t % 7), 4)}, {vr(X + 4 * t, 4)}, {'0' if t == 0 else vr(GL, 4)}")
    stamp(E, 5)
    E.wait(vm=0)
    E.barrier()
    if aux:
        flag_store(E, 3)
    wo_dma(E)
    T = X
    NEG = T + 55
    E(f"v_mov_b32 v{NEG}, 0xf149f2ca")
    streams = []
    MX = [T + 48, T + 49]; SM = [T + 50, T + 51]; tt = T + 52
    pre, mid, post = [], [], []
    for hh in range(2):
        B_ = T + 24 * hh
        qo, L, pk = B_, B_ + 4, B_ + 12
        P, O = B_ + 16, ACC[1] + 8 * hh
        o = []
        o += pack_op(ACC[2] + 8 * hh, qo)
        o.append(f"v_mfma_f32_16x16x32_bf16 {vr(L, 4)}, {vr(KPV + 4 * hh, 4)}, {vr(qo, 4)}, 0")
        o.append(f"v_mfma_f32_16x16x32_bf16 {vr(L + 4, 4)}, {vr(KO + 4 * hh, 4)}, {vr(qo, 4)}, 0")
        o += round_pairs(L, L, 8, pk)
        for i in range(8):
            o.append(f"v_mul_f32 v{L + i}, s{sSCL}, v{L + i}")
        o += round_pairs(L, L, 8, pk)
        for i in range(8):
            o.append(f"v_cndmask_b32 v{L + i}, v{NEG}, v{L + i}, {sr(sMASK + 2 * i, 2)}")
        mx = MX[hh]
        o.append(f"v_max3_f32 v{mx}, v{L}, v{L+1}, v{L+2}")
        o.append(f"v_max3_f32 v{mx}, v{mx}, v{L+3}, v{L+4}")
        o.append(f"v_max3_f32 v{mx}, v{mx}, v{L+5}, v{L+6}")
        o.append(f"v_max_f32 v{mx}, v{mx}, v{L+7}")
        pre.append(o)
        o = []
        o.append(f"v_mul_f32 v{mx}, s{sL2E}, v{mx}")
        for i in range(8):
            o.append(f"v_fma_f32 v{L + i}, v{L + i}, s{sL2E}, -v{mx}")
        for i in range(8):
            o.append(f"v_exp_f32 v{L + i}, v{L + i}")
        sm = SM[hh]
        o.append(f"v_add_f32 v{sm}, v{L}, v{L + 1}")
        for i in range(2, 8):
            o.append(f"v_add_f32 v{sm}, v{sm}, v{L + i}")
        mid.append(o)
        o = []
        o.append(f"v_rcp_f32 v{sm}, v{sm}")
        for i in range(8):
            o.append(f"v_mul_f32 v{L + i}, v{L + i}, v{sm}")
        for i in range(4):
            o.append(f"v_cvt_pk_bf16_f32 v{P + i}, v{L + 2 * i}, v{L + 2 * i + 1}")
        for dt in range(2):
            o.append(f"v_mfma_f32_16x16x32_bf16 {vr(O + 4 * dt, 4)}, {vr(VV + 8 * hh + 4 * dt, 4)}, {vr(P, 4)}, 0")
        o += pack_op(O, qo)
        for i in range(4):
            o.append(f"v_min_u32 v{qo + i}, -2, v{qo + i}")
        o.append(f"buffer_store_dwordx4 {vr(qo, 4)}, v{vOOFF}, {sr(SWS, 4)}, 0 offen offset:{1024 * hh} sc1")
        post.append(o)
    E(interleave(pre[0], pre[1]))
    E(dual_reduce(MX[0], MX[1], tt, "v_max_f32"))
    E(interleave(mid[0], mid[1]))
    E(dual_reduce(SM[0], SM[1], tt, "v_add_f32"))
    E(interleave(post[0], post[1]))
    g = GL
    E(f"v_cvt_pk_bf16_f32 v{g + 1}, v{g}, v{g}")
    E(f"v_lshlrev_b32 v{g}, 16, v{g + 1}")
    E(f"v_mul_f32 v{g}, s{sL2E}, v{g}")
    E(f"v_exp_f32 v{g}, -v{g}")
    E(f"v_add_f32 v{g}, 1.0, v{g}")
    E(f"v_rcp_f32 v{g}, v{g}")
    E(f"v_cvt_pk_bf16_f32 v{g + 1}, v{g}, v{g}")
    E(f"v_lshlrev_b32 v{g}, 16, v{g + 1}")
    E(f"buffer_store_dword v{g}, v{vGOFF}, {sr(SWS, 4)}, 0 offen sc1")
    stamp(E, 8)

def phase3(E):
    E.label("L_p3")
    E.vmq = [{"dst": set(), "tag": None}] * 20
    E(f"s_cmp_ge_u32 s{sJ}, 28")
    E("s_cbranch_scc1 L_fin")
    E(f"s_cmp_lg_u32 s{sWV}, 0")
    Ls = newlabel("f3s")
    E(f"s_cbranch_scc1 {Ls}")
    L = newlabel("f3"); Ld = newlabel("f3d")
    E(f"s_lshr_b32 s{sT0}, s{sT}, 1")
    E(f"s_lshl_b32 s{sT0}, s{sT0}, 4")
    E(f"v_and_b32 v{vA2}, 3, v{vLANE}")
    E(f"v_lshl_add_u32 v{vA2}, v{vA2}, 2, s{sT0}")
    E(f"s_mov_b32 s{sSPIN}, 0")
    E(f"s_mov_b32 s{sT1}, 0x03030303")
    E.label(L)
    E(f"buffer_load_dword v{vA3}, v{vA2}, {sr(SDBG, 4)}, 0 offen sc1")
    E.force_wait(vm=0)
    E(f"v_cmp_ne_u32 vcc, s{sT1}, v{vA3}")
    E(f"s_cbranch_vccz {Ld}")
    E(f"s_add_u32 s{sSPIN}, s{sSPIN}, 1")
    E(f"s_cmp_lt_u32 s{sSPIN}, {SPIN_MAX}")
    E(f"s_cbranch_scc0 {Ld}")
    E("s_sleep 2")
    E(f"s_branch {L}")
    E.label(Ld)
    E.label(Ls)
    E.force_wait(vm=0)
    E.barrier()
    stamp(E, 9)
    rt, kh = sT0, sT1
    E(f"s_and_b32 s{rt}, s{sWV}, 3")
    E(f"s_lshr_b32 s{kh}, s{sWV}, 2")
    E(f"s_lshl_b32 s{sT2}, s{sT}, 2")
    E(f"s_add_u32 s{sT2}, s{sT2}, s{rt}")
    E(f"s_lshl_b32 s{sSPIN}, s{sT2}, 14")
    E(f"v_add_u32 v{vA0}, s{sSPIN}, v{vL16B}")
    E(f"s_lshl_b32 s{sSPIN}, s{kh}, 13")
    E(f"v_add_u32 v{vA0}, s{sSPIN}, v{vA0}")
    E(f"v_add_u32 v{vA1}, 4096, v{vA0}")
    vROW, vGV = 4, 5
    E(f"s_lshl_b32 s{sT2}, s{sT2}, 4")
    E(f"v_add_u32 v{vROW}, s{sT2}, v{vL16}")
    E(f"v_lshlrev_b32 v{vA2}, 2, v{vROW}")
    E(f"v_add_u32 v{vA2}, {WS_G}, v{vA2}")
    vWO = 116
    t0, t1, t2 = TMP, TMP + 1, TMP + 2
    E(f"v_bfe_u32 v{t0}, v{vLANE}, 2, 2")
    E(f"v_lshl_add_u32 v{t0}, v{vG}, 2, v{t0}")
    E(f"v_bfe_u32 v{t1}, v{t0}, 1, 2")
    E(f"v_and_b32 v{t2}, 3, v{vLANE}")
    E(f"v_lshlrev_b32 v{t2}, 3, v{t2}")
    E(f"v_lshl_add_u32 v{t2}, v{t0}, 7, v{t2}")
    E(f"s_mul_i32 s{sT2}, s{kh}, 28672")
    E(f"v_add_u32 v{t2}, s{sT2}, v{t2}")
    for c in range(4):
        E(f"v_xor_b32 v{t0}, {c}, v{t1}")
        E(f"v_lshl_add_u32 v{vWO + c}, v{t0}, 5, v{t2}")
    OF = X
    AC = [80, 96]
    for br in range(2):
        of = OF + 32 * br
        loads = []
        for hl in range(8):
            loads.append(f"buffer_load_dwordx4 {vr(of + 4 * hl, 4)}, v{vA0 if hl < 4 else vA1}, {sr(SWS, 4)}, s{sT2} offen offset:{1024 * (hl & 3)} sc1")
        regs = list(range(of, of + 32))
        if br == 0:
            loads.append(f"buffer_load_dword v{vGV}, v{vA2}, {sr(SWS, 4)}, 0 offen sc1")
            regs.append(vGV)
        E(f"s_mov_b32 s{sT2}, {WS_OB if br else 0}")
        poll_loop(E, loads, regs, "o", TMP)
        stamp(E, 10 + 2 * br)
        if br == 1:
            for c in range(4):
                E(f"v_add_u32 v{vWO + c}, 57344, v{vWO + c}")
        for hl in range(8):
            wf = WF + 16 * (hl & 1)
            for c in range(4):
                for j in range(2):
                    E(f"ds_read_b64_tr_b16 {vr(wf + 4 * c + 2 * j, 2)}, v{vWO + (c ^ (2 * (hl & 1)))} offset:{3584 * hl + 2048 * j}")
            for c in range(4):
                acc = AC[br] + 4 * c
                E(f"v_mfma_f32_16x16x32_bf16 {vr(acc, 4)}, {vr(wf + 4 * c, 4)}, {vr(of + 4 * hl, 4)}, {'0' if hl == 0 else vr(acc, 4)}")
        stamp(E, 11 + 2 * br)
    E(f"s_lshl_b32 s{sT2}, s{sWV}, 12")
    E(f"s_add_u32 s{sT2}, s{sT2}, {XB3}")
    E(f"v_add_u32 v{vA0}, s{sT2}, v{vL16B}")
    E(f"s_xor_b32 s{sT2}, s{sWV}, 4")
    E(f"s_lshl_b32 s{sT2}, s{sT2}, 12")
    E(f"s_add_u32 s{sT2}, s{sT2}, {XB3}")
    E(f"v_add_u32 v{vA1}, s{sT2}, v{vL16B}")
    E(f"v_mul_u32_u24 v{vA2}, 896, v{vROW}")
    E(f"v_lshl_add_u32 v{vA2}, v{vG}, 3, v{vA2}")
    E(f"s_lshl_b32 s{sT2}, s{sCT}, 7")
    E(f"v_add_u32 v{vA2}, s{sT2}, v{vA2}")
    E(f"s_lshl_b32 s{sT2}, s{kh}, 6")
    E(f"v_add_u32 v{vA2}, s{sT2}, v{vA2}")
    Lk1 = newlabel("k1"); Lk = newlabel("kd")
    KEEP = TMP + 8
    E(f"s_cmp_eq_u32 s{kh}, 0")
    E.flush_haz()
    E(f"s_cbranch_scc0 {Lk1}")
    for khv in range(2):
        keep = [2 * khv, 2 * khv + 1]; send = [2 - 2 * khv, 3 - 2 * khv]
        for br in range(2):
            for i, c in enumerate(send):
                E(f"ds_write_b128 v{vA0}, {vr(AC[br] + 4 * c, 4)} offset:{2048 * br + 1024 * i}")
            for i, c in enumerate(keep):
                for r in range(4):
                    E(f"v_mov_b32 v{KEEP + 8 * br + 4 * i + r}, v{AC[br] + 4 * c + r}")
        if khv == 0:
            E.flush_haz()
            E(f"s_branch {Lk}")
            E.label(Lk1)
    E.label(Lk)
    E.force_wait(lgkm=0)
    E.barrier()
    RC = TMP + 24
    for br in range(2):
        for i in range(2):
            E(f"ds_read_b128 {vr(RC + 8 * br + 4 * i, 4)}, v{vA1} offset:{2048 * br + 1024 * i}")
    omg, tp = TMP, TMP + 40
    E(f"v_sub_f32 v{omg}, 1.0, v{vGV}")
    if OPT["round_final"]:
        E(f"v_cvt_pk_bf16_f32 v{omg + 1}, v{omg}, v{omg}")
        E(f"v_lshlrev_b32 v{omg}, 16, v{omg + 1}")
    for i in range(16):
        E(f"v_add_f32 v{KEEP + i}, v{KEEP + i}, v{RC + i}")
    if OPT["round_final"]:
        E(round_pairs(KEEP, KEEP, 16, tp))
        for i in range(8):
            E(f"v_mul_f32 v{KEEP + i}, v{KEEP + i}, v{vGV}")
            E(f"v_mul_f32 v{KEEP + 8 + i}, v{KEEP + 8 + i}, v{omg}")
        E(round_pairs(KEEP, KEEP, 16, tp))
        for i in range(8):
            E(f"v_add_f32 v{KEEP + i}, v{KEEP + i}, v{KEEP + 8 + i}")
    else:
        for i in range(8):
            E(f"v_mul_f32 v{KEEP + i}, v{KEEP + i}, v{vGV}")
            E(f"v_fmac_f32 v{KEEP + i}, v{KEEP + 8 + i}, v{omg}")
    for i in range(4):
        E(f"v_cvt_pk_bf16_f32 v{tp + i}, v{KEEP + 2 * i}, v{KEEP + 2 * i + 1}")
    for i in range(2):
        E(f"buffer_store_dwordx2 {vr(tp + 2 * i, 2)}, v{vA2}, {sr(SOUT, 4)}, 0 offen offset:{32 * i}")
    stamp(E, 14)
    E.label("L_fin")
    if OPT["stamps"]:
        Lz = newlabel("st")
        E(f"s_cmp_lg_u32 s{sWV}, 0")
        E(f"s_cbranch_scc1 {Lz}")
        E.force_wait(vm=0, lgkm=0)
        E(f"s_lshl_b32 s{sT0}, s2, 7")
        E(f"s_add_u32 s{sT0}, s{sT0}, {WS_ST}")
        E(f"v_mov_b32 v{vA0}, s{sT0}")
        E("s_mov_b64 exec, 1")
        for i in range(15):
            E(f"v_mov_b32 v{TMP}, s{sSTAMP + 2 * i}")
            E(f"v_mov_b32 v{TMP + 1}, s{sSTAMP + 2 * i + 1}")
            E(f"buffer_store_dwordx2 {vr(TMP, 2)}, v{vA0}, {sr(SWS, 4)}, 0 offen offset:{8 * i}")
            E.force_wait(vm=0)
        E.label(Lz)

def main():
    hdr = open("cdna_kernels/" + NAME + ".s.ref").read().split("; Override launch geometry")[0]
    E.raw(hdr.rstrip())
    E.raw(f"; @launch grid=(256,1,1) block=(512,1,1) lds={LDS_BYTES}")
    E.raw('.amdgcn_target "amdgcn-amd-amdhsa--gfx950"')
    E.raw(".text")
    E.raw(f".globl {NAME}_kernel")
    E.raw(".p2align 8")
    E.raw(f".type {NAME}_kernel,@function")
    E.raw(f"{NAME}_kernel:")
    prologue(E)
    if OPT["stamps"]:
        for i in range(1, 15):
            E(f"s_mov_b64 {sr(sSTAMP + 2 * i, 2)}, 0")
    E(f"s_cmp_eq_u32 s{sBR}, 0")
    E.flush_haz()
    E("s_cbranch_scc0 L_B")
    E(f"s_cmp_eq_u32 s{sWV}, 7")
    E("s_cbranch_scc1 L_A_aux")
    for name, fn, aux in (("L_A_main", phase1_A, False), ("L_A_aux", phase1_A, True), ("L_B_main", phase1_B, False), ("L_B_aux", phase1_B, True)):
        if name == "L_B_main":
            E.label("L_B")
            E(f"s_cmp_eq_u32 s{sWV}, 7")
            E("s_cbranch_scc1 L_B_aux")
        E.label(name)
        E.vmq = []; E.lgq = []
        fn(E, aux)
        E.wait(lgkm=0)
        E.flush_haz()
        E("s_branch L_p3")
    phase3(E)
    E.label("L_end")
    E("s_endpgm")
    E.raw('.section .rodata,"a"')
    E.raw(".p2align 6")
    E.raw(f".amdhsa_kernel {NAME}_kernel")
    E.raw("  .amdhsa_next_free_vgpr 256")
    E.raw("  .amdhsa_next_free_sgpr 102")
    E.raw("  .amdhsa_accum_offset 256")
    E.raw("  .amdhsa_group_segment_fixed_size 0")
    E.raw("  .amdhsa_kernarg_size 88")
    E.raw("  .amdhsa_user_sgpr_count 2")
    E.raw("  .amdhsa_user_sgpr_kernarg_segment_ptr 1")
    E.raw("  .amdhsa_system_sgpr_workgroup_id_x 1")
    E.raw(".end_amdhsa_kernel")
    open(sys.argv[1], "w").write(E.text())
    print("instructions:", E.nins)

main()
```

```python
import sys, struct, math
from asmlib import *

NAME = "gated_mix__sliding_local_dilated__linear_kernel_hedgehog__prompt"
OPT = dict(stamps=0, fine=0, round_final=1, pf=1, flag_at=5, ahead=2)
for a in sys.argv[2:]:
    k, v = a.split("=")
    OPT[k] = int(v) if v.lstrip("-").isdigit() else v

LDS_BYTES = 163840
PHI_STRIDE, V_STRIDE = 264, 72
WS_OA, WS_OB, WS_KVP, WS_G, WS_ST = 0, 2 << 20, 4 << 20, 5 << 20, 8 << 20
WS_BYTES = 16 << 20
SPIN_MAX = 30000
SEGCOL = {"Q": 0, "K": 1, "V": 2}
SEGI = {"K": 0, "V": 1, "Q": 2}
WOA_BASE, WOB_BASE, XB3 = 0, 61440, 119296
B_SS = 30720
B_STAGES = [dict(m=m, segs=["K", "V"], base=B_SS * (m % 5)) for m in range(7)] + \
           [dict(m=m, segs=["Q"], base=B_SS * (2 + m % 3)) for m in range(7)]
for i, st in enumerate(B_STAGES):
    prev = [j for j in range(i) if B_STAGES[j]["base"] == st["base"]]
    st["after"] = (prev[-1] + 1) if prev else -1
B_WPH = 153600
PHI_BASE = 0
VB = [128 * PHI_STRIDE, 128 * PHI_STRIDE + 128 * V_STRIDE]
KVF = 122880
A_SS = 39936
A_STAGES = [dict(m=m, segs=["K", "V", "Q"], base=A_SS * (m % 4)) for m in range(7)]
for i, st in enumerate(A_STAGES):
    prev = [j for j in range(i) if A_STAGES[j]["base"] == st["base"]]
    st["after"] = (prev[-1] + 1) if prev else -1
A_GATE = 159744
A_EXCH = XB3
def woff(br, k):
    return (18432 if br == "A" else 16384) + 7168 * k

def f2u(x): return struct.unpack("<I", struct.pack("<f", x))[0]
LOG2E = f2u(1.4426950408889634)
SCALE = f2u(28 ** -0.5)

SX, SW, SWS, SDBG, SAUX, SWOA, SWOB, SOUT = 8, 12, 16, 20, 24, 28, 32, 36
sRB, sHP, sBR, sWV, sT, sCT, sJ, sT0, sT1, sM0 = 40, 41, 42, 43, 44, 45, 46, 47, 48, 49
sMASK = 50
sG3 = 66
sL2E, sSCL, sSPIN, sT2 = 68, 69, 70, 71
sKA = 72
sSTAMP = 72
sRG, sHH, s16K, sMP = 3, 4, 5, 6

NVGPR = 168
vLANE, vL16, vG, vL16B = 0, 1, 2, 3
vXR, vTR, vPADB, vOOFF = 4, 6, 7, 8
vA0, vA1, vA2, vA3 = 9, 10, 11, 12
vSL, vXRH = 13, 13
ACC = [16, 32, 48]
T0 = 152

E = Emitter()
lblc = [0]
def newlabel(p):
    lblc[0] += 1
    return f"L_{p}_{lblc[0]}"

def stamp(E, idx, fine=False):
    if OPT["stamps"] and (idx == 0 or bool(OPT["fine"]) == fine):
        E(f"s_memrealtime {sr(sSTAMP + 2 * idx, 2)}")

def srd(E, d, lo, nbytes):
    E(f"s_mov_b32 s{d}, s{lo}")
    E(f"s_and_b32 s{d+1}, s{lo+1}, 0xffff")
    E(f"s_mov_b32 s{d+2}, {nbytes}")
    E(f"s_mov_b32 s{d+3}, 0x20000")

def dual_reduce(a, b, t, op):
    return [
        f"v_permlane32_swap_b32 v{a}, v{b}",
        f"{op} v{a}, v{a}, v{b}",
        f"v_mov_b32 v{t}, v{a}",
        f"v_permlane16_swap_b32 v{a}, v{t}",
        f"{op} v{a}, v{a}, v{t}",
        f"v_mov_b32 v{b}, v{a}",
        f"v_permlane32_swap_b32 v{a}, v{b}",
    ]

def round_pairs(src, dst, n, tmp):
    out = []
    for i in range(0, n, 2):
        out.append(f"v_cvt_pk_bf16_f32 v{tmp + i // 2}, v{src + i}, v{src + i + 1}")
    for i in range(0, n, 2):
        out.append(f"v_lshlrev_b32 v{dst + i}, 16, v{tmp + i // 2}")
        out.append(f"v_and_b32 v{dst + i + 1}, 0xffff0000, v{tmp + i // 2}")
    return out

def pack_op(acc, dst, zero_pad=True):
    out = [f"v_cvt_pk_bf16_f32 v{dst + i}, v{acc + 2 * i}, v{acc + 2 * i + 1}" for i in range(4)]
    if zero_pad:
        out += [f"v_cndmask_b32 v{dst + 2}, v{dst + 2}, 0, {sr(sG3, 2)}", f"v_cndmask_b32 v{dst + 3}, v{dst + 3}, 0, {sr(sG3, 2)}"]
    return out

def vadd_imm(reg, delta):
    if delta == 0:
        return []
    return [f"v_add_u32 v{reg}, {delta & 0xffffffff:#x}, v{reg}"]

def prologue(E):
    E("s_cmp_ge_u32 s2, 256")
    E("s_cbranch_scc1 L_end")
    E(f"s_load_dwordx16 {sr(sKA, 16)}, s[0:1], 0")
    E(f"s_load_dwordx4 {sr(sKA + 16, 4)}, s[0:1], 64")
    E(f"s_load_dwordx2 {sr(sKA + 20, 2)}, s[0:1], 80")
    E(f"v_lshrrev_b32 v{T0}, 6, v0")
    E(f"v_and_b32 v{vLANE}, 63, v0")
    E(f"v_readfirstlane_b32 s{sWV}, v{T0}")
    E(f"s_and_b32 s{sT0}, s2, 7")
    E(f"s_lshr_b32 s{sJ}, s2, 3")
    E(f"s_lshr_b32 s{sBR}, s{sJ}, 4")
    E(f"s_and_b32 s{sRB}, s{sT0}, 3")
    E(f"s_lshl_b32 s{sRB}, s{sRB}, 2")
    E(f"s_bfe_u32 s{sT1}, s{sJ}, 0x20002")
    E(f"s_add_u32 s{sRB}, s{sRB}, s{sT1}")
    E(f"s_lshr_b32 s{sHP}, s{sT0}, 2")
    E(f"s_lshl_b32 s{sHP}, s{sHP}, 2")
    E(f"s_and_b32 s{sT1}, s{sJ}, 3")
    E(f"s_add_u32 s{sHP}, s{sHP}, s{sT1}")
    E(f"s_mul_i32 s{sT1}, s{sJ}, 37")
    E(f"s_lshr_b32 s{sT1}, s{sT1}, 8")
    E(f"s_lshl_b32 s{sT}, s{sT0}, 2")
    E(f"s_add_u32 s{sT}, s{sT}, s{sT1}")
    E(f"s_mul_i32 s{sT1}, s{sT1}, 7")
    E(f"s_sub_u32 s{sCT}, s{sJ}, s{sT1}")
    E(f"s_lshr_b32 s{sRG}, s{sWV}, 1")
    E(f"s_and_b32 s{sHH}, s{sWV}, 1")
    E(f"v_and_b32 v{vL16}, 15, v{vLANE}")
    E(f"v_lshrrev_b32 v{vG}, 4, v{vLANE}")
    E(f"v_lshlrev_b32 v{vL16B}, 4, v{vLANE}")
    E(f"s_mov_b32 s{sG3}, 0")
    E(f"s_mov_b32 s{sG3+1}, 0xffff0000")
    E(f"s_mov_b32 s{sL2E}, {LOG2E:#x}")
    E(f"s_mov_b32 s{sSCL}, {SCALE:#x}")

def srds(E):
    E.force_wait(lgkm=0)
    K = sKA
    srd(E, SX, K + 0, 2048 * 896)
    E(f"s_cmp_eq_u32 s{sBR}, 0")
    E(f"s_cselect_b32 s{sT0}, s{K+2}, s{K+8}")
    E(f"s_cselect_b32 s{sT1}, s{K+3}, s{K+9}")
    srd(E, SW, sT0, 448 * 2688)

def srds2(E):
    K = sKA
    E(f"s_mov_b32 s{sT2}, 25088")
    E(f"s_cmp_eq_u32 s{sBR}, 0")
    E(f"s_cselect_b32 s{sT0}, s{K+14}, s{K+10}")
    E(f"s_cselect_b32 s{sT1}, s{K+15}, s{K+11}")
    E(f"s_cselect_b32 s{sT2}, 896, s{sT2}")
    E(f"s_mov_b32 s{SAUX}, s{sT0}")
    E(f"s_and_b32 s{SAUX+1}, s{sT1}, 0xffff")
    E(f"s_mov_b32 s{SAUX+2}, s{sT2}")
    E(f"s_mov_b32 s{SAUX+3}, 0x20000")
    srd(E, SWS, K + 20, WS_BYTES)
    srd(E, SWOA, K + 4, 448 * 896)
    srd(E, SWOB, K + 12, 448 * 896)
    srd(E, SOUT, K + 16, 2048 * 896)
    srd(E, SDBG, K + 18, 256)

def stamps_init(E):
    if OPT["stamps"]:
        stamp(E, 0)
        for i in range(1, 15):
            E(f"s_mov_b64 {sr(sSTAMP + 2 * i, 2)}, 0")

def prefetch(E):
    K = sKA
    SP = sMASK + 2
    t0, t1, t2, t3 = T0, T0 + 1, T0 + 2, T0 + 3
    Lx = newlabel("pfx"); Ld = newlabel("pfd")
    E(f"s_cmp_ge_u32 s{sWV}, 6")
    E.flush_haz()
    E(f"s_cbranch_scc1 {Lx}")
    E(f"s_cmp_lt_u32 s{sWV}, 3")
    E(f"s_cselect_b32 s{sT0}, s{K+2}, s{K+8}")
    E(f"s_cselect_b32 s{sT1}, s{K+3}, s{K+9}")
    E(f"s_cselect_b32 s{sT2}, 0, 3")
    srd(E, SP, sT0, 448 * 2688)
    E(f"s_sub_u32 s{sT2}, s{sWV}, s{sT2}")
    E(f"s_lshl_b32 s{sT2}, s{sT2}, 6")
    E(f"v_add_u32 v{t0}, s{sT2}, v{vLANE}")
    E(f"v_mul_u32_u24 v{t1}, 5462, v{t0}")
    E(f"v_lshrrev_b32 v{t1}, 16, v{t1}")
    E(f"v_mul_u32_u24 v{t2}, 12, v{t1}")
    E(f"v_sub_u32 v{t2}, v{t0}, v{t2}")
    E(f"v_lshrrev_b32 v{t3}, 2, v{t2}")
    E(f"v_and_b32 v{t2}, 3, v{t2}")
    E(f"s_mul_i32 s{sT2}, s{sJ}, 14")
    E(f"v_add_u32 v{t1}, s{sT2}, v{t1}")
    E(f"v_mul_u32_u24 v{t1}, 2688, v{t1}")
    E(f"v_mul_u32_u24 v{t3}, 896, v{t3}")
    E(f"v_lshl_add_u32 v{t2}, v{t2}, 7, v{t3}")
    E(f"s_lshr_b32 s{sT2}, s{sHP}, 2")
    E(f"s_mul_i32 s{sT2}, s{sT2}, 384")
    E(f"v_add3_u32 v{t1}, v{t1}, v{t2}, s{sT2}")
    E(f"v_mov_b32 v{t2}, 0x1000000")
    E(f"v_cmp_gt_u32 vcc, 168, v{t0}")
    E(f"v_cndmask_b32 v{t1}, v{t2}, v{t1}, vcc")
    E(f"buffer_load_dword v15, v{t1}, {sr(SP, 4)}, 0 offen")
    E.flush_haz()
    E(f"s_branch {Ld}")
    E.label(Lx)
    E(f"s_sub_u32 s{sT2}, s{sWV}, 6")
    E(f"s_lshl_b32 s{sT2}, s{sT2}, 6")
    E(f"v_add_u32 v{t0}, s{sT2}, v{vLANE}")
    E(f"s_mul_i32 s{sT2}, s{sJ}, 112")
    E(f"s_lshr_b32 s{sT1}, s{sRB}, 2")
    E(f"s_mul_i32 s{sT1}, s{sT1}, 3584")
    E(f"s_add_u32 s{sT2}, s{sT2}, s{sT1}")
    E(f"v_add_u32 v{t1}, s{sT2}, v{t0}")
    E(f"v_lshlrev_b32 v{t1}, 7, v{t1}")
    E(f"v_mov_b32 v{t2}, 0x1000000")
    E(f"v_cmp_gt_u32 vcc, 112, v{t0}")
    E(f"v_cndmask_b32 v{t1}, v{t2}, v{t1}, vcc")
    E(f"buffer_load_dword v15, v{t1}, {sr(SX, 4)}, 0 offen")
    E.label(Ld)
    E.vmq = [{"dst": set(), "tag": "PF"}]

def flag_store(E, val, t0, t1):
    E(f"s_lshl_b32 s{sT0}, s{sRB}, 4")
    E(f"s_lshl_b32 s{sT1}, s{sBR}, 3")
    E(f"s_add_u32 s{sT0}, s{sT0}, s{sT1}")
    E(f"s_add_u32 s{sT0}, s{sT0}, s{sHP}")
    E(f"v_mov_b32 v{t0}, s{sT0}")
    E(f"v_mov_b32 v{t1}, {val}")
    E("s_mov_b64 exec, 1")
    E(f"buffer_store_byte v{t1}, v{t0}, {sr(SDBG, 4)}, 0 offen sc1")
    E("s_mov_b64 exec, -1")

def spin_tail(E, L, Ld):
    E(f"s_cbranch_vccz {Ld}")
    E(f"s_add_u32 s{sSPIN}, s{sSPIN}, 1")
    E(f"s_cmp_lt_u32 s{sSPIN}, {SPIN_MAX}")
    E(f"s_cbranch_scc0 {Ld}")
    E("s_sleep 2")
    E(f"s_branch {L}")
    E.label(Ld)

def flags_wait_all(E, t0, t1):
    L = newlabel("fl"); Ld = newlabel("fld")
    E(f"v_lshlrev_b32 v{t0}, 2, v{vLANE}")
    E(f"s_mov_b32 s{sSPIN}, 0")
    E(f"s_mov_b32 s{sT1}, 0x01010101")
    E.label(L)
    E(f"buffer_load_dword v{t1}, v{t0}, {sr(SDBG, 4)}, 0 offen sc1")
    E.force_wait(vm=0)
    E(f"v_cmp_ne_u32 vcc, s{sT1}, v{t1}")
    spin_tail(E, L, Ld)

def check_regs(E, regs, tmp):
    rs = list(regs)
    E(f"v_max_u32 v{tmp}, v{rs[0]}, v{rs[1]}")
    rest = rs[2:]
    while len(rest) >= 2:
        E(f"v_max3_u32 v{tmp}, v{tmp}, v{rest[0]}, v{rest[1]}"); rest = rest[2:]
    if rest:
        E(f"v_max_u32 v{tmp}, v{tmp}, v{rest[0]}")
    E(f"v_cmp_eq_u32 vcc, -1, v{tmp}")

def poll_loop(E, loads, regs, name, tmp, pre_issued=False):
    L = newlabel(name); Lc = newlabel(name + "c"); Ld = newlabel(name + "d")
    E(f"s_mov_b32 s{sSPIN}, 0")
    if pre_issued:
        E.flush_haz()
        E(f"s_branch {Lc}")
    E.label(L)
    E(loads)
    E.label(Lc)
    E.force_wait(vm=0)
    check_regs(E, regs, tmp)
    spin_tail(E, L, Ld)

def cons_setup(E, br):
    t0, t1, t2 = T0, T0 + 1, T0 + 2
    E(f"v_bfe_u32 v{t0}, v{vLANE}, 2, 2")
    E(f"v_and_b32 v{t1}, 3, v{vLANE}")
    E(f"v_lshlrev_b32 v{t2}, 3, v{vG}")
    E(f"v_lshl_add_u32 v{t2}, v{t0}, 1, v{t2}")
    E(f"v_mul_u32_u24 v{t2}, 112, v{t2}")
    E(f"v_lshl_add_u32 v{vTR}, v{t1}, 3, v{t2}")
    E(f"s_mul_i32 s{sT0}, s{sHH}, 56")
    E(f"v_add_u32 v{vTR}, s{sT0}, v{vTR}")
    E(f"v_lshrrev_b32 v{t0}, 1, v{vL16}")
    E(f"v_xor_b32 v{t0}, v{t0}, v{vG}")
    E(f"v_lshlrev_b32 v{t0}, 4, v{t0}")
    E(f"v_lshl_add_u32 v{t0}, v{vL16}, 7, v{t0}")
    E(f"s_lshl_b32 s{sT0}, s{sRG}, 12")
    E(f"v_add_u32 v{vXR}, s{sT0}, v{t0}")
    E(f"v_xor_b32 v{vXR+1}, 64, v{vXR}")
    E(f"s_lshl_b32 s{sT0}, s{sRB}, 3")
    E(f"s_lshl_b32 s{sT1}, s{sRG}, 1")
    E(f"s_add_u32 s{sT0}, s{sT0}, s{sT1}")
    E(f"s_lshl_b32 s{sT0}, s{sT0}, 4")
    E(f"s_lshl_b32 s{sT1}, s{sHP}, 1")
    E(f"s_add_u32 s{sT0}, s{sT0}, s{sT1}")
    E(f"s_add_u32 s{sT0}, s{sT0}, s{sHH}")
    E(f"s_lshl_b32 s{sT0}, s{sT0}, 10")
    E(f"s_lshl_b32 s{sT1}, s{sBR}, 21")
    E(f"s_add_u32 s{sT0}, s{sT0}, s{sT1}")
    E(f"v_add_u32 v{vOOFF}, s{sT0}, v{vL16B}")
    E(f"s_mov_b32 s{s16K}, 16384")

def ostore(reg, u):
    return f"buffer_store_dwordx4 {vr(reg, 4)}, v{vOOFF}, {sr(SWS, 4)}, {'0' if u == 0 else 's' + str(s16K)} offen sc1"

class Cons:
    def __init__(self, E, br, stages, buf0, bufsz, nbuf, halo=False, HACC=None):
        self.E, self.br, self.stages = E, br, stages
        self.buf0, self.bufsz, self.nbuf, self.halo, self.HACC = buf0, bufsz, nbuf, halo, HACC
        self.cur_base = 0
        self.ks = 0; self.pending = []
        self.nbar = 0
        self.prebar = None

    def parts(self, s, tt, buf):
        st = self.stages[s]; m = st["m"]; t = 2 * m + tt
        first = t == 0
        B0 = self.buf0 + self.bufsz * buf
        rd, mm = [], []
        xr = [B0, B0 + 4]
        for u in range(2):
            rd.append(f"ds_read_b128 {vr(xr[u], 4)}, v{vXR + tt} offset:{2048 * u}")
        wb = B0 + 8
        if self.halo:
            hx = B0 + 8; wb = B0 + 12
            rd.append(f"ds_read_b128 {vr(hx, 4)}, v{vXR + tt} offset:16384")
        elif self.br == "A":
            wb = B0 + 12
        for k, seg in enumerate(st["segs"]):
            si = SEGI[seg]
            tr = not (self.br == "A" and seg == "V")
            for c in range(2):
                wf = wb + 8 * k + 4 * c
                for j in range(2):
                    rd.append(f"ds_read_b64_tr_b16 {vr(wf + 2 * j, 2)}, v{vTR} offset:{woff(self.br, k) + 3584 * tt + 112 * j + 32 * c}")
                for u in range(2):
                    acc = ACC[si] + 8 * u + 4 * c
                    a_, b_ = (vr(wf, 4), vr(xr[u], 4)) if tr else (vr(xr[u], 4), vr(wf, 4))
                    mm.append(f"v_mfma_f32_16x16x32_bf16 {vr(acc, 4)}, {a_}, {b_}, {'0' if first else vr(acc, 4)}")
                if self.halo and seg != "Q":
                    acc = self.HACC + 8 * si + 4 * c
                    a_, b_ = (vr(wf, 4), vr(hx, 4)) if tr else (vr(hx, 4), vr(wf, 4))
                    mm.append(f"v_mfma_f32_16x16x32_bf16 {vr(acc, 4)}, {a_}, {b_}, {'0' if first else vr(acc, 4)}")
        return rd, mm

    def run(self, s0, s1):
        E = self.E
        ks, end = 2 * s0, 2 * s1 + 2
        pending = []
        bi = 0
        while ks < end or pending:
            if ks < end and len(pending) < self.nbuf:
                s, tt = divmod(ks, 2)
                if tt == 0:
                    if self.prebar:
                        self.prebar(E, s)
                    E.barrier(lgkm0=True)
                    self.nbar += 1
                    if self.nbar <= 14:
                        stamp(E, self.nbar, fine=True)
                    d = self.stages[s]["base"] - self.cur_base
                    self.cur_base = self.stages[s]["base"]
                    for r in (vXR, vXR + 1, vTR):
                        E(vadd_imm(r, d))
                rd, mm = self.parts(s, tt, bi % self.nbuf)
                bi += 1
                E(rd)
                pending.append(mm)
                ks += 1
                if ks % 2 == 0 and ks < end:
                    while len(pending) > 1:
                        E(pending.pop(0))
            else:
                E(pending.pop(0))

def phi_path(si, outreg, tmps, WP):
    streams = []
    for u in range(2):
        T = tmps[u]
        P = ACC[si] + 8 * u
        op, pk, Ep, Em = T, T, P, T + 4
        mx, mn, mx1, mn1 = T + 12, T + 13, T + 14, T + 15
        t, sp, sm = T, mx1, mn1
        o = []
        o += pack_op(P, op)
        for ft in range(2):
            o.append(f"v_mfma_f32_16x16x32_bf16 {vr(P + 4 * ft, 4)}, {vr(WP + 4 * ft, 4)}, {vr(op, 4)}, 0")
        o += round_pairs(P, P, 8, pk)
        o.append(f"v_max3_f32 v{mx}, v{P}, v{P+1}, v{P+2}")
        o.append(f"v_max3_f32 v{mn}, -v{P}, -v{P+1}, -v{P+2}")
        o.append(f"v_max3_f32 v{mx}, v{mx}, v{P+3}, v{P+4}")
        o.append(f"v_max3_f32 v{mn}, v{mn}, -v{P+3}, -v{P+4}")
        o.append(f"v_max3_f32 v{mx}, v{mx}, v{P+5}, v{P+6}")
        o.append(f"v_max3_f32 v{mn}, v{mn}, -v{P+5}, -v{P+6}")
        o.append(f"v_max_f32 v{mx}, v{mx}, v{P+7}")
        o.append(f"v_max_f32 v{mn}, v{mn}, -v{P+7}")
        o += dual_reduce(mx, mn, t, "v_max_f32")
        o.append(f"v_mul_f32 v{mx}, s{sL2E}, v{mx}")
        o.append(f"v_mul_f32 v{mn}, s{sL2E}, v{mn}")
        o.append(f"v_add_f32 v{mx1}, v{mx}, v{vPADB}")
        o.append(f"v_add_f32 v{mn1}, v{mn}, v{vPADB}")
        for i in range(8):
            o.append(f"v_fma_f32 v{Em+i}, -v{P+i}, s{sL2E}, -v{mn if i < 4 else mn1}")
            o.append(f"v_fma_f32 v{Ep+i}, v{P+i}, s{sL2E}, -v{mx if i < 4 else mx1}")
        for i in range(8):
            o.append(f"v_exp_f32 v{Ep+i}, v{Ep+i}")
            o.append(f"v_exp_f32 v{Em+i}, v{Em+i}")
        o.append(f"v_add_f32 v{sp}, v{Ep}, v{Ep+1}")
        o.append(f"v_add_f32 v{sm}, v{Em}, v{Em+1}")
        for i in range(2, 8):
            o.append(f"v_add_f32 v{sp}, v{sp}, v{Ep+i}")
            o.append(f"v_add_f32 v{sm}, v{sm}, v{Em+i}")
        o += dual_reduce(sp, sm, t, "v_add_f32")
        o.append(f"v_rcp_f32 v{sp}, v{sp}")
        o.append(f"v_rcp_f32 v{sm}, v{sm}")
        for i in range(8):
            o.append(f"v_mul_f32 v{Ep+i}, v{Ep+i}, v{sp}")
            o.append(f"v_mul_f32 v{Em+i}, v{Em+i}, v{sm}")
        for i in range(4):
            o.append(f"v_cvt_pk_bf16_f32 v{outreg + 8 * u + i}, v{Ep + 2 * i}, v{Ep + 2 * i + 1}")
            o.append(f"v_cvt_pk_bf16_f32 v{outreg + 8 * u + 4 + i}, v{Em + 2 * i}, v{Em + 2 * i + 1}")
        streams.append(o)
    return interleave(streams[0], streams[1])

def cons_B(E):
    WP, PHI, BUF = 64, 72, 88
    srds(E); srds2(E)
    if OPT["pf"]:
        prefetch(E)
    stamps_init(E)
    cons_setup(E, "B")
    ones = T0 + 4
    for i in range(4):
        E(f"v_mov_b32 v{ones + i}, -1")
    vKV = 14
    E(f"s_lshl_b32 s{sT0}, s{sHP}, 4")
    E(f"s_add_u32 s{sT0}, s{sT0}, s{sRB}")
    E(f"s_lshl_b32 s{sT0}, s{sT0}, 3")
    E(f"s_add_u32 s{sT0}, s{sT0}, s{sWV}")
    E(f"s_lshl_b32 s{sT0}, s{sT0}, 10")
    E(f"s_add_u32 s{sT0}, s{sT0}, {WS_KVP}")
    E(f"v_add_u32 v{vKV}, s{sT0}, v{vL16B}")
    E(f"buffer_store_dwordx4 {vr(ones, 4)}, v{vKV}, {sr(SWS, 4)}, 0 offen sc1")
    E(ostore(ones, 0)); E(ostore(ones, 1))
    E(f"v_mov_b32 v{vPADB}, 0")
    E(f"v_mov_b32 v{T0}, 0x7149f2ca")
    E(f"v_cndmask_b32 v{vPADB}, v{vPADB}, v{T0}, {sr(sG3, 2)}")
    E(f"s_lshl_b32 s{sT2}, s{sRG}, 5")
    E(f"v_add_u32 v{vSL}, s{sT2}, v{vL16}")
    E(f"v_mul_u32_u24 v{vA0}, {PHI_STRIDE}, v{vSL}")
    E(f"v_lshl_add_u32 v{vA0}, v{vG}, 3, v{vA0}")
    E(f"s_lshl_b32 s{sT2}, s{sHH}, 7")
    E(f"v_add_u32 v{vA0}, s{sT2}, v{vA0}")
    E(f"v_mul_u32_u24 v{vA1}, {V_STRIDE}, v{vSL}")
    E(f"v_lshl_add_u32 v{vA1}, v{vG}, 3, v{vA1}")
    E(f"s_mul_i32 s{sT0}, s{sHH}, {VB[1] - VB[0]}")
    E(f"s_add_u32 s{sT0}, s{sT0}, {VB[0]}")
    E(f"v_add_u32 v{vA1}, s{sT0}, v{vA1}")
    t0, t1 = T0, T0 + 1
    E(f"v_and_b32 v{t0}, 1, v{vG}")
    E(f"v_lshlrev_b32 v{t0}, 4, v{t0}")
    E(f"v_bfe_u32 v{t1}, v{vLANE}, 2, 2")
    E(f"v_lshl_add_u32 v{t0}, v{t1}, 2, v{t0}")
    E(f"v_lshrrev_b32 v{t1}, 1, v{vG}")
    E(f"v_lshl_add_u32 v{t0}, v{t1}, 1, v{t0}")
    E(f"v_and_b32 v{t1}, 3, v{vLANE}")
    E(f"v_lshlrev_b32 v{t1}, 3, v{t1}")
    E(f"s_lshr_b32 s{sT0}, s{sWV}, 1")
    E(f"s_lshl_b32 s{sT0}, s{sT0}, 6")
    E(f"v_mul_u32_u24 v{vA2}, {PHI_STRIDE}, v{t0}")
    E(f"v_add3_u32 v{vA2}, v{vA2}, v{t1}, s{sT0}")
    E(f"s_lshr_b32 s{sT0}, s{sWV}, 2")
    E(f"s_mul_i32 s{sT0}, s{sT0}, {VB[1] - VB[0]}")
    E(f"s_add_u32 s{sT0}, s{sT0}, {VB[0]}")
    E(f"s_and_b32 s{sT1}, s{sWV}, 1")
    E(f"s_lshl_b32 s{sT1}, s{sT1}, 5")
    E(f"s_add_u32 s{sT0}, s{sT0}, s{sT1}")
    E(f"v_mul_u32_u24 v{vA3}, {V_STRIDE}, v{t0}")
    E(f"v_add3_u32 v{vA3}, v{vA3}, v{t1}, s{sT0}")
    w1, w2 = T0 + 8, T0 + 9
    E(f"v_bfe_u32 v{t0}, v{vLANE}, 2, 2")
    E(f"v_lshl_add_u32 v{t0}, v{vG}, 2, v{t0}")
    E(f"v_mul_u32_u24 v{t0}, 56, v{t0}")
    E(f"s_mul_i32 s{sT2}, s{sHH}, 1568")
    E(f"s_add_u32 s{sT2}, s{sT2}, {B_WPH}")
    E(f"v_add_u32 v{t0}, s{sT2}, v{t0}")
    E(f"v_and_b32 v{t1}, 3, v{vLANE}")
    E(f"v_min_u32 v{w2}, 2, v{t1}")
    E(f"v_lshl_add_u32 v{w1}, v{t1}, 3, v{t0}")
    E(f"v_lshl_add_u32 v{w2}, v{w2}, 3, v{t0}")
    C = Cons(E, "B", B_STAGES, BUF, 24, 3)
    def prebar(E, s):
        if s == OPT["flag_at"]:
            E.wait(vm=0)
        if s == 3:
            for ft in range(2):
                for j in range(2):
                    E(f"ds_read_b64_tr_b16 {vr(WP + 4 * ft + 2 * j, 2)}, v{w1 if ft == 0 else w2} offset:{896 * j + 32 * ft}")
            for ft in range(2):
                for i in (2, 3):
                    r = WP + 4 * ft + i
                    E(f"v_cndmask_b32 v{r}, v{r}, 0, {sr(sG3, 2)}")
    C.prebar = prebar
    C.run(0, 6)
    stamp(E, 1)
    body = phi_path(0, PHI, [BUF, BUF + 16], WP)
    vp0 = BUF + 32
    vpk = [f"v_mov_b32 v{vp0 + 8}, 0x3f80"]
    for u in range(2):
        vp = vp0 + 4 * u
        vpk += pack_op(ACC[1] + 8 * u, vp, zero_pad=False)
        vpk.append(f"v_cndmask_b32 v{vp + 2}, v{vp + 2}, v{vp0 + 8}, {sr(sG3, 2)}")
        vpk.append(f"v_cndmask_b32 v{vp + 3}, v{vp + 3}, 0, {sr(sG3, 2)}")
    E(body[:40])
    E.barrier()
    E(vpk)
    for u in range(2):
        for dt in range(2):
            E(f"ds_write_b64 v{vA1}, {vr(vp0 + 4 * u + 2 * dt, 2)} offset:{16 * V_STRIDE * u + 32 * dt}")
    E(body[40:])
    for u in range(2):
        for sg in range(2):
            for ft in range(2):
                E(f"ds_write_b64 v{vA0}, {vr(PHI + 8 * u + 4 * sg + 2 * ft, 2)} offset:{PHI_BASE + 16 * PHI_STRIDE * u + 64 * sg + 32 * ft}")
    stamp(E, 3)
    E.barrier()
    KA, KB_, KD = BUF, BUF + 32, BUF + 48
    for ks in range(4):
        for j in range(2):
            E(f"ds_read_b64_tr_b16 {vr(KB_ + 4 * ks + 2 * j, 2)}, v{vA3} offset:{(32 * ks + j) * V_STRIDE}")
        for ft in range(2):
            for j in range(2):
                E(f"ds_read_b64_tr_b16 {vr(KA + 8 * ks + 4 * ft + 2 * j, 2)}, v{vA2} offset:{PHI_BASE + (32 * ks + j) * PHI_STRIDE + 32 * ft}")
    for ks in range(4):
        for ft in range(2):
            cin = "0" if ks == 0 else vr(KD + 4 * ft, 4)
            E(f"v_mfma_f32_16x16x32_bf16 {vr(KD + 4 * ft, 4)}, {vr(KA + 8 * ks + 4 * ft, 4)}, {vr(KB_ + 4 * ks, 4)}, {cin}")
    kp = T0
    E(pack_op(KD, kp, zero_pad=False))
    for i in range(4):
        E(f"v_min_u32 v{kp + i}, -2, v{kp + i}")
    E(f"buffer_store_dwordx4 {vr(kp, 4)}, v{vKV}, {sr(SWS, 4)}, 0 offen sc1")
    stamp(E, 4)
    C.bufsz = 16
    C.prebar = None
    C.run(7, 13)
    stamp(E, 5)
    E.barrier()
    G = BUF
    E(f"s_lshl_b32 s{sT0}, s{sHP}, 17")
    E(f"s_lshl_b32 s{sT1}, s{sWV}, 10")
    E(f"s_add_u32 s{sT0}, s{sT0}, s{sT1}")
    E(f"s_add_u32 s{sT0}, s{sT0}, {WS_KVP}")
    E(f"v_add_u32 v{vA1}, s{sT0}, v{vL16B}")
    loads = []
    for p in range(16):
        loads.append(f"s_mov_b32 s{sT0}, {8192 * p}")
        loads.append(f"buffer_load_dwordx4 {vr(G + 4 * p, 4)}, v{vA1}, {sr(SWS, 4)}, s{sT0} offen sc1")
    body = phi_path(2, PHI, [ACC[0], ACC[1]], WP)
    h = len(body) // 2
    E(body[:h])
    E(loads)
    E(body[h:])
    stamp(E, 6)
    poll_loop(E, loads, range(G, G + 64), "kv", T0, pre_issued=True)
    stamp(E, 7)
    SUM = ACC[0]
    tl, th = T0, T0 + 1
    for p in range(16):
        for i in range(4):
            r = G + 4 * p + i
            if p == 0:
                E(f"v_lshlrev_b32 v{SUM + 2 * i}, 16, v{r}")
                E(f"v_and_b32 v{SUM + 2 * i + 1}, 0xffff0000, v{r}")
            else:
                E(f"v_lshlrev_b32 v{tl + 2 * (i & 1)}, 16, v{r}")
                E(f"v_and_b32 v{th + 2 * (i & 1)}, 0xffff0000, v{r}")
                E(f"v_pk_add_f32 {vr(SUM + 2 * i, 2)}, {vr(SUM + 2 * i, 2)}, {vr(tl + 2 * (i & 1), 2)}")
    kf = T0 + 4
    E(pack_op(SUM, kf, zero_pad=False))
    E(f"s_lshl_b32 s{sT0}, s{sWV}, 10")
    E(f"s_add_u32 s{sT0}, s{sT0}, {KVF}")
    E(f"v_add_u32 v{vA1}, s{sT0}, v{vL16B}")
    E(f"ds_write_b128 v{vA1}, {vr(kf, 4)}")
    E(f"s_lshl_b32 s{sT0}, s{sHH}, 12")
    E(f"s_add_u32 s{sT0}, s{sT0}, {KVF}")
    E(f"v_add_u32 v{vA1}, s{sT0}, v{vL16B}")
    E(f"v_lshlrev_b32 v{vA2}, 8, v{vG}")
    E(f"s_add_u32 s{sT0}, s{sT0}, {12 * 16}")
    E(f"v_add_u32 v{vA2}, s{sT0}, v{vA2}")
    E.barrier()
    KF, ZF, NUM = BUF, BUF + 16, BUF + 24
    for w in range(4):
        E(f"ds_read_b128 {vr(KF + 4 * w, 4)}, v{vA1} offset:{1024 * w}")
    for sg in range(2):
        E(f"ds_read_b128 {vr(ZF + 4 * sg, 4)}, v{vA2} offset:{1024 * (2 * sg + 1)}")
    for u in range(2):
        for dt in range(2):
            for sg in range(2):
                d = NUM + 12 * u + 4 * dt
                E(f"v_mfma_f32_16x16x32_bf16 {vr(d, 4)}, {vr(KF + 4 * (2 * sg + dt), 4)}, {vr(PHI + 8 * u + 4 * sg, 4)}, {'0' if sg == 0 else vr(d, 4)}")
        for sg in range(2):
            d = NUM + 12 * u + 8
            E(f"v_mfma_f32_16x16x32_bf16 {vr(d, 4)}, {vr(ZF + 4 * sg, 4)}, {vr(PHI + 8 * u + 4 * sg, 4)}, {'0' if sg == 0 else vr(d, 4)}")
    st = []
    for u in range(2):
        n = NUM + 12 * u; dn = n + 8
        t = BUF + 48 + 8 * u
        o = []
        o += round_pairs(n, n, 8, t)
        o.append(f"v_cvt_pk_bf16_f32 v{t + 4}, v{dn}, v{dn}")
        o.append(f"v_lshlrev_b32 v{dn}, 16, v{t + 4}")
        o.append(f"v_add_f32 v{dn}, 0x358637bd, v{dn}")
        o.append(f"v_cvt_pk_bf16_f32 v{t + 4}, v{dn}, v{dn}")
        o.append(f"v_lshlrev_b32 v{dn}, 16, v{t + 4}")
        o.append(f"v_rcp_f32 v{dn}, v{dn}")
        for i in range(8):
            o.append(f"v_mul_f32 v{n + i}, v{n + i}, v{dn}")
        o += pack_op(n, t)
        for i in range(4):
            o.append(f"v_min_u32 v{t + i}, -2, v{t + i}")
        o.append(ostore(t, u))
        st.append(o)
    E(interleave(st[0], st[1]))
    stamp(E, 8)

def att_masks():
    ms = []
    for tile in range(2):
        for i in range(4):
            m = 0
            for lane in range(64):
                q, g = lane & 15, lane >> 4
                d = q - (4 * g + i) + (16 if tile == 0 else 0)
                if 0 <= d <= 14 and d % 2 == 0:
                    m |= 1 << lane
            ms.append(m)
    return ms

def cons_A(E, halo):
    HACC, BUF = 64, 80
    srds(E); srds2(E)
    if OPT["pf"]:
        prefetch(E)
    stamps_init(E)
    cons_setup(E, "A")
    ones = T0 + 4
    for i in range(4):
        E(f"v_mov_b32 v{ones + i}, -1")
    E(ostore(ones, 0)); E(ostore(ones, 1))
    ms = att_masks()
    for i, m in enumerate(ms):
        E(f"s_mov_b32 s{sMASK + 2 * i}, {m & 0xffffffff:#x}")
        E(f"s_mov_b32 s{sMASK + 2 * i + 1}, {m >> 32:#x}")
    E(f"s_lshl_b32 s{sT0}, s{sWV}, 11")
    E(f"s_add_u32 s{sT0}, s{sT0}, {A_EXCH}")
    E(f"v_add_u32 v{vA1}, s{sT0}, v{vL16B}")
    E(f"v_lshl_add_u32 v{vA2}, v{vLANE}, 3, s{sT0}")
    C = Cons(E, "A", A_STAGES, BUF, 36, 2, halo=halo, HACC=HACC)
    def prebar(E, s):
        if s == OPT["flag_at"]:
            E.wait(vm=0)
    C.prebar = prebar
    C.run(0, 6)
    stamp(E, 1)
    KT, VV = BUF, BUF + 12
    for u in range(2):
        E(pack_op(ACC[0] + 8 * u, KT + 4 + 4 * u))
        for dt in range(2):
            a = ACC[1] + 8 * u + 4 * dt
            d = VV + 8 * u + 4 * dt + 2
            E(f"v_cvt_pk_bf16_f32 v{d}, v{a}, v{a + 1}")
            E(f"v_cvt_pk_bf16_f32 v{d + 1}, v{a + 2}, v{a + 3}")
            if u == 0:
                E(f"v_mov_b32 v{d + 6}, v{d}")
                E(f"v_mov_b32 v{d + 7}, v{d + 1}")
    E.barrier()
    E(f"ds_write_b128 v{vA1}, {vr(KT + 8, 4)} offset:4096")
    for dt in range(2):
        E(f"ds_write_b64 v{vA2}, {vr(VV + 8 + 4 * dt + 2, 2)} offset:{4096 + 1024 + 512 * dt}")
    if halo:
        E(pack_op(HACC, KT))
        for dt in range(2):
            a = HACC + 8 + 4 * dt
            d = VV + 4 * dt
            E(f"v_cvt_pk_bf16_f32 v{d}, v{a}, v{a + 1}")
            E(f"v_cvt_pk_bf16_f32 v{d + 1}, v{a + 2}, v{a + 3}")
        E(f"s_cmp_eq_u32 s{sRB}, 0")
        E(f"s_cselect_b64 {sr(sMP, 2)}, 0, -1")
    T = BUF + 28
    NEG = T0 + 8
    E(f"v_mov_b32 v{NEG}, 0xf149f2ca")
    MX = [T0, T0 + 1]; SM = [T0 + 2, T0 + 3]; tt = T0 + 4
    pre0, pre, mid, post = [], [], [], []
    for u in range(2):
        B_ = T + 20 * u
        qo, L, pk, P = B_, B_ + 4, B_ + 12, B_ + 16
        O = ACC[1] + 8 * u
        pre0 += pack_op(ACC[2] + 8 * u, qo)
        o = []
        o.append(f"v_mfma_f32_16x16x32_bf16 {vr(L + 4, 4)}, {vr(KT + 4 * u + 4, 4)}, {vr(qo, 4)}, 0")
        o.append(f"v_mfma_f32_16x16x32_bf16 {vr(L, 4)}, {vr(KT + 4 * u, 4)}, {vr(qo, 4)}, 0")
        o += round_pairs(L, L, 8, pk)
        for i in range(8):
            o.append(f"v_mul_f32 v{L + i}, s{sSCL}, v{L + i}")
        o += round_pairs(L, L, 8, pk)
        for i in range(8):
            o.append(f"v_cndmask_b32 v{L + i}, v{NEG}, v{L + i}, {sr(sMASK + 2 * i, 2)}")
        if halo and u == 0:
            for i in range(4):
                o.append(f"v_cndmask_b32 v{L + i}, v{NEG}, v{L + i}, {sr(sMP, 2)}")
        mx = MX[u]
        o.append(f"v_max3_f32 v{mx}, v{L}, v{L+1}, v{L+2}")
        o.append(f"v_max3_f32 v{mx}, v{mx}, v{L+3}, v{L+4}")
        o.append(f"v_max3_f32 v{mx}, v{mx}, v{L+5}, v{L+6}")
        o.append(f"v_max_f32 v{mx}, v{mx}, v{L+7}")
        pre.append(o)
        o = []
        o.append(f"v_mul_f32 v{mx}, s{sL2E}, v{mx}")
        for i in range(8):
            o.append(f"v_fma_f32 v{L + i}, v{L + i}, s{sL2E}, -v{mx}")
        for i in range(8):
            o.append(f"v_exp_f32 v{L + i}, v{L + i}")
        sm = SM[u]
        o.append(f"v_add_f32 v{sm}, v{L}, v{L + 1}")
        for i in range(2, 8):
            o.append(f"v_add_f32 v{sm}, v{sm}, v{L + i}")
        mid.append(o)
        o = []
        o.append(f"v_rcp_f32 v{sm}, v{sm}")
        for i in range(8):
            o.append(f"v_mul_f32 v{L + i}, v{L + i}, v{sm}")
        for i in range(4):
            o.append(f"v_cvt_pk_bf16_f32 v{P + i}, v{L + 2 * i}, v{L + 2 * i + 1}")
        for dt in range(2):
            o.append(f"v_mfma_f32_16x16x32_bf16 {vr(O + 4 * dt, 4)}, {vr(VV + 8 * u + 4 * dt, 4)}, {vr(P, 4)}, 0")
        o += pack_op(O, qo)
        for i in range(4):
            o.append(f"v_min_u32 v{qo + i}, -2, v{qo + i}")
        o.append(ostore(qo, u))
        post.append(o)
    E(pre0)
    E.barrier()
    if not halo:
        E(f"ds_read_b128 {vr(KT, 4)}, v{vA1}")
        for dt in range(2):
            E(f"ds_read_b64 {vr(VV + 4 * dt, 2)}, v{vA2} offset:{1024 + 512 * dt}")
    E(interleave(pre[1], pre[0]))
    E(dual_reduce(MX[0], MX[1], tt, "v_max_f32"))
    E(interleave(mid[0], mid[1]))
    E(dual_reduce(SM[0], SM[1], tt, "v_add_f32"))
    E(interleave(post[0], post[1]))
    stamp(E, 8)

def loader(E, br, last):
    stages = A_STAGES if br == "A" else B_STAGES
    vX, vW0, vW1, vH0, vH1, vWO, vGX, vGF, vGOFF = 4, 5, 6, 7, 8, 9, 10, 12, 13
    t0, t1, t2, t3 = T0, T0 + 1, T0 + 2, T0 + 3
    sL = sRG
    E(f"s_sub_u32 s{sL}, s{sWV}, 8")
    E(f"v_lshrrev_b32 v{t0}, 3, v{vLANE}")
    E(f"v_bfe_u32 v{t1}, v{vLANE}, 4, 2")
    E(f"s_lshl_b32 s{sT1}, s{sHH}, 2")
    E(f"v_or_b32 v{t1}, s{sT1}, v{t1}")
    E(f"v_and_b32 v{t2}, 7, v{vLANE}")
    E(f"v_xor_b32 v{t1}, v{t1}, v{t2}")
    E(f"s_lshl_b32 s{sT0}, s{sRB}, 7")
    E(f"s_lshl_b32 s{sT1}, s{sL}, 3")
    E(f"s_add_u32 s{sT0}, s{sT0}, s{sT1}")
    E(f"v_add_u32 v{t0}, s{sT0}, v{t0}")
    E(f"v_mul_u32_u24 v{vX}, 896, v{t0}")
    E(f"v_lshl_add_u32 v{vX}, v{t1}, 4, v{vX}")
    for pi, vw in enumerate((vW0, vW1)):
        if last and pi == 1:
            break
        E(f"s_lshl_b32 s{sT1}, s{sL}, 6")
        if pi:
            E(f"s_add_u32 s{sT1}, s{sT1}, 256")
        E(f"v_add_u32 v{t0}, s{sT1}, v{vLANE}")
        E(f"v_mul_u32_u24 v{t1}, 9363, v{t0}")
        E(f"v_lshrrev_b32 v{t1}, 16, v{t1}")
        E(f"v_mul_u32_u24 v{t2}, 7, v{t1}")
        E(f"v_sub_u32 v{t2}, v{t0}, v{t2}")
        E(f"v_and_b32 v{t0}, 0x38, v{t1}")
        E(f"v_and_b32 v{t3}, 1, v{t1}")
        E(f"v_lshl_add_u32 v{t0}, v{t3}, 2, v{t0}")
        E(f"v_bfe_u32 v{t3}, v{t1}, 1, 2")
        E(f"v_add_u32 v{t0}, v{t0}, v{t3}")
        E(f"v_mul_u32_u24 v{vw}, 2688, v{t0}")
        E(f"v_lshl_add_u32 v{vw}, v{t2}, 4, v{vw}")
        E(f"s_mul_i32 s{sT1}, s{sHP}, 112")
        E(f"v_add_u32 v{vw}, s{sT1}, v{vw}")
    E(f"s_lshl_b32 s{sM0}, s{sL}, 10")
    if last and br == "A":
        E(f"v_subrev_u32 v{vH1}, {32 * 896}, v{vX}")
        E(f"v_xor_b32 v{vH0}, 64, v{vX}")
        E(f"v_subrev_u32 v{vH0}, {40 * 896}, v{vH0}")
    srds(E)
    def issue(s):
        st = stages[s]; m = st["m"]; base = st["base"]
        for i in range(4):
            E(f"s_add_u32 m0, s{sM0}, {base + 4096 * i}")
            E(f"s_mov_b32 s{sT0}, {128 * m + 28672 * i}")
            E(f"buffer_load_dwordx4 v{vX}, {sr(SX, 4)}, s{sT0} offen lds", tag=f"S{s}")
        for k, seg in enumerate(st["segs"]):
            for pi, vw in enumerate((vW0, vW1)):
                if last and pi == 1:
                    break
                E(f"s_add_u32 m0, s{sM0}, {base + woff(br, k) + 4096 * pi}")
                E(f"s_mov_b32 s{sT0}, {m * 64 * 2688 + SEGCOL[seg] * 896}")
                E(f"buffer_load_dwordx4 v{vw}, {sr(SW, 4)}, s{sT0} offen lds", tag=f"S{s}")
        if last and br == "A":
            for n2, vh in enumerate((vH0, vH1)):
                E(f"s_mov_b32 m0, {base + 16384 + 1024 * n2}")
                E(f"s_mov_b32 s{sT0}, {128 * m}")
                E(f"buffer_load_dwordx4 v{vh}, {sr(SX, 4)}, s{sT0} offen lds", tag=f"S{s}")
    nxt = 0
    issue(0); nxt = 1
    srds2(E)
    stamps_init(E)
    if last:
        if br == "B":
            E(f"s_mul_i32 s{sT1}, s{sHP}, 3136")
            E(f"v_add_u32 v{t0}, s{sT1}, v{vL16B}")
            for i in range(4):
                E(f"s_mov_b32 m0, {B_WPH + 1024 * i}")
                E(f"s_mov_b32 s{sT0}, {1024 * i}")
                E(f"buffer_load_dwordx4 v{t0}, {sr(SAUX, 4)}, s{sT0} offen lds", tag="S1")
        else:
            E(f"s_mov_b32 m0, {A_GATE}")
            E(f"buffer_load_dwordx4 v{vL16B}, {sr(SAUX, 4)}, 0 offen lds", tag="S0")
    while nxt < OPT["ahead"]:
        issue(nxt); nxt += 1
    E(f"v_lshrrev_b32 v{vWO}, 3, v{vLANE}")
    E(f"v_bfe_u32 v{t1}, v{vLANE}, 4, 2")
    E(f"v_lshlrev_b32 v{t1}, 1, v{t1}")
    E(f"v_and_b32 v{t2}, 7, v{vLANE}")
    E(f"v_xor_b32 v{t1}, v{t1}, v{t2}")
    E(f"v_mul_u32_u24 v{vWO}, 896, v{vWO}")
    E(f"v_lshl_add_u32 v{vWO}, v{t1}, 4, v{vWO}")
    E(f"s_lshl_b32 s{sT1}, s{sCT}, 7")
    E(f"s_mul_i32 s{sT2}, s{sL}, {8 * 896}")
    E(f"s_add_u32 s{sT1}, s{sT1}, s{sT2}")
    E(f"s_cmp_ge_u32 s{sJ}, 28")
    E(f"s_cselect_b32 s{sT1}, 0x1000000, s{sT1}")
    E(f"v_add_u32 v{vWO}, s{sT1}, v{vWO}")
    def wo(b2):
        for i in range(14):
            E(f"s_add_u32 m0, s{sM0}, {(WOB_BASE if b2 else WOA_BASE) + i * 4096}")
            E(f"s_mov_b32 s{sT0}, {i * 32 * 896}")
            E(f"buffer_load_dwordx4 v{vWO}, {sr(SWOA if b2 == 0 else SWOB, 4)}, s{sT0} offen lds", tag=f"WO{b2}")
    gate = last and br == "A"
    if gate:
        E(f"v_lshrrev_b32 v{t0}, 1, v{vL16}")
        E(f"v_xor_b32 v{t0}, v{t0}, v{vG}")
        E(f"v_lshlrev_b32 v{t0}, 4, v{t0}")
        E(f"v_lshl_add_u32 v{t0}, v{vL16}, 7, v{t0}")
        E(f"s_lshl_b32 s{sT0}, s{sHP}, 11")
        E(f"v_add_u32 v{vGX}, s{sT0}, v{t0}")
        E(f"v_xor_b32 v{vGX + 1}, 64, v{vGX}")
        E(f"v_lshlrev_b32 v{vGF}, 4, v{vG}")
        E(f"v_add_u32 v{vGF}, {A_GATE}, v{vGF}")
        E(f"s_lshl_b32 s{sT0}, s{sRB}, 7")
        E(f"s_lshl_b32 s{sT1}, s{sHP}, 4")
        E(f"s_add_u32 s{sT0}, s{sT0}, s{sT1}")
        E(f"s_lshl_b32 s{sT0}, s{sT0}, 2")
        E(f"s_add_u32 s{sT0}, s{sT0}, {WS_G}")
        E(f"v_lshl_add_u32 v{vGOFF}, v{vLANE}, 2, s{sT0}")
        E(f"v_mov_b32 v{t0}, {WS_BYTES}")
        E(f"v_cmp_gt_u32 vcc, 16, v{vLANE}")
        E(f"v_cndmask_b32 v{vGOFF}, v{t0}, v{vGOFF}, vcc")
        E(f"v_mov_b32 v{t1}, -1")
        E(f"buffer_store_dword v{t1}, v{vGOFF}, {sr(SWS, 4)}, 0 offen sc1", tag="GCLR")
    GL, GB = 16, 20
    cur = 0
    def step(s):
        nonlocal nxt, cur
        E.wait_tag(f"S{s}")
        if s == OPT["flag_at"] and gate:
            E.wait_tag("GCLR")
        E.barrier(lgkm0=True)
        if gate:
            d = stages[s]["base"] - cur; cur = stages[s]["base"]
            E(vadd_imm(vGX, d)); E(vadd_imm(vGX + 1, d))
            m = stages[s]["m"]
            for tt in range(2):
                E(f"ds_read_b128 {vr(GB + 8 * tt, 4)}, v{vGX + tt}")
                E(f"ds_read_b128 {vr(GB + 8 * tt + 4, 4)}, v{vGF} offset:{64 * (2 * m + tt)}")
        while nxt < len(stages) and stages[nxt]["after"] <= s and nxt <= s + OPT["ahead"]:
            issue(nxt); nxt += 1
        if s == OPT["flag_at"] and last:
            flag_store(E, 1, t0, t1)
        if gate:
            m = stages[s]["m"]
            for tt in range(2):
                E(f"v_mfma_f32_16x16x32_bf16 {vr(GL, 4)}, {vr(GB + 8 * tt + 4, 4)}, {vr(GB + 8 * tt, 4)}, {'0' if (m == 0 and tt == 0) else vr(GL, 4)}")
    if br == "A":
        for s in range(7):
            step(s)
        if gate:
            g = GL
            E(f"v_cvt_pk_bf16_f32 v{g + 1}, v{g}, v{g}")
            E(f"v_lshlrev_b32 v{g}, 16, v{g + 1}")
            E(f"v_mul_f32 v{g}, s{sL2E}, v{g}")
            E(f"v_exp_f32 v{g}, -v{g}")
            E(f"v_add_f32 v{g}, 1.0, v{g}")
            E(f"v_rcp_f32 v{g}, v{g}")
            E(f"v_cvt_pk_bf16_f32 v{g + 1}, v{g}, v{g}")
            E(f"v_lshlrev_b32 v{g}, 16, v{g + 1}")
            E(f"buffer_store_dword v{g}, v{vGOFF}, {sr(SWS, 4)}, 0 offen sc1")
        E.barrier()
        wo(0); wo(1)
        E.barrier()
        if last:
            flags_wait_all(E, t0, t1)
    else:
        for s in range(7):
            step(s)
        while nxt < 10:
            issue(nxt); nxt += 1
        E.barrier()
        E.barrier()
        OPT_ahead = OPT["ahead"]; OPT["ahead"] = 3
        for s in range(7, 14):
            step(s)
            if s == 11:
                assert nxt == 14
                wo(0)
        OPT["ahead"] = OPT_ahead
        if last:
            flags_wait_all(E, t0, t1)
        E.barrier()
        wo(1)
        E.barrier()
    E(f"s_cmp_ge_u32 s{sJ}, 28")
    E.flush_haz()
    E("s_cbranch_scc1 L_end")
    E.wait_tag("WO0")
    E.barrier()
    E.force_wait(vm=0)
    E.barrier()
    E("s_branch L_end")

def phase3(E):
    E.label("L_p3")
    E.vmq = []; E.lgq = []
    E(f"s_cmp_ge_u32 s{sJ}, 28")
    E("s_cbranch_scc1 L_fin")
    rt, kh = sT0, sT1
    vROW, vGV, vWO = 4, 5, 12
    TMP = 144
    E(f"s_and_b32 s{rt}, s{sWV}, 3")
    E(f"s_lshr_b32 s{kh}, s{sWV}, 2")
    E(f"s_lshl_b32 s{sT2}, s{sT}, 2")
    E(f"s_add_u32 s{sT2}, s{sT2}, s{rt}")
    E(f"s_lshl_b32 s{sSPIN}, s{sT2}, 14")
    E(f"v_add_u32 v{vA0}, s{sSPIN}, v{vL16B}")
    E(f"s_lshl_b32 s{sSPIN}, s{kh}, 13")
    E(f"v_add_u32 v{vA0}, s{sSPIN}, v{vA0}")
    E(f"v_add_u32 v{vA1}, 4096, v{vA0}")
    E(f"s_lshl_b32 s{sT2}, s{sT2}, 4")
    E(f"v_add_u32 v{vROW}, s{sT2}, v{vL16}")
    E(f"v_lshlrev_b32 v{vA2}, 2, v{vROW}")
    E(f"v_add_u32 v{vA2}, {WS_G}, v{vA2}")
    t0, t1, t2 = TMP, TMP + 1, TMP + 2
    E(f"v_bfe_u32 v{t0}, v{vLANE}, 2, 2")
    E(f"v_lshl_add_u32 v{t0}, v{vG}, 2, v{t0}")
    E(f"v_bfe_u32 v{t1}, v{t0}, 1, 2")
    E(f"v_and_b32 v{t2}, 3, v{vLANE}")
    E(f"v_lshlrev_b32 v{t2}, 3, v{t2}")
    E(f"v_lshl_add_u32 v{t2}, v{t0}, 7, v{t2}")
    E(f"s_mul_i32 s{sT2}, s{kh}, 28672")
    E(f"s_add_u32 s{sT2}, s{sT2}, {WOA_BASE}")
    E(f"v_add_u32 v{t2}, s{sT2}, v{t2}")
    for c in range(4):
        E(f"v_xor_b32 v{t0}, {c}, v{t1}")
        E(f"v_lshl_add_u32 v{vWO + c}, v{t0}, 5, v{t2}")
    OF, AC, WF = 16, [80, 96], 112
    for br in range(2):
        E.barrier()
        stamp(E, 9) if br == 0 else None
        of = OF + 32 * br
        loads = []
        for hl in range(8):
            loads.append(f"buffer_load_dwordx4 {vr(of + 4 * hl, 4)}, v{vA0 if hl < 4 else vA1}, {sr(SWS, 4)}, s{sT2} offen offset:{1024 * (hl & 3)} sc1")
        regs = list(range(of, of + 32))
        if br == 0:
            loads.append(f"buffer_load_dword v{vGV}, v{vA2}, {sr(SWS, 4)}, 0 offen sc1")
            regs.append(vGV)
        E(f"s_mov_b32 s{sT2}, {WS_OB if br else 0}")
        poll_loop(E, loads, regs, "o", TMP)
        stamp(E, 10 + 2 * br)
        if br == 1:
            for c in range(4):
                E(vadd_imm(vWO + c, WOB_BASE - WOA_BASE))
        for hl in range(8):
            wf = WF + 16 * (hl & 1)
            for c in range(4):
                for j in range(2):
                    E(f"ds_read_b64_tr_b16 {vr(wf + 4 * c + 2 * j, 2)}, v{vWO + (c ^ (2 * (hl & 1)))} offset:{3584 * hl + 2048 * j}")
            for c in range(4):
                acc = AC[br] + 4 * c
                E(f"v_mfma_f32_16x16x32_bf16 {vr(acc, 4)}, {vr(wf + 4 * c, 4)}, {vr(of + 4 * hl, 4)}, {'0' if hl == 0 else vr(acc, 4)}")
        stamp(E, 11 + 2 * br)
    E(f"s_lshl_b32 s{sT2}, s{sWV}, 12")
    E(f"s_add_u32 s{sT2}, s{sT2}, {XB3}")
    E(f"v_add_u32 v{vA0}, s{sT2}, v{vL16B}")
    E(f"s_xor_b32 s{sT2}, s{sWV}, 4")
    E(f"s_lshl_b32 s{sT2}, s{sT2}, 12")
    E(f"s_add_u32 s{sT2}, s{sT2}, {XB3}")
    E(f"v_add_u32 v{vA1}, s{sT2}, v{vL16B}")
    E(f"v_mul_u32_u24 v{vA2}, 896, v{vROW}")
    E(f"v_lshl_add_u32 v{vA2}, v{vG}, 3, v{vA2}")
    E(f"s_lshl_b32 s{sT2}, s{sCT}, 7")
    E(f"v_add_u32 v{vA2}, s{sT2}, v{vA2}")
    E(f"s_lshl_b32 s{sT2}, s{kh}, 6")
    E(f"v_add_u32 v{vA2}, s{sT2}, v{vA2}")
    Lk1 = newlabel("k1"); Lk = newlabel("kd")
    KEEP, RC, tp, omg = 16, 32, 48, 56
    E(f"s_cmp_eq_u32 s{kh}, 0")
    E.flush_haz()
    E(f"s_cbranch_scc0 {Lk1}")
    for khv in range(2):
        keep = [2 * khv, 2 * khv + 1]; send = [2 - 2 * khv, 3 - 2 * khv]
        for br in range(2):
            for i, c in enumerate(send):
                E(f"ds_write_b128 v{vA0}, {vr(AC[br] + 4 * c, 4)} offset:{2048 * br + 1024 * i}")
            for i, c in enumerate(keep):
                for r in range(4):
                    E(f"v_mov_b32 v{KEEP + 8 * br + 4 * i + r}, v{AC[br] + 4 * c + r}")
        if khv == 0:
            E.flush_haz()
            E(f"s_branch {Lk}")
            E.label(Lk1)
    E.label(Lk)
    E.force_wait(lgkm=0)
    E.barrier()
    for br in range(2):
        for i in range(2):
            E(f"ds_read_b128 {vr(RC + 8 * br + 4 * i, 4)}, v{vA1} offset:{2048 * br + 1024 * i}")
    E(f"v_sub_f32 v{omg}, 1.0, v{vGV}")
    if OPT["round_final"]:
        E(f"v_cvt_pk_bf16_f32 v{omg + 1}, v{omg}, v{omg}")
        E(f"v_lshlrev_b32 v{omg}, 16, v{omg + 1}")
    for i in range(16):
        E(f"v_add_f32 v{KEEP + i}, v{KEEP + i}, v{RC + i}")
    if OPT["round_final"]:
        E(round_pairs(KEEP, KEEP, 16, tp))
        for i in range(8):
            E(f"v_mul_f32 v{KEEP + i}, v{KEEP + i}, v{vGV}")
            E(f"v_mul_f32 v{KEEP + 8 + i}, v{KEEP + 8 + i}, v{omg}")
        E(round_pairs(KEEP, KEEP, 16, tp))
        for i in range(8):
            E(f"v_add_f32 v{KEEP + i}, v{KEEP + i}, v{KEEP + 8 + i}")
    else:
        for i in range(8):
            E(f"v_mul_f32 v{KEEP + i}, v{KEEP + i}, v{vGV}")
            E(f"v_fmac_f32 v{KEEP + i}, v{KEEP + 8 + i}, v{omg}")
    for i in range(4):
        E(f"v_cvt_pk_bf16_f32 v{tp + i}, v{KEEP + 2 * i}, v{KEEP + 2 * i + 1}")
    for i in range(2):
        E(f"buffer_store_dwordx2 {vr(tp + 2 * i, 2)}, v{vA2}, {sr(SOUT, 4)}, 0 offen offset:{32 * i}")
    stamp(E, 14)
    E.label("L_fin")
    if OPT["stamps"]:
        Lz = newlabel("st")
        E(f"s_cmp_lg_u32 s{sWV}, 0")
        E(f"s_cbranch_scc1 {Lz}")
        E.force_wait(vm=0, lgkm=0)
        E(f"s_lshl_b32 s{sT0}, s2, 7")
        E(f"s_add_u32 s{sT0}, s{sT0}, {WS_ST}")
        E(f"v_mov_b32 v{vA0}, s{sT0}")
        E("s_mov_b64 exec, 1")
        for i in range(15):
            E(f"v_mov_b32 v{TMP}, s{sSTAMP + 2 * i}")
            E(f"v_mov_b32 v{TMP + 1}, s{sSTAMP + 2 * i + 1}")
            E(f"buffer_store_dwordx2 {vr(TMP, 2)}, v{vA0}, {sr(SWS, 4)}, 0 offen offset:{8 * i}")
            E.force_wait(vm=0)
        E.label(Lz)

def main():
    hdr = open("cdna_kernels/" + NAME + ".s.ref").read().split("; Override launch geometry")[0]
    E.raw(hdr.rstrip())
    E.raw(f"; @launch grid=(256,1,1) block=(768,1,1) lds={LDS_BYTES}")
    E.raw('.amdgcn_target "amdgcn-amd-amdhsa--gfx950"')
    E.raw(".text")
    E.raw(f".globl {NAME}_kernel")
    E.raw(".p2align 8")
    E.raw(f".type {NAME}_kernel,@function")
    E.raw(f"{NAME}_kernel:")
    prologue(E)
    E(f"s_cmp_eq_u32 s{sBR}, 0")
    E.flush_haz()
    E("s_cbranch_scc0 L_B")
    E(f"s_cmp_eq_u32 s{sWV}, 11")
    E("s_cbranch_scc1 L_A_ld3")
    E(f"s_cmp_ge_u32 s{sWV}, 8")
    E("s_cbranch_scc1 L_A_ld")
    E(f"s_cmp_lt_u32 s{sWV}, 2")
    E("s_cbranch_scc1 L_A_halo")
    E("s_branch L_A_main")
    E.label("L_B")
    E(f"s_cmp_eq_u32 s{sWV}, 11")
    E("s_cbranch_scc1 L_B_ld3")
    E(f"s_cmp_ge_u32 s{sWV}, 8")
    E("s_cbranch_scc1 L_B_ld")
    E("s_branch L_B_main")
    for name, fn in (("L_A_ld", lambda: loader(E, "A", False)), ("L_A_ld3", lambda: loader(E, "A", True)),
                     ("L_B_ld", lambda: loader(E, "B", False)), ("L_B_ld3", lambda: loader(E, "B", True))):
        E.label(name); E.vmq = []; E.lgq = []
        fn()
    for name, fn in (("L_A_main", lambda: cons_A(E, False)), ("L_A_halo", lambda: cons_A(E, True)), ("L_B_main", lambda: cons_B(E))):
        E.label(name); E.vmq = []; E.lgq = []
        fn()
        E.wait(lgkm=0)
        E.flush_haz()
        E("s_branch L_p3")
    phase3(E)
    E.label("L_end")
    E("s_endpgm")
    E.raw('.section .rodata,"a"')
    E.raw(".p2align 6")
    E.raw(f".amdhsa_kernel {NAME}_kernel")
    E.raw(f"  .amdhsa_next_free_vgpr {NVGPR}")
    E.raw("  .amdhsa_next_free_sgpr 102")
    E.raw(f"  .amdhsa_accum_offset {NVGPR}")
    E.raw("  .amdhsa_group_segment_fixed_size 0")
    E.raw("  .amdhsa_kernarg_size 88")
    E.raw("  .amdhsa_user_sgpr_count 2")
    E.raw("  .amdhsa_user_sgpr_kernarg_segment_ptr 1")
    E.raw("  .amdhsa_system_sgpr_workgroup_id_x 1")
    E.raw(".end_amdhsa_kernel")
    txt = E.text()
    import re
    mx = max(int(x) for x in re.findall(r"\bv\[?(\d+)", txt) + re.findall(r"\bv\[\d+:(\d+)\]", txt))
    assert mx < NVGPR, mx
    open(sys.argv[1], "w").write(txt)
    print("instructions:", E.nins, "max vgpr", mx)

main()
```

```python
import sys, struct, math
from asmlib import *

NAME = "gated_mix__sliding_local_dilated__linear_kernel_hedgehog__prompt"
OPT = dict(stamps=0, fine=0, round_final=1, pf=1, flag_at=5, ahead=2, nov=4, fill=5, mfsum=1, prio=1, pkfma=2, gat=90, no_comp=0, no_load=0, no_clr=0, lead=2)
for a in sys.argv[2:]:
    k, v = a.split("=")
    OPT[k] = int(v) if v.lstrip("-").isdigit() else v

LDS_BYTES = 163840
PHI_STRIDE, V_STRIDE = 264, 72
WS_OA, WS_OB, WS_KVP, WS_G, WS_ST = 0, 2 << 20, 4 << 20, 5 << 20, 8 << 20
WS_BYTES = 16 << 20
SPIN_MAX = 30000
SEGCOL = {"Q": 0, "K": 1, "V": 2}
SEGI = {"K": 0, "V": 1, "Q": 2}
WOA_BASE, WOB_BASE, XB3 = 57856, 0, 115712
B_SS = 39936
B_STAGES = [dict(m=m, segs=["K", "V", "Q"], base=B_SS * (m % 4)) for m in range(7)]
for i, st in enumerate(B_STAGES):
    prev = [j for j in range(i) if B_STAGES[j]["base"] == st["base"]]
    st["after"] = (prev[-1] + 2) if prev else -1
B_WPH = 159744
PHI_BASE = 0
VB = [128 * PHI_STRIDE, 128 * PHI_STRIDE + 128 * V_STRIDE]
KVF = 143360
A_SS = 39936
A_STAGES = [dict(m=m, segs=["K", "V", "Q"], base=A_SS * (m % 4)) for m in range(7)]
for i, st in enumerate(A_STAGES):
    prev = [j for j in range(i) if A_STAGES[j]["base"] == st["base"]]
    st["after"] = (prev[-1] + 2) if prev else -1
A_GATE = 159744
A_EXCH = XB3
def woff(br, k):
    return 18432 + 7168 * k

def f2u(x): return struct.unpack("<I", struct.pack("<f", x))[0]
LOG2E = f2u(1.4426950408889634)
SCALE = f2u(28 ** -0.5)

SX, SW, SWS, SDBG, SAUX, SWOA, SWOB, SOUT = 8, 12, 16, 20, 24, 28, 32, 36
sRB, sHP, sBR, sWV, sT, sCT, sJ, sT0, sT1, sM0 = 40, 41, 42, 43, 44, 45, 46, 47, 48, 49
sMASK = 50
sG3 = 66
sL2E, sSCL, sSPIN, sT2 = 68, 69, 70, 71
sKA = 72
sSTAMP = 72
sRG, sHH, s16K, sMP = 3, 4, 5, 6
sHIM = sG3 + 1

NVGPR = 168
vLANE, vL16, vG, vL16B = 0, 1, 2, 3
vXR, vTR, vPADB, vOOFF = 4, 6, 7, 8
vA0, vA1, vA2, vA3 = 9, 10, 11, 12
vSL, vXRH = 13, 13
ACC = [16, 32, 48]
T0 = 152

E = Emitter()
lblc = [0]
def newlabel(p):
    lblc[0] += 1
    return f"L_{p}_{lblc[0]}"

def stamp(E, idx, fine=False):
    if OPT["stamps"] and (idx == 0 or bool(OPT["fine"]) == fine):
        E(f"s_memrealtime {sr(sSTAMP + 2 * idx, 2)}")

def srd(E, d, lo, nbytes):
    E(f"s_mov_b32 s{d}, s{lo}")
    E(f"s_and_b32 s{d+1}, s{lo+1}, 0xffff")
    E(f"s_mov_b32 s{d+2}, {nbytes}")
    E(f"s_mov_b32 s{d+3}, 0x20000")

def dual_reduce(a, b, t, op):
    return [
        f"v_permlane32_swap_b32 v{a}, v{b}",
        f"{op} v{a}, v{a}, v{b}",
        f"v_mov_b32 v{t}, v{a}",
        f"v_permlane16_swap_b32 v{a}, v{t}",
        f"{op} v{a}, v{a}, v{t}",
        f"v_mov_b32 v{b}, v{a}",
        f"v_permlane32_swap_b32 v{a}, v{b}",
    ]

def round_pairs(src, dst, n, tmp):
    out = []
    for i in range(0, n, 2):
        out.append(f"v_cvt_pk_bf16_f32 v{tmp + i // 2}, v{src + i}, v{src + i + 1}")
    for i in range(0, n, 2):
        out.append(f"v_lshlrev_b32 v{dst + i}, 16, v{tmp + i // 2}")
        out.append(f"v_and_b32 v{dst + i + 1}, s{sHIM}, v{tmp + i // 2}")
    return out

def pack_op(acc, dst, zero_pad=True):
    out = [f"v_cvt_pk_bf16_f32 v{dst + i}, v{acc + 2 * i}, v{acc + 2 * i + 1}" for i in range(4)]
    if zero_pad:
        out += [f"v_cndmask_b32 v{dst + 2}, v{dst + 2}, 0, {sr(sG3, 2)}", f"v_cndmask_b32 v{dst + 3}, v{dst + 3}, 0, {sr(sG3, 2)}"]
    return out

def interleave_front(mm, rd):
    out = []
    n = max(1, (len(mm) * 3) // 4)
    j = 0
    for i, x in enumerate(mm):
        tgt = min(len(rd), ((i + 1) * len(rd) + n - 1) // n)
        while j < tgt:
            out.append(rd[j]); j += 1
        out.append(x)
    out += rd[j:]
    return out

def vadd_imm(reg, delta):
    if delta == 0:
        return []
    return [f"v_add_u32 v{reg}, {delta & 0xffffffff:#x}, v{reg}"]

def prologue(E):
    E("s_cmp_ge_u32 s2, 256")
    E("s_cbranch_scc1 L_end")
    E(f"s_load_dwordx16 {sr(sKA, 16)}, s[0:1], 0")
    E(f"s_load_dwordx4 {sr(sKA + 16, 4)}, s[0:1], 64")
    E(f"s_load_dwordx2 {sr(sKA + 20, 2)}, s[0:1], 80")
    E(f"v_lshrrev_b32 v{T0}, 6, v0")
    E(f"v_and_b32 v{vLANE}, 63, v0")
    E(f"v_readfirstlane_b32 s{sWV}, v{T0}")
    E(f"s_and_b32 s{sT0}, s2, 7")
    E(f"s_lshr_b32 s{sJ}, s2, 3")
    E(f"s_lshr_b32 s{sBR}, s{sJ}, 4")
    E(f"s_xor_b32 s{sBR}, s{sBR}, 1")
    E(f"s_and_b32 s{sRB}, s{sT0}, 3")
    E(f"s_lshl_b32 s{sRB}, s{sRB}, 2")
    E(f"s_bfe_u32 s{sT1}, s{sJ}, 0x20002")
    E(f"s_add_u32 s{sRB}, s{sRB}, s{sT1}")
    E(f"s_lshr_b32 s{sHP}, s{sT0}, 2")
    E(f"s_lshl_b32 s{sHP}, s{sHP}, 2")
    E(f"s_and_b32 s{sT1}, s{sJ}, 3")
    E(f"s_add_u32 s{sHP}, s{sHP}, s{sT1}")
    E(f"s_mul_i32 s{sT1}, s{sJ}, 37")
    E(f"s_lshr_b32 s{sT1}, s{sT1}, 8")
    E(f"s_lshl_b32 s{sT}, s{sT0}, 2")
    E(f"s_add_u32 s{sT}, s{sT}, s{sT1}")
    E(f"s_mul_i32 s{sT1}, s{sT1}, 7")
    E(f"s_sub_u32 s{sCT}, s{sJ}, s{sT1}")
    E(f"s_lshr_b32 s{sRG}, s{sWV}, 1")
    E(f"s_and_b32 s{sHH}, s{sWV}, 1")
    E(f"v_and_b32 v{vL16}, 15, v{vLANE}")
    E(f"v_lshrrev_b32 v{vG}, 4, v{vLANE}")
    E(f"v_lshlrev_b32 v{vL16B}, 4, v{vLANE}")
    E(f"s_mov_b32 s{sG3}, 0")
    E(f"s_mov_b32 s{sG3+1}, 0xffff0000")
    E(f"s_mov_b32 s{sL2E}, {LOG2E:#x}")
    E(f"s_mov_b32 s{sSCL}, {SCALE:#x}")

def srds(E):
    E.force_wait(lgkm=0)
    K = sKA
    srd(E, SX, K + 0, 2048 * 896)
    E(f"s_cmp_eq_u32 s{sBR}, 0")
    E(f"s_cselect_b32 s{sT0}, s{K+2}, s{K+8}")
    E(f"s_cselect_b32 s{sT1}, s{K+3}, s{K+9}")
    srd(E, SW, sT0, 448 * 2688)

def srds2(E):
    K = sKA
    E(f"s_mov_b32 s{sT2}, 25088")
    E(f"s_cmp_eq_u32 s{sBR}, 0")
    E(f"s_cselect_b32 s{sT0}, s{K+14}, s{K+10}")
    E(f"s_cselect_b32 s{sT1}, s{K+15}, s{K+11}")
    E(f"s_cselect_b32 s{sT2}, 896, s{sT2}")
    E(f"s_mov_b32 s{SAUX}, s{sT0}")
    E(f"s_and_b32 s{SAUX+1}, s{sT1}, 0xffff")
    E(f"s_mov_b32 s{SAUX+2}, s{sT2}")
    E(f"s_mov_b32 s{SAUX+3}, 0x20000")
    srd(E, SWS, K + 20, WS_BYTES)
    srd(E, SWOA, K + 4, 448 * 896)
    srd(E, SWOB, K + 12, 448 * 896)
    srd(E, SOUT, K + 16, 2048 * 896)
    srd(E, SDBG, K + 18, 256)

def stamps_init(E):
    if OPT["stamps"]:
        stamp(E, 0)
        for i in range(1, 15):
            E(f"s_mov_b64 {sr(sSTAMP + 2 * i, 2)}, 0")

def prefetch(E):
    K = sKA
    SP = sMASK + 2
    t0, t1, t2, t3 = T0, T0 + 1, T0 + 2, T0 + 3
    Lx = newlabel("pfx"); Ld = newlabel("pfd")
    E(f"s_cmp_ge_u32 s{sWV}, 6")
    E.flush_haz()
    E(f"s_cbranch_scc1 {Lx}")
    E(f"s_cmp_lt_u32 s{sWV}, 3")
    E(f"s_cselect_b32 s{sT0}, s{K+2}, s{K+8}")
    E(f"s_cselect_b32 s{sT1}, s{K+3}, s{K+9}")
    E(f"s_cselect_b32 s{sT2}, 0, 3")
    srd(E, SP, sT0, 448 * 2688)
    E(f"s_sub_u32 s{sT2}, s{sWV}, s{sT2}")
    E(f"s_lshl_b32 s{sT2}, s{sT2}, 6")
    E(f"v_add_u32 v{t0}, s{sT2}, v{vLANE}")
    E(f"v_mul_u32_u24 v{t1}, 5462, v{t0}")
    E(f"v_lshrrev_b32 v{t1}, 16, v{t1}")
    E(f"v_mul_u32_u24 v{t2}, 12, v{t1}")
    E(f"v_sub_u32 v{t2}, v{t0}, v{t2}")
    E(f"v_lshrrev_b32 v{t3}, 2, v{t2}")
    E(f"v_and_b32 v{t2}, 3, v{t2}")
    E(f"s_mul_i32 s{sT2}, s{sJ}, 14")
    E(f"v_add_u32 v{t1}, s{sT2}, v{t1}")
    E(f"v_mul_u32_u24 v{t1}, 2688, v{t1}")
    E(f"v_mul_u32_u24 v{t3}, 896, v{t3}")
    E(f"v_lshl_add_u32 v{t2}, v{t2}, 7, v{t3}")
    E(f"s_lshr_b32 s{sT2}, s{sHP}, 2")
    E(f"s_mul_i32 s{sT2}, s{sT2}, 384")
    E(f"v_add3_u32 v{t1}, v{t1}, v{t2}, s{sT2}")
    E(f"v_mov_b32 v{t2}, 0x1000000")
    E(f"v_cmp_gt_u32 vcc, 168, v{t0}")
    E(f"v_cndmask_b32 v{t1}, v{t2}, v{t1}, vcc")
    E(f"buffer_load_dword v15, v{t1}, {sr(SP, 4)}, 0 offen")
    E.flush_haz()
    E(f"s_branch {Ld}")
    E.label(Lx)
    E(f"s_sub_u32 s{sT2}, s{sWV}, 6")
    E(f"s_lshl_b32 s{sT2}, s{sT2}, 6")
    E(f"v_add_u32 v{t0}, s{sT2}, v{vLANE}")
    E(f"s_mul_i32 s{sT2}, s{sJ}, 112")
    E(f"s_lshr_b32 s{sT1}, s{sRB}, 2")
    E(f"s_mul_i32 s{sT1}, s{sT1}, 3584")
    E(f"s_add_u32 s{sT2}, s{sT2}, s{sT1}")
    E(f"v_add_u32 v{t1}, s{sT2}, v{t0}")
    E(f"v_lshlrev_b32 v{t1}, 7, v{t1}")
    E(f"v_mov_b32 v{t2}, 0x1000000")
    E(f"v_cmp_gt_u32 vcc, 112, v{t0}")
    E(f"v_cndmask_b32 v{t1}, v{t2}, v{t1}, vcc")
    E(f"buffer_load_dword v15, v{t1}, {sr(SX, 4)}, 0 offen")
    E.label(Ld)
    E.vmq = [{"dst": set(), "tag": "PF"}]

def flag_store(E, val, t0, t1, base=0):
    E(f"s_lshl_b32 s{sT0}, s{sRB}, 3")
    E(f"s_add_u32 s{sT0}, s{sT0}, s{sHP}")
    if base:
        E(f"s_add_u32 s{sT0}, s{sT0}, {base}")
    E(f"v_mov_b32 v{t0}, s{sT0}")
    E(f"v_mov_b32 v{t1}, {val}")
    E("s_mov_b64 exec, 1")
    E(f"buffer_store_byte v{t1}, v{t0}, {sr(SDBG, 4)}, 0 offen sc1")
    E("s_mov_b64 exec, -1")

def spin_tail(E, L, Ld, sleep=2):
    E(f"s_cbranch_vccz {Ld}")
    E(f"s_add_u32 s{sSPIN}, s{sSPIN}, 1")
    E(f"s_cmp_lt_u32 s{sSPIN}, {SPIN_MAX}")
    E(f"s_cbranch_scc0 {Ld}")
    E(f"s_sleep {sleep}")
    E(f"s_branch {L}")
    E.label(Ld)

def flags_wait_all(E, t0, t1, base=0):
    L = newlabel("fl"); Ld = newlabel("fld")
    E(f"v_and_b32 v{t0}, 31, v{vLANE}")
    E(f"v_lshlrev_b32 v{t0}, 2, v{t0}")
    E(f"s_mov_b32 s{sSPIN}, 0")
    E(f"s_mov_b32 s{sT1}, 0x01010101")
    E.label(L)
    E(f"buffer_load_dword v{t1}, v{t0}, {sr(SDBG, 4)}, 0 offen offset:{base} sc1")
    E.force_wait(vm=0)
    E(f"v_cmp_ne_u32 vcc, s{sT1}, v{t1}")
    spin_tail(E, L, Ld, sleep=40)

def check_regs(E, regs, tmp):
    rs = list(regs)
    E(f"v_max_u32 v{tmp}, v{rs[0]}, v{rs[1]}")
    rest = rs[2:]
    while len(rest) >= 2:
        E(f"v_max3_u32 v{tmp}, v{tmp}, v{rest[0]}, v{rest[1]}"); rest = rest[2:]
    if rest:
        E(f"v_max_u32 v{tmp}, v{tmp}, v{rest[0]}")
    E(f"v_cmp_eq_u32 vcc, -1, v{tmp}")

def poll_loop(E, loads, regs, name, tmp, pre_issued=False):
    L = newlabel(name); Lc = newlabel(name + "c"); Ld = newlabel(name + "d")
    E(f"s_mov_b32 s{sSPIN}, 0")
    if pre_issued:
        E.flush_haz()
        E(f"s_branch {Lc}")
    E.label(L)
    E(loads)
    E.label(Lc)
    E.force_wait(vm=0)
    check_regs(E, regs, tmp)
    spin_tail(E, L, Ld)

def cons_setup(E, br):
    t0, t1, t2 = T0, T0 + 1, T0 + 2
    E(f"v_bfe_u32 v{t0}, v{vLANE}, 2, 2")
    E(f"v_and_b32 v{t1}, 3, v{vLANE}")
    E(f"v_lshlrev_b32 v{t2}, 3, v{vG}")
    E(f"v_lshl_add_u32 v{t2}, v{t0}, 1, v{t2}")
    E(f"v_mul_u32_u24 v{t2}, 112, v{t2}")
    E(f"v_lshl_add_u32 v{vTR}, v{t1}, 3, v{t2}")
    E(f"s_mul_i32 s{sT0}, s{sHH}, 56")
    E(f"v_add_u32 v{vTR}, s{sT0}, v{vTR}")
    E(f"v_lshrrev_b32 v{t0}, 1, v{vL16}")
    E(f"v_xor_b32 v{t0}, v{t0}, v{vG}")
    E(f"v_lshlrev_b32 v{t0}, 4, v{t0}")
    E(f"v_lshl_add_u32 v{t0}, v{vL16}, 7, v{t0}")
    E(f"s_lshl_b32 s{sT0}, s{sRG}, 12")
    E(f"v_add_u32 v{vXR}, s{sT0}, v{t0}")
    E(f"v_xor_b32 v{vXR+1}, 64, v{vXR}")
    E(f"s_lshl_b32 s{sT0}, s{sRB}, 3")
    E(f"s_lshl_b32 s{sT1}, s{sRG}, 1")
    E(f"s_add_u32 s{sT0}, s{sT0}, s{sT1}")
    E(f"s_lshl_b32 s{sT0}, s{sT0}, 4")
    E(f"s_lshl_b32 s{sT1}, s{sHP}, 1")
    E(f"s_add_u32 s{sT0}, s{sT0}, s{sT1}")
    E(f"s_add_u32 s{sT0}, s{sT0}, s{sHH}")
    E(f"s_lshl_b32 s{sT0}, s{sT0}, 10")
    E(f"s_lshl_b32 s{sT1}, s{sBR}, 21")
    E(f"s_add_u32 s{sT0}, s{sT0}, s{sT1}")
    E(f"v_add_u32 v{vOOFF}, s{sT0}, v{vL16B}")
    E(f"s_mov_b32 s{s16K}, 16384")

def ostore(reg, u):
    return f"buffer_store_dwordx4 {vr(reg, 4)}, v{vOOFF}, {sr(SWS, 4)}, {'0' if u == 0 else 's' + str(s16K)} offen sc1"

class Cons:
    def __init__(self, E, br, stages, buf0, bufsz, nbuf, halo=False, HACC=None):
        self.E, self.br, self.stages = E, br, stages
        self.buf0, self.bufsz, self.nbuf, self.halo, self.HACC = buf0, bufsz, nbuf, halo, HACC
        self.cur_base = 0
        self.ks = 0; self.pending = []
        self.nbar = 0
        self.prebar = None

    def parts(self, s, tt, buf):
        st = self.stages[s]; m = st["m"]; t = 2 * m + tt
        first = t == 0
        B0 = self.buf0 + self.bufsz * buf
        rd, mm = [], []
        xr = [B0, B0 + 4]
        for u in range(2):
            rd.append(f"ds_read_b128 {vr(xr[u], 4)}, v{vXR + tt} offset:{2048 * u}")
        wb = B0 + 8
        if self.halo:
            hx = B0 + 8; wb = B0 + 12
            rd.append(f"ds_read_b128 {vr(hx, 4)}, v{vXR + tt} offset:16384")
        elif self.br == "A":
            wb = B0 + 12
        for k, seg in enumerate(st["segs"]):
            si = SEGI[seg]
            tr = not (self.br == "A" and seg == "V")
            for c in range(2):
                wf = wb + 8 * k + 4 * c
                for j in range(2):
                    rd.append(f"ds_read_b64_tr_b16 {vr(wf + 2 * j, 2)}, v{vTR} offset:{woff(self.br, k) + 3584 * tt + 112 * j + 32 * c}")
                for u in range(2):
                    acc = ACC[si] + 8 * u + 4 * c
                    a_, b_ = (vr(wf, 4), vr(xr[u], 4)) if tr else (vr(xr[u], 4), vr(wf, 4))
                    mm.append(f"v_mfma_f32_16x16x32_bf16 {vr(acc, 4)}, {a_}, {b_}, {'0' if first else vr(acc, 4)}")
                if self.halo and seg != "Q":
                    acc = self.HACC + 8 * si + 4 * c
                    a_, b_ = (vr(wf, 4), vr(hx, 4)) if tr else (vr(hx, 4), vr(wf, 4))
                    mm.append(f"v_mfma_f32_16x16x32_bf16 {vr(acc, 4)}, {a_}, {b_}, {'0' if first else vr(acc, 4)}")
        if OPT["no_comp"] == 1:
            return [], []
        if OPT["no_comp"] == 2:
            return rd, []
        if OPT["no_comp"] == 3:
            return [], mm
        return rd, mm

    def run(self, s0, s1):
        E = self.E
        prev = []
        for ks in range(2 * s0, 2 * s1 + 2):
            s, tt = divmod(ks, 2)
            pre = []
            if tt == 0:
                nlead = min(OPT["lead"], len(prev))
                E(prev[:nlead]); prev = prev[nlead:]
                if self.prebar:
                    self.prebar(E, s)
                E.barrier(lgkm0=False)
                self.nbar += 1
                if self.nbar <= 14:
                    stamp(E, self.nbar, fine=True)
                if OPT["stamps"] and OPT["fine"] and self.nbar in (2, 7):
                    E(f"s_memtime {sr(sSTAMP + 2 * (12 if self.nbar == 2 else 13), 2)}")
                d = self.stages[s]["base"] - self.cur_base
                self.cur_base = self.stages[s]["base"]
                for r in (vXR, vXR + 1, vTR):
                    E(vadd_imm(r, d))
            rd, mm = self.parts(s, tt, ks % 2)
            if prev:
                E(interleave_front(prev, rd))
            else:
                E(rd)
            prev = mm
        E(prev)

vL2E = 162
ONES = 164
def phi_path(si, outreg, tmps, WP):
    streams = []
    for u in range(2):
        T = tmps[u]
        P = ACC[si] + 8 * u
        op, pk, Ep, Em = T, T, P, T + 4
        mx, mn, mx1, mn1 = T + 12, T + 13, T + 14, T + 15
        t = T
        O = outreg + 8 * u
        o = []
        o += pack_op(P, op)
        for ft in range(2):
            o.append(f"v_mfma_f32_16x16x32_bf16 {vr(P + 4 * ft, 4)}, {vr(WP + 4 * ft, 4)}, {vr(op, 4)}, 0")
        o += round_pairs(P, P, 8, pk)
        o.append(f"v_max3_f32 v{mx}, v{P}, v{P+1}, v{P+2}")
        o.append(f"v_min3_f32 v{mn}, v{P}, v{P+1}, v{P+2}")
        o.append(f"v_max3_f32 v{mx}, v{mx}, v{P+3}, v{P+4}")
        o.append(f"v_min3_f32 v{mn}, v{mn}, v{P+3}, v{P+4}")
        o.append(f"v_max3_f32 v{mx}, v{mx}, v{P+5}, v{P+6}")
        o.append(f"v_min3_f32 v{mn}, v{mn}, v{P+5}, v{P+6}")
        o.append(f"v_max_f32 v{mx}, v{mx}, v{P+7}")
        o.append(f"v_max_f32 v{mn}, -v{mn}, -v{P+7}")
        o += dual_reduce(mx, mn, t, "v_max_f32")
        o.append(f"v_mul_f32 v{mx}, s{sL2E}, v{mx}")
        o.append(f"v_mul_f32 v{mn}, s{sL2E}, v{mn}")
        o.append(f"v_add_f32 v{mx1}, v{mx}, v{vPADB}")
        o.append(f"v_add_f32 v{mn1}, v{mn}, v{vPADB}")
        for i in (range(8) if not OPT["pkfma"] else []):
            o.append(f"v_fma_f32 v{Em+i}, -v{P+i}, s{sL2E}, -v{mn if i < 4 else mn1}")
            o.append(f"v_fma_f32 v{Ep+i}, v{P+i}, s{sL2E}, -v{mx if i < 4 else mx1}")
        for i in (range(0, 8, 2) if OPT["pkfma"] else []):
            mm_ = vr(mx if i < 4 else mx1, 2)
            if OPT["pkfma"] == 2:
                o.append(f"v_pk_fma_f32 {vr(Em+i, 2)}, {vr(P+i, 2)}, {vr(vL2E, 2)}, {mm_} op_sel:[0,0,1] op_sel_hi:[1,1,1] neg_lo:[1,0,1] neg_hi:[1,0,1]")
                o.append(f"v_pk_fma_f32 {vr(Ep+i, 2)}, {vr(P+i, 2)}, {vr(vL2E, 2)}, {mm_} op_sel_hi:[1,1,0] neg_lo:[0,0,1] neg_hi:[0,0,1]")
                continue
            o.append(f"v_pk_fma_f32 {vr(Em+i, 2)}, {vr(P+i, 2)}, {sr(sL2E, 2)}, {mm_} op_sel:[0,0,1] op_sel_hi:[1,0,1] neg_lo:[1,0,1] neg_hi:[1,0,1]")
            o.append(f"v_pk_fma_f32 {vr(Ep+i, 2)}, {vr(P+i, 2)}, {sr(sL2E, 2)}, {mm_} op_sel_hi:[1,0,0] neg_lo:[0,0,1] neg_hi:[0,0,1]")
        for i in range(8):
            o.append(f"v_exp_f32 v{Ep+i}, v{Ep+i}")
            o.append(f"v_exp_f32 v{Em+i}, v{Em+i}")
        if OPT["mfsum"]:
            for i in range(4):
                o.append(f"v_cvt_pk_bf16_f32 v{O + i}, v{Ep + 2 * i}, v{Ep + 2 * i + 1}")
                o.append(f"v_cvt_pk_bf16_f32 v{O + 4 + i}, v{Em + 2 * i}, v{Em + 2 * i + 1}")
            SP, SM = T, T + 12
            o.append(f"v_mfma_f32_16x16x32_bf16 {vr(SP, 4)}, {vr(ONES, 4)}, {vr(O, 4)}, 0")
            o.append(f"v_mfma_f32_16x16x32_bf16 {vr(SM, 4)}, {vr(ONES, 4)}, {vr(O + 4, 4)}, 0")
            sp, sm = SP, SM
        else:
            sp, sm = mx1, mn1
            o.append(f"v_add_f32 v{sp}, v{Ep}, v{Ep+1}")
            o.append(f"v_add_f32 v{sm}, v{Em}, v{Em+1}")
            for i in range(2, 8):
                o.append(f"v_add_f32 v{sp}, v{sp}, v{Ep+i}")
                o.append(f"v_add_f32 v{sm}, v{sm}, v{Em+i}")
            o += dual_reduce(sp, sm, t, "v_add_f32")
        o.append(f"v_rcp_f32 v{sp}, v{sp}")
        o.append(f"v_rcp_f32 v{sm}, v{sm}")
        for i in range(8):
            o.append(f"v_mul_f32 v{Ep+i}, v{Ep+i}, v{sp}")
            o.append(f"v_mul_f32 v{Em+i}, v{Em+i}, v{sm}")
        for i in range(4):
            o.append(f"v_cvt_pk_bf16_f32 v{O + i}, v{Ep + 2 * i}, v{Ep + 2 * i + 1}")
            o.append(f"v_cvt_pk_bf16_f32 v{O + 4 + i}, v{Em + 2 * i}, v{Em + 2 * i + 1}")
        streams.append(o)
    return interleave(streams[0], streams[1])

def cons_B(E):
    WP, PHI, BUF = 64, 72, 88
    cons_setup(E, "B")
    srds(E); srds2(E)
    if OPT["pf"]:
        prefetch(E)
    stamps_init(E)
    ones = PHI
    for i in range(4):
        E(f"v_mov_b32 v{ones + i}, -1")
        E(f"v_mov_b32 v{ONES + i}, 0x3f803f80")
    E(f"v_mov_b32 v{vL2E}, s{sL2E}"); E(f"v_mov_b32 v{vL2E + 1}, s{sL2E}")
    vKV = 14
    E(f"s_lshl_b32 s{sT0}, s{sHP}, 4")
    E(f"s_add_u32 s{sT0}, s{sT0}, s{sRB}")
    E(f"s_lshl_b32 s{sT0}, s{sT0}, 3")
    E(f"s_add_u32 s{sT0}, s{sT0}, s{sWV}")
    E(f"s_lshl_b32 s{sT0}, s{sT0}, 10")
    E(f"s_add_u32 s{sT0}, s{sT0}, {WS_KVP}")
    E(f"v_add_u32 v{vKV}, s{sT0}, v{vL16B}")
    E(f"v_mov_b32 v{vPADB}, 0")
    E(f"v_mov_b32 v{T0}, 0x7149f2ca")
    E(f"v_cndmask_b32 v{vPADB}, v{vPADB}, v{T0}, {sr(sG3, 2)}")
    E(f"s_lshl_b32 s{sT2}, s{sRG}, 5")
    E(f"v_add_u32 v{vSL}, s{sT2}, v{vL16}")
    E(f"v_mul_u32_u24 v{vA0}, {PHI_STRIDE}, v{vSL}")
    E(f"v_lshl_add_u32 v{vA0}, v{vG}, 3, v{vA0}")
    E(f"s_lshl_b32 s{sT2}, s{sHH}, 7")
    E(f"v_add_u32 v{vA0}, s{sT2}, v{vA0}")
    E(f"v_mul_u32_u24 v{vA1}, {V_STRIDE}, v{vSL}")
    E(f"v_lshl_add_u32 v{vA1}, v{vG}, 3, v{vA1}")
    E(f"s_mul_i32 s{sT0}, s{sHH}, {VB[1] - VB[0]}")
    E(f"s_add_u32 s{sT0}, s{sT0}, {VB[0]}")
    E(f"v_add_u32 v{vA1}, s{sT0}, v{vA1}")
    t0, t1 = T0, T0 + 1
    E(f"v_and_b32 v{t0}, 1, v{vG}")
    E(f"v_lshlrev_b32 v{t0}, 4, v{t0}")
    E(f"v_bfe_u32 v{t1}, v{vLANE}, 2, 2")
    E(f"v_lshl_add_u32 v{t0}, v{t1}, 2, v{t0}")
    E(f"v_lshrrev_b32 v{t1}, 1, v{vG}")
    E(f"v_lshl_add_u32 v{t0}, v{t1}, 1, v{t0}")
    E(f"v_and_b32 v{t1}, 3, v{vLANE}")
    E(f"v_lshlrev_b32 v{t1}, 3, v{t1}")
    E(f"s_lshr_b32 s{sT0}, s{sWV}, 1")
    E(f"s_lshl_b32 s{sT0}, s{sT0}, 6")
    E(f"v_mul_u32_u24 v{vA2}, {PHI_STRIDE}, v{t0}")
    E(f"v_add3_u32 v{vA2}, v{vA2}, v{t1}, s{sT0}")
    E(f"s_lshr_b32 s{sT0}, s{sWV}, 2")
    E(f"s_mul_i32 s{sT0}, s{sT0}, {VB[1] - VB[0]}")
    E(f"s_add_u32 s{sT0}, s{sT0}, {VB[0]}")
    E(f"s_and_b32 s{sT1}, s{sWV}, 1")
    E(f"s_lshl_b32 s{sT1}, s{sT1}, 5")
    E(f"s_add_u32 s{sT0}, s{sT0}, s{sT1}")
    E(f"v_mul_u32_u24 v{vA3}, {V_STRIDE}, v{t0}")
    E(f"v_add3_u32 v{vA3}, v{vA3}, v{t1}, s{sT0}")
    w1, w2 = T0 + 8, T0 + 9
    E(f"v_bfe_u32 v{t0}, v{vLANE}, 2, 2")
    E(f"v_lshl_add_u32 v{t0}, v{vG}, 2, v{t0}")
    E(f"v_mul_u32_u24 v{t0}, 56, v{t0}")
    E(f"s_mul_i32 s{sT2}, s{sHH}, 1568")
    E(f"s_add_u32 s{sT2}, s{sT2}, {B_WPH}")
    E(f"v_add_u32 v{t0}, s{sT2}, v{t0}")
    E(f"v_and_b32 v{t1}, 3, v{vLANE}")
    E(f"v_min_u32 v{w2}, 2, v{t1}")
    E(f"v_lshl_add_u32 v{w1}, v{t1}, 3, v{t0}")
    E(f"v_lshl_add_u32 v{w2}, v{w2}, 3, v{t0}")
    C = Cons(E, "B", B_STAGES, BUF, 32, 2)
    def prebar(E, s):
        if s == 3:
            for ft in range(2):
                for j in range(2):
                    E(f"ds_read_b64_tr_b16 {vr(WP + 4 * ft + 2 * j, 2)}, v{w1 if ft == 0 else w2} offset:{896 * j + 32 * ft}")
            for ft in range(2):
                for i in (2, 3):
                    r = WP + 4 * ft + i
                    E(f"v_cndmask_b32 v{r}, v{r}, 0, {sr(sG3, 2)}")
    C.prebar = prebar
    C.run(0, 6)
    stamp(E, 1)
    SCR = BUF + 32
    vp0 = T0
    F = [f"v_mov_b32 v{vp0 + 8}, 0x3f80"]
    for u in range(2):
        vp = vp0 + 4 * u
        F += pack_op(ACC[1] + 8 * u, vp, zero_pad=False)
        F.append(f"v_cndmask_b32 v{vp + 2}, v{vp + 2}, v{vp0 + 8}, {sr(sG3, 2)}")
        F.append(f"v_cndmask_b32 v{vp + 3}, v{vp + 3}, 0, {sr(sG3, 2)}")
    for u in range(2):
        for dt in range(2):
            F.append(f"ds_write_b64 v{vA1}, {vr(vp0 + 4 * u + 2 * dt, 2)} offset:{16 * V_STRIDE * u + 32 * dt}")
    body = phi_path(0, PHI, [SCR, SCR + 16], WP)
    E(body[:16]); E(F); E(body[16:])
    for u in range(2):
        for sg in range(2):
            for ft in range(2):
                E(f"ds_write_b64 v{vA0}, {vr(PHI + 8 * u + 4 * sg + 2 * ft, 2)} offset:{PHI_BASE + 16 * PHI_STRIDE * u + 64 * sg + 32 * ft}")
    stamp(E, 3)
    E.barrier()
    KA, KB_, KD = ACC[0], SCR, SCR + 16
    for ks in range(4):
        for j in range(2):
            E(f"ds_read_b64_tr_b16 {vr(KB_ + 4 * ks + 2 * j, 2)}, v{vA3} offset:{(32 * ks + j) * V_STRIDE}")
        for ft in range(2):
            for j in range(2):
                E(f"ds_read_b64_tr_b16 {vr(KA + 8 * ks + 4 * ft + 2 * j, 2)}, v{vA2} offset:{PHI_BASE + (32 * ks + j) * PHI_STRIDE + 32 * ft}")
        if ks >= 1:
            for ft in range(2):
                cin = "0" if ks == 1 else vr(KD + 4 * ft, 4)
                E(f"v_mfma_f32_16x16x32_bf16 {vr(KD + 4 * ft, 4)}, {vr(KA + 8 * (ks - 1) + 4 * ft, 4)}, {vr(KB_ + 4 * (ks - 1), 4)}, {cin}")
    for ft in range(2):
        E(f"v_mfma_f32_16x16x32_bf16 {vr(KD + 4 * ft, 4)}, {vr(KA + 24 + 4 * ft, 4)}, {vr(KB_ + 12, 4)}, {vr(KD + 4 * ft, 4)}")
    kp = T0
    E(pack_op(KD, kp, zero_pad=False))
    for i in range(4):
        E(f"v_min_u32 v{kp + i}, -2, v{kp + i}")
    E(f"buffer_store_dwordx4 {vr(kp, 4)}, v{vKV}, {sr(SWS, 4)}, 0 offen sc1")
    stamp(E, 4)
    E.barrier()
    G = BUF
    E(f"s_lshl_b32 s{sT0}, s{sHP}, 17")
    E(f"s_lshl_b32 s{sT1}, s{sWV}, 10")
    E(f"s_add_u32 s{sT0}, s{sT0}, s{sT1}")
    E(f"s_add_u32 s{sT0}, s{sT0}, {WS_KVP}")
    E(f"v_add_u32 v{vA1}, s{sT0}, v{vL16B}")
    loads = []
    for p in range(16):
        loads.append(f"s_mov_b32 s{sT0}, {8192 * p}")
        loads.append(f"buffer_load_dwordx4 {vr(G + 4 * p, 4)}, v{vA1}, {sr(SWS, 4)}, s{sT0} offen sc1")
    body = phi_path(2, PHI, [ACC[0], ACC[1]], WP)
    h = len(body) * OPT["gat"] // 100
    E(body[:h])
    E.barrier()
    stamp(E, 5)
    E(loads)
    E(body[h:])
    E(p3_setup(E))
    stamp(E, 6)
    SEL = T0 + 2
    SUM = ACC[0]
    t0_, t1_ = ACC[0] + 8, ACC[0] + 9
    E(f"v_lshrrev_b32 v{t0_}, 2, v{vL16}")
    E(f"v_cmp_eq_u32 vcc, v{t0_}, v{vG}")
    E(f"v_and_b32 v{t0_}, 1, v{vL16}")
    E(f"v_lshlrev_b32 v{t0_}, 4, v{t0_}")
    E(f"v_mov_b32 v{t1_}, 0x3f80")
    E(f"v_lshlrev_b32 v{t0_}, v{t0_}, v{t1_}")
    E(f"v_cndmask_b32 v{t0_}, 0, v{t0_}, vcc")
    E(f"v_and_b32 v{t1_}, 2, v{vL16}")
    E(f"v_cmp_eq_u32 vcc, 0, v{t1_}")
    for r in (SEL, SEL + 1, SEL + 4, SEL + 5):
        E(f"v_mov_b32 v{r}, 0")
    E(f"v_cndmask_b32 v{SEL + 2}, 0, v{t0_}, vcc")
    E(f"v_cndmask_b32 v{SEL + 3}, v{t0_}, 0, vcc")
    L = newlabel("kv"); Lc = newlabel("kvc"); Ld = newlabel("kvd")
    E(f"s_mov_b32 s{sSPIN}, 0")
    saved = list(E.vmq)
    E.flush_haz()
    E(f"s_branch {Lc}")
    E.label(L)
    E.vmq = []
    E(loads)
    E.label(Lc)
    chk = T0
    for p in range(16):
        g4 = G + 4 * p
        E(f"v_mfma_f32_16x16x32_bf16 {vr(SUM, 4)}, {vr(SEL + 2, 4)}, {vr(g4, 4)}, {'0' if p == 0 else vr(SUM, 4)}")
        E(f"v_mfma_f32_16x16x32_bf16 {vr(SUM + 4, 4)}, {vr(SEL, 4)}, {vr(g4, 4)}, {'0' if p == 0 else vr(SUM + 4, 4)}")
        if p == 0:
            E(f"v_max_u32 v{chk}, v{g4}, v{g4 + 1}")
        else:
            E(f"v_max3_u32 v{chk}, v{chk}, v{g4}, v{g4 + 1}")
        E(f"v_max3_u32 v{chk}, v{chk}, v{g4 + 2}, v{g4 + 3}")
    E(f"v_cmp_eq_u32 vcc, -1, v{chk}")
    spin_tail(E, L, Ld)
    stamp(E, 7)
    kf = ACC[0] + 8
    E(pack_op(SUM, kf, zero_pad=False))
    E(f"s_lshl_b32 s{sT0}, s{sWV}, 10")
    E(f"s_add_u32 s{sT0}, s{sT0}, {KVF}")
    E(f"v_add_u32 v{vA1}, s{sT0}, v{vL16B}")
    E(f"ds_write_b128 v{vA1}, {vr(kf, 4)}")
    E(f"s_lshl_b32 s{sT0}, s{sHH}, 12")
    E(f"s_add_u32 s{sT0}, s{sT0}, {KVF}")
    E(f"v_add_u32 v{vA1}, s{sT0}, v{vL16B}")
    E(f"v_lshlrev_b32 v{vA2}, 8, v{vG}")
    E(f"s_add_u32 s{sT0}, s{sT0}, {12 * 16}")
    E(f"v_add_u32 v{vA2}, s{sT0}, v{vA2}")
    E.barrier()
    KF, ZF, NUM = BUF, BUF + 16, BUF + 24
    for w in range(4):
        E(f"ds_read_b128 {vr(KF + 4 * w, 4)}, v{vA1} offset:{1024 * w}")
    for sg in range(2):
        E(f"ds_read_b128 {vr(ZF + 4 * sg, 4)}, v{vA2} offset:{1024 * (2 * sg + 1)}")
    pre_a = p3_loads(0)[0]
    for u in range(2):
        for dt in range(2):
            for sg in range(2):
                d = NUM + 12 * u + 4 * dt
                E(f"v_mfma_f32_16x16x32_bf16 {vr(d, 4)}, {vr(KF + 4 * (2 * sg + dt), 4)}, {vr(PHI + 8 * u + 4 * sg, 4)}, {'0' if sg == 0 else vr(d, 4)}")
        for sg in range(2):
            d = NUM + 12 * u + 8
            E(f"v_mfma_f32_16x16x32_bf16 {vr(d, 4)}, {vr(ZF + 4 * sg, 4)}, {vr(PHI + 8 * u + 4 * sg, 4)}, {'0' if sg == 0 else vr(d, 4)}")
    E(pre_a)
    st = []
    for u in range(2):
        n = NUM + 12 * u; dn = n + 8
        t = BUF + 48 + 8 * u
        o = []
        o += round_pairs(n, n, 8, t)
        o.append(f"v_cvt_pk_bf16_f32 v{t + 4}, v{dn}, v{dn}")
        o.append(f"v_lshlrev_b32 v{dn}, 16, v{t + 4}")
        o.append(f"v_add_f32 v{dn}, 0x358637bd, v{dn}")
        o.append(f"v_cvt_pk_bf16_f32 v{t + 4}, v{dn}, v{dn}")
        o.append(f"v_lshlrev_b32 v{dn}, 16, v{t + 4}")
        o.append(f"v_rcp_f32 v{dn}, v{dn}")
        for i in range(8):
            o.append(f"v_mul_f32 v{n + i}, v{n + i}, v{dn}")
        o += pack_op(n, t)
        for i in range(4):
            o.append(f"v_min_u32 v{t + i}, -2, v{t + i}")
        o.append(ostore(t, u))
        st.append(o)
    E(interleave(st[0], st[1]))
    stamp(E, 8)

def att_masks():
    ms = []
    for tile in range(2):
        for i in range(4):
            m = 0
            for lane in range(64):
                q, g = lane & 15, lane >> 4
                d = q - (4 * g + i) + (16 if tile == 0 else 0)
                if 0 <= d <= 14 and d % 2 == 0:
                    m |= 1 << lane
            ms.append(m)
    return ms

def cons_A(E, halo):
    HACC, BUF = 64, 80
    cons_setup(E, "A")
    srds(E); srds2(E)
    ones = T0 + 4
    for i in range(4):
        E(f"v_mov_b32 v{ones + i}, -1")
    E(f"s_lshl_b32 s{sT0}, s{sHP}, 4")
    E(f"s_add_u32 s{sT0}, s{sT0}, s{sRB}")
    E(f"s_lshl_b32 s{sT0}, s{sT0}, 3")
    E(f"s_add_u32 s{sT0}, s{sT0}, s{sWV}")
    E(f"s_lshl_b32 s{sT0}, s{sT0}, 10")
    E(f"s_add_u32 s{sT0}, s{sT0}, {WS_KVP}")
    E(f"v_add_u32 v{vA0}, s{sT0}, v{vL16B}")
    E(f"buffer_store_dwordx4 {vr(ones, 4)}, v{vA0}, {sr(SWS, 4)}, 0 offen sc1")
    if OPT["pf"]:
        prefetch(E)
    stamps_init(E)
    ms = att_masks()
    for i, m in enumerate(ms):
        E(f"s_mov_b32 s{sMASK + 2 * i}, {m & 0xffffffff:#x}")
        E(f"s_mov_b32 s{sMASK + 2 * i + 1}, {m >> 32:#x}")
    E(f"s_lshl_b32 s{sT0}, s{sWV}, 11")
    E(f"s_add_u32 s{sT0}, s{sT0}, {A_EXCH}")
    E(f"v_add_u32 v{vA1}, s{sT0}, v{vL16B}")
    E(f"v_lshl_add_u32 v{vA2}, v{vLANE}, 3, s{sT0}")
    C = Cons(E, "A", A_STAGES, BUF, 36, 2, halo=halo, HACC=HACC)
    def fl(E, base):
        Lf = newlabel("fs")
        E(f"s_cmp_lg_u32 s{sWV}, 0")
        E.flush_haz()
        E(f"s_cbranch_scc1 {Lf}")
        flag_store(E, 1, T0, T0 + 1, base)
        E.label(Lf)
    def prebar(E, s):
        if s == 0:
            E.force_wait(vm=1 if OPT["pf"] else 0)
        if s == 1 and halo:
            fl(E, 0)
        if s in (1, 2):
            E(f"s_mov_b32 s{sT0}, {WS_OB + 16384 * (s - 1)}")
            E(f"buffer_store_dwordx4 {vr(ones, 4)}, v{vOOFF}, {sr(SWS, 4)}, s{sT0} offen sc1")
            E(ostore(ones, s - 1))
        if s == 5:
            E.force_wait(vm=0)
        if s == 6 and halo:
            fl(E, 128)
    C.prebar = prebar
    C.run(0, 6)
    stamp(E, 1)
    KT, VV = BUF, BUF + 12
    for u in range(2):
        E(pack_op(ACC[0] + 8 * u, KT + 4 + 4 * u))
        for dt in range(2):
            a = ACC[1] + 8 * u + 4 * dt
            d = VV + 8 * u + 4 * dt + 2
            E(f"v_cvt_pk_bf16_f32 v{d}, v{a}, v{a + 1}")
            E(f"v_cvt_pk_bf16_f32 v{d + 1}, v{a + 2}, v{a + 3}")
            if u == 0:
                E(f"v_mov_b32 v{d + 6}, v{d}")
                E(f"v_mov_b32 v{d + 7}, v{d + 1}")
    E.barrier()
    E(f"ds_write_b128 v{vA1}, {vr(KT + 8, 4)} offset:4096")
    for dt in range(2):
        E(f"ds_write_b64 v{vA2}, {vr(VV + 8 + 4 * dt + 2, 2)} offset:{4096 + 1024 + 512 * dt}")
    if halo:
        E(pack_op(HACC, KT))
        for dt in range(2):
            a = HACC + 8 + 4 * dt
            d = VV + 4 * dt
            E(f"v_cvt_pk_bf16_f32 v{d}, v{a}, v{a + 1}")
            E(f"v_cvt_pk_bf16_f32 v{d + 1}, v{a + 2}, v{a + 3}")
        E(f"s_cmp_eq_u32 s{sRB}, 0")
        E(f"s_cselect_b64 {sr(sMP, 2)}, 0, -1")
    T = BUF + 28
    NEG = T0 + 8
    E(f"v_mov_b32 v{NEG}, 0xf149f2ca")
    MX = [T0, T0 + 1]; SM = [T0 + 2, T0 + 3]; tt = T0 + 4
    pre0, pre, mid, post = [], [], [], []
    for u in range(2):
        B_ = T + 20 * u
        qo, L, pk, P = B_, B_ + 4, B_ + 12, B_ + 16
        O = ACC[1] + 8 * u
        pre0 += pack_op(ACC[2] + 8 * u, qo)
        o = []
        o.append(f"v_mfma_f32_16x16x32_bf16 {vr(L + 4, 4)}, {vr(KT + 4 * u + 4, 4)}, {vr(qo, 4)}, 0")
        o.append(f"v_mfma_f32_16x16x32_bf16 {vr(L, 4)}, {vr(KT + 4 * u, 4)}, {vr(qo, 4)}, 0")
        o += round_pairs(L, L, 8, pk)
        for i in range(8):
            o.append(f"v_mul_f32 v{L + i}, s{sSCL}, v{L + i}")
        o += round_pairs(L, L, 8, pk)
        for i in range(8):
            o.append(f"v_cndmask_b32 v{L + i}, v{NEG}, v{L + i}, {sr(sMASK + 2 * i, 2)}")
        if halo and u == 0:
            for i in range(4):
                o.append(f"v_cndmask_b32 v{L + i}, v{NEG}, v{L + i}, {sr(sMP, 2)}")
        mx = MX[u]
        o.append(f"v_max3_f32 v{mx}, v{L}, v{L+1}, v{L+2}")
        o.append(f"v_max3_f32 v{mx}, v{mx}, v{L+3}, v{L+4}")
        o.append(f"v_max3_f32 v{mx}, v{mx}, v{L+5}, v{L+6}")
        o.append(f"v_max_f32 v{mx}, v{mx}, v{L+7}")
        pre.append(o)
        o = []
        o.append(f"v_mul_f32 v{mx}, s{sL2E}, v{mx}")
        for i in range(8):
            o.append(f"v_fma_f32 v{L + i}, v{L + i}, s{sL2E}, -v{mx}")
        for i in range(8):
            o.append(f"v_exp_f32 v{L + i}, v{L + i}")
        sm = SM[u]
        o.append(f"v_add_f32 v{sm}, v{L}, v{L + 1}")
        for i in range(2, 8):
            o.append(f"v_add_f32 v{sm}, v{sm}, v{L + i}")
        mid.append(o)
        o = []
        o.append(f"v_rcp_f32 v{sm}, v{sm}")
        for i in range(8):
            o.append(f"v_mul_f32 v{L + i}, v{L + i}, v{sm}")
        for i in range(4):
            o.append(f"v_cvt_pk_bf16_f32 v{P + i}, v{L + 2 * i}, v{L + 2 * i + 1}")
        for dt in range(2):
            o.append(f"v_mfma_f32_16x16x32_bf16 {vr(O + 4 * dt, 4)}, {vr(VV + 8 * u + 4 * dt, 4)}, {vr(P, 4)}, 0")
        o += pack_op(O, qo)
        for i in range(4):
            o.append(f"v_min_u32 v{qo + i}, -2, v{qo + i}")
        o.append(ostore(qo, u))
        post.append(o)
    E(pre0)
    E.barrier()
    if not halo:
        E(f"ds_read_b128 {vr(KT, 4)}, v{vA1}")
        for dt in range(2):
            E(f"ds_read_b64 {vr(VV + 4 * dt, 2)}, v{vA2} offset:{1024 + 512 * dt}")
    E(interleave(pre[1], pre[0]))
    E(dual_reduce(MX[0], MX[1], tt, "v_max_f32"))
    E(interleave(mid[0], mid[1]))
    E(dual_reduce(SM[0], SM[1], tt, "v_add_f32"))
    E(interleave(post[0], post[1]))
    stamp(E, 8)
    E.barrier()
    E(p3_setup(E))

def loader(E, br, last):
    stages = A_STAGES if br == "A" else B_STAGES
    vX, vW0, vW1, vH0, vH1, vWO, vGX, vGF, vGOFF = 4, 5, 6, 7, 8, 9, 10, 12, 13
    t0, t1, t2, t3 = T0, T0 + 1, T0 + 2, T0 + 3
    sL = sRG
    if OPT["prio"]:
        E("s_setprio 3")
    E(f"s_sub_u32 s{sL}, s{sWV}, 8")
    E(f"v_lshrrev_b32 v{t0}, 3, v{vLANE}")
    E(f"v_bfe_u32 v{t1}, v{vLANE}, 4, 2")
    E(f"s_lshl_b32 s{sT1}, s{sHH}, 2")
    E(f"v_or_b32 v{t1}, s{sT1}, v{t1}")
    E(f"v_and_b32 v{t2}, 7, v{vLANE}")
    E(f"v_xor_b32 v{t1}, v{t1}, v{t2}")
    E(f"s_lshl_b32 s{sT0}, s{sRB}, 7")
    E(f"s_lshl_b32 s{sT1}, s{sL}, 3")
    E(f"s_add_u32 s{sT0}, s{sT0}, s{sT1}")
    E(f"v_add_u32 v{t0}, s{sT0}, v{t0}")
    E(f"v_mul_u32_u24 v{vX}, 896, v{t0}")
    E(f"v_lshl_add_u32 v{vX}, v{t1}, 4, v{vX}")
    for pi, vw in enumerate((vW0, vW1)):
        if last and pi == 1:
            break
        E(f"s_lshl_b32 s{sT1}, s{sL}, 6")
        if pi:
            E(f"s_add_u32 s{sT1}, s{sT1}, 256")
        E(f"v_add_u32 v{t0}, s{sT1}, v{vLANE}")
        E(f"v_mul_u32_u24 v{t1}, 9363, v{t0}")
        E(f"v_lshrrev_b32 v{t1}, 16, v{t1}")
        E(f"v_mul_u32_u24 v{t2}, 7, v{t1}")
        E(f"v_sub_u32 v{t2}, v{t0}, v{t2}")
        E(f"v_and_b32 v{t0}, 0x38, v{t1}")
        E(f"v_and_b32 v{t3}, 1, v{t1}")
        E(f"v_lshl_add_u32 v{t0}, v{t3}, 2, v{t0}")
        E(f"v_bfe_u32 v{t3}, v{t1}, 1, 2")
        E(f"v_add_u32 v{t0}, v{t0}, v{t3}")
        E(f"v_mul_u32_u24 v{vw}, 2688, v{t0}")
        E(f"v_lshl_add_u32 v{vw}, v{t2}, 4, v{vw}")
        E(f"s_mul_i32 s{sT1}, s{sHP}, 112")
        E(f"v_add_u32 v{vw}, s{sT1}, v{vw}")
    E(f"s_lshl_b32 s{sM0}, s{sL}, 10")
    if last and br == "A":
        E(f"v_subrev_u32 v{vH1}, {32 * 896}, v{vX}")
        E(f"v_xor_b32 v{vH0}, 64, v{vX}")
        E(f"v_subrev_u32 v{vH0}, {40 * 896}, v{vH0}")
    srds(E)
    def issue(s):
        if OPT["no_load"]:
            return
        st = stages[s]; m = st["m"]; base = st["base"]
        for i in range(4):
            E(f"s_add_u32 m0, s{sM0}, {base + 4096 * i}")
            E(f"s_mov_b32 s{sT0}, {128 * m + 28672 * i}")
            E(f"buffer_load_dwordx4 v{vX}, {sr(SX, 4)}, s{sT0} offen lds", tag=f"S{s}")
        for k, seg in enumerate(st["segs"]):
            for pi, vw in enumerate((vW0, vW1)):
                if last and pi == 1:
                    break
                E(f"s_add_u32 m0, s{sM0}, {base + woff(br, k) + 4096 * pi}")
                E(f"s_mov_b32 s{sT0}, {m * 64 * 2688 + SEGCOL[seg] * 896}")
                E(f"buffer_load_dwordx4 v{vw}, {sr(SW, 4)}, s{sT0} offen lds", tag=f"S{s}")
        if last and br == "A":
            for n2, vh in enumerate((vH0, vH1)):
                E(f"s_mov_b32 m0, {base + 16384 + 1024 * n2}")
                E(f"s_mov_b32 s{sT0}, {128 * m}")
                E(f"buffer_load_dwordx4 v{vh}, {sr(SX, 4)}, s{sT0} offen lds", tag=f"S{s}")
    nxt = 0
    issue(0); nxt = 1
    srds2(E)
    stamps_init(E)
    if last:
        if br == "B":
            E(f"s_mul_i32 s{sT1}, s{sHP}, 3136")
            E(f"v_add_u32 v{t0}, s{sT1}, v{vL16B}")
            for i in range(4):
                E(f"s_mov_b32 m0, {B_WPH + 1024 * i}")
                E(f"s_mov_b32 s{sT0}, {1024 * i}")
                E(f"buffer_load_dwordx4 v{t0}, {sr(SAUX, 4)}, s{sT0} offen lds", tag="S1")
        else:
            E(f"s_mov_b32 m0, {A_GATE}")
            E(f"buffer_load_dwordx4 v{vL16B}, {sr(SAUX, 4)}, 0 offen lds", tag="S0")
    while nxt < OPT["ahead"]:
        issue(nxt); nxt += 1
    E(f"v_lshrrev_b32 v{vWO}, 3, v{vLANE}")
    E(f"v_bfe_u32 v{t1}, v{vLANE}, 4, 2")
    E(f"v_lshlrev_b32 v{t1}, 1, v{t1}")
    E(f"v_and_b32 v{t2}, 7, v{vLANE}")
    E(f"v_xor_b32 v{t1}, v{t1}, v{t2}")
    E(f"v_mul_u32_u24 v{vWO}, 896, v{vWO}")
    E(f"v_lshl_add_u32 v{vWO}, v{t1}, 4, v{vWO}")
    E(f"s_lshl_b32 s{sT1}, s{sCT}, 7")
    E(f"s_mul_i32 s{sT2}, s{sL}, {8 * 896}")
    E(f"s_add_u32 s{sT1}, s{sT1}, s{sT2}")
    E(f"s_cmp_ge_u32 s{sJ}, 28")
    E(f"s_cselect_b32 s{sT1}, 0x1000000, s{sT1}")
    E(f"v_add_u32 v{vWO}, s{sT1}, v{vWO}")
    def wo(b2):
        for i in range(14):
            E(f"s_add_u32 m0, s{sM0}, {(WOB_BASE if b2 else WOA_BASE) + i * 4096}")
            E(f"s_mov_b32 s{sT0}, {i * 32 * 896}")
            E(f"buffer_load_dwordx4 v{vWO}, {sr(SWOA if b2 == 0 else SWOB, 4)}, s{sT0} offen lds", tag=f"WO{b2}")
    gate = last and br == "A"
    if gate:
        E(f"v_lshrrev_b32 v{t0}, 1, v{vL16}")
        E(f"v_xor_b32 v{t0}, v{t0}, v{vG}")
        E(f"v_lshlrev_b32 v{t0}, 4, v{t0}")
        E(f"v_lshl_add_u32 v{t0}, v{vL16}, 7, v{t0}")
        E(f"s_lshl_b32 s{sT0}, s{sHP}, 11")
        E(f"v_add_u32 v{vGX}, s{sT0}, v{t0}")
        E(f"v_xor_b32 v{vGX + 1}, 64, v{vGX}")
        E(f"v_lshlrev_b32 v{vGF}, 4, v{vG}")
        E(f"v_add_u32 v{vGF}, {A_GATE}, v{vGF}")
        E(f"s_lshl_b32 s{sT0}, s{sRB}, 7")
        E(f"s_lshl_b32 s{sT1}, s{sHP}, 4")
        E(f"s_add_u32 s{sT0}, s{sT0}, s{sT1}")
        E(f"s_lshl_b32 s{sT0}, s{sT0}, 2")
        E(f"s_add_u32 s{sT0}, s{sT0}, {WS_G}")
        E(f"v_lshl_add_u32 v{vGOFF}, v{vLANE}, 2, s{sT0}")
        E(f"v_mov_b32 v{t0}, {WS_BYTES}")
        E(f"v_cmp_gt_u32 vcc, 16, v{vLANE}")
        E(f"v_cndmask_b32 v{vGOFF}, v{t0}, v{vGOFF}, vcc")
        E(f"v_mov_b32 v{t1}, -1")
        E(f"buffer_store_dword v{t1}, v{vGOFF}, {sr(SWS, 4)}, 0 offen sc1", tag="GCLR")
    GL, GB = 16, 20
    cur = 0
    cleared = [False]
    def clears():
        on = 40
        for i in range(4):
            E(f"v_mov_b32 v{on + i}, -1")
        E(f"s_lshl_b32 s{sT0}, s{sRB}, 3")
        E(f"s_lshl_b32 s{sT1}, s{sL}, 1")
        E(f"s_add_u32 s{sT0}, s{sT0}, s{sT1}")
        E(f"s_lshl_b32 s{sT0}, s{sT0}, 4")
        E(f"s_lshl_b32 s{sT1}, s{sHP}, 1")
        E(f"s_add_u32 s{sT0}, s{sT0}, s{sT1}")
        E(f"s_lshl_b32 s{sT0}, s{sT0}, 10")
        E(f"s_lshl_b32 s{sT1}, s{sBR}, 21")
        E(f"s_add_u32 s{sT0}, s{sT0}, s{sT1}")
        E(f"v_add_u32 v{t2}, s{sT0}, v{vL16B}")
        E(f"s_mov_b32 s{sT1}, 16384")
        if br == "B":
            E(f"s_lshl_b32 s{sT0}, s{sHP}, 4")
            E(f"s_add_u32 s{sT0}, s{sT0}, s{sRB}")
            E(f"s_lshl_b32 s{sT0}, s{sT0}, 2")
            E(f"s_add_u32 s{sT0}, s{sT0}, s{sL}")
            E(f"s_lshl_b32 s{sT0}, s{sT0}, 11")
            E(f"s_add_u32 s{sT0}, s{sT0}, {WS_KVP}")
            E(f"v_add_u32 v{t3}, s{sT0}, v{vL16B}")
            for i in range(2):
                E(f"buffer_store_dwordx4 {vr(on, 4)}, v{t3}, {sr(SWS, 4)}, 0 offen offset:{1024 * i} sc1", tag="CLR")
        for u in range(2):
            for i in range(2):
                E(f"buffer_store_dwordx4 {vr(on, 4)}, v{t2}, {sr(SWS, 4)}, {'0' if u == 0 else 's' + str(sT1)} offen offset:{1024 * i} sc1", tag="CLR")
    def step(s):
        nonlocal nxt, cur
        E.wait_tag(f"S{s}")
        if gate and s == OPT["flag_at"]:
            E.wait_tag("GCLR")
        E.barrier(lgkm0=True)
        if gate:
            d = stages[s]["base"] - cur; cur = stages[s]["base"]
            E(vadd_imm(vGX, d)); E(vadd_imm(vGX + 1, d))
            m = stages[s]["m"]
            for tt in range(2):
                E(f"ds_read_b128 {vr(GB + 8 * tt, 4)}, v{vGX + tt}")
                E(f"ds_read_b128 {vr(GB + 8 * tt + 4, 4)}, v{vGF} offset:{64 * (2 * m + tt)}")
        while nxt < len(stages) and stages[nxt]["after"] <= s and nxt <= s + OPT["ahead"]:
            issue(nxt); nxt += 1
        if gate:
            m = stages[s]["m"]
            for tt in range(2):
                E(f"v_mfma_f32_16x16x32_bf16 {vr(GL, 4)}, {vr(GB + 8 * tt + 4, 4)}, {vr(GB + 8 * tt, 4)}, {'0' if (m == 0 and tt == 0) else vr(GL, 4)}")
    if br == "A":
        for s in range(7):
            step(s)
        if gate:
            g = GL
            E(f"v_cvt_pk_bf16_f32 v{g + 1}, v{g}, v{g}")
            E(f"v_lshlrev_b32 v{g}, 16, v{g + 1}")
            E(f"v_mul_f32 v{g}, s{sL2E}, v{g}")
            E(f"v_exp_f32 v{g}, -v{g}")
            E(f"v_add_f32 v{g}, 1.0, v{g}")
            E(f"v_rcp_f32 v{g}, v{g}")
            E(f"v_cvt_pk_bf16_f32 v{g + 1}, v{g}, v{g}")
            E(f"v_lshlrev_b32 v{g}, 16, v{g + 1}")
            E.wait_tag("GCLR")
            E(f"buffer_store_dword v{g}, v{vGOFF}, {sr(SWS, 4)}, 0 offen sc1")
        E.barrier()
        E.barrier()
        E.barrier()
        wo(0); wo(1)
        if last:
            flags_wait_all(E, t0, t1, 128)
    else:
        for s in range(7):
            step(s)
        if last:
            flags_wait_all(E, t0, t1)
        E.barrier()
        E.barrier()
        wo(0)
        E.barrier()
        if last:
            flags_wait_all(E, t0, t1, 128)
        E.barrier()
    E(f"s_cmp_ge_u32 s{sJ}, 28")
    E.flush_haz()
    E("s_cbranch_scc1 L_end")
    E.wait_tag("WO0")
    E.barrier()
    if br == "B":
        wo(1)
    E.force_wait(vm=0)
    E.barrier()
    E("s_branch L_end")

def p3_setup(E):
    rt, kh = sP3, sP3 + 1
    t0, t1, t2 = T0 + 8, T0 + 9, T0 + 1
    o = []
    o.append(f"s_and_b32 s{rt}, s{sWV}, 3")
    o.append(f"s_lshr_b32 s{kh}, s{sWV}, 2")
    o.append(f"s_lshl_b32 s{sT2}, s{sT}, 2")
    o.append(f"s_add_u32 s{sT2}, s{sT2}, s{rt}")
    o.append(f"s_lshl_b32 s{sP3 + 2}, s{sT2}, 14")
    o.append(f"s_lshl_b32 s{sP3 + 3}, s{kh}, 13")
    o.append(f"s_add_u32 s{sP3 + 2}, s{sP3 + 2}, s{sP3 + 3}")
    o.append(f"v_add_u32 v{pOF}, s{sP3 + 2}, v{vL16B}")
    o.append(f"s_lshl_b32 s{sT2}, s{sT2}, 4")
    o.append(f"v_add_u32 v{pROW}, s{sT2}, v{vL16}")
    o.append(f"v_bfe_u32 v{t0}, v{vLANE}, 2, 2")
    o.append(f"v_lshl_add_u32 v{t0}, v{vG}, 2, v{t0}")
    o.append(f"v_bfe_u32 v{t1}, v{t0}, 1, 2")
    o.append(f"v_and_b32 v{t2}, 3, v{vLANE}")
    o.append(f"v_lshlrev_b32 v{t2}, 3, v{t2}")
    o.append(f"v_lshl_add_u32 v{t2}, v{t0}, 7, v{t2}")
    o.append(f"s_mul_i32 s{sT2}, s{kh}, 28672")
    o.append(f"s_add_u32 s{sT2}, s{sT2}, {WOA_BASE}")
    o.append(f"v_add_u32 v{t2}, s{sT2}, v{t2}")
    o.append(f"s_lshl_b32 s{sT2}, s{kh}, 1")
    o.append(f"v_xor_b32 v{t1}, s{sT2}, v{t1}")
    for c in range(4):
        o.append(f"v_xor_b32 v{t0}, {c}, v{t1}")
        o.append(f"v_lshl_add_u32 v{pWO + c}, v{t0}, 5, v{t2}")
    o.append(f"v_add_u32 v7, 4096, v{pOF}")
    o.append(f"v_lshlrev_b32 v9, 2, v{pROW}")
    o.append(f"v_add_u32 v9, {WS_G}, v9")
    return o

sP3 = sMASK
pOF, pROW, pWO = 4, 5, 12
def p3_loads(br):
    of = 16 + 32 * br
    loads = [f"s_mov_b32 s{sT2}, {WS_OB if br else 0}"]
    for hl in range(8):
        loads.append(f"buffer_load_dwordx4 {vr(of + 4 * hl, 4)}, v{pOF if hl < 4 else 7}, {sr(SWS, 4)}, s{sT2} offen offset:{1024 * (hl & 3)} sc1")
    regs = list(range(of, of + 32))
    if br == 0:
        loads.append(f"buffer_load_dword v6, v9, {sr(SWS, 4)}, 0 offen sc1")
        regs.append(6)
    return loads, regs

def phase3(E):
    E.label("L_p3")
    E.vmq = []; E.lgq = []
    E(f"s_cmp_ge_u32 s{sJ}, 28")
    E("s_cbranch_scc1 L_fin")
    rt, kh = sP3, sP3 + 1
    vROW, vGV, vWO = pROW, 6, pWO
    vOF0, vOF1, vGA, vXO, vXP, vOUT = pOF, 7, 9, 8, 10, 11
    TMP = 144
    OF, AC, WF = 16, [80, 96], 112
    loads_for = p3_loads
    def gemm(br):
        of = OF + 32 * br
        prev = []
        for hl in range(8):
            wf = WF + 16 * (hl & 1)
            rd = []
            for c in range(4):
                for j in range(2):
                    rd.append(f"ds_read_b64_tr_b16 {vr(wf + 4 * c + 2 * j, 2)}, v{vWO + (c ^ (2 * (hl & 1)))} offset:{3584 * hl + 2048 * j}")
            E(interleave_front(prev, rd) if prev else rd)
            prev = []
            for c in (2, 3, 0, 1):
                acc = AC[br] + 4 * c
                prev.append(f"v_mfma_f32_16x16x32_bf16 {vr(acc, 4)}, {vr(wf + 4 * c, 4)}, {vr(of + 4 * hl, 4)}, {'0' if hl == 0 else vr(acc, 4)}")
        E(prev)
    E.barrier()
    stamp(E, 9)
    la, ra = loads_for(0)
    Lsk = newlabel("p3a")
    E(f"s_cmp_lg_u32 s{sBR}, 0")
    E.flush_haz()
    E(f"s_cbranch_scc1 {Lsk}")
    E(la)
    E.label(Lsk)
    E(f"s_lshl_b32 s{sT0}, s{sWV}, 12")
    E(f"s_add_u32 s{sT0}, s{sT0}, {XB3}")
    E(f"v_add_u32 v{vXO}, s{sT0}, v{vL16B}")
    E(f"s_xor_b32 s{sT0}, s{sWV}, 4")
    E(f"s_lshl_b32 s{sT0}, s{sT0}, 12")
    E(f"s_add_u32 s{sT0}, s{sT0}, {XB3}")
    E(f"v_add_u32 v{vXP}, s{sT0}, v{vL16B}")
    E(f"v_mul_u32_u24 v{vOUT}, 896, v{vROW}")
    E(f"v_lshl_add_u32 v{vOUT}, v{vG}, 3, v{vOUT}")
    E(f"s_lshl_b32 s{sT0}, s{sCT}, 7")
    E(f"s_lshl_b32 s{sT1}, s{kh}, 6")
    E(f"s_add_u32 s{sT0}, s{sT0}, s{sT1}")
    E(f"v_add_u32 v{vOUT}, s{sT0}, v{vOUT}")
    poll_loop(E, la, ra, "o", TMP, pre_issued=True)
    stamp(E, 10)
    gemm(0)
    for i in range(2):
        E(f"ds_write_b128 v{vXO}, {vr(AC[0] + 8 + 4 * i, 4)} offset:{1024 * i}")
    stamp(E, 11)
    lb, rb_ = loads_for(1)
    E(lb)
    for c in range(4):
        E(vadd_imm(vWO + c, WOB_BASE - WOA_BASE))
    E.barrier()
    RA, T1, tp, omg = OF, OF + 8, OF + 16, OF + 24
    for i in range(2):
        E(f"ds_read_b128 {vr(RA + 4 * i, 4)}, v{vXP} offset:{1024 * i}")
    E(f"v_sub_f32 v{omg}, 1.0, v{vGV}")
    if OPT["round_final"]:
        E(f"v_cvt_pk_bf16_f32 v{omg + 1}, v{omg}, v{omg}")
        E(f"v_lshlrev_b32 v{omg}, 16, v{omg + 1}")
    for i in range(8):
        E(f"v_add_f32 v{T1 + i}, v{AC[0] + i}, v{RA + i}")
    if OPT["round_final"]:
        E(round_pairs(T1, T1, 8, tp))
    for i in range(8):
        E(f"v_mul_f32 v{T1 + i}, v{T1 + i}, v{vGV}")
    if OPT["round_final"]:
        E(round_pairs(T1, T1, 8, tp))
    poll_loop(E, lb, rb_, "o", TMP, pre_issued=True)
    stamp(E, 12)
    gemm(1)
    for i in range(2):
        E(f"ds_write_b128 v{vXO}, {vr(AC[1] + 8 + 4 * i, 4)} offset:{2048 + 1024 * i}")
    stamp(E, 13)
    E.barrier()
    for i in range(2):
        E(f"ds_read_b128 {vr(RA + 4 * i, 4)}, v{vXP} offset:{2048 + 1024 * i}")
    KB = AC[1]
    for i in range(8):
        E(f"v_add_f32 v{KB + i}, v{KB + i}, v{RA + i}")
    if OPT["round_final"]:
        E(round_pairs(KB, KB, 8, tp))
        for i in range(8):
            E(f"v_mul_f32 v{KB + i}, v{KB + i}, v{omg}")
        E(round_pairs(KB, KB, 8, tp))
        for i in range(8):
            E(f"v_add_f32 v{T1 + i}, v{T1 + i}, v{KB + i}")
    else:
        for i in range(8):
            E(f"v_fmac_f32 v{T1 + i}, v{KB + i}, v{omg}")
    for i in range(4):
        E(f"v_cvt_pk_bf16_f32 v{tp + i}, v{T1 + 2 * i}, v{T1 + 2 * i + 1}")
    for i in range(2):
        E(f"buffer_store_dwordx2 {vr(tp + 2 * i, 2)}, v{vOUT}, {sr(SOUT, 4)}, 0 offen offset:{32 * i}")
    stamp(E, 14)
    E.label("L_fin")
    if OPT["stamps"]:
        Lz = newlabel("st")
        E(f"s_cmp_lg_u32 s{sWV}, 0")
        E(f"s_cbranch_scc1 {Lz}")
        E.force_wait(vm=0, lgkm=0)
        E(f"s_lshl_b32 s{sT0}, s2, 7")
        E(f"s_add_u32 s{sT0}, s{sT0}, {WS_ST}")
        E(f"v_mov_b32 v{vA0}, s{sT0}")
        E("s_mov_b64 exec, 1")
        for i in range(15):
            E(f"v_mov_b32 v{TMP}, s{sSTAMP + 2 * i}")
            E(f"v_mov_b32 v{TMP + 1}, s{sSTAMP + 2 * i + 1}")
            E(f"buffer_store_dwordx2 {vr(TMP, 2)}, v{vA0}, {sr(SWS, 4)}, 0 offen offset:{8 * i}")
            E.force_wait(vm=0)
        E.label(Lz)

def main():
    hdr = open("cdna_kernels/" + NAME + ".s.ref").read().split("; Override launch geometry")[0]
    E.raw(hdr.rstrip())
    E.raw(f"; @launch grid=(256,1,1) block=(768,1,1) lds={LDS_BYTES}")
    E.raw('.amdgcn_target "amdgcn-amd-amdhsa--gfx950"')
    E.raw(".text")
    E.raw(f".globl {NAME}_kernel")
    E.raw(".p2align 8")
    E.raw(f".type {NAME}_kernel,@function")
    E.raw(f"{NAME}_kernel:")
    prologue(E)
    E(f"s_cmp_lt_u32 s{sWV}, 8")
    E.flush_haz()
    E("s_cbranch_scc1 L_cons")
    E(f"s_cmp_eq_u32 s{sWV}, 11")
    E("s_cbranch_scc1 L_ld3")
    E(f"s_cmp_eq_u32 s{sBR}, 0")
    E("s_cbranch_scc1 L_A_ld")
    for name, fn in (("L_B_ld", lambda: loader(E, "B", False)), ("L_ld3", None), ("L_B_ld3", lambda: loader(E, "B", True)),
                     ("L_A_ld", lambda: loader(E, "A", False)), ("L_A_ld3", lambda: loader(E, "A", True))):
        E.label(name); E.vmq = []; E.lgq = []
        if fn is None:
            E(f"s_cmp_eq_u32 s{sBR}, 0")
            E("s_cbranch_scc1 L_A_ld3")
        else:
            fn()
    E.label("L_cons")
    E(f"s_cmp_eq_u32 s{sBR}, 0")
    E("s_cbranch_scc0 L_B_main")
    E(f"s_cmp_lt_u32 s{sWV}, 2")
    E("s_cbranch_scc1 L_A_halo")
    for name, fn in (("L_A_main", lambda: cons_A(E, False)), ("L_A_halo", lambda: cons_A(E, True)), ("L_B_main", lambda: cons_B(E))):
        E.label(name); E.vmq = []; E.lgq = []
        fn()
        E.wait(lgkm=0)
        E.flush_haz()
        E("s_branch L_p3")
    phase3(E)
    E.label("L_end")
    E("s_endpgm")
    E.raw('.section .rodata,"a"')
    E.raw(".p2align 6")
    E.raw(f".amdhsa_kernel {NAME}_kernel")
    E.raw(f"  .amdhsa_next_free_vgpr {NVGPR}")
    E.raw("  .amdhsa_next_free_sgpr 102")
    E.raw(f"  .amdhsa_accum_offset {NVGPR}")
    E.raw("  .amdhsa_group_segment_fixed_size 0")
    E.raw("  .amdhsa_kernarg_size 88")
    E.raw("  .amdhsa_user_sgpr_count 2")
    E.raw("  .amdhsa_user_sgpr_kernarg_segment_ptr 1")
    E.raw("  .amdhsa_system_sgpr_workgroup_id_x 1")
    E.raw(".end_amdhsa_kernel")
    txt = E.text()
    import re
    mx = max(int(x) for x in re.findall(r"\bv\[?(\d+)", txt) + re.findall(r"\bv\[\d+:(\d+)\]", txt))
    assert mx < NVGPR, mx
    open(sys.argv[1], "w").write(txt)
    print("instructions:", E.nins, "max vgpr", mx)

main()
```

```python
import sys, struct, math
from asmlib import *

NAME = "gated_mix__sliding_local_dilated__linear_kernel_hedgehog__prompt"
OPT = dict(stamps=0, fine=0, round_final=1, pf=1, flag_at=5, ahead=2, nov=4, fill=5, mfsum=1, prio=1, pkfma=2, gat=90, no_comp=0, no_load=0, no_clr=0, lead=2, dbgspan=0)
for a in sys.argv[2:]:
    k, v = a.split("=")
    OPT[k] = int(v) if v.lstrip("-").isdigit() else v

LDS_BYTES = 163840
PHI_STRIDE, V_STRIDE = 264, 72
WS_OA, WS_OB, WS_KVP, WS_G, WS_ST = 0, 2 << 20, 4 << 20, 5 << 20, 8 << 20
WS_BYTES = 16 << 20
SPIN_MAX = 30000
SEGCOL = {"Q": 0, "K": 1, "V": 2}
SEGI = {"K": 0, "V": 1, "Q": 2}
WOA_BASE, WOB_BASE, XB3 = 57856, 0, 115712
B_SS = 39936
B_STAGES = [dict(m=m, segs=["K", "V", "Q"], base=B_SS * (m % 4)) for m in range(7)]
for i, st in enumerate(B_STAGES):
    prev = [j for j in range(i) if B_STAGES[j]["base"] == st["base"]]
    st["after"] = (prev[-1] + 2) if prev else -1
B_WPH = 159744
PHI_BASE = 0
VB = [128 * PHI_STRIDE, 128 * PHI_STRIDE + 128 * V_STRIDE]
KVF = 143360
A_SS = 39936
A_STAGES = [dict(m=m, segs=["K", "V", "Q"], base=A_SS * (m % 4)) for m in range(7)]
for i, st in enumerate(A_STAGES):
    prev = [j for j in range(i) if A_STAGES[j]["base"] == st["base"]]
    st["after"] = (prev[-1] + 2) if prev else -1
A_GATE = 159744
A_EXCH = XB3
def woff(br, k):
    return 18432 + 7168 * k

def f2u(x): return struct.unpack("<I", struct.pack("<f", x))[0]
LOG2E = f2u(1.4426950408889634)
SCALE = f2u(28 ** -0.5)

SX, SW, SWS, SDBG, SAUX, SWOA, SWOB, SOUT = 8, 12, 16, 20, 24, 28, 32, 36
sRB, sHP, sBR, sWV, sT, sCT, sJ, sT0, sT1, sM0 = 40, 41, 42, 43, 44, 45, 46, 47, 48, 49
sMASK = 50
sG3 = 66
sL2E, sSCL, sSPIN, sT2 = 68, 69, 70, 71
sKA = 72
sSTAMP = 72
sRG, sHH, s16K, sMP = 3, 4, 5, 6
sHIM = sG3 + 1

NVGPR = 168
vLANE, vL16, vG, vL16B = 0, 1, 2, 3
vXR, vTR, vPADB, vOOFF = 4, 6, 7, 8
vA0, vA1, vA2, vA3 = 9, 10, 11, 12
vSL, vXRH = 13, 13
ACC = [16, 32, 48]
T0 = 152

E = Emitter()
lblc = [0]
def newlabel(p):
    lblc[0] += 1
    return f"L_{p}_{lblc[0]}"

def stamp(E, idx, fine=False):
    if OPT["stamps"] and (idx == 0 or bool(OPT["fine"]) == fine):
        E(f"s_memrealtime {sr(sSTAMP + 2 * idx, 2)}")

def srd(E, d, lo, nbytes):
    E(f"s_mov_b32 s{d}, s{lo}")
    E(f"s_and_b32 s{d+1}, s{lo+1}, 0xffff")
    E(f"s_mov_b32 s{d+2}, {nbytes}")
    E(f"s_mov_b32 s{d+3}, 0x20000")

def dual_reduce(a, b, t, op):
    return [
        f"v_permlane32_swap_b32 v{a}, v{b}",
        f"{op} v{a}, v{a}, v{b}",
        f"v_mov_b32 v{t}, v{a}",
        f"v_permlane16_swap_b32 v{a}, v{t}",
        f"{op} v{a}, v{a}, v{t}",
        f"v_mov_b32 v{b}, v{a}",
        f"v_permlane32_swap_b32 v{a}, v{b}",
    ]

def round_pairs(src, dst, n, tmp):
    out = []
    for i in range(0, n, 2):
        out.append(f"v_cvt_pk_bf16_f32 v{tmp + i // 2}, v{src + i}, v{src + i + 1}")
    for i in range(0, n, 2):
        out.append(f"v_lshlrev_b32 v{dst + i}, 16, v{tmp + i // 2}")
        out.append(f"v_and_b32 v{dst + i + 1}, s{sHIM}, v{tmp + i // 2}")
    return out

def pack_op(acc, dst, zero_pad=True):
    out = [f"v_cvt_pk_bf16_f32 v{dst + i}, v{acc + 2 * i}, v{acc + 2 * i + 1}" for i in range(4)]
    if zero_pad:
        out += [f"v_cndmask_b32 v{dst + 2}, v{dst + 2}, 0, {sr(sG3, 2)}", f"v_cndmask_b32 v{dst + 3}, v{dst + 3}, 0, {sr(sG3, 2)}"]
    return out

def interleave_front(mm, rd):
    out = []
    n = max(1, (len(mm) * 3) // 4)
    j = 0
    for i, x in enumerate(mm):
        tgt = min(len(rd), ((i + 1) * len(rd) + n - 1) // n)
        while j < tgt:
            out.append(rd[j]); j += 1
        out.append(x)
    out += rd[j:]
    return out

def vadd_imm(reg, delta):
    if delta == 0:
        return []
    return [f"v_add_u32 v{reg}, {delta & 0xffffffff:#x}, v{reg}"]

def prologue(E):
    E("s_cmp_ge_u32 s2, 256")
    E("s_cbranch_scc1 L_end")
    if OPT["dbgspan"]:
        E("s_memrealtime s[94:95]")
    E(f"s_load_dwordx16 {sr(sKA, 16)}, s[0:1], 0")
    E(f"s_load_dwordx4 {sr(sKA + 16, 4)}, s[0:1], 64")
    E(f"s_load_dwordx2 {sr(sKA + 20, 2)}, s[0:1], 80")
    E(f"v_lshrrev_b32 v{T0}, 6, v0")
    E(f"v_and_b32 v{vLANE}, 63, v0")
    E(f"v_readfirstlane_b32 s{sWV}, v{T0}")
    E(f"s_and_b32 s{sT0}, s2, 7")
    E(f"s_lshr_b32 s{sJ}, s2, 3")
    E(f"s_lshr_b32 s{sBR}, s{sJ}, 4")
    E(f"s_xor_b32 s{sBR}, s{sBR}, 1")
    E(f"s_and_b32 s{sRB}, s{sT0}, 3")
    E(f"s_lshl_b32 s{sRB}, s{sRB}, 2")
    E(f"s_bfe_u32 s{sT1}, s{sJ}, 0x20002")
    E(f"s_add_u32 s{sRB}, s{sRB}, s{sT1}")
    E(f"s_lshr_b32 s{sHP}, s{sT0}, 2")
    E(f"s_lshl_b32 s{sHP}, s{sHP}, 2")
    E(f"s_and_b32 s{sT1}, s{sJ}, 3")
    E(f"s_add_u32 s{sHP}, s{sHP}, s{sT1}")
    E(f"s_mul_i32 s{sT1}, s{sJ}, 37")
    E(f"s_lshr_b32 s{sT1}, s{sT1}, 8")
    E(f"s_lshl_b32 s{sT}, s{sT0}, 2")
    E(f"s_add_u32 s{sT}, s{sT}, s{sT1}")
    E(f"s_mul_i32 s{sT1}, s{sT1}, 7")
    E(f"s_sub_u32 s{sCT}, s{sJ}, s{sT1}")
    E(f"s_lshr_b32 s{sRG}, s{sWV}, 1")
    E(f"s_and_b32 s{sHH}, s{sWV}, 1")
    E(f"v_and_b32 v{vL16}, 15, v{vLANE}")
    E(f"v_lshrrev_b32 v{vG}, 4, v{vLANE}")
    E(f"v_lshlrev_b32 v{vL16B}, 4, v{vLANE}")
    E(f"s_mov_b32 s{sG3}, 0")
    E(f"s_mov_b32 s{sG3+1}, 0xffff0000")
    E(f"s_mov_b32 s{sL2E}, {LOG2E:#x}")
    E(f"s_mov_b32 s{sSCL}, {SCALE:#x}")

def srds(E):
    E.force_wait(lgkm=0)
    K = sKA
    srd(E, SX, K + 0, 2048 * 896)
    E(f"s_cmp_eq_u32 s{sBR}, 0")
    E(f"s_cselect_b32 s{sT0}, s{K+2}, s{K+8}")
    E(f"s_cselect_b32 s{sT1}, s{K+3}, s{K+9}")
    srd(E, SW, sT0, 448 * 2688)

def srds2(E):
    K = sKA
    E(f"s_mov_b32 s{sT2}, 25088")
    E(f"s_cmp_eq_u32 s{sBR}, 0")
    E(f"s_cselect_b32 s{sT0}, s{K+14}, s{K+10}")
    E(f"s_cselect_b32 s{sT1}, s{K+15}, s{K+11}")
    E(f"s_cselect_b32 s{sT2}, 896, s{sT2}")
    E(f"s_mov_b32 s{SAUX}, s{sT0}")
    E(f"s_and_b32 s{SAUX+1}, s{sT1}, 0xffff")
    E(f"s_mov_b32 s{SAUX+2}, s{sT2}")
    E(f"s_mov_b32 s{SAUX+3}, 0x20000")
    srd(E, SWS, K + 20, WS_BYTES)
    srd(E, SWOA, K + 4, 448 * 896)
    srd(E, SWOB, K + 12, 448 * 896)
    srd(E, SOUT, K + 16, 2048 * 896)
    srd(E, SDBG, K + 18, 256)

def stamps_init(E):
    if OPT["stamps"]:
        stamp(E, 0)
        for i in range(1, 15):
            E(f"s_mov_b64 {sr(sSTAMP + 2 * i, 2)}, 0")

def prefetch(E):
    K = sKA
    SP = sMASK + 2
    t0, t1, t2, t3 = T0, T0 + 1, T0 + 2, T0 + 3
    Lx = newlabel("pfx"); Ld = newlabel("pfd")
    E(f"s_cmp_ge_u32 s{sWV}, 6")
    E.flush_haz()
    E(f"s_cbranch_scc1 {Lx}")
    E(f"s_cmp_lt_u32 s{sWV}, 3")
    E(f"s_cselect_b32 s{sT0}, s{K+2}, s{K+8}")
    E(f"s_cselect_b32 s{sT1}, s{K+3}, s{K+9}")
    E(f"s_cselect_b32 s{sT2}, 0, 3")
    srd(E, SP, sT0, 448 * 2688)
    E(f"s_sub_u32 s{sT2}, s{sWV}, s{sT2}")
    E(f"s_lshl_b32 s{sT2}, s{sT2}, 6")
    E(f"v_add_u32 v{t0}, s{sT2}, v{vLANE}")
    E(f"v_mul_u32_u24 v{t1}, 5462, v{t0}")
    E(f"v_lshrrev_b32 v{t1}, 16, v{t1}")
    E(f"v_mul_u32_u24 v{t2}, 12, v{t1}")
    E(f"v_sub_u32 v{t2}, v{t0}, v{t2}")
    E(f"v_lshrrev_b32 v{t3}, 2, v{t2}")
    E(f"v_and_b32 v{t2}, 3, v{t2}")
    E(f"s_mul_i32 s{sT2}, s{sJ}, 14")
    E(f"v_add_u32 v{t1}, s{sT2}, v{t1}")
    E(f"v_mul_u32_u24 v{t1}, 2688, v{t1}")
    E(f"v_mul_u32_u24 v{t3}, 896, v{t3}")
    E(f"v_lshl_add_u32 v{t2}, v{t2}, 7, v{t3}")
    E(f"s_lshr_b32 s{sT2}, s{sHP}, 2")
    E(f"s_mul_i32 s{sT2}, s{sT2}, 384")
    E(f"v_add3_u32 v{t1}, v{t1}, v{t2}, s{sT2}")
    E(f"v_mov_b32 v{t2}, 0x1000000")
    E(f"v_cmp_gt_u32 vcc, 168, v{t0}")
    E(f"v_cndmask_b32 v{t1}, v{t2}, v{t1}, vcc")
    E(f"buffer_load_dword v15, v{t1}, {sr(SP, 4)}, 0 offen")
    E.flush_haz()
    E(f"s_branch {Ld}")
    E.label(Lx)
    E(f"s_sub_u32 s{sT2}, s{sWV}, 6")
    E(f"s_lshl_b32 s{sT2}, s{sT2}, 6")
    E(f"v_add_u32 v{t0}, s{sT2}, v{vLANE}")
    E(f"s_mul_i32 s{sT2}, s{sJ}, 112")
    E(f"s_lshr_b32 s{sT1}, s{sRB}, 2")
    E(f"s_mul_i32 s{sT1}, s{sT1}, 3584")
    E(f"s_add_u32 s{sT2}, s{sT2}, s{sT1}")
    E(f"v_add_u32 v{t1}, s{sT2}, v{t0}")
    E(f"v_lshlrev_b32 v{t1}, 7, v{t1}")
    E(f"v_mov_b32 v{t2}, 0x1000000")
    E(f"v_cmp_gt_u32 vcc, 112, v{t0}")
    E(f"v_cndmask_b32 v{t1}, v{t2}, v{t1}, vcc")
    E(f"buffer_load_dword v15, v{t1}, {sr(SX, 4)}, 0 offen")
    E.label(Ld)
    E.vmq = [{"dst": set(), "tag": "PF"}]

def flag_store(E, val, t0, t1, base=0):
    E(f"s_lshl_b32 s{sT0}, s{sRB}, 3")
    E(f"s_add_u32 s{sT0}, s{sT0}, s{sHP}")
    E(f"s_add_u32 s{sT0}, s{sT0}, 128")
    val = 3 if base else 1
    E(f"v_mov_b32 v{t0}, s{sT0}")
    E(f"v_mov_b32 v{t1}, {val}")
    E("s_mov_b64 exec, 1")
    E(f"buffer_store_byte v{t1}, v{t0}, {sr(SDBG, 4)}, 0 offen sc1")
    E("s_mov_b64 exec, -1")

def spin_tail(E, L, Ld, sleep=2):
    E(f"s_cbranch_vccz {Ld}")
    E(f"s_add_u32 s{sSPIN}, s{sSPIN}, 1")
    E(f"s_cmp_lt_u32 s{sSPIN}, {SPIN_MAX}")
    E(f"s_cbranch_scc0 {Ld}")
    E(f"s_sleep {sleep}")
    E(f"s_branch {L}")
    E.label(Ld)

def flags_wait_all(E, t0, t1, base=0):
    L = newlabel("fl"); Ld = newlabel("fld")
    E(f"v_and_b32 v{t0}, 31, v{vLANE}")
    E(f"v_lshlrev_b32 v{t0}, 2, v{t0}")
    E(f"s_mov_b32 s{sSPIN}, 0")
    E(f"s_mov_b32 s{sT1}, {'0x03030303' if base else '0x01010101'}")
    E.label(L)
    E(f"buffer_load_dword v{t1}, v{t0}, {sr(SDBG, 4)}, 0 offen offset:128 sc1")
    E.force_wait(vm=0)
    E(f"v_and_b32 v{t1}, s{sT1}, v{t1}")
    E(f"v_cmp_ne_u32 vcc, s{sT1}, v{t1}")
    spin_tail(E, L, Ld, sleep=40)

def check_regs(E, regs, tmp):
    rs = list(regs)
    E(f"v_max_u32 v{tmp}, v{rs[0]}, v{rs[1]}")
    rest = rs[2:]
    while len(rest) >= 2:
        E(f"v_max3_u32 v{tmp}, v{tmp}, v{rest[0]}, v{rest[1]}"); rest = rest[2:]
    if rest:
        E(f"v_max_u32 v{tmp}, v{tmp}, v{rest[0]}")
    E(f"v_cmp_eq_u32 vcc, -1, v{tmp}")

def poll_loop(E, loads, regs, name, tmp, pre_issued=False):
    L = newlabel(name); Lc = newlabel(name + "c"); Ld = newlabel(name + "d")
    E(f"s_mov_b32 s{sSPIN}, 0")
    if pre_issued:
        E.flush_haz()
        E(f"s_branch {Lc}")
    E.label(L)
    E(loads)
    E.label(Lc)
    E.force_wait(vm=0)
    check_regs(E, regs, tmp)
    spin_tail(E, L, Ld)

def cons_setup(E, br):
    t0, t1, t2 = T0, T0 + 1, T0 + 2
    E(f"v_bfe_u32 v{t0}, v{vLANE}, 2, 2")
    E(f"v_and_b32 v{t1}, 3, v{vLANE}")
    E(f"v_lshlrev_b32 v{t2}, 3, v{vG}")
    E(f"v_lshl_add_u32 v{t2}, v{t0}, 1, v{t2}")
    E(f"v_mul_u32_u24 v{t2}, 112, v{t2}")
    E(f"v_lshl_add_u32 v{vTR}, v{t1}, 3, v{t2}")
    E(f"s_mul_i32 s{sT0}, s{sHH}, 56")
    E(f"v_add_u32 v{vTR}, s{sT0}, v{vTR}")
    E(f"v_lshrrev_b32 v{t0}, 1, v{vL16}")
    E(f"v_xor_b32 v{t0}, v{t0}, v{vG}")
    E(f"v_lshlrev_b32 v{t0}, 4, v{t0}")
    E(f"v_lshl_add_u32 v{t0}, v{vL16}, 7, v{t0}")
    E(f"s_lshl_b32 s{sT0}, s{sRG}, 12")
    E(f"v_add_u32 v{vXR}, s{sT0}, v{t0}")
    E(f"v_xor_b32 v{vXR+1}, 64, v{vXR}")
    E(f"s_lshl_b32 s{sT0}, s{sRB}, 3")
    E(f"s_lshl_b32 s{sT1}, s{sRG}, 1")
    E(f"s_add_u32 s{sT0}, s{sT0}, s{sT1}")
    E(f"s_lshl_b32 s{sT0}, s{sT0}, 4")
    E(f"s_lshl_b32 s{sT1}, s{sHP}, 1")
    E(f"s_add_u32 s{sT0}, s{sT0}, s{sT1}")
    E(f"s_add_u32 s{sT0}, s{sT0}, s{sHH}")
    E(f"s_lshl_b32 s{sT0}, s{sT0}, 10")
    E(f"s_lshl_b32 s{sT1}, s{sBR}, 21")
    E(f"s_add_u32 s{sT0}, s{sT0}, s{sT1}")
    E(f"v_add_u32 v{vOOFF}, s{sT0}, v{vL16B}")
    E(f"s_mov_b32 s{s16K}, 16384")

def ostore(reg, u):
    return f"buffer_store_dwordx4 {vr(reg, 4)}, v{vOOFF}, {sr(SWS, 4)}, {'0' if u == 0 else 's' + str(s16K)} offen sc1"

class Cons:
    def __init__(self, E, br, stages, buf0, bufsz, nbuf, halo=False, HACC=None):
        self.E, self.br, self.stages = E, br, stages
        self.buf0, self.bufsz, self.nbuf, self.halo, self.HACC = buf0, bufsz, nbuf, halo, HACC
        self.cur_base = 0
        self.ks = 0; self.pending = []
        self.nbar = 0
        self.prebar = None

    def parts(self, s, tt, buf):
        st = self.stages[s]; m = st["m"]; t = 2 * m + tt
        first = t == 0
        B0 = self.buf0 + self.bufsz * buf
        rd, mm = [], []
        xr = [B0, B0 + 4]
        for u in range(2):
            rd.append(f"ds_read_b128 {vr(xr[u], 4)}, v{vXR + tt} offset:{2048 * u}")
        wb = B0 + 8
        if self.halo:
            hx = B0 + 8; wb = B0 + 12
            rd.append(f"ds_read_b128 {vr(hx, 4)}, v{vXR + tt} offset:16384")
        elif self.br == "A":
            wb = B0 + 12
        for k, seg in enumerate(st["segs"]):
            si = SEGI[seg]
            tr = not (self.br == "A" and seg == "V")
            for c in range(2):
                wf = wb + 8 * k + 4 * c
                for j in range(2):
                    rd.append(f"ds_read_b64_tr_b16 {vr(wf + 2 * j, 2)}, v{vTR} offset:{woff(self.br, k) + 3584 * tt + 112 * j + 32 * c}")
                for u in range(2):
                    acc = ACC[si] + 8 * u + 4 * c
                    a_, b_ = (vr(wf, 4), vr(xr[u], 4)) if tr else (vr(xr[u], 4), vr(wf, 4))
                    mm.append(f"v_mfma_f32_16x16x32_bf16 {vr(acc, 4)}, {a_}, {b_}, {'0' if first else vr(acc, 4)}")
                if self.halo and seg != "Q":
                    acc = self.HACC + 8 * si + 4 * c
                    a_, b_ = (vr(wf, 4), vr(hx, 4)) if tr else (vr(hx, 4), vr(wf, 4))
                    mm.append(f"v_mfma_f32_16x16x32_bf16 {vr(acc, 4)}, {a_}, {b_}, {'0' if first else vr(acc, 4)}")
        if OPT["no_comp"] == 1:
            return [], []
        if OPT["no_comp"] == 2:
            return rd, []
        if OPT["no_comp"] == 3:
            return [], mm
        return rd, mm

    def run(self, s0, s1):
        E = self.E
        prev = []
        for ks in range(2 * s0, 2 * s1 + 2):
            s, tt = divmod(ks, 2)
            pre = []
            if tt == 0:
                nlead = min(OPT["lead"], len(prev))
                E(prev[:nlead]); prev = prev[nlead:]
                if self.prebar:
                    self.prebar(E, s)
                E.barrier(lgkm0=False)
                self.nbar += 1
                if self.nbar <= 14:
                    stamp(E, self.nbar, fine=True)
                if OPT["stamps"] and OPT["fine"] and self.nbar in (2, 7):
                    E(f"s_memtime {sr(sSTAMP + 2 * (12 if self.nbar == 2 else 13), 2)}")
                d = self.stages[s]["base"] - self.cur_base
                self.cur_base = self.stages[s]["base"]
                for r in (vXR, vXR + 1, vTR):
                    E(vadd_imm(r, d))
            rd, mm = self.parts(s, tt, ks % 2)
            if prev:
                E(interleave_front(prev, rd))
            else:
                E(rd)
            prev = mm
        E(prev)

vL2E = 162
ONES = 164
def phi_path(si, outreg, tmps, WP):
    streams = []
    for u in range(2):
        T = tmps[u]
        P = ACC[si] + 8 * u
        op, pk, Ep, Em = T, T, P, T + 4
        mx, mn, mx1, mn1 = T + 12, T + 13, T + 14, T + 15
        t = T
        O = outreg + 8 * u
        o = []
        o += pack_op(P, op)
        for ft in range(2):
            o.append(f"v_mfma_f32_16x16x32_bf16 {vr(P + 4 * ft, 4)}, {vr(WP + 4 * ft, 4)}, {vr(op, 4)}, 0")
        o += round_pairs(P, P, 8, pk)
        o.append(f"v_max3_f32 v{mx}, v{P}, v{P+1}, v{P+2}")
        o.append(f"v_min3_f32 v{mn}, v{P}, v{P+1}, v{P+2}")
        o.append(f"v_max3_f32 v{mx}, v{mx}, v{P+3}, v{P+4}")
        o.append(f"v_min3_f32 v{mn}, v{mn}, v{P+3}, v{P+4}")
        o.append(f"v_max3_f32 v{mx}, v{mx}, v{P+5}, v{P+6}")
        o.append(f"v_min3_f32 v{mn}, v{mn}, v{P+5}, v{P+6}")
        o.append(f"v_max_f32 v{mx}, v{mx}, v{P+7}")
        o.append(f"v_max_f32 v{mn}, -v{mn}, -v{P+7}")
        o += dual_reduce(mx, mn, t, "v_max_f32")
        o.append(f"v_mul_f32 v{mx}, s{sL2E}, v{mx}")
        o.append(f"v_mul_f32 v{mn}, s{sL2E}, v{mn}")
        o.append(f"v_add_f32 v{mx1}, v{mx}, v{vPADB}")
        o.append(f"v_add_f32 v{mn1}, v{mn}, v{vPADB}")
        for i in (range(8) if not OPT["pkfma"] else []):
            o.append(f"v_fma_f32 v{Em+i}, -v{P+i}, s{sL2E}, -v{mn if i < 4 else mn1}")
            o.append(f"v_fma_f32 v{Ep+i}, v{P+i}, s{sL2E}, -v{mx if i < 4 else mx1}")
        for i in (range(0, 8, 2) if OPT["pkfma"] else []):
            mm_ = vr(mx if i < 4 else mx1, 2)
            if OPT["pkfma"] == 2:
                o.append(f"v_pk_fma_f32 {vr(Em+i, 2)}, {vr(P+i, 2)}, {vr(vL2E, 2)}, {mm_} op_sel:[0,0,1] op_sel_hi:[1,1,1] neg_lo:[1,0,1] neg_hi:[1,0,1]")
                o.append(f"v_pk_fma_f32 {vr(Ep+i, 2)}, {vr(P+i, 2)}, {vr(vL2E, 2)}, {mm_} op_sel_hi:[1,1,0] neg_lo:[0,0,1] neg_hi:[0,0,1]")
                continue
            o.append(f"v_pk_fma_f32 {vr(Em+i, 2)}, {vr(P+i, 2)}, {sr(sL2E, 2)}, {mm_} op_sel:[0,0,1] op_sel_hi:[1,0,1] neg_lo:[1,0,1] neg_hi:[1,0,1]")
            o.append(f"v_pk_fma_f32 {vr(Ep+i, 2)}, {vr(P+i, 2)}, {sr(sL2E, 2)}, {mm_} op_sel_hi:[1,0,0] neg_lo:[0,0,1] neg_hi:[0,0,1]")
        for i in range(8):
            o.append(f"v_exp_f32 v{Ep+i}, v{Ep+i}")
            o.append(f"v_exp_f32 v{Em+i}, v{Em+i}")
        if OPT["mfsum"]:
            for i in range(4):
                o.append(f"v_cvt_pk_bf16_f32 v{O + i}, v{Ep + 2 * i}, v{Ep + 2 * i + 1}")
                o.append(f"v_cvt_pk_bf16_f32 v{O + 4 + i}, v{Em + 2 * i}, v{Em + 2 * i + 1}")
            SP, SM = T, T + 12
            o.append(f"v_mfma_f32_16x16x32_bf16 {vr(SP, 4)}, {vr(ONES, 4)}, {vr(O, 4)}, 0")
            o.append(f"v_mfma_f32_16x16x32_bf16 {vr(SM, 4)}, {vr(ONES, 4)}, {vr(O + 4, 4)}, 0")
            sp, sm = SP, SM
        else:
            sp, sm = mx1, mn1
            o.append(f"v_add_f32 v{sp}, v{Ep}, v{Ep+1}")
            o.append(f"v_add_f32 v{sm}, v{Em}, v{Em+1}")
            for i in range(2, 8):
                o.append(f"v_add_f32 v{sp}, v{sp}, v{Ep+i}")
                o.append(f"v_add_f32 v{sm}, v{sm}, v{Em+i}")
            o += dual_reduce(sp, sm, t, "v_add_f32")
        o.append(f"v_rcp_f32 v{sp}, v{sp}")
        o.append(f"v_rcp_f32 v{sm}, v{sm}")
        for i in range(8):
            o.append(f"v_mul_f32 v{Ep+i}, v{Ep+i}, v{sp}")
            o.append(f"v_mul_f32 v{Em+i}, v{Em+i}, v{sm}")
        for i in range(4):
            o.append(f"v_cvt_pk_bf16_f32 v{O + i}, v{Ep + 2 * i}, v{Ep + 2 * i + 1}")
            o.append(f"v_cvt_pk_bf16_f32 v{O + 4 + i}, v{Em + 2 * i}, v{Em + 2 * i + 1}")
        streams.append(o)
    return interleave(streams[0], streams[1])

def cons_B(E):
    WP, PHI, BUF = 64, 72, 88
    cons_setup(E, "B")
    srds(E); srds2(E)
    if OPT["pf"]:
        prefetch(E)
    stamps_init(E)
    ones = PHI
    for i in range(4):
        E(f"v_mov_b32 v{ones + i}, -1")
        E(f"v_mov_b32 v{ONES + i}, 0x3f803f80")
    E(f"v_mov_b32 v{vL2E}, s{sL2E}"); E(f"v_mov_b32 v{vL2E + 1}, s{sL2E}")
    vKV = 14
    E(f"s_lshl_b32 s{sT0}, s{sHP}, 4")
    E(f"s_add_u32 s{sT0}, s{sT0}, s{sRB}")
    E(f"s_lshl_b32 s{sT0}, s{sT0}, 3")
    E(f"s_add_u32 s{sT0}, s{sT0}, s{sWV}")
    E(f"s_lshl_b32 s{sT0}, s{sT0}, 10")
    E(f"s_add_u32 s{sT0}, s{sT0}, {WS_KVP}")
    E(f"v_add_u32 v{vKV}, s{sT0}, v{vL16B}")
    E(f"v_mov_b32 v{vPADB}, 0")
    E(f"v_mov_b32 v{T0}, 0x7149f2ca")
    E(f"v_cndmask_b32 v{vPADB}, v{vPADB}, v{T0}, {sr(sG3, 2)}")
    E(f"s_lshl_b32 s{sT2}, s{sRG}, 5")
    E(f"v_add_u32 v{vSL}, s{sT2}, v{vL16}")
    E(f"v_mul_u32_u24 v{vA0}, {PHI_STRIDE}, v{vSL}")
    E(f"v_lshl_add_u32 v{vA0}, v{vG}, 3, v{vA0}")
    E(f"s_lshl_b32 s{sT2}, s{sHH}, 7")
    E(f"v_add_u32 v{vA0}, s{sT2}, v{vA0}")
    E(f"v_mul_u32_u24 v{vA1}, {V_STRIDE}, v{vSL}")
    E(f"v_lshl_add_u32 v{vA1}, v{vG}, 3, v{vA1}")
    E(f"s_mul_i32 s{sT0}, s{sHH}, {VB[1] - VB[0]}")
    E(f"s_add_u32 s{sT0}, s{sT0}, {VB[0]}")
    E(f"v_add_u32 v{vA1}, s{sT0}, v{vA1}")
    t0, t1 = T0, T0 + 1
    E(f"v_and_b32 v{t0}, 1, v{vG}")
    E(f"v_lshlrev_b32 v{t0}, 4, v{t0}")
    E(f"v_bfe_u32 v{t1}, v{vLANE}, 2, 2")
    E(f"v_lshl_add_u32 v{t0}, v{t1}, 2, v{t0}")
    E(f"v_lshrrev_b32 v{t1}, 1, v{vG}")
    E(f"v_lshl_add_u32 v{t0}, v{t1}, 1, v{t0}")
    E(f"v_and_b32 v{t1}, 3, v{vLANE}")
    E(f"v_lshlrev_b32 v{t1}, 3, v{t1}")
    E(f"s_lshr_b32 s{sT0}, s{sWV}, 1")
    E(f"s_lshl_b32 s{sT0}, s{sT0}, 6")
    E(f"v_mul_u32_u24 v{vA2}, {PHI_STRIDE}, v{t0}")
    E(f"v_add3_u32 v{vA2}, v{vA2}, v{t1}, s{sT0}")
    E(f"s_lshr_b32 s{sT0}, s{sWV}, 2")
    E(f"s_mul_i32 s{sT0}, s{sT0}, {VB[1] - VB[0]}")
    E(f"s_add_u32 s{sT0}, s{sT0}, {VB[0]}")
    E(f"s_and_b32 s{sT1}, s{sWV}, 1")
    E(f"s_lshl_b32 s{sT1}, s{sT1}, 5")
    E(f"s_add_u32 s{sT0}, s{sT0}, s{sT1}")
    E(f"v_mul_u32_u24 v{vA3}, {V_STRIDE}, v{t0}")
    E(f"v_add3_u32 v{vA3}, v{vA3}, v{t1}, s{sT0}")
    w1, w2 = T0 + 8, T0 + 9
    E(f"v_bfe_u32 v{t0}, v{vLANE}, 2, 2")
    E(f"v_lshl_add_u32 v{t0}, v{vG}, 2, v{t0}")
    E(f"v_mul_u32_u24 v{t0}, 56, v{t0}")
    E(f"s_mul_i32 s{sT2}, s{sHH}, 1568")
    E(f"s_add_u32 s{sT2}, s{sT2}, {B_WPH}")
    E(f"v_add_u32 v{t0}, s{sT2}, v{t0}")
    E(f"v_and_b32 v{t1}, 3, v{vLANE}")
    E(f"v_min_u32 v{w2}, 2, v{t1}")
    E(f"v_lshl_add_u32 v{w1}, v{t1}, 3, v{t0}")
    E(f"v_lshl_add_u32 v{w2}, v{w2}, 3, v{t0}")
    C = Cons(E, "B", B_STAGES, BUF, 32, 2)
    def prebar(E, s):
        if s == 3:
            for ft in range(2):
                for j in range(2):
                    E(f"ds_read_b64_tr_b16 {vr(WP + 4 * ft + 2 * j, 2)}, v{w1 if ft == 0 else w2} offset:{896 * j + 32 * ft}")
            for ft in range(2):
                for i in (2, 3):
                    r = WP + 4 * ft + i
                    E(f"v_cndmask_b32 v{r}, v{r}, 0, {sr(sG3, 2)}")
    C.prebar = prebar
    C.run(0, 6)
    stamp(E, 1)
    SCR = BUF + 32
    vp0 = T0
    F = [f"v_mov_b32 v{vp0 + 8}, 0x3f80"]
    for u in range(2):
        vp = vp0 + 4 * u
        F += pack_op(ACC[1] + 8 * u, vp, zero_pad=False)
        F.append(f"v_cndmask_b32 v{vp + 2}, v{vp + 2}, v{vp0 + 8}, {sr(sG3, 2)}")
        F.append(f"v_cndmask_b32 v{vp + 3}, v{vp + 3}, 0, {sr(sG3, 2)}")
    for u in range(2):
        for dt in range(2):
            F.append(f"ds_write_b64 v{vA1}, {vr(vp0 + 4 * u + 2 * dt, 2)} offset:{16 * V_STRIDE * u + 32 * dt}")
    body = phi_path(0, PHI, [SCR, SCR + 16], WP)
    E(body[:16]); E(F); E(body[16:])
    for u in range(2):
        for sg in range(2):
            for ft in range(2):
                E(f"ds_write_b64 v{vA0}, {vr(PHI + 8 * u + 4 * sg + 2 * ft, 2)} offset:{PHI_BASE + 16 * PHI_STRIDE * u + 64 * sg + 32 * ft}")
    stamp(E, 3)
    E.barrier()
    KA, KB_, KD = ACC[0], SCR, SCR + 16
    for ks in range(4):
        for j in range(2):
            E(f"ds_read_b64_tr_b16 {vr(KB_ + 4 * ks + 2 * j, 2)}, v{vA3} offset:{(32 * ks + j) * V_STRIDE}")
        for ft in range(2):
            for j in range(2):
                E(f"ds_read_b64_tr_b16 {vr(KA + 8 * ks + 4 * ft + 2 * j, 2)}, v{vA2} offset:{PHI_BASE + (32 * ks + j) * PHI_STRIDE + 32 * ft}")
        if ks >= 1:
            for ft in range(2):
                cin = "0" if ks == 1 else vr(KD + 4 * ft, 4)
                E(f"v_mfma_f32_16x16x32_bf16 {vr(KD + 4 * ft, 4)}, {vr(KA + 8 * (ks - 1) + 4 * ft, 4)}, {vr(KB_ + 4 * (ks - 1), 4)}, {cin}")
    for ft in range(2):
        E(f"v_mfma_f32_16x16x32_bf16 {vr(KD + 4 * ft, 4)}, {vr(KA + 24 + 4 * ft, 4)}, {vr(KB_ + 12, 4)}, {vr(KD + 4 * ft, 4)}")
    kp = T0
    E(pack_op(KD, kp, zero_pad=False))
    for i in range(4):
        E(f"v_min_u32 v{kp + i}, -2, v{kp + i}")
    E(f"buffer_store_dwordx4 {vr(kp, 4)}, v{vKV}, {sr(SWS, 4)}, 0 offen sc1")
    stamp(E, 4)
    E.barrier()
    G = BUF
    E(f"s_lshl_b32 s{sT0}, s{sHP}, 17")
    E(f"s_lshl_b32 s{sT1}, s{sWV}, 10")
    E(f"s_add_u32 s{sT0}, s{sT0}, s{sT1}")
    E(f"s_add_u32 s{sT0}, s{sT0}, {WS_KVP}")
    E(f"v_add_u32 v{vA1}, s{sT0}, v{vL16B}")
    loads = []
    for p in range(16):
        loads.append(f"s_mov_b32 s{sT0}, {8192 * p}")
        loads.append(f"buffer_load_dwordx4 {vr(G + 4 * p, 4)}, v{vA1}, {sr(SWS, 4)}, s{sT0} offen sc1")
    body = phi_path(2, PHI, [ACC[0], ACC[1]], WP)
    h = len(body) * OPT["gat"] // 100
    E(body[:h])
    E.barrier()
    stamp(E, 5)
    E(loads)
    E(body[h:])
    E(p3_setup(E))
    stamp(E, 6)
    SEL = T0 + 2
    SUM = ACC[0]
    t0_, t1_ = ACC[0] + 8, ACC[0] + 9
    E(f"v_lshrrev_b32 v{t0_}, 2, v{vL16}")
    E(f"v_cmp_eq_u32 vcc, v{t0_}, v{vG}")
    E(f"v_and_b32 v{t0_}, 1, v{vL16}")
    E(f"v_lshlrev_b32 v{t0_}, 4, v{t0_}")
    E(f"v_mov_b32 v{t1_}, 0x3f80")
    E(f"v_lshlrev_b32 v{t0_}, v{t0_}, v{t1_}")
    E(f"v_cndmask_b32 v{t0_}, 0, v{t0_}, vcc")
    E(f"v_and_b32 v{t1_}, 2, v{vL16}")
    E(f"v_cmp_eq_u32 vcc, 0, v{t1_}")
    for r in (SEL, SEL + 1, SEL + 4, SEL + 5):
        E(f"v_mov_b32 v{r}, 0")
    E(f"v_cndmask_b32 v{SEL + 2}, 0, v{t0_}, vcc")
    E(f"v_cndmask_b32 v{SEL + 3}, v{t0_}, 0, vcc")
    L = newlabel("kv"); Lc = newlabel("kvc"); Ld = newlabel("kvd")
    E(f"s_mov_b32 s{sSPIN}, 0")
    saved = list(E.vmq)
    E.flush_haz()
    E(f"s_branch {Lc}")
    E.label(L)
    E.vmq = []
    E(loads)
    E.label(Lc)
    chk = T0
    for p in range(16):
        g4 = G + 4 * p
        E(f"v_mfma_f32_16x16x32_bf16 {vr(SUM, 4)}, {vr(SEL + 2, 4)}, {vr(g4, 4)}, {'0' if p == 0 else vr(SUM, 4)}")
        E(f"v_mfma_f32_16x16x32_bf16 {vr(SUM + 4, 4)}, {vr(SEL, 4)}, {vr(g4, 4)}, {'0' if p == 0 else vr(SUM + 4, 4)}")
        if p == 0:
            E(f"v_max_u32 v{chk}, v{g4}, v{g4 + 1}")
        else:
            E(f"v_max3_u32 v{chk}, v{chk}, v{g4}, v{g4 + 1}")
        E(f"v_max3_u32 v{chk}, v{chk}, v{g4 + 2}, v{g4 + 3}")
    E(f"v_cmp_eq_u32 vcc, -1, v{chk}")
    spin_tail(E, L, Ld)
    stamp(E, 7)
    kf = ACC[0] + 8
    E(pack_op(SUM, kf, zero_pad=False))
    E(f"s_lshl_b32 s{sT0}, s{sWV}, 10")
    E(f"s_add_u32 s{sT0}, s{sT0}, {KVF}")
    E(f"v_add_u32 v{vA1}, s{sT0}, v{vL16B}")
    E(f"ds_write_b128 v{vA1}, {vr(kf, 4)}")
    E(f"s_lshl_b32 s{sT0}, s{sHH}, 12")
    E(f"s_add_u32 s{sT0}, s{sT0}, {KVF}")
    E(f"v_add_u32 v{vA1}, s{sT0}, v{vL16B}")
    E(f"v_lshlrev_b32 v{vA2}, 8, v{vG}")
    E(f"s_add_u32 s{sT0}, s{sT0}, {12 * 16}")
    E(f"v_add_u32 v{vA2}, s{sT0}, v{vA2}")
    E.barrier()
    KF, ZF, NUM = BUF, BUF + 16, BUF + 24
    for w in range(4):
        E(f"ds_read_b128 {vr(KF + 4 * w, 4)}, v{vA1} offset:{1024 * w}")
    for sg in range(2):
        E(f"ds_read_b128 {vr(ZF + 4 * sg, 4)}, v{vA2} offset:{1024 * (2 * sg + 1)}")
    pre_a = p3_loads(0)[0]
    for u in range(2):
        for dt in range(2):
            for sg in range(2):
                d = NUM + 12 * u + 4 * dt
                E(f"v_mfma_f32_16x16x32_bf16 {vr(d, 4)}, {vr(KF + 4 * (2 * sg + dt), 4)}, {vr(PHI + 8 * u + 4 * sg, 4)}, {'0' if sg == 0 else vr(d, 4)}")
        for sg in range(2):
            d = NUM + 12 * u + 8
            E(f"v_mfma_f32_16x16x32_bf16 {vr(d, 4)}, {vr(ZF + 4 * sg, 4)}, {vr(PHI + 8 * u + 4 * sg, 4)}, {'0' if sg == 0 else vr(d, 4)}")
    E(pre_a)
    st = []
    for u in range(2):
        n = NUM + 12 * u; dn = n + 8
        t = BUF + 48 + 8 * u
        o = []
        o += round_pairs(n, n, 8, t)
        o.append(f"v_cvt_pk_bf16_f32 v{t + 4}, v{dn}, v{dn}")
        o.append(f"v_lshlrev_b32 v{dn}, 16, v{t + 4}")
        o.append(f"v_add_f32 v{dn}, 0x358637bd, v{dn}")
        o.append(f"v_cvt_pk_bf16_f32 v{t + 4}, v{dn}, v{dn}")
        o.append(f"v_lshlrev_b32 v{dn}, 16, v{t + 4}")
        o.append(f"v_rcp_f32 v{dn}, v{dn}")
        for i in range(8):
            o.append(f"v_mul_f32 v{n + i}, v{n + i}, v{dn}")
        o += pack_op(n, t)
        for i in range(4):
            o.append(f"v_min_u32 v{t + i}, -2, v{t + i}")
        o.append(ostore(t, u))
        st.append(o)
    E(interleave(st[0], st[1]))
    stamp(E, 8)

def att_masks():
    ms = []
    for tile in range(2):
        for i in range(4):
            m = 0
            for lane in range(64):
                q, g = lane & 15, lane >> 4
                d = q - (4 * g + i) + (16 if tile == 0 else 0)
                if 0 <= d <= 14 and d % 2 == 0:
                    m |= 1 << lane
            ms.append(m)
    return ms

def cons_A(E, halo):
    HACC, BUF = 64, 80
    cons_setup(E, "A")
    srds(E); srds2(E)
    ones = T0 + 4
    for i in range(4):
        E(f"v_mov_b32 v{ones + i}, -1")
    E(f"s_lshl_b32 s{sT0}, s{sHP}, 4")
    E(f"s_add_u32 s{sT0}, s{sT0}, s{sRB}")
    E(f"s_lshl_b32 s{sT0}, s{sT0}, 3")
    E(f"s_add_u32 s{sT0}, s{sT0}, s{sWV}")
    E(f"s_lshl_b32 s{sT0}, s{sT0}, 10")
    E(f"s_add_u32 s{sT0}, s{sT0}, {WS_KVP}")
    E(f"v_add_u32 v{vA0}, s{sT0}, v{vL16B}")
    E(f"buffer_store_dwordx4 {vr(ones, 4)}, v{vA0}, {sr(SWS, 4)}, 0 offen sc1")
    if OPT["pf"]:
        prefetch(E)
    stamps_init(E)
    ms = att_masks()
    for i, m in enumerate(ms):
        E(f"s_mov_b32 s{sMASK + 2 * i}, {m & 0xffffffff:#x}")
        E(f"s_mov_b32 s{sMASK + 2 * i + 1}, {m >> 32:#x}")
    E(f"s_lshl_b32 s{sT0}, s{sWV}, 11")
    E(f"s_add_u32 s{sT0}, s{sT0}, {A_EXCH}")
    E(f"v_add_u32 v{vA1}, s{sT0}, v{vL16B}")
    E(f"v_lshl_add_u32 v{vA2}, v{vLANE}, 3, s{sT0}")
    C = Cons(E, "A", A_STAGES, BUF, 36, 2, halo=halo, HACC=HACC)
    def fl(E, base):
        Lf = newlabel("fs")
        E(f"s_cmp_lg_u32 s{sWV}, 0")
        E.flush_haz()
        E(f"s_cbranch_scc1 {Lf}")
        flag_store(E, 1, T0, T0 + 1, base)
        E.label(Lf)
    def prebar(E, s):
        if s == 0:
            E.force_wait(vm=1 if OPT["pf"] else 0)
        if s == 1 and halo:
            fl(E, 0)
        if s in (1, 2):
            E(f"s_mov_b32 s{sT0}, {WS_OB + 16384 * (s - 1)}")
            E(f"buffer_store_dwordx4 {vr(ones, 4)}, v{vOOFF}, {sr(SWS, 4)}, s{sT0} offen sc1")
            E(ostore(ones, s - 1))
        if s == 5:
            E.force_wait(vm=0)
        if s == 6 and halo:
            fl(E, 128)
    C.prebar = prebar
    C.run(0, 6)
    stamp(E, 1)
    KT, VV = BUF, BUF + 12
    for u in range(2):
        E(pack_op(ACC[0] + 8 * u, KT + 4 + 4 * u))
        for dt in range(2):
            a = ACC[1] + 8 * u + 4 * dt
            d = VV + 8 * u + 4 * dt + 2
            E(f"v_cvt_pk_bf16_f32 v{d}, v{a}, v{a + 1}")
            E(f"v_cvt_pk_bf16_f32 v{d + 1}, v{a + 2}, v{a + 3}")
            if u == 0:
                E(f"v_mov_b32 v{d + 6}, v{d}")
                E(f"v_mov_b32 v{d + 7}, v{d + 1}")
    E.barrier()
    E(f"ds_write_b128 v{vA1}, {vr(KT + 8, 4)} offset:4096")
    for dt in range(2):
        E(f"ds_write_b64 v{vA2}, {vr(VV + 8 + 4 * dt + 2, 2)} offset:{4096 + 1024 + 512 * dt}")
    if halo:
        E(pack_op(HACC, KT))
        for dt in range(2):
            a = HACC + 8 + 4 * dt
            d = VV + 4 * dt
            E(f"v_cvt_pk_bf16_f32 v{d}, v{a}, v{a + 1}")
            E(f"v_cvt_pk_bf16_f32 v{d + 1}, v{a + 2}, v{a + 3}")
        E(f"s_cmp_eq_u32 s{sRB}, 0")
        E(f"s_cselect_b64 {sr(sMP, 2)}, 0, -1")
    T = BUF + 28
    NEG = T0 + 8
    E(f"v_mov_b32 v{NEG}, 0xf149f2ca")
    MX = [T0, T0 + 1]; SM = [T0 + 2, T0 + 3]; tt = T0 + 4
    pre0, pre, mid, post = [], [], [], []
    for u in range(2):
        B_ = T + 20 * u
        qo, L, pk, P = B_, B_ + 4, B_ + 12, B_ + 16
        O = ACC[1] + 8 * u
        pre0 += pack_op(ACC[2] + 8 * u, qo)
        o = []
        o.append(f"v_mfma_f32_16x16x32_bf16 {vr(L + 4, 4)}, {vr(KT + 4 * u + 4, 4)}, {vr(qo, 4)}, 0")
        o.append(f"v_mfma_f32_16x16x32_bf16 {vr(L, 4)}, {vr(KT + 4 * u, 4)}, {vr(qo, 4)}, 0")
        o += round_pairs(L, L, 8, pk)
        for i in range(8):
            o.append(f"v_mul_f32 v{L + i}, s{sSCL}, v{L + i}")
        o += round_pairs(L, L, 8, pk)
        for i in range(8):
            o.append(f"v_cndmask_b32 v{L + i}, v{NEG}, v{L + i}, {sr(sMASK + 2 * i, 2)}")
        if halo and u == 0:
            for i in range(4):
                o.append(f"v_cndmask_b32 v{L + i}, v{NEG}, v{L + i}, {sr(sMP, 2)}")
        mx = MX[u]
        o.append(f"v_max3_f32 v{mx}, v{L}, v{L+1}, v{L+2}")
        o.append(f"v_max3_f32 v{mx}, v{mx}, v{L+3}, v{L+4}")
        o.append(f"v_max3_f32 v{mx}, v{mx}, v{L+5}, v{L+6}")
        o.append(f"v_max_f32 v{mx}, v{mx}, v{L+7}")
        pre.append(o)
        o = []
        o.append(f"v_mul_f32 v{mx}, s{sL2E}, v{mx}")
        for i in range(8):
            o.append(f"v_fma_f32 v{L + i}, v{L + i}, s{sL2E}, -v{mx}")
        for i in range(8):
            o.append(f"v_exp_f32 v{L + i}, v{L + i}")
        sm = SM[u]
        o.append(f"v_add_f32 v{sm}, v{L}, v{L + 1}")
        for i in range(2, 8):
            o.append(f"v_add_f32 v{sm}, v{sm}, v{L + i}")
        mid.append(o)
        o = []
        o.append(f"v_rcp_f32 v{sm}, v{sm}")
        for i in range(8):
            o.append(f"v_mul_f32 v{L + i}, v{L + i}, v{sm}")
        for i in range(4):
            o.append(f"v_cvt_pk_bf16_f32 v{P + i}, v{L + 2 * i}, v{L + 2 * i + 1}")
        for dt in range(2):
            o.append(f"v_mfma_f32_16x16x32_bf16 {vr(O + 4 * dt, 4)}, {vr(VV + 8 * u + 4 * dt, 4)}, {vr(P, 4)}, 0")
        o += pack_op(O, qo)
        for i in range(4):
            o.append(f"v_min_u32 v{qo + i}, -2, v{qo + i}")
        o.append(ostore(qo, u))
        post.append(o)
    E(pre0)
    E.barrier()
    if not halo:
        E(f"ds_read_b128 {vr(KT, 4)}, v{vA1}")
        for dt in range(2):
            E(f"ds_read_b64 {vr(VV + 4 * dt, 2)}, v{vA2} offset:{1024 + 512 * dt}")
    E(interleave(pre[1], pre[0]))
    E(dual_reduce(MX[0], MX[1], tt, "v_max_f32"))
    E(interleave(mid[0], mid[1]))
    E(dual_reduce(SM[0], SM[1], tt, "v_add_f32"))
    E(interleave(post[0], post[1]))
    stamp(E, 8)
    E.barrier()
    E(p3_setup(E))

def loader(E, br, last):
    stages = A_STAGES if br == "A" else B_STAGES
    vX, vW0, vW1, vH0, vH1, vWO, vGX, vGF, vGOFF = 4, 5, 6, 7, 8, 9, 10, 12, 13
    t0, t1, t2, t3 = T0, T0 + 1, T0 + 2, T0 + 3
    sL = sRG
    if OPT["prio"]:
        E("s_setprio 3")
    E(f"s_sub_u32 s{sL}, s{sWV}, 8")
    E(f"v_lshrrev_b32 v{t0}, 3, v{vLANE}")
    E(f"v_bfe_u32 v{t1}, v{vLANE}, 4, 2")
    E(f"s_lshl_b32 s{sT1}, s{sHH}, 2")
    E(f"v_or_b32 v{t1}, s{sT1}, v{t1}")
    E(f"v_and_b32 v{t2}, 7, v{vLANE}")
    E(f"v_xor_b32 v{t1}, v{t1}, v{t2}")
    E(f"s_lshl_b32 s{sT0}, s{sRB}, 7")
    E(f"s_lshl_b32 s{sT1}, s{sL}, 3")
    E(f"s_add_u32 s{sT0}, s{sT0}, s{sT1}")
    E(f"v_add_u32 v{t0}, s{sT0}, v{t0}")
    E(f"v_mul_u32_u24 v{vX}, 896, v{t0}")
    E(f"v_lshl_add_u32 v{vX}, v{t1}, 4, v{vX}")
    for pi, vw in enumerate((vW0, vW1)):
        if last and pi == 1:
            break
        E(f"s_lshl_b32 s{sT1}, s{sL}, 6")
        if pi:
            E(f"s_add_u32 s{sT1}, s{sT1}, 256")
        E(f"v_add_u32 v{t0}, s{sT1}, v{vLANE}")
        E(f"v_mul_u32_u24 v{t1}, 9363, v{t0}")
        E(f"v_lshrrev_b32 v{t1}, 16, v{t1}")
        E(f"v_mul_u32_u24 v{t2}, 7, v{t1}")
        E(f"v_sub_u32 v{t2}, v{t0}, v{t2}")
        E(f"v_and_b32 v{t0}, 0x38, v{t1}")
        E(f"v_and_b32 v{t3}, 1, v{t1}")
        E(f"v_lshl_add_u32 v{t0}, v{t3}, 2, v{t0}")
        E(f"v_bfe_u32 v{t3}, v{t1}, 1, 2")
        E(f"v_add_u32 v{t0}, v{t0}, v{t3}")
        E(f"v_mul_u32_u24 v{vw}, 2688, v{t0}")
        E(f"v_lshl_add_u32 v{vw}, v{t2}, 4, v{vw}")
        E(f"s_mul_i32 s{sT1}, s{sHP}, 112")
        E(f"v_add_u32 v{vw}, s{sT1}, v{vw}")
    E(f"s_lshl_b32 s{sM0}, s{sL}, 10")
    if last and br == "A":
        E(f"v_subrev_u32 v{vH1}, {32 * 896}, v{vX}")
        E(f"v_xor_b32 v{vH0}, 64, v{vX}")
        E(f"v_subrev_u32 v{vH0}, {40 * 896}, v{vH0}")
    srds(E)
    def issue(s):
        if OPT["no_load"]:
            return
        st = stages[s]; m = st["m"]; base = st["base"]
        for i in range(4):
            E(f"s_add_u32 m0, s{sM0}, {base + 4096 * i}")
            E(f"s_mov_b32 s{sT0}, {128 * m + 28672 * i}")
            E(f"buffer_load_dwordx4 v{vX}, {sr(SX, 4)}, s{sT0} offen lds", tag=f"S{s}")
        for k, seg in enumerate(st["segs"]):
            for pi, vw in enumerate((vW0, vW1)):
                if last and pi == 1:
                    break
                E(f"s_add_u32 m0, s{sM0}, {base + woff(br, k) + 4096 * pi}")
                E(f"s_mov_b32 s{sT0}, {m * 64 * 2688 + SEGCOL[seg] * 896}")
                E(f"buffer_load_dwordx4 v{vw}, {sr(SW, 4)}, s{sT0} offen lds", tag=f"S{s}")
        if last and br == "A":
            for n2, vh in enumerate((vH0, vH1)):
                E(f"s_mov_b32 m0, {base + 16384 + 1024 * n2}")
                E(f"s_mov_b32 s{sT0}, {128 * m}")
                E(f"buffer_load_dwordx4 v{vh}, {sr(SX, 4)}, s{sT0} offen lds", tag=f"S{s}")
    nxt = 0
    issue(0); nxt = 1
    srds2(E)
    stamps_init(E)
    if last:
        if br == "B":
            E(f"s_mul_i32 s{sT1}, s{sHP}, 3136")
            E(f"v_add_u32 v{t0}, s{sT1}, v{vL16B}")
            for i in range(4):
                E(f"s_mov_b32 m0, {B_WPH + 1024 * i}")
                E(f"s_mov_b32 s{sT0}, {1024 * i}")
                E(f"buffer_load_dwordx4 v{t0}, {sr(SAUX, 4)}, s{sT0} offen lds", tag="S1")
        else:
            E(f"s_mov_b32 m0, {A_GATE}")
            E(f"buffer_load_dwordx4 v{vL16B}, {sr(SAUX, 4)}, 0 offen lds", tag="S0")
    while nxt < OPT["ahead"]:
        issue(nxt); nxt += 1
    E(f"v_lshrrev_b32 v{vWO}, 3, v{vLANE}")
    E(f"v_bfe_u32 v{t1}, v{vLANE}, 4, 2")
    E(f"v_lshlrev_b32 v{t1}, 1, v{t1}")
    E(f"v_and_b32 v{t2}, 7, v{vLANE}")
    E(f"v_xor_b32 v{t1}, v{t1}, v{t2}")
    E(f"v_mul_u32_u24 v{vWO}, 896, v{vWO}")
    E(f"v_lshl_add_u32 v{vWO}, v{t1}, 4, v{vWO}")
    E(f"s_lshl_b32 s{sT1}, s{sCT}, 7")
    E(f"s_mul_i32 s{sT2}, s{sL}, {8 * 896}")
    E(f"s_add_u32 s{sT1}, s{sT1}, s{sT2}")
    E(f"s_cmp_ge_u32 s{sJ}, 28")
    E(f"s_cselect_b32 s{sT1}, 0x1000000, s{sT1}")
    E(f"v_add_u32 v{vWO}, s{sT1}, v{vWO}")
    def wo(b2):
        for i in range(14):
            E(f"s_add_u32 m0, s{sM0}, {(WOB_BASE if b2 else WOA_BASE) + i * 4096}")
            E(f"s_mov_b32 s{sT0}, {i * 32 * 896}")
            E(f"buffer_load_dwordx4 v{vWO}, {sr(SWOA if b2 == 0 else SWOB, 4)}, s{sT0} offen lds", tag=f"WO{b2}")
    gate = last and br == "A"
    if gate:
        E(f"v_lshrrev_b32 v{t0}, 1, v{vL16}")
        E(f"v_xor_b32 v{t0}, v{t0}, v{vG}")
        E(f"v_lshlrev_b32 v{t0}, 4, v{t0}")
        E(f"v_lshl_add_u32 v{t0}, v{vL16}, 7, v{t0}")
        E(f"s_lshl_b32 s{sT0}, s{sHP}, 11")
        E(f"v_add_u32 v{vGX}, s{sT0}, v{t0}")
        E(f"v_xor_b32 v{vGX + 1}, 64, v{vGX}")
        E(f"v_lshlrev_b32 v{vGF}, 4, v{vG}")
        E(f"v_add_u32 v{vGF}, {A_GATE}, v{vGF}")
        E(f"s_lshl_b32 s{sT0}, s{sRB}, 7")
        E(f"s_lshl_b32 s{sT1}, s{sHP}, 4")
        E(f"s_add_u32 s{sT0}, s{sT0}, s{sT1}")
        E(f"s_lshl_b32 s{sT0}, s{sT0}, 2")
        E(f"s_add_u32 s{sT0}, s{sT0}, {WS_G}")
        E(f"v_lshl_add_u32 v{vGOFF}, v{vLANE}, 2, s{sT0}")
        E(f"v_mov_b32 v{t0}, {WS_BYTES}")
        E(f"v_cmp_gt_u32 vcc, 16, v{vLANE}")
        E(f"v_cndmask_b32 v{vGOFF}, v{t0}, v{vGOFF}, vcc")
        E(f"v_mov_b32 v{t1}, -1")
        E(f"buffer_store_dword v{t1}, v{vGOFF}, {sr(SWS, 4)}, 0 offen sc1", tag="GCLR")
    GL, GB = 16, 20
    cur = 0
    cleared = [False]
    def clears():
        on = 40
        for i in range(4):
            E(f"v_mov_b32 v{on + i}, -1")
        E(f"s_lshl_b32 s{sT0}, s{sRB}, 3")
        E(f"s_lshl_b32 s{sT1}, s{sL}, 1")
        E(f"s_add_u32 s{sT0}, s{sT0}, s{sT1}")
        E(f"s_lshl_b32 s{sT0}, s{sT0}, 4")
        E(f"s_lshl_b32 s{sT1}, s{sHP}, 1")
        E(f"s_add_u32 s{sT0}, s{sT0}, s{sT1}")
        E(f"s_lshl_b32 s{sT0}, s{sT0}, 10")
        E(f"s_lshl_b32 s{sT1}, s{sBR}, 21")
        E(f"s_add_u32 s{sT0}, s{sT0}, s{sT1}")
        E(f"v_add_u32 v{t2}, s{sT0}, v{vL16B}")
        E(f"s_mov_b32 s{sT1}, 16384")
        if br == "B":
            E(f"s_lshl_b32 s{sT0}, s{sHP}, 4")
            E(f"s_add_u32 s{sT0}, s{sT0}, s{sRB}")
            E(f"s_lshl_b32 s{sT0}, s{sT0}, 2")
            E(f"s_add_u32 s{sT0}, s{sT0}, s{sL}")
            E(f"s_lshl_b32 s{sT0}, s{sT0}, 11")
            E(f"s_add_u32 s{sT0}, s{sT0}, {WS_KVP}")
            E(f"v_add_u32 v{t3}, s{sT0}, v{vL16B}")
            for i in range(2):
                E(f"buffer_store_dwordx4 {vr(on, 4)}, v{t3}, {sr(SWS, 4)}, 0 offen offset:{1024 * i} sc1", tag="CLR")
        for u in range(2):
            for i in range(2):
                E(f"buffer_store_dwordx4 {vr(on, 4)}, v{t2}, {sr(SWS, 4)}, {'0' if u == 0 else 's' + str(sT1)} offen offset:{1024 * i} sc1", tag="CLR")
    def step(s):
        nonlocal nxt, cur
        E.wait_tag(f"S{s}")
        if gate and s == OPT["flag_at"]:
            E.wait_tag("GCLR")
        E.barrier(lgkm0=True)
        if gate:
            d = stages[s]["base"] - cur; cur = stages[s]["base"]
            E(vadd_imm(vGX, d)); E(vadd_imm(vGX + 1, d))
            m = stages[s]["m"]
            for tt in range(2):
                E(f"ds_read_b128 {vr(GB + 8 * tt, 4)}, v{vGX + tt}")
                E(f"ds_read_b128 {vr(GB + 8 * tt + 4, 4)}, v{vGF} offset:{64 * (2 * m + tt)}")
        while nxt < len(stages) and stages[nxt]["after"] <= s and nxt <= s + OPT["ahead"]:
            issue(nxt); nxt += 1
        if gate:
            m = stages[s]["m"]
            for tt in range(2):
                E(f"v_mfma_f32_16x16x32_bf16 {vr(GL, 4)}, {vr(GB + 8 * tt + 4, 4)}, {vr(GB + 8 * tt, 4)}, {'0' if (m == 0 and tt == 0) else vr(GL, 4)}")
    if br == "A":
        for s in range(7):
            step(s)
        if gate:
            g = GL
            E(f"v_cvt_pk_bf16_f32 v{g + 1}, v{g}, v{g}")
            E(f"v_lshlrev_b32 v{g}, 16, v{g + 1}")
            E(f"v_mul_f32 v{g}, s{sL2E}, v{g}")
            E(f"v_exp_f32 v{g}, -v{g}")
            E(f"v_add_f32 v{g}, 1.0, v{g}")
            E(f"v_rcp_f32 v{g}, v{g}")
            E(f"v_cvt_pk_bf16_f32 v{g + 1}, v{g}, v{g}")
            E(f"v_lshlrev_b32 v{g}, 16, v{g + 1}")
            E.wait_tag("GCLR")
            E(f"buffer_store_dword v{g}, v{vGOFF}, {sr(SWS, 4)}, 0 offen sc1")
        E.barrier()
        E.barrier()
        E.barrier()
        wo(0); wo(1)
        if last:
            flags_wait_all(E, t0, t1, 128)
    else:
        for s in range(7):
            step(s)
        if last:
            flags_wait_all(E, t0, t1)
        E.barrier()
        E.barrier()
        wo(0)
        E.barrier()
        if last:
            flags_wait_all(E, t0, t1, 128)
        E.barrier()
    E(f"s_cmp_ge_u32 s{sJ}, 28")
    E.flush_haz()
    E("s_cbranch_scc1 L_end")
    E.wait_tag("WO0")
    E.barrier()
    if br == "B":
        wo(1)
    E.force_wait(vm=0)
    E.barrier()
    E("s_branch L_end")

def p3_setup(E):
    rt, kh = sP3, sP3 + 1
    t0, t1, t2 = T0 + 8, T0 + 9, T0 + 1
    o = []
    o.append(f"s_and_b32 s{rt}, s{sWV}, 3")
    o.append(f"s_lshr_b32 s{kh}, s{sWV}, 2")
    o.append(f"s_lshl_b32 s{sT2}, s{sT}, 2")
    o.append(f"s_add_u32 s{sT2}, s{sT2}, s{rt}")
    o.append(f"s_lshl_b32 s{sP3 + 2}, s{sT2}, 14")
    o.append(f"s_lshl_b32 s{sP3 + 3}, s{kh}, 13")
    o.append(f"s_add_u32 s{sP3 + 2}, s{sP3 + 2}, s{sP3 + 3}")
    o.append(f"v_add_u32 v{pOF}, s{sP3 + 2}, v{vL16B}")
    o.append(f"s_lshl_b32 s{sT2}, s{sT2}, 4")
    o.append(f"v_add_u32 v{pROW}, s{sT2}, v{vL16}")
    o.append(f"v_bfe_u32 v{t0}, v{vLANE}, 2, 2")
    o.append(f"v_lshl_add_u32 v{t0}, v{vG}, 2, v{t0}")
    o.append(f"v_bfe_u32 v{t1}, v{t0}, 1, 2")
    o.append(f"v_and_b32 v{t2}, 3, v{vLANE}")
    o.append(f"v_lshlrev_b32 v{t2}, 3, v{t2}")
    o.append(f"v_lshl_add_u32 v{t2}, v{t0}, 7, v{t2}")
    o.append(f"s_mul_i32 s{sT2}, s{kh}, 28672")
    o.append(f"s_add_u32 s{sT2}, s{sT2}, {WOA_BASE}")
    o.append(f"v_add_u32 v{t2}, s{sT2}, v{t2}")
    o.append(f"s_lshl_b32 s{sT2}, s{kh}, 1")
    o.append(f"v_xor_b32 v{t1}, s{sT2}, v{t1}")
    for c in range(4):
        o.append(f"v_xor_b32 v{t0}, {c}, v{t1}")
        o.append(f"v_lshl_add_u32 v{pWO + c}, v{t0}, 5, v{t2}")
    o.append(f"v_add_u32 v7, 4096, v{pOF}")
    o.append(f"v_lshlrev_b32 v9, 2, v{pROW}")
    o.append(f"v_add_u32 v9, {WS_G}, v9")
    return o

sP3 = sMASK
pOF, pROW, pWO = 4, 5, 12
def p3_loads(br):
    of = 16 + 32 * br
    loads = [f"s_mov_b32 s{sT2}, {WS_OB if br else 0}"]
    for hl in range(8):
        loads.append(f"buffer_load_dwordx4 {vr(of + 4 * hl, 4)}, v{pOF if hl < 4 else 7}, {sr(SWS, 4)}, s{sT2} offen offset:{1024 * (hl & 3)} sc1")
    regs = list(range(of, of + 32))
    if br == 0:
        loads.append(f"buffer_load_dword v6, v9, {sr(SWS, 4)}, 0 offen sc1")
        regs.append(6)
    return loads, regs

def phase3(E):
    E.label("L_p3")
    E.vmq = []; E.lgq = []
    E(f"s_cmp_ge_u32 s{sJ}, 28")
    E("s_cbranch_scc1 L_fin")
    rt, kh = sP3, sP3 + 1
    vROW, vGV, vWO = pROW, 6, pWO
    vOF0, vOF1, vGA, vXO, vXP, vOUT = pOF, 7, 9, 8, 10, 11
    TMP = 144
    OF, AC, WF = 16, [80, 96], 112
    loads_for = p3_loads
    def gemm(br):
        of = OF + 32 * br
        prev = []
        for hl in range(8):
            wf = WF + 16 * (hl & 1)
            rd = []
            for c in range(4):
                for j in range(2):
                    rd.append(f"ds_read_b64_tr_b16 {vr(wf + 4 * c + 2 * j, 2)}, v{vWO + (c ^ (2 * (hl & 1)))} offset:{3584 * hl + 2048 * j}")
            E(interleave_front(prev, rd) if prev else rd)
            prev = []
            for c in (2, 3, 0, 1):
                acc = AC[br] + 4 * c
                prev.append(f"v_mfma_f32_16x16x32_bf16 {vr(acc, 4)}, {vr(wf + 4 * c, 4)}, {vr(of + 4 * hl, 4)}, {'0' if hl == 0 else vr(acc, 4)}")
        E(prev)
    E.barrier()
    stamp(E, 9)
    la, ra = loads_for(0)
    Lsk = newlabel("p3a")
    E(f"s_cmp_lg_u32 s{sBR}, 0")
    E.flush_haz()
    E(f"s_cbranch_scc1 {Lsk}")
    E(la)
    E.label(Lsk)
    E(f"s_lshl_b32 s{sT0}, s{sWV}, 12")
    E(f"s_add_u32 s{sT0}, s{sT0}, {XB3}")
    E(f"v_add_u32 v{vXO}, s{sT0}, v{vL16B}")
    E(f"s_xor_b32 s{sT0}, s{sWV}, 4")
    E(f"s_lshl_b32 s{sT0}, s{sT0}, 12")
    E(f"s_add_u32 s{sT0}, s{sT0}, {XB3}")
    E(f"v_add_u32 v{vXP}, s{sT0}, v{vL16B}")
    E(f"v_mul_u32_u24 v{vOUT}, 896, v{vROW}")
    E(f"v_lshl_add_u32 v{vOUT}, v{vG}, 3, v{vOUT}")
    E(f"s_lshl_b32 s{sT0}, s{sCT}, 7")
    E(f"s_lshl_b32 s{sT1}, s{kh}, 6")
    E(f"s_add_u32 s{sT0}, s{sT0}, s{sT1}")
    E(f"v_add_u32 v{vOUT}, s{sT0}, v{vOUT}")
    poll_loop(E, la, ra, "o", TMP, pre_issued=True)
    stamp(E, 10)
    gemm(0)
    for i in range(2):
        E(f"ds_write_b128 v{vXO}, {vr(AC[0] + 8 + 4 * i, 4)} offset:{1024 * i}")
    stamp(E, 11)
    lb, rb_ = loads_for(1)
    E(lb)
    for c in range(4):
        E(vadd_imm(vWO + c, WOB_BASE - WOA_BASE))
    E.barrier()
    RA, T1, tp, omg = OF, OF + 8, OF + 16, OF + 24
    for i in range(2):
        E(f"ds_read_b128 {vr(RA + 4 * i, 4)}, v{vXP} offset:{1024 * i}")
    E(f"v_sub_f32 v{omg}, 1.0, v{vGV}")
    if OPT["round_final"]:
        E(f"v_cvt_pk_bf16_f32 v{omg + 1}, v{omg}, v{omg}")
        E(f"v_lshlrev_b32 v{omg}, 16, v{omg + 1}")
    for i in range(8):
        E(f"v_add_f32 v{T1 + i}, v{AC[0] + i}, v{RA + i}")
    if OPT["round_final"]:
        E(round_pairs(T1, T1, 8, tp))
    for i in range(8):
        E(f"v_mul_f32 v{T1 + i}, v{T1 + i}, v{vGV}")
    if OPT["round_final"]:
        E(round_pairs(T1, T1, 8, tp))
    poll_loop(E, lb, rb_, "o", TMP, pre_issued=True)
    stamp(E, 12)
    gemm(1)
    for i in range(2):
        E(f"ds_write_b128 v{vXO}, {vr(AC[1] + 8 + 4 * i, 4)} offset:{2048 + 1024 * i}")
    stamp(E, 13)
    E.barrier()
    for i in range(2):
        E(f"ds_read_b128 {vr(RA + 4 * i, 4)}, v{vXP} offset:{2048 + 1024 * i}")
    KB = AC[1]
    for i in range(8):
        E(f"v_add_f32 v{KB + i}, v{KB + i}, v{RA + i}")
    if OPT["round_final"]:
        E(round_pairs(KB, KB, 8, tp))
        for i in range(8):
            E(f"v_mul_f32 v{KB + i}, v{KB + i}, v{omg}")
        E(round_pairs(KB, KB, 8, tp))
        for i in range(8):
            E(f"v_add_f32 v{T1 + i}, v{T1 + i}, v{KB + i}")
    else:
        for i in range(8):
            E(f"v_fmac_f32 v{T1 + i}, v{KB + i}, v{omg}")
    for i in range(4):
        E(f"v_cvt_pk_bf16_f32 v{tp + i}, v{T1 + 2 * i}, v{T1 + 2 * i + 1}")
    for i in range(2):
        E(f"buffer_store_dwordx2 {vr(tp + 2 * i, 2)}, v{vOUT}, {sr(SOUT, 4)}, 0 offen offset:{32 * i}")
    stamp(E, 14)
    E.label("L_fin")
    if OPT["dbgspan"]:
        Lz = newlabel("sp")
        E(f"s_cmp_lg_u32 s{sWV}, 0")
        E(f"s_cbranch_scc1 {Lz}")
        E.force_wait(vm=0)
        E("s_memrealtime s[96:97]")
        E.force_wait(lgkm=0)
        E("s_not_b32 s94, s94")
        E("v_mov_b32 v144, s96")
        E("v_mov_b32 v145, s94")
        E("v_mov_b32 v146, 0")
        E("s_mov_b64 exec, 1")
        E(f"buffer_atomic_umax v144, v146, {sr(SDBG, 4)}, 0 offen")
        E(f"buffer_atomic_umax v145, v146, {sr(SDBG, 4)}, 0 offen offset:4")
        E("s_not_b32 s94, s94")
        E("v_mov_b32 v145, s94")
        E(f"buffer_atomic_umax v145, v146, {sr(SDBG, 4)}, 0 offen offset:8")
        E("s_mov_b64 exec, -1")
        E.label(Lz)
    if OPT["stamps"]:
        Lz = newlabel("st")
        E(f"s_cmp_lg_u32 s{sWV}, 0")
        E(f"s_cbranch_scc1 {Lz}")
        E.force_wait(vm=0, lgkm=0)
        E(f"s_lshl_b32 s{sT0}, s2, 7")
        E(f"s_add_u32 s{sT0}, s{sT0}, {WS_ST}")
        E(f"v_mov_b32 v{vA0}, s{sT0}")
        E("s_mov_b64 exec, 1")
        for i in range(15):
            E(f"v_mov_b32 v{TMP}, s{sSTAMP + 2 * i}")
            E(f"v_mov_b32 v{TMP + 1}, s{sSTAMP + 2 * i + 1}")
            E(f"buffer_store_dwordx2 {vr(TMP, 2)}, v{vA0}, {sr(SWS, 4)}, 0 offen offset:{8 * i}")
            E.force_wait(vm=0)
        E.label(Lz)

def main():
    hdr = open("cdna_kernels/" + NAME + ".s.ref").read().split("; Override launch geometry")[0]
    E.raw(hdr.rstrip())
    E.raw(f"; @launch grid=(256,1,1) block=(768,1,1) lds={LDS_BYTES}")
    E.raw('.amdgcn_target "amdgcn-amd-amdhsa--gfx950"')
    E.raw(".text")
    E.raw(f".globl {NAME}_kernel")
    E.raw(".p2align 8")
    E.raw(f".type {NAME}_kernel,@function")
    E.raw(f"{NAME}_kernel:")
    prologue(E)
    E(f"s_cmp_lt_u32 s{sWV}, 8")
    E.flush_haz()
    E("s_cbranch_scc1 L_cons")
    E(f"s_cmp_eq_u32 s{sWV}, 11")
    E("s_cbranch_scc1 L_ld3")
    E(f"s_cmp_eq_u32 s{sBR}, 0")
    E("s_cbranch_scc1 L_A_ld")
    for name, fn in (("L_B_ld", lambda: loader(E, "B", False)), ("L_ld3", None), ("L_B_ld3", lambda: loader(E, "B", True)),
                     ("L_A_ld", lambda: loader(E, "A", False)), ("L_A_ld3", lambda: loader(E, "A", True))):
        E.label(name); E.vmq = []; E.lgq = []
        if fn is None:
            E(f"s_cmp_eq_u32 s{sBR}, 0")
            E("s_cbranch_scc1 L_A_ld3")
        else:
            fn()
    E.label("L_cons")
    E(f"s_cmp_eq_u32 s{sBR}, 0")
    E("s_cbranch_scc0 L_B_main")
    E(f"s_cmp_lt_u32 s{sWV}, 2")
    E("s_cbranch_scc1 L_A_halo")
    for name, fn in (("L_A_main", lambda: cons_A(E, False)), ("L_A_halo", lambda: cons_A(E, True)), ("L_B_main", lambda: cons_B(E))):
        E.label(name); E.vmq = []; E.lgq = []
        fn()
        E.wait(lgkm=0)
        E.flush_haz()
        E("s_branch L_p3")
    phase3(E)
    E.label("L_end")
    E("s_endpgm")
    E.raw('.section .rodata,"a"')
    E.raw(".p2align 6")
    E.raw(f".amdhsa_kernel {NAME}_kernel")
    E.raw(f"  .amdhsa_next_free_vgpr {NVGPR}")
    E.raw("  .amdhsa_next_free_sgpr 102")
    E.raw(f"  .amdhsa_accum_offset {NVGPR}")
    E.raw("  .amdhsa_group_segment_fixed_size 0")
    E.raw("  .amdhsa_kernarg_size 88")
    E.raw("  .amdhsa_user_sgpr_count 2")
    E.raw("  .amdhsa_user_sgpr_kernarg_segment_ptr 1")
    E.raw("  .amdhsa_system_sgpr_workgroup_id_x 1")
    E.raw(".end_amdhsa_kernel")
    txt = E.text()
    import re
    mx = max(int(x) for x in re.findall(r"\bv\[?(\d+)", txt) + re.findall(r"\bv\[\d+:(\d+)\]", txt))
    assert mx < NVGPR, mx
    open(sys.argv[1], "w").write(txt)
    print("instructions:", E.nins, "max vgpr", mx)

main()
```

```python
import sys, struct, math
from asmlib import *

NAME = "gated_mix__sliding_local_dilated__linear_kernel_hedgehog__prompt"
OPT = dict(stamps=0, fine=0, round_final=1, pf=1, flag_at=5, ahead=2, nov=4, fill=5, mfsum=1, prio=1, pkfma=2, gat=90, no_comp=0, no_load=0, no_clr=0, lead=2, dbgspan=0, pf2=1, prog=0)
for a in sys.argv[2:]:
    k, v = a.split("=")
    OPT[k] = int(v) if v.lstrip("-").isdigit() else v

LDS_BYTES = 163840
PHI_STRIDE, V_STRIDE = 264, 72
WS_OA, WS_OB, WS_KVP, WS_G, WS_ST = 0, 2 << 20, 4 << 20, 5 << 20, 8 << 20
WS_BYTES = 16 << 20
SPIN_MAX = 30000
SEGCOL = {"Q": 0, "K": 1, "V": 2}
SEGI = {"K": 0, "V": 1, "Q": 2}
WOA_BASE, WOB_BASE, XB3 = 58368, 0, 116736
B_SS = 39936
B_STAGES = [dict(m=m, segs=["K", "V", "Q"], base=B_SS * (m % 4)) for m in range(7)]
for i, st in enumerate(B_STAGES):
    prev = [j for j in range(i) if B_STAGES[j]["base"] == st["base"]]
    st["after"] = (prev[-1] + 2) if prev else -1
B_WPH = 159744
PHI_BASE = 0
VB = [128 * PHI_STRIDE, 128 * PHI_STRIDE + 128 * V_STRIDE]
KVF = 143360
A_SS = 39936
A_STAGES = [dict(m=m, segs=["K", "V", "Q"], base=A_SS * (m % 4)) for m in range(7)]
for i, st in enumerate(A_STAGES):
    prev = [j for j in range(i) if A_STAGES[j]["base"] == st["base"]]
    st["after"] = (prev[-1] + 2) if prev else -1
A_GATE = 159744
A_EXCH = XB3
def woff(br, k):
    return 18432 + 7168 * k

def f2u(x): return struct.unpack("<I", struct.pack("<f", x))[0]
LOG2E = f2u(1.4426950408889634)
SCALE = f2u(28 ** -0.5)

SX, SW, SWS, SDBG, SAUX, SWOA, SWOB, SOUT = 8, 12, 16, 20, 24, 28, 32, 36
sRB, sHP, sBR, sWV, sT, sCT, sJ, sT0, sT1, sM0 = 40, 41, 42, 43, 44, 45, 46, 47, 48, 49
sMASK = 50
sG3 = 66
sL2E, sSCL, sSPIN, sT2 = 68, 69, 70, 71
sKA = 72
sSTAMP = 72
sRG, sHH, s16K, sMP = 3, 4, 5, 6
sHIM = sG3 + 1

NVGPR = 168
vLANE, vL16, vG, vL16B = 0, 1, 2, 3
vXR, vTR, vPADB, vOOFF = 4, 6, 7, 8
vA0, vA1, vA2, vA3 = 9, 10, 11, 12
vSL, vXRH = 13, 13
ACC = [16, 32, 48]
T0 = 152

E = Emitter()
lblc = [0]
def newlabel(p):
    lblc[0] += 1
    return f"L_{p}_{lblc[0]}"

def stamp(E, idx, fine=False):
    if OPT["stamps"] and (idx == 0 or bool(OPT["fine"]) == fine):
        E(f"s_memrealtime {sr(sSTAMP + 2 * idx, 2)}")

def srd(E, d, lo, nbytes):
    E(f"s_mov_b32 s{d}, s{lo}")
    E(f"s_and_b32 s{d+1}, s{lo+1}, 0xffff")
    E(f"s_mov_b32 s{d+2}, {nbytes}")
    E(f"s_mov_b32 s{d+3}, 0x20000")

def dual_reduce(a, b, t, op):
    return [
        f"v_permlane32_swap_b32 v{a}, v{b}",
        f"{op} v{a}, v{a}, v{b}",
        f"v_mov_b32 v{t}, v{a}",
        f"v_permlane16_swap_b32 v{a}, v{t}",
        f"{op} v{a}, v{a}, v{t}",
        f"v_mov_b32 v{b}, v{a}",
        f"v_permlane32_swap_b32 v{a}, v{b}",
    ]

def round_pairs(src, dst, n, tmp):
    out = []
    for i in range(0, n, 2):
        out.append(f"v_cvt_pk_bf16_f32 v{tmp + i // 2}, v{src + i}, v{src + i + 1}")
    for i in range(0, n, 2):
        out.append(f"v_lshlrev_b32 v{dst + i}, 16, v{tmp + i // 2}")
        out.append(f"v_and_b32 v{dst + i + 1}, s{sHIM}, v{tmp + i // 2}")
    return out

def pack_op(acc, dst, zero_pad=True):
    out = [f"v_cvt_pk_bf16_f32 v{dst + i}, v{acc + 2 * i}, v{acc + 2 * i + 1}" for i in range(4)]
    if zero_pad:
        out += [f"v_cndmask_b32 v{dst + 2}, v{dst + 2}, 0, {sr(sG3, 2)}", f"v_cndmask_b32 v{dst + 3}, v{dst + 3}, 0, {sr(sG3, 2)}"]
    return out

def interleave_front(mm, rd):
    out = []
    n = max(1, (len(mm) * 3) // 4)
    j = 0
    for i, x in enumerate(mm):
        tgt = min(len(rd), ((i + 1) * len(rd) + n - 1) // n)
        while j < tgt:
            out.append(rd[j]); j += 1
        out.append(x)
    out += rd[j:]
    return out

def vadd_imm(reg, delta):
    if delta == 0:
        return []
    return [f"v_add_u32 v{reg}, {delta & 0xffffffff:#x}, v{reg}"]

def prologue(E):
    E("s_cmp_ge_u32 s2, 256")
    E("s_cbranch_scc1 L_end")
    if OPT["dbgspan"]:
        E("s_memrealtime s[94:95]")
    E(f"s_load_dwordx16 {sr(sKA, 16)}, s[0:1], 0")
    E(f"s_load_dwordx4 {sr(sKA + 16, 4)}, s[0:1], 64")
    E(f"s_load_dwordx2 {sr(sKA + 20, 2)}, s[0:1], 80")
    E(f"v_lshrrev_b32 v{T0}, 6, v0")
    E(f"v_and_b32 v{vLANE}, 63, v0")
    E(f"v_readfirstlane_b32 s{sWV}, v{T0}")
    E(f"s_and_b32 s{sT0}, s2, 7")
    E(f"s_lshr_b32 s{sJ}, s2, 3")
    E(f"s_lshr_b32 s{sBR}, s{sJ}, 4")
    E(f"s_xor_b32 s{sBR}, s{sBR}, 1")
    E(f"s_and_b32 s{sRB}, s{sT0}, 3")
    E(f"s_lshl_b32 s{sRB}, s{sRB}, 2")
    E(f"s_bfe_u32 s{sT1}, s{sJ}, 0x20002")
    E(f"s_add_u32 s{sRB}, s{sRB}, s{sT1}")
    E(f"s_lshr_b32 s{sHP}, s{sT0}, 2")
    E(f"s_lshl_b32 s{sHP}, s{sHP}, 2")
    E(f"s_and_b32 s{sT1}, s{sJ}, 3")
    E(f"s_add_u32 s{sHP}, s{sHP}, s{sT1}")
    E(f"s_mul_i32 s{sT1}, s{sJ}, 37")
    E(f"s_lshr_b32 s{sT1}, s{sT1}, 8")
    E(f"s_lshl_b32 s{sT}, s{sT0}, 2")
    E(f"s_add_u32 s{sT}, s{sT}, s{sT1}")
    E(f"s_mul_i32 s{sT1}, s{sT1}, 7")
    E(f"s_sub_u32 s{sCT}, s{sJ}, s{sT1}")
    E(f"s_lshr_b32 s{sRG}, s{sWV}, 1")
    E(f"s_and_b32 s{sHH}, s{sWV}, 1")
    E(f"v_and_b32 v{vL16}, 15, v{vLANE}")
    E(f"v_lshrrev_b32 v{vG}, 4, v{vLANE}")
    E(f"v_lshlrev_b32 v{vL16B}, 4, v{vLANE}")
    E(f"s_mov_b32 s{sG3}, 0")
    E(f"s_mov_b32 s{sG3+1}, 0xffff0000")
    E(f"s_mov_b32 s{sL2E}, {LOG2E:#x}")
    E(f"s_mov_b32 s{sSCL}, {SCALE:#x}")

def srds(E):
    E.force_wait(lgkm=0)
    K = sKA
    srd(E, SX, K + 0, 2048 * 896)
    E(f"s_cmp_eq_u32 s{sBR}, 0")
    E(f"s_cselect_b32 s{sT0}, s{K+2}, s{K+8}")
    E(f"s_cselect_b32 s{sT1}, s{K+3}, s{K+9}")
    srd(E, SW, sT0, 448 * 2688)

def srds2(E):
    K = sKA
    E(f"s_mov_b32 s{sT2}, 25088")
    E(f"s_cmp_eq_u32 s{sBR}, 0")
    E(f"s_cselect_b32 s{sT0}, s{K+14}, s{K+10}")
    E(f"s_cselect_b32 s{sT1}, s{K+15}, s{K+11}")
    E(f"s_cselect_b32 s{sT2}, 896, s{sT2}")
    E(f"s_mov_b32 s{SAUX}, s{sT0}")
    E(f"s_and_b32 s{SAUX+1}, s{sT1}, 0xffff")
    E(f"s_mov_b32 s{SAUX+2}, s{sT2}")
    E(f"s_mov_b32 s{SAUX+3}, 0x20000")
    srd(E, SWS, K + 20, WS_BYTES)
    srd(E, SWOA, K + 4, 448 * 896)
    srd(E, SWOB, K + 12, 448 * 896)
    srd(E, SOUT, K + 16, 2048 * 896)
    srd(E, SDBG, K + 18, 256)

def stamps_init(E):
    if OPT["stamps"]:
        stamp(E, 0)
        for i in range(1, 15):
            E(f"s_mov_b64 {sr(sSTAMP + 2 * i, 2)}, 0")

def prefetch(E):
    K = sKA
    SP = sMASK + 2
    t0, t1, t2, t3 = T0, T0 + 1, T0 + 2, T0 + 3
    Lx = newlabel("pfx"); Ld = newlabel("pfd")
    E(f"s_cmp_ge_u32 s{sWV}, 6")
    E.flush_haz()
    E(f"s_cbranch_scc1 {Lx}")
    E(f"s_cmp_lt_u32 s{sWV}, 3")
    E(f"s_cselect_b32 s{sT0}, s{K+2}, s{K+8}")
    E(f"s_cselect_b32 s{sT1}, s{K+3}, s{K+9}")
    E(f"s_cselect_b32 s{sT2}, 0, 3")
    srd(E, SP, sT0, 448 * 2688)
    E(f"s_sub_u32 s{sT2}, s{sWV}, s{sT2}")
    E(f"s_lshl_b32 s{sT2}, s{sT2}, 6")
    E(f"v_add_u32 v{t0}, s{sT2}, v{vLANE}")
    E(f"v_mul_u32_u24 v{t1}, 5462, v{t0}")
    E(f"v_lshrrev_b32 v{t1}, 16, v{t1}")
    E(f"v_mul_u32_u24 v{t2}, 12, v{t1}")
    E(f"v_sub_u32 v{t2}, v{t0}, v{t2}")
    E(f"v_lshrrev_b32 v{t3}, 2, v{t2}")
    E(f"v_and_b32 v{t2}, 3, v{t2}")
    E(f"s_mul_i32 s{sT2}, s{sJ}, 14")
    E(f"v_add_u32 v{t1}, s{sT2}, v{t1}")
    E(f"v_mul_u32_u24 v{t1}, 2688, v{t1}")
    E(f"v_mul_u32_u24 v{t3}, 896, v{t3}")
    E(f"v_lshl_add_u32 v{t2}, v{t2}, 7, v{t3}")
    E(f"s_lshr_b32 s{sT2}, s{sHP}, 2")
    E(f"s_mul_i32 s{sT2}, s{sT2}, 384")
    E(f"v_add3_u32 v{t1}, v{t1}, v{t2}, s{sT2}")
    E(f"v_mov_b32 v{t2}, 0x1000000")
    E(f"v_cmp_gt_u32 vcc, 168, v{t0}")
    E(f"v_cndmask_b32 v{t1}, v{t2}, v{t1}, vcc")
    E(f"buffer_load_dword v15, v{t1}, {sr(SP, 4)}, 0 offen")
    E.flush_haz()
    E(f"s_branch {Ld}")
    E.label(Lx)
    E(f"s_sub_u32 s{sT2}, s{sWV}, 6")
    E(f"s_lshl_b32 s{sT2}, s{sT2}, 6")
    E(f"v_add_u32 v{t0}, s{sT2}, v{vLANE}")
    E(f"s_mul_i32 s{sT2}, s{sJ}, 112")
    E(f"s_lshr_b32 s{sT1}, s{sRB}, 2")
    E(f"s_mul_i32 s{sT1}, s{sT1}, 3584")
    E(f"s_add_u32 s{sT2}, s{sT2}, s{sT1}")
    E(f"v_add_u32 v{t1}, s{sT2}, v{t0}")
    E(f"v_lshlrev_b32 v{t1}, 7, v{t1}")
    E(f"v_mov_b32 v{t2}, 0x1000000")
    E(f"v_cmp_gt_u32 vcc, 112, v{t0}")
    E(f"v_cndmask_b32 v{t1}, v{t2}, v{t1}, vcc")
    E(f"buffer_load_dword v15, v{t1}, {sr(SX, 4)}, 0 offen")
    E.label(Ld)
    E.vmq = [{"dst": set(), "tag": "PF"}]

def prefetch2(E, t0, t1, dst):
    Ld = newlabel("p2d"); Lb = newlabel("p2b")
    E(f"s_and_b32 s{sT0}, s{sWV}, 3")
    E(f"s_lshl_b32 s{sT0}, s{sT0}, 6")
    E(f"v_add_u32 v{t0}, s{sT0}, v{vLANE}")
    E(f"s_and_b32 s{sT0}, s{sJ}, 15")
    E(f"s_mul_i32 s{sT0}, s{sT0}, 196")
    E(f"v_add_u32 v{t1}, s{sT0}, v{t0}")
    E(f"v_lshlrev_b32 v{t1}, 7, v{t1}")
    E(f"v_cmp_gt_u32 vcc, 196, v{t0}")
    E(f"v_mov_b32 v{t0}, 0x1000000")
    E(f"v_cndmask_b32 v{t1}, v{t0}, v{t1}, vcc")
    E(f"s_cmp_ge_u32 s{sWV}, 4")
    E.flush_haz()
    E(f"s_cbranch_scc1 {Lb}")
    E(f"buffer_load_dword v{dst}, v{t1}, {sr(SWOA, 4)}, 0 offen")
    E(f"s_branch {Ld}")
    E.label(Lb)
    E(f"buffer_load_dword v{dst}, v{t1}, {sr(SWOB, 4)}, 0 offen")
    E.label(Ld)

def flag_store(E, val, t0, t1, base=0):
    E(f"s_lshl_b32 s{sT0}, s{sRB}, 3")
    E(f"s_add_u32 s{sT0}, s{sT0}, s{sHP}")
    if base:
        E(f"s_add_u32 s{sT0}, s{sT0}, {base}")
    E(f"v_mov_b32 v{t0}, s{sT0}")
    E(f"v_mov_b32 v{t1}, {val}")
    E("s_mov_b64 exec, 1")
    E(f"buffer_store_byte v{t1}, v{t0}, {sr(SDBG, 4)}, 0 offen sc1")
    E("s_mov_b64 exec, -1")

def spin_tail(E, L, Ld, sleep=2):
    E(f"s_cbranch_vccz {Ld}")
    E(f"s_add_u32 s{sSPIN}, s{sSPIN}, 1")
    E(f"s_cmp_lt_u32 s{sSPIN}, {SPIN_MAX}")
    E(f"s_cbranch_scc0 {Ld}")
    E(f"s_sleep {sleep}")
    E(f"s_branch {L}")
    E.label(Ld)

def flags_wait_all(E, t0, t1, base=0):
    L = newlabel("fl"); Ld = newlabel("fld")
    E(f"v_and_b32 v{t0}, 31, v{vLANE}")
    E(f"v_lshlrev_b32 v{t0}, 2, v{t0}")
    E(f"s_mov_b32 s{sSPIN}, 0")
    E(f"s_mov_b32 s{sT1}, 0x01010101")
    E.label(L)
    E(f"buffer_load_dword v{t1}, v{t0}, {sr(SDBG, 4)}, 0 offen offset:{base} sc1")
    E.force_wait(vm=0)
    E(f"v_cmp_ne_u32 vcc, s{sT1}, v{t1}")
    spin_tail(E, L, Ld, sleep=40)

def check_regs(E, regs, tmp):
    rs = list(regs)
    E(f"v_max_u32 v{tmp}, v{rs[0]}, v{rs[1]}")
    rest = rs[2:]
    while len(rest) >= 2:
        E(f"v_max3_u32 v{tmp}, v{tmp}, v{rest[0]}, v{rest[1]}"); rest = rest[2:]
    if rest:
        E(f"v_max_u32 v{tmp}, v{tmp}, v{rest[0]}")
    E(f"v_cmp_eq_u32 vcc, -1, v{tmp}")

def poll_loop(E, loads, regs, name, tmp, pre_issued=False):
    L = newlabel(name); Lc = newlabel(name + "c"); Ld = newlabel(name + "d")
    E(f"s_mov_b32 s{sSPIN}, 0")
    if pre_issued:
        E.flush_haz()
        E(f"s_branch {Lc}")
    E.label(L)
    E(loads)
    E.label(Lc)
    E.force_wait(vm=0)
    check_regs(E, regs, tmp)
    spin_tail(E, L, Ld)

def cons_setup(E, br):
    t0, t1, t2 = T0, T0 + 1, T0 + 2
    E(f"v_bfe_u32 v{t0}, v{vLANE}, 2, 2")
    E(f"v_and_b32 v{t1}, 3, v{vLANE}")
    E(f"v_lshlrev_b32 v{t2}, 3, v{vG}")
    E(f"v_lshl_add_u32 v{t2}, v{t0}, 1, v{t2}")
    E(f"v_mul_u32_u24 v{t2}, 112, v{t2}")
    E(f"v_lshl_add_u32 v{vTR}, v{t1}, 3, v{t2}")
    E(f"s_mul_i32 s{sT0}, s{sHH}, 56")
    E(f"v_add_u32 v{vTR}, s{sT0}, v{vTR}")
    E(f"v_lshrrev_b32 v{t0}, 1, v{vL16}")
    E(f"v_xor_b32 v{t0}, v{t0}, v{vG}")
    E(f"v_lshlrev_b32 v{t0}, 4, v{t0}")
    E(f"v_lshl_add_u32 v{t0}, v{vL16}, 7, v{t0}")
    E(f"s_lshl_b32 s{sT0}, s{sRG}, 12")
    E(f"v_add_u32 v{vXR}, s{sT0}, v{t0}")
    E(f"v_xor_b32 v{vXR+1}, 64, v{vXR}")
    E(f"s_lshl_b32 s{sT0}, s{sRB}, 3")
    E(f"s_lshl_b32 s{sT1}, s{sRG}, 1")
    E(f"s_add_u32 s{sT0}, s{sT0}, s{sT1}")
    E(f"s_lshl_b32 s{sT0}, s{sT0}, 4")
    E(f"s_lshl_b32 s{sT1}, s{sHP}, 1")
    E(f"s_add_u32 s{sT0}, s{sT0}, s{sT1}")
    E(f"s_add_u32 s{sT0}, s{sT0}, s{sHH}")
    E(f"s_lshl_b32 s{sT0}, s{sT0}, 10")
    E(f"s_lshl_b32 s{sT1}, s{sBR}, 21")
    E(f"s_add_u32 s{sT0}, s{sT0}, s{sT1}")
    E(f"v_add_u32 v{vOOFF}, s{sT0}, v{vL16B}")
    E(f"s_mov_b32 s{s16K}, 16384")

def ostore(reg, u):
    return f"buffer_store_dwordx4 {vr(reg, 4)}, v{vOOFF}, {sr(SWS, 4)}, {'0' if u == 0 else 's' + str(s16K)} offen sc1"

class Cons:
    def __init__(self, E, br, stages, buf0, bufsz, nbuf, halo=False, HACC=None):
        self.E, self.br, self.stages = E, br, stages
        self.buf0, self.bufsz, self.nbuf, self.halo, self.HACC = buf0, bufsz, nbuf, halo, HACC
        self.cur_base = 0
        self.ks = 0; self.pending = []
        self.nbar = 0
        self.prebar = None

    def parts(self, s, tt, buf):
        st = self.stages[s]; m = st["m"]; t = 2 * m + tt
        first = t == 0
        B0 = self.buf0 + self.bufsz * buf
        rd, mm = [], []
        xr = [B0, B0 + 4]
        for u in range(2):
            rd.append(f"ds_read_b128 {vr(xr[u], 4)}, v{vXR + tt} offset:{2048 * u}")
        wb = B0 + 8
        if self.halo:
            hx = B0 + 8; wb = B0 + 12
            rd.append(f"ds_read_b128 {vr(hx, 4)}, v{vXR + tt} offset:16384")
        elif self.br == "A":
            wb = B0 + 12
        for k, seg in enumerate(st["segs"]):
            si = SEGI[seg]
            tr = not (self.br == "A" and seg == "V")
            for c in range(2):
                wf = wb + 8 * k + 4 * c
                for j in range(2):
                    rd.append(f"ds_read_b64_tr_b16 {vr(wf + 2 * j, 2)}, v{vTR} offset:{woff(self.br, k) + 3584 * tt + 112 * j + 32 * c}")
                for u in range(2):
                    acc = ACC[si] + 8 * u + 4 * c
                    a_, b_ = (vr(wf, 4), vr(xr[u], 4)) if tr else (vr(xr[u], 4), vr(wf, 4))
                    mm.append(f"v_mfma_f32_16x16x32_bf16 {vr(acc, 4)}, {a_}, {b_}, {'0' if first else vr(acc, 4)}")
                if self.halo and seg != "Q":
                    acc = self.HACC + 8 * si + 4 * c
                    a_, b_ = (vr(wf, 4), vr(hx, 4)) if tr else (vr(hx, 4), vr(wf, 4))
                    mm.append(f"v_mfma_f32_16x16x32_bf16 {vr(acc, 4)}, {a_}, {b_}, {'0' if first else vr(acc, 4)}")
        if OPT["no_comp"] == 1:
            return [], []
        if OPT["no_comp"] == 2:
            return rd, []
        if OPT["no_comp"] == 3:
            return [], mm
        return rd, mm

    def run(self, s0, s1):
        E = self.E
        prev = []
        for ks in range(2 * s0, 2 * s1 + 2):
            s, tt = divmod(ks, 2)
            pre = []
            if tt == 0:
                nlead = min(OPT["lead"], len(prev))
                E(prev[:nlead]); prev = prev[nlead:]
                if self.prebar:
                    self.prebar(E, s)
                E.barrier(lgkm0=False)
                self.nbar += 1
                if self.nbar <= 14:
                    stamp(E, self.nbar, fine=True)
                if OPT["stamps"] and OPT["fine"] and self.nbar in (2, 7):
                    E(f"s_memtime {sr(sSTAMP + 2 * (12 if self.nbar == 2 else 13), 2)}")
                d = self.stages[s]["base"] - self.cur_base
                self.cur_base = self.stages[s]["base"]
                for r in (vXR, vXR + 1, vTR):
                    E(vadd_imm(r, d))
            rd, mm = self.parts(s, tt, ks % 2)
            if prev:
                E(interleave_front(prev, rd))
            else:
                E(rd)
            prev = mm
        E(prev)

vL2E = 162
ONES = 164
def phi_path(si, outreg, tmps, WP):
    streams = []
    for u in range(2):
        T = tmps[u]
        P = ACC[si] + 8 * u
        op, pk, Ep, Em = T, T, P, T + 4
        mx, mn, mx1, mn1 = T + 12, T + 13, T + 14, T + 15
        t = T
        O = outreg + 8 * u
        o = []
        o += pack_op(P, op)
        for ft in range(2):
            o.append(f"v_mfma_f32_16x16x32_bf16 {vr(P + 4 * ft, 4)}, {vr(WP + 4 * ft, 4)}, {vr(op, 4)}, 0")
        o += round_pairs(P, P, 8, pk)
        o.append(f"v_max3_f32 v{mx}, v{P}, v{P+1}, v{P+2}")
        o.append(f"v_min3_f32 v{mn}, v{P}, v{P+1}, v{P+2}")
        o.append(f"v_max3_f32 v{mx}, v{mx}, v{P+3}, v{P+4}")
        o.append(f"v_min3_f32 v{mn}, v{mn}, v{P+3}, v{P+4}")
        o.append(f"v_max3_f32 v{mx}, v{mx}, v{P+5}, v{P+6}")
        o.append(f"v_min3_f32 v{mn}, v{mn}, v{P+5}, v{P+6}")
        o.append(f"v_max_f32 v{mx}, v{mx}, v{P+7}")
        o.append(f"v_max_f32 v{mn}, -v{mn}, -v{P+7}")
        o += dual_reduce(mx, mn, t, "v_max_f32")
        o.append(f"v_mul_f32 v{mx}, s{sL2E}, v{mx}")
        o.append(f"v_mul_f32 v{mn}, s{sL2E}, v{mn}")
        o.append(f"v_add_f32 v{mx1}, v{mx}, v{vPADB}")
        o.append(f"v_add_f32 v{mn1}, v{mn}, v{vPADB}")
        for i in (range(8) if not OPT["pkfma"] else []):
            o.append(f"v_fma_f32 v{Em+i}, -v{P+i}, s{sL2E}, -v{mn if i < 4 else mn1}")
            o.append(f"v_fma_f32 v{Ep+i}, v{P+i}, s{sL2E}, -v{mx if i < 4 else mx1}")
        for i in (range(0, 8, 2) if OPT["pkfma"] else []):
            mm_ = vr(mx if i < 4 else mx1, 2)
            if OPT["pkfma"] == 2:
                o.append(f"v_pk_fma_f32 {vr(Em+i, 2)}, {vr(P+i, 2)}, {vr(vL2E, 2)}, {mm_} op_sel:[0,0,1] op_sel_hi:[1,1,1] neg_lo:[1,0,1] neg_hi:[1,0,1]")
                o.append(f"v_pk_fma_f32 {vr(Ep+i, 2)}, {vr(P+i, 2)}, {vr(vL2E, 2)}, {mm_} op_sel_hi:[1,1,0] neg_lo:[0,0,1] neg_hi:[0,0,1]")
                continue
            o.append(f"v_pk_fma_f32 {vr(Em+i, 2)}, {vr(P+i, 2)}, {sr(sL2E, 2)}, {mm_} op_sel:[0,0,1] op_sel_hi:[1,0,1] neg_lo:[1,0,1] neg_hi:[1,0,1]")
            o.append(f"v_pk_fma_f32 {vr(Ep+i, 2)}, {vr(P+i, 2)}, {sr(sL2E, 2)}, {mm_} op_sel_hi:[1,0,0] neg_lo:[0,0,1] neg_hi:[0,0,1]")
        for i in range(8):
            o.append(f"v_exp_f32 v{Ep+i}, v{Ep+i}")
            o.append(f"v_exp_f32 v{Em+i}, v{Em+i}")
        if OPT["mfsum"]:
            for i in range(4):
                o.append(f"v_cvt_pk_bf16_f32 v{O + i}, v{Ep + 2 * i}, v{Ep + 2 * i + 1}")
                o.append(f"v_cvt_pk_bf16_f32 v{O + 4 + i}, v{Em + 2 * i}, v{Em + 2 * i + 1}")
            SP, SM = T, T + 12
            o.append(f"v_mfma_f32_16x16x32_bf16 {vr(SP, 4)}, {vr(ONES, 4)}, {vr(O, 4)}, 0")
            o.append(f"v_mfma_f32_16x16x32_bf16 {vr(SM, 4)}, {vr(ONES, 4)}, {vr(O + 4, 4)}, 0")
            sp, sm = SP, SM
        else:
            sp, sm = mx1, mn1
            o.append(f"v_add_f32 v{sp}, v{Ep}, v{Ep+1}")
            o.append(f"v_add_f32 v{sm}, v{Em}, v{Em+1}")
            for i in range(2, 8):
                o.append(f"v_add_f32 v{sp}, v{sp}, v{Ep+i}")
                o.append(f"v_add_f32 v{sm}, v{sm}, v{Em+i}")
            o += dual_reduce(sp, sm, t, "v_add_f32")
        o.append(f"v_rcp_f32 v{sp}, v{sp}")
        o.append(f"v_rcp_f32 v{sm}, v{sm}")
        for i in range(8):
            o.append(f"v_mul_f32 v{Ep+i}, v{Ep+i}, v{sp}")
            o.append(f"v_mul_f32 v{Em+i}, v{Em+i}, v{sm}")
        for i in range(4):
            o.append(f"v_cvt_pk_bf16_f32 v{O + i}, v{Ep + 2 * i}, v{Ep + 2 * i + 1}")
            o.append(f"v_cvt_pk_bf16_f32 v{O + 4 + i}, v{Em + 2 * i}, v{Em + 2 * i + 1}")
        streams.append(o)
    return interleave(streams[0], streams[1])

def cons_B(E):
    WP, PHI, BUF = 64, 72, 88
    cons_setup(E, "B")
    srds(E); srds2(E)
    if OPT["pf"]:
        prefetch(E)
    stamps_init(E)
    ones = PHI
    for i in range(4):
        E(f"v_mov_b32 v{ones + i}, -1")
        E(f"v_mov_b32 v{ONES + i}, 0x3f803f80")
    E(f"v_mov_b32 v{vL2E}, s{sL2E}"); E(f"v_mov_b32 v{vL2E + 1}, s{sL2E}")
    vKV = 14
    E(f"s_lshl_b32 s{sT0}, s{sHP}, 4")
    E(f"s_add_u32 s{sT0}, s{sT0}, s{sRB}")
    E(f"s_lshl_b32 s{sT0}, s{sT0}, 3")
    E(f"s_add_u32 s{sT0}, s{sT0}, s{sWV}")
    E(f"s_lshl_b32 s{sT0}, s{sT0}, 10")
    E(f"s_add_u32 s{sT0}, s{sT0}, {WS_KVP}")
    E(f"v_add_u32 v{vKV}, s{sT0}, v{vL16B}")
    E(f"v_mov_b32 v{vPADB}, 0")
    E(f"v_mov_b32 v{T0}, 0x7149f2ca")
    E(f"v_cndmask_b32 v{vPADB}, v{vPADB}, v{T0}, {sr(sG3, 2)}")
    E(f"s_lshl_b32 s{sT2}, s{sRG}, 5")
    E(f"v_add_u32 v{vSL}, s{sT2}, v{vL16}")
    E(f"v_mul_u32_u24 v{vA0}, {PHI_STRIDE}, v{vSL}")
    E(f"v_lshl_add_u32 v{vA0}, v{vG}, 3, v{vA0}")
    E(f"s_lshl_b32 s{sT2}, s{sHH}, 7")
    E(f"v_add_u32 v{vA0}, s{sT2}, v{vA0}")
    E(f"v_mul_u32_u24 v{vA1}, {V_STRIDE}, v{vSL}")
    E(f"v_lshl_add_u32 v{vA1}, v{vG}, 3, v{vA1}")
    E(f"s_mul_i32 s{sT0}, s{sHH}, {VB[1] - VB[0]}")
    E(f"s_add_u32 s{sT0}, s{sT0}, {VB[0]}")
    E(f"v_add_u32 v{vA1}, s{sT0}, v{vA1}")
    t0, t1 = T0, T0 + 1
    E(f"v_and_b32 v{t0}, 1, v{vG}")
    E(f"v_lshlrev_b32 v{t0}, 4, v{t0}")
    E(f"v_bfe_u32 v{t1}, v{vLANE}, 2, 2")
    E(f"v_lshl_add_u32 v{t0}, v{t1}, 2, v{t0}")
    E(f"v_lshrrev_b32 v{t1}, 1, v{vG}")
    E(f"v_lshl_add_u32 v{t0}, v{t1}, 1, v{t0}")
    E(f"v_and_b32 v{t1}, 3, v{vLANE}")
    E(f"v_lshlrev_b32 v{t1}, 3, v{t1}")
    E(f"s_lshr_b32 s{sT0}, s{sWV}, 1")
    E(f"s_lshl_b32 s{sT0}, s{sT0}, 6")
    E(f"v_mul_u32_u24 v{vA2}, {PHI_STRIDE}, v{t0}")
    E(f"v_add3_u32 v{vA2}, v{vA2}, v{t1}, s{sT0}")
    E(f"s_lshr_b32 s{sT0}, s{sWV}, 2")
    E(f"s_mul_i32 s{sT0}, s{sT0}, {VB[1] - VB[0]}")
    E(f"s_add_u32 s{sT0}, s{sT0}, {VB[0]}")
    E(f"s_and_b32 s{sT1}, s{sWV}, 1")
    E(f"s_lshl_b32 s{sT1}, s{sT1}, 5")
    E(f"s_add_u32 s{sT0}, s{sT0}, s{sT1}")
    E(f"v_mul_u32_u24 v{vA3}, {V_STRIDE}, v{t0}")
    E(f"v_add3_u32 v{vA3}, v{vA3}, v{t1}, s{sT0}")
    w1, w2 = T0 + 8, T0 + 9
    E(f"v_bfe_u32 v{t0}, v{vLANE}, 2, 2")
    E(f"v_lshl_add_u32 v{t0}, v{vG}, 2, v{t0}")
    E(f"v_mul_u32_u24 v{t0}, 56, v{t0}")
    E(f"s_mul_i32 s{sT2}, s{sHH}, 1568")
    E(f"s_add_u32 s{sT2}, s{sT2}, {B_WPH}")
    E(f"v_add_u32 v{t0}, s{sT2}, v{t0}")
    E(f"v_and_b32 v{t1}, 3, v{vLANE}")
    E(f"v_min_u32 v{w2}, 2, v{t1}")
    E(f"v_lshl_add_u32 v{w1}, v{t1}, 3, v{t0}")
    E(f"v_lshl_add_u32 v{w2}, v{w2}, 3, v{t0}")
    C = Cons(E, "B", B_STAGES, BUF, 32, 2)
    def prebar(E, s):
        if s == 3:
            for ft in range(2):
                for j in range(2):
                    E(f"ds_read_b64_tr_b16 {vr(WP + 4 * ft + 2 * j, 2)}, v{w1 if ft == 0 else w2} offset:{896 * j + 32 * ft}")
            for ft in range(2):
                for i in (2, 3):
                    r = WP + 4 * ft + i
                    E(f"v_cndmask_b32 v{r}, v{r}, 0, {sr(sG3, 2)}")
    C.prebar = prebar
    C.run(0, 6)
    stamp(E, 1)
    SCR = BUF + 32
    vp0 = T0
    F = [f"v_mov_b32 v{vp0 + 8}, 0x3f80"]
    for u in range(2):
        vp = vp0 + 4 * u
        F += pack_op(ACC[1] + 8 * u, vp, zero_pad=False)
        F.append(f"v_cndmask_b32 v{vp + 2}, v{vp + 2}, v{vp0 + 8}, {sr(sG3, 2)}")
        F.append(f"v_cndmask_b32 v{vp + 3}, v{vp + 3}, 0, {sr(sG3, 2)}")
    for u in range(2):
        for dt in range(2):
            F.append(f"ds_write_b64 v{vA1}, {vr(vp0 + 4 * u + 2 * dt, 2)} offset:{16 * V_STRIDE * u + 32 * dt}")
    body = phi_path(0, PHI, [SCR, SCR + 16], WP)
    E(body[:16]); E(F); E(body[16:])
    for u in range(2):
        for sg in range(2):
            for ft in range(2):
                E(f"ds_write_b64 v{vA0}, {vr(PHI + 8 * u + 4 * sg + 2 * ft, 2)} offset:{PHI_BASE + 16 * PHI_STRIDE * u + 64 * sg + 32 * ft}")
    stamp(E, 3)
    E.barrier()
    KA, KB_, KD = ACC[0], SCR, SCR + 16
    for ks in range(4):
        for j in range(2):
            E(f"ds_read_b64_tr_b16 {vr(KB_ + 4 * ks + 2 * j, 2)}, v{vA3} offset:{(32 * ks + j) * V_STRIDE}")
        for ft in range(2):
            for j in range(2):
                E(f"ds_read_b64_tr_b16 {vr(KA + 8 * ks + 4 * ft + 2 * j, 2)}, v{vA2} offset:{PHI_BASE + (32 * ks + j) * PHI_STRIDE + 32 * ft}")
        if ks >= 1:
            for ft in range(2):
                cin = "0" if ks == 1 else vr(KD + 4 * ft, 4)
                E(f"v_mfma_f32_16x16x32_bf16 {vr(KD + 4 * ft, 4)}, {vr(KA + 8 * (ks - 1) + 4 * ft, 4)}, {vr(KB_ + 4 * (ks - 1), 4)}, {cin}")
    for ft in range(2):
        E(f"v_mfma_f32_16x16x32_bf16 {vr(KD + 4 * ft, 4)}, {vr(KA + 24 + 4 * ft, 4)}, {vr(KB_ + 12, 4)}, {vr(KD + 4 * ft, 4)}")
    kp = T0
    E(pack_op(KD, kp, zero_pad=False))
    for i in range(4):
        E(f"v_min_u32 v{kp + i}, -2, v{kp + i}")
    E(f"buffer_store_dwordx4 {vr(kp, 4)}, v{vKV}, {sr(SWS, 4)}, 0 offen sc1")
    stamp(E, 4)
    E.barrier()
    G = BUF
    E(f"s_lshl_b32 s{sT0}, s{sHP}, 17")
    E(f"s_lshl_b32 s{sT1}, s{sWV}, 10")
    E(f"s_add_u32 s{sT0}, s{sT0}, s{sT1}")
    E(f"s_add_u32 s{sT0}, s{sT0}, {WS_KVP}")
    E(f"v_add_u32 v{vA1}, s{sT0}, v{vL16B}")
    loads = []
    for p in range(16):
        loads.append(f"s_mov_b32 s{sT0}, {8192 * p}")
        loads.append(f"buffer_load_dwordx4 {vr(G + 4 * p, 4)}, v{vA1}, {sr(SWS, 4)}, s{sT0} offen sc1")
    body = phi_path(2, PHI, [ACC[0], ACC[1]], WP)
    h = len(body) * OPT["gat"] // 100
    E(body[:h])
    E.barrier()
    stamp(E, 5)
    E(loads)
    E(body[h:])
    E(p3_setup(E))
    stamp(E, 6)
    SEL = T0 + 2
    SUM = ACC[0]
    t0_, t1_ = ACC[0] + 8, ACC[0] + 9
    E(f"v_lshrrev_b32 v{t0_}, 2, v{vL16}")
    E(f"v_cmp_eq_u32 vcc, v{t0_}, v{vG}")
    E(f"v_and_b32 v{t0_}, 1, v{vL16}")
    E(f"v_lshlrev_b32 v{t0_}, 4, v{t0_}")
    E(f"v_mov_b32 v{t1_}, 0x3f80")
    E(f"v_lshlrev_b32 v{t0_}, v{t0_}, v{t1_}")
    E(f"v_cndmask_b32 v{t0_}, 0, v{t0_}, vcc")
    E(f"v_and_b32 v{t1_}, 2, v{vL16}")
    E(f"v_cmp_eq_u32 vcc, 0, v{t1_}")
    for r in (SEL, SEL + 1, SEL + 4, SEL + 5):
        E(f"v_mov_b32 v{r}, 0")
    E(f"v_cndmask_b32 v{SEL + 2}, 0, v{t0_}, vcc")
    E(f"v_cndmask_b32 v{SEL + 3}, v{t0_}, 0, vcc")
    L = newlabel("kv"); Lc = newlabel("kvc"); Ld = newlabel("kvd")
    E(f"s_mov_b32 s{sSPIN}, 0")
    saved = list(E.vmq)
    E.flush_haz()
    E(f"s_branch {Lc}")
    E.label(L)
    E.vmq = []
    E(loads)
    E.label(Lc)
    chk = T0
    for p in range(16):
        g4 = G + 4 * p
        E(f"v_mfma_f32_16x16x32_bf16 {vr(SUM, 4)}, {vr(SEL + 2, 4)}, {vr(g4, 4)}, {'0' if p == 0 else vr(SUM, 4)}")
        E(f"v_mfma_f32_16x16x32_bf16 {vr(SUM + 4, 4)}, {vr(SEL, 4)}, {vr(g4, 4)}, {'0' if p == 0 else vr(SUM + 4, 4)}")
        if p == 0:
            E(f"v_max_u32 v{chk}, v{g4}, v{g4 + 1}")
        else:
            E(f"v_max3_u32 v{chk}, v{chk}, v{g4}, v{g4 + 1}")
        E(f"v_max3_u32 v{chk}, v{chk}, v{g4 + 2}, v{g4 + 3}")
    E(f"v_cmp_eq_u32 vcc, -1, v{chk}")
    spin_tail(E, L, Ld)
    stamp(E, 7)
    kf = ACC[0] + 8
    E(pack_op(SUM, kf, zero_pad=False))
    E(f"s_lshl_b32 s{sT0}, s{sWV}, 10")
    E(f"s_add_u32 s{sT0}, s{sT0}, {KVF}")
    E(f"v_add_u32 v{vA1}, s{sT0}, v{vL16B}")
    E(f"ds_write_b128 v{vA1}, {vr(kf, 4)}")
    E(f"s_lshl_b32 s{sT0}, s{sHH}, 12")
    E(f"s_add_u32 s{sT0}, s{sT0}, {KVF}")
    E(f"v_add_u32 v{vA1}, s{sT0}, v{vL16B}")
    E(f"v_lshlrev_b32 v{vA2}, 8, v{vG}")
    E(f"s_add_u32 s{sT0}, s{sT0}, {12 * 16}")
    E(f"v_add_u32 v{vA2}, s{sT0}, v{vA2}")
    E.barrier()
    KF, ZF, NUM = BUF, BUF + 16, BUF + 24
    for w in range(4):
        E(f"ds_read_b128 {vr(KF + 4 * w, 4)}, v{vA1} offset:{1024 * w}")
    for sg in range(2):
        E(f"ds_read_b128 {vr(ZF + 4 * sg, 4)}, v{vA2} offset:{1024 * (2 * sg + 1)}")
    pre_a = p3_loads(0)[0]
    for u in range(2):
        for dt in range(2):
            for sg in range(2):
                d = NUM + 12 * u + 4 * dt
                E(f"v_mfma_f32_16x16x32_bf16 {vr(d, 4)}, {vr(KF + 4 * (2 * sg + dt), 4)}, {vr(PHI + 8 * u + 4 * sg, 4)}, {'0' if sg == 0 else vr(d, 4)}")
        for sg in range(2):
            d = NUM + 12 * u + 8
            E(f"v_mfma_f32_16x16x32_bf16 {vr(d, 4)}, {vr(ZF + 4 * sg, 4)}, {vr(PHI + 8 * u + 4 * sg, 4)}, {'0' if sg == 0 else vr(d, 4)}")
    E(pre_a)
    st = []
    for u in range(2):
        n = NUM + 12 * u; dn = n + 8
        t = BUF + 48 + 8 * u
        o = []
        o += round_pairs(n, n, 8, t)
        o.append(f"v_cvt_pk_bf16_f32 v{t + 4}, v{dn}, v{dn}")
        o.append(f"v_lshlrev_b32 v{dn}, 16, v{t + 4}")
        o.append(f"v_add_f32 v{dn}, 0x358637bd, v{dn}")
        o.append(f"v_cvt_pk_bf16_f32 v{t + 4}, v{dn}, v{dn}")
        o.append(f"v_lshlrev_b32 v{dn}, 16, v{t + 4}")
        o.append(f"v_rcp_f32 v{dn}, v{dn}")
        for i in range(8):
            o.append(f"v_mul_f32 v{n + i}, v{n + i}, v{dn}")
        o += pack_op(n, t)
        for i in range(4):
            o.append(f"v_min_u32 v{t + i}, -2, v{t + i}")
        o.append(ostore(t, u))
        st.append(o)
    E(interleave(st[0], st[1]))
    stamp(E, 8)

def att_masks():
    ms = []
    for tile in range(2):
        for i in range(4):
            m = 0
            for lane in range(64):
                q, g = lane & 15, lane >> 4
                d = q - (4 * g + i) + (16 if tile == 0 else 0)
                if 0 <= d <= 14 and d % 2 == 0:
                    m |= 1 << lane
            ms.append(m)
    return ms

def cons_A(E, halo):
    HACC, BUF = 64, 80
    cons_setup(E, "A")
    srds(E); srds2(E)
    ones = T0 + 4
    for i in range(4):
        E(f"v_mov_b32 v{ones + i}, -1")
    E(f"s_lshl_b32 s{sT0}, s{sHP}, 4")
    E(f"s_add_u32 s{sT0}, s{sT0}, s{sRB}")
    E(f"s_lshl_b32 s{sT0}, s{sT0}, 3")
    E(f"s_add_u32 s{sT0}, s{sT0}, s{sWV}")
    E(f"s_lshl_b32 s{sT0}, s{sT0}, 10")
    E(f"s_add_u32 s{sT0}, s{sT0}, {WS_KVP}")
    E(f"v_add_u32 v{vA0}, s{sT0}, v{vL16B}")
    E(f"buffer_store_dwordx4 {vr(ones, 4)}, v{vA0}, {sr(SWS, 4)}, 0 offen sc1")
    if OPT["pf"]:
        prefetch(E)
    stamps_init(E)
    ms = att_masks()
    for i, m in enumerate(ms):
        E(f"s_mov_b32 s{sMASK + 2 * i}, {m & 0xffffffff:#x}")
        E(f"s_mov_b32 s{sMASK + 2 * i + 1}, {m >> 32:#x}")
    E(f"s_lshl_b32 s{sT0}, s{sWV}, 11")
    E(f"s_add_u32 s{sT0}, s{sT0}, {A_EXCH}")
    E(f"v_add_u32 v{vA1}, s{sT0}, v{vL16B}")
    E(f"v_lshl_add_u32 v{vA2}, v{vLANE}, 3, s{sT0}")
    C = Cons(E, "A", A_STAGES, BUF, 36, 2, halo=halo, HACC=HACC)
    def fl(E, base):
        Lf = newlabel("fs")
        E(f"s_cmp_lg_u32 s{sWV}, 0")
        E.flush_haz()
        E(f"s_cbranch_scc1 {Lf}")
        flag_store(E, 1, T0, T0 + 1, base)
        E.label(Lf)
    def prebar(E, s):
        if s == 0:
            E.force_wait(vm=1 if OPT["pf"] else 0)
        if s == 1 and halo:
            fl(E, 0)
        if s in (1, 2):
            E(f"s_mov_b32 s{sT0}, {WS_OB + 16384 * (s - 1)}")
            E(f"buffer_store_dwordx4 {vr(ones, 4)}, v{vOOFF}, {sr(SWS, 4)}, s{sT0} offen sc1")
            E(ostore(ones, s - 1))
        if s == 3 and OPT["pf2"]:
            sv = list(E.vmq); prefetch2(E, T0, T0 + 1, 15); E.vmq = sv
        if s == 5:
            E.force_wait(vm=0)
        if s == 6 and halo:
            fl(E, 128)
    C.prebar = prebar
    C.run(0, 6)
    stamp(E, 1)
    KT, VV = BUF, BUF + 12
    for u in range(2):
        E(pack_op(ACC[0] + 8 * u, KT + 4 + 4 * u))
        for dt in range(2):
            a = ACC[1] + 8 * u + 4 * dt
            d = VV + 8 * u + 4 * dt + 2
            E(f"v_cvt_pk_bf16_f32 v{d}, v{a}, v{a + 1}")
            E(f"v_cvt_pk_bf16_f32 v{d + 1}, v{a + 2}, v{a + 3}")
            if u == 0:
                E(f"v_mov_b32 v{d + 6}, v{d}")
                E(f"v_mov_b32 v{d + 7}, v{d + 1}")
    E.barrier()
    E(f"ds_write_b128 v{vA1}, {vr(KT + 8, 4)} offset:4096")
    for dt in range(2):
        E(f"ds_write_b64 v{vA2}, {vr(VV + 8 + 4 * dt + 2, 2)} offset:{4096 + 1024 + 512 * dt}")
    if halo:
        E(pack_op(HACC, KT))
        for dt in range(2):
            a = HACC + 8 + 4 * dt
            d = VV + 4 * dt
            E(f"v_cvt_pk_bf16_f32 v{d}, v{a}, v{a + 1}")
            E(f"v_cvt_pk_bf16_f32 v{d + 1}, v{a + 2}, v{a + 3}")
        E(f"s_cmp_eq_u32 s{sRB}, 0")
        E(f"s_cselect_b64 {sr(sMP, 2)}, 0, -1")
    T = BUF + 28
    NEG = T0 + 8
    E(f"v_mov_b32 v{NEG}, 0xf149f2ca")
    MX = [T0, T0 + 1]; SM = [T0 + 2, T0 + 3]; tt = T0 + 4
    pre0, pre, mid, post = [], [], [], []
    for u in range(2):
        B_ = T + 20 * u
        qo, L, pk, P = B_, B_ + 4, B_ + 12, B_ + 16
        O = ACC[1] + 8 * u
        pre0 += pack_op(ACC[2] + 8 * u, qo)
        o = []
        o.append(f"v_mfma_f32_16x16x32_bf16 {vr(L + 4, 4)}, {vr(KT + 4 * u + 4, 4)}, {vr(qo, 4)}, 0")
        o.append(f"v_mfma_f32_16x16x32_bf16 {vr(L, 4)}, {vr(KT + 4 * u, 4)}, {vr(qo, 4)}, 0")
        o += round_pairs(L, L, 8, pk)
        for i in range(8):
            o.append(f"v_mul_f32 v{L + i}, s{sSCL}, v{L + i}")
        o += round_pairs(L, L, 8, pk)
        for i in range(8):
            o.append(f"v_cndmask_b32 v{L + i}, v{NEG}, v{L + i}, {sr(sMASK + 2 * i, 2)}")
        if halo and u == 0:
            for i in range(4):
                o.append(f"v_cndmask_b32 v{L + i}, v{NEG}, v{L + i}, {sr(sMP, 2)}")
        mx = MX[u]
        o.append(f"v_max3_f32 v{mx}, v{L}, v{L+1}, v{L+2}")
        o.append(f"v_max3_f32 v{mx}, v{mx}, v{L+3}, v{L+4}")
        o.append(f"v_max3_f32 v{mx}, v{mx}, v{L+5}, v{L+6}")
        o.append(f"v_max_f32 v{mx}, v{mx}, v{L+7}")
        pre.append(o)
        o = []
        o.append(f"v_mul_f32 v{mx}, s{sL2E}, v{mx}")
        for i in range(8):
            o.append(f"v_fma_f32 v{L + i}, v{L + i}, s{sL2E}, -v{mx}")
        for i in range(8):
            o.append(f"v_exp_f32 v{L + i}, v{L + i}")
        sm = SM[u]
        o.append(f"v_add_f32 v{sm}, v{L}, v{L + 1}")
        for i in range(2, 8):
            o.append(f"v_add_f32 v{sm}, v{sm}, v{L + i}")
        mid.append(o)
        o = []
        o.append(f"v_rcp_f32 v{sm}, v{sm}")
        for i in range(8):
            o.append(f"v_mul_f32 v{L + i}, v{L + i}, v{sm}")
        for i in range(4):
            o.append(f"v_cvt_pk_bf16_f32 v{P + i}, v{L + 2 * i}, v{L + 2 * i + 1}")
        for dt in range(2):
            o.append(f"v_mfma_f32_16x16x32_bf16 {vr(O + 4 * dt, 4)}, {vr(VV + 8 * u + 4 * dt, 4)}, {vr(P, 4)}, 0")
        o += pack_op(O, qo)
        for i in range(4):
            o.append(f"v_min_u32 v{qo + i}, -2, v{qo + i}")
        o.append(ostore(qo, u))
        post.append(o)
    E(pre0)
    E.barrier()
    if not halo:
        E(f"ds_read_b128 {vr(KT, 4)}, v{vA1}")
        for dt in range(2):
            E(f"ds_read_b64 {vr(VV + 4 * dt, 2)}, v{vA2} offset:{1024 + 512 * dt}")
    E(interleave(pre[1], pre[0]))
    E(dual_reduce(MX[0], MX[1], tt, "v_max_f32"))
    E(interleave(mid[0], mid[1]))
    E(dual_reduce(SM[0], SM[1], tt, "v_add_f32"))
    E(interleave(post[0], post[1]))
    stamp(E, 8)
    E.barrier()
    E(p3_setup(E))

def loader(E, br, last):
    stages = A_STAGES if br == "A" else B_STAGES
    vX, vW0, vW1, vH0, vH1, vWO, vGX, vGF, vGOFF = 4, 5, 6, 7, 8, 9, 10, 12, 13
    t0, t1, t2, t3 = T0, T0 + 1, T0 + 2, T0 + 3
    sL = sRG
    if OPT["prio"]:
        E("s_setprio 3")
    E(f"s_sub_u32 s{sL}, s{sWV}, 8")
    E(f"v_lshrrev_b32 v{t0}, 3, v{vLANE}")
    E(f"v_bfe_u32 v{t1}, v{vLANE}, 4, 2")
    E(f"s_lshl_b32 s{sT1}, s{sHH}, 2")
    E(f"v_or_b32 v{t1}, s{sT1}, v{t1}")
    E(f"v_and_b32 v{t2}, 7, v{vLANE}")
    E(f"v_xor_b32 v{t1}, v{t1}, v{t2}")
    E(f"s_lshl_b32 s{sT0}, s{sRB}, 7")
    E(f"s_lshl_b32 s{sT1}, s{sL}, 3")
    E(f"s_add_u32 s{sT0}, s{sT0}, s{sT1}")
    E(f"v_add_u32 v{t0}, s{sT0}, v{t0}")
    E(f"v_mul_u32_u24 v{vX}, 896, v{t0}")
    E(f"v_lshl_add_u32 v{vX}, v{t1}, 4, v{vX}")
    for pi, vw in enumerate((vW0, vW1)):
        if last and pi == 1:
            break
        E(f"s_lshl_b32 s{sT1}, s{sL}, 6")
        if pi:
            E(f"s_add_u32 s{sT1}, s{sT1}, 256")
        E(f"v_add_u32 v{t0}, s{sT1}, v{vLANE}")
        E(f"v_mul_u32_u24 v{t1}, 9363, v{t0}")
        E(f"v_lshrrev_b32 v{t1}, 16, v{t1}")
        E(f"v_mul_u32_u24 v{t2}, 7, v{t1}")
        E(f"v_sub_u32 v{t2}, v{t0}, v{t2}")
        E(f"v_and_b32 v{t0}, 0x38, v{t1}")
        E(f"v_and_b32 v{t3}, 1, v{t1}")
        E(f"v_lshl_add_u32 v{t0}, v{t3}, 2, v{t0}")
        E(f"v_bfe_u32 v{t3}, v{t1}, 1, 2")
        E(f"v_add_u32 v{t0}, v{t0}, v{t3}")
        E(f"v_mul_u32_u24 v{vw}, 2688, v{t0}")
        E(f"v_lshl_add_u32 v{vw}, v{t2}, 4, v{vw}")
        E(f"s_mul_i32 s{sT1}, s{sHP}, 112")
        E(f"v_add_u32 v{vw}, s{sT1}, v{vw}")
    E(f"s_lshl_b32 s{sM0}, s{sL}, 10")
    if last and br == "A":
        E(f"v_subrev_u32 v{vH1}, {32 * 896}, v{vX}")
        E(f"v_xor_b32 v{vH0}, 64, v{vX}")
        E(f"v_subrev_u32 v{vH0}, {40 * 896}, v{vH0}")
    srds(E)
    def issue(s):
        if OPT["no_load"]:
            return
        st = stages[s]; m = st["m"]; base = st["base"]
        for i in range(4):
            E(f"s_add_u32 m0, s{sM0}, {base + 4096 * i}")
            E(f"s_mov_b32 s{sT0}, {128 * m + 28672 * i}")
            E(f"buffer_load_dwordx4 v{vX}, {sr(SX, 4)}, s{sT0} offen lds", tag=f"S{s}")
        for k, seg in enumerate(st["segs"]):
            for pi, vw in enumerate((vW0, vW1)):
                if last and pi == 1:
                    break
                E(f"s_add_u32 m0, s{sM0}, {base + woff(br, k) + 4096 * pi}")
                E(f"s_mov_b32 s{sT0}, {m * 64 * 2688 + SEGCOL[seg] * 896}")
                E(f"buffer_load_dwordx4 v{vw}, {sr(SW, 4)}, s{sT0} offen lds", tag=f"S{s}")
        if last and br == "A":
            for n2, vh in enumerate((vH0, vH1)):
                E(f"s_mov_b32 m0, {base + 16384 + 1024 * n2}")
                E(f"s_mov_b32 s{sT0}, {128 * m}")
                E(f"buffer_load_dwordx4 v{vh}, {sr(SX, 4)}, s{sT0} offen lds", tag=f"S{s}")
    nxt = 0
    issue(0); nxt = 1
    srds2(E)
    stamps_init(E)
    if last:
        if br == "B":
            E(f"s_mul_i32 s{sT1}, s{sHP}, 3136")
            E(f"v_add_u32 v{t0}, s{sT1}, v{vL16B}")
            for i in range(4):
                E(f"s_mov_b32 m0, {B_WPH + 1024 * i}")
                E(f"s_mov_b32 s{sT0}, {1024 * i}")
                E(f"buffer_load_dwordx4 v{t0}, {sr(SAUX, 4)}, s{sT0} offen lds", tag="S1")
        else:
            E(f"s_mov_b32 m0, {A_GATE}")
            E(f"buffer_load_dwordx4 v{vL16B}, {sr(SAUX, 4)}, 0 offen lds", tag="S0")
    while nxt < OPT["ahead"]:
        issue(nxt); nxt += 1
    E(f"v_lshrrev_b32 v{vWO}, 3, v{vLANE}")
    E(f"v_bfe_u32 v{t1}, v{vLANE}, 4, 2")
    E(f"v_lshlrev_b32 v{t1}, 1, v{t1}")
    E(f"v_and_b32 v{t2}, 7, v{vLANE}")
    E(f"v_xor_b32 v{t1}, v{t1}, v{t2}")
    E(f"v_mul_u32_u24 v{vWO}, 896, v{vWO}")
    E(f"v_lshl_add_u32 v{vWO}, v{t1}, 4, v{vWO}")
    E(f"s_lshl_b32 s{sT1}, s{sCT}, 7")
    E(f"s_mul_i32 s{sT2}, s{sL}, {8 * 896}")
    E(f"s_add_u32 s{sT1}, s{sT1}, s{sT2}")
    E(f"s_cmp_ge_u32 s{sJ}, 28")
    E(f"s_cselect_b32 s{sT1}, 0x1000000, s{sT1}")
    E(f"v_add_u32 v{vWO}, s{sT1}, v{vWO}")
    def wo(b2):
        for i in range(14):
            E(f"s_add_u32 m0, s{sM0}, {(WOB_BASE if b2 else WOA_BASE) + i * 4096}")
            E(f"s_mov_b32 s{sT0}, {i * 32 * 896}")
            E(f"buffer_load_dwordx4 v{vWO}, {sr(SWOA if b2 == 0 else SWOB, 4)}, s{sT0} offen lds", tag=f"WO{b2}")
        if last:
            E(f"s_mov_b32 m0, {(WOB_BASE if b2 else WOA_BASE) + 57344}")
            E(f"s_mov_b32 s{sT0}, {448 * 896}")
            E(f"buffer_load_dwordx4 v{vWO}, {sr(SWOA if b2 == 0 else SWOB, 4)}, s{sT0} offen lds", tag=f"WO{b2}")
    gate = last and br == "A"
    if gate:
        E(f"v_lshrrev_b32 v{t0}, 1, v{vL16}")
        E(f"v_xor_b32 v{t0}, v{t0}, v{vG}")
        E(f"v_lshlrev_b32 v{t0}, 4, v{t0}")
        E(f"v_lshl_add_u32 v{t0}, v{vL16}, 7, v{t0}")
        E(f"s_lshl_b32 s{sT0}, s{sHP}, 11")
        E(f"v_add_u32 v{vGX}, s{sT0}, v{t0}")
        E(f"v_xor_b32 v{vGX + 1}, 64, v{vGX}")
        E(f"v_lshlrev_b32 v{vGF}, 4, v{vG}")
        E(f"v_add_u32 v{vGF}, {A_GATE}, v{vGF}")
        E(f"s_lshl_b32 s{sT0}, s{sRB}, 7")
        E(f"s_lshl_b32 s{sT1}, s{sHP}, 4")
        E(f"s_add_u32 s{sT0}, s{sT0}, s{sT1}")
        E(f"s_lshl_b32 s{sT0}, s{sT0}, 2")
        E(f"s_add_u32 s{sT0}, s{sT0}, {WS_G}")
        E(f"v_lshl_add_u32 v{vGOFF}, v{vLANE}, 2, s{sT0}")
        E(f"v_mov_b32 v{t0}, {WS_BYTES}")
        E(f"v_cmp_gt_u32 vcc, 16, v{vLANE}")
        E(f"v_cndmask_b32 v{vGOFF}, v{t0}, v{vGOFF}, vcc")
        E(f"v_mov_b32 v{t1}, -1")
        E(f"buffer_store_dword v{t1}, v{vGOFF}, {sr(SWS, 4)}, 0 offen sc1", tag="GCLR")
    GL, GB = 16, 20
    cur = 0
    cleared = [False]
    def clears():
        on = 40
        for i in range(4):
            E(f"v_mov_b32 v{on + i}, -1")
        E(f"s_lshl_b32 s{sT0}, s{sRB}, 3")
        E(f"s_lshl_b32 s{sT1}, s{sL}, 1")
        E(f"s_add_u32 s{sT0}, s{sT0}, s{sT1}")
        E(f"s_lshl_b32 s{sT0}, s{sT0}, 4")
        E(f"s_lshl_b32 s{sT1}, s{sHP}, 1")
        E(f"s_add_u32 s{sT0}, s{sT0}, s{sT1}")
        E(f"s_lshl_b32 s{sT0}, s{sT0}, 10")
        E(f"s_lshl_b32 s{sT1}, s{sBR}, 21")
        E(f"s_add_u32 s{sT0}, s{sT0}, s{sT1}")
        E(f"v_add_u32 v{t2}, s{sT0}, v{vL16B}")
        E(f"s_mov_b32 s{sT1}, 16384")
        if br == "B":
            E(f"s_lshl_b32 s{sT0}, s{sHP}, 4")
            E(f"s_add_u32 s{sT0}, s{sT0}, s{sRB}")
            E(f"s_lshl_b32 s{sT0}, s{sT0}, 2")
            E(f"s_add_u32 s{sT0}, s{sT0}, s{sL}")
            E(f"s_lshl_b32 s{sT0}, s{sT0}, 11")
            E(f"s_add_u32 s{sT0}, s{sT0}, {WS_KVP}")
            E(f"v_add_u32 v{t3}, s{sT0}, v{vL16B}")
            for i in range(2):
                E(f"buffer_store_dwordx4 {vr(on, 4)}, v{t3}, {sr(SWS, 4)}, 0 offen offset:{1024 * i} sc1", tag="CLR")
        for u in range(2):
            for i in range(2):
                E(f"buffer_store_dwordx4 {vr(on, 4)}, v{t2}, {sr(SWS, 4)}, {'0' if u == 0 else 's' + str(sT1)} offen offset:{1024 * i} sc1", tag="CLR")
    def step(s):
        nonlocal nxt, cur
        E.wait_tag(f"S{s}")
        if gate and s == OPT["flag_at"]:
            E.wait_tag("GCLR")
        E.barrier(lgkm0=True)
        if gate:
            d = stages[s]["base"] - cur; cur = stages[s]["base"]
            E(vadd_imm(vGX, d)); E(vadd_imm(vGX + 1, d))
            m = stages[s]["m"]
            for tt in range(2):
                E(f"ds_read_b128 {vr(GB + 8 * tt, 4)}, v{vGX + tt}")
                E(f"ds_read_b128 {vr(GB + 8 * tt + 4, 4)}, v{vGF} offset:{64 * (2 * m + tt)}")
        while nxt < len(stages) and stages[nxt]["after"] <= s and nxt <= s + OPT["ahead"]:
            issue(nxt); nxt += 1
        if gate:
            m = stages[s]["m"]
            for tt in range(2):
                E(f"v_mfma_f32_16x16x32_bf16 {vr(GL, 4)}, {vr(GB + 8 * tt + 4, 4)}, {vr(GB + 8 * tt, 4)}, {'0' if (m == 0 and tt == 0) else vr(GL, 4)}")
    if br == "A":
        for s in range(7):
            step(s)
        if gate:
            g = GL
            E(f"v_cvt_pk_bf16_f32 v{g + 1}, v{g}, v{g}")
            E(f"v_lshlrev_b32 v{g}, 16, v{g + 1}")
            E(f"v_mul_f32 v{g}, s{sL2E}, v{g}")
            E(f"v_exp_f32 v{g}, -v{g}")
            E(f"v_add_f32 v{g}, 1.0, v{g}")
            E(f"v_rcp_f32 v{g}, v{g}")
            E(f"v_cvt_pk_bf16_f32 v{g + 1}, v{g}, v{g}")
            E(f"v_lshlrev_b32 v{g}, 16, v{g + 1}")
            E.wait_tag("GCLR")
            E(f"buffer_store_dword v{g}, v{vGOFF}, {sr(SWS, 4)}, 0 offen sc1")
        E.barrier()
        E.barrier()
        E.barrier()
        wo(0); wo(1)
        if last:
            flags_wait_all(E, t0, t1, 128)
    else:
        for s in range(7):
            step(s)
        if last:
            flags_wait_all(E, t0, t1)
        E.barrier()
        E.barrier()
        wo(0)
        E.barrier()
        if last:
            flags_wait_all(E, t0, t1, 128)
        E.barrier()
    E(f"s_cmp_ge_u32 s{sJ}, 28")
    E.flush_haz()
    E("s_cbranch_scc1 L_end")
    E.wait_tag("WO0")
    E.barrier()
    if br == "B":
        wo(1)
    E.force_wait(vm=0)
    E.barrier()
    E("s_branch L_end")

def p3_setup(E):
    rt, kh = sP3, sP3 + 1
    t0, t1, t2 = T0 + 8, T0 + 9, T0 + 1
    o = []
    o.append(f"s_and_b32 s{rt}, s{sWV}, 3")
    o.append(f"s_lshr_b32 s{kh}, s{sWV}, 2")
    o.append(f"s_lshl_b32 s{sT2}, s{sT}, 2")
    o.append(f"s_add_u32 s{sT2}, s{sT2}, s{rt}")
    o.append(f"s_lshl_b32 s{sP3 + 2}, s{sT2}, 14")
    o.append(f"s_lshl_b32 s{sP3 + 3}, s{kh}, 13")
    o.append(f"s_add_u32 s{sP3 + 2}, s{sP3 + 2}, s{sP3 + 3}")
    o.append(f"v_add_u32 v{pOF}, s{sP3 + 2}, v{vL16B}")
    o.append(f"s_lshl_b32 s{sT2}, s{sT2}, 4")
    o.append(f"v_add_u32 v{pROW}, s{sT2}, v{vL16}")
    o.append(f"v_bfe_u32 v{t0}, v{vLANE}, 2, 2")
    o.append(f"v_lshl_add_u32 v{t0}, v{vG}, 2, v{t0}")
    o.append(f"v_bfe_u32 v{t1}, v{t0}, 1, 2")
    o.append(f"v_and_b32 v{t2}, 3, v{vLANE}")
    o.append(f"v_lshlrev_b32 v{t2}, 3, v{t2}")
    o.append(f"v_lshl_add_u32 v{t2}, v{t0}, 7, v{t2}")
    o.append(f"s_mul_i32 s{sT2}, s{kh}, 28672")
    o.append(f"s_add_u32 s{sT2}, s{sT2}, {WOA_BASE}")
    o.append(f"v_add_u32 v{t2}, s{sT2}, v{t2}")
    o.append(f"s_lshl_b32 s{sT2}, s{kh}, 1")
    o.append(f"v_xor_b32 v{t1}, s{sT2}, v{t1}")
    for c in range(4):
        o.append(f"v_xor_b32 v{t0}, {c}, v{t1}")
        o.append(f"v_lshl_add_u32 v{pWO + c}, v{t0}, 5, v{t2}")
    o.append(f"v_add_u32 v7, 4096, v{pOF}")
    o.append(f"v_lshlrev_b32 v9, 2, v{pROW}")
    o.append(f"v_add_u32 v9, {WS_G}, v9")
    return o

sP3 = sMASK
pOF, pROW, pWO = 4, 5, 12
def p3_loads(br):
    of = 16 + 32 * br
    loads = [f"s_mov_b32 s{sT2}, {WS_OB if br else 0}"]
    for hl in range(8):
        loads.append(f"buffer_load_dwordx4 {vr(of + 4 * hl, 4)}, v{pOF if hl < 4 else 7}, {sr(SWS, 4)}, s{sT2} offen offset:{1024 * (hl & 3)} sc1")
    regs = list(range(of, of + 32))
    if br == 0:
        loads.append(f"buffer_load_dword v6, v9, {sr(SWS, 4)}, 0 offen sc1")
        regs.append(6)
    return loads, regs

def phase3(E):
    E.label("L_p3")
    E.vmq = []; E.lgq = []
    E(f"s_cmp_ge_u32 s{sJ}, 28")
    E("s_cbranch_scc1 L_fin")
    rt, kh = sP3, sP3 + 1
    vROW, vGV, vWO = pROW, 6, pWO
    vOF0, vOF1, vGA, vXO, vXP, vOUT = pOF, 7, 9, 8, 10, 11
    TMP = 144
    OF, AC, WF = 16, [80, 96], 112
    loads_for = p3_loads
    def gemm(br):
        of = OF + 32 * br
        prev = []
        for hl in range(8):
            wf = WF + 16 * (hl & 1)
            rd = []
            for c in range(4):
                for j in range(2):
                    rd.append(f"ds_read_b64_tr_b16 {vr(wf + 4 * c + 2 * j, 2)}, v{vWO + (c ^ (2 * (hl & 1)))} offset:{3584 * hl + 2048 * j}")
            E(interleave_front(prev, rd) if prev else rd)
            prev = []
            for c in (2, 3, 0, 1):
                acc = AC[br] + 4 * c
                prev.append(f"v_mfma_f32_16x16x32_bf16 {vr(acc, 4)}, {vr(wf + 4 * c, 4)}, {vr(of + 4 * hl, 4)}, {'0' if hl == 0 else vr(acc, 4)}")
        E(prev)
    E.barrier()
    stamp(E, 9)
    la, ra = loads_for(0)
    Lsk = newlabel("p3a")
    E(f"s_cmp_lg_u32 s{sBR}, 0")
    E.flush_haz()
    E(f"s_cbranch_scc1 {Lsk}")
    E(la)
    E.label(Lsk)
    E(f"s_lshl_b32 s{sT0}, s{sWV}, 12")
    E(f"s_add_u32 s{sT0}, s{sT0}, {XB3}")
    E(f"v_add_u32 v{vXO}, s{sT0}, v{vL16B}")
    E(f"s_xor_b32 s{sT0}, s{sWV}, 4")
    E(f"s_lshl_b32 s{sT0}, s{sT0}, 12")
    E(f"s_add_u32 s{sT0}, s{sT0}, {XB3}")
    E(f"v_add_u32 v{vXP}, s{sT0}, v{vL16B}")
    E(f"v_mul_u32_u24 v{vOUT}, 896, v{vROW}")
    E(f"v_lshl_add_u32 v{vOUT}, v{vG}, 3, v{vOUT}")
    E(f"s_lshl_b32 s{sT0}, s{sCT}, 7")
    E(f"s_lshl_b32 s{sT1}, s{kh}, 6")
    E(f"s_add_u32 s{sT0}, s{sT0}, s{sT1}")
    E(f"v_add_u32 v{vOUT}, s{sT0}, v{vOUT}")
    poll_loop(E, la, ra, "o", TMP, pre_issued=True)
    stamp(E, 10)
    gemm(0)
    for i in range(2):
        E(f"ds_write_b128 v{vXO}, {vr(AC[0] + 8 + 4 * i, 4)} offset:{1024 * i}")
    stamp(E, 11)
    lb, rb_ = loads_for(1)
    E(lb)
    for c in range(4):
        E(vadd_imm(vWO + c, WOB_BASE - WOA_BASE))
    E.barrier()
    RA, T1, tp, omg = OF, OF + 8, OF + 16, OF + 24
    for i in range(2):
        E(f"ds_read_b128 {vr(RA + 4 * i, 4)}, v{vXP} offset:{1024 * i}")
    E(f"v_sub_f32 v{omg}, 1.0, v{vGV}")
    if OPT["round_final"]:
        E(f"v_cvt_pk_bf16_f32 v{omg + 1}, v{omg}, v{omg}")
        E(f"v_lshlrev_b32 v{omg}, 16, v{omg + 1}")
    for i in range(8):
        E(f"v_add_f32 v{T1 + i}, v{AC[0] + i}, v{RA + i}")
    if OPT["round_final"]:
        E(round_pairs(T1, T1, 8, tp))
    for i in range(8):
        E(f"v_mul_f32 v{T1 + i}, v{T1 + i}, v{vGV}")
    if OPT["round_final"]:
        E(round_pairs(T1, T1, 8, tp))
    if not OPT["prog"]:
        poll_loop(E, lb, rb_, "o", TMP, pre_issued=True)
        stamp(E, 12)
        gemm(1)
    else:
        of = OF + 32
        sMK = sP3 + 2
        for i in range(16):
            E(f"v_mov_b32 v{AC[1] + i}, 0")
        E(f"s_mov_b32 s{sMK}, 15")
        E(f"s_mov_b32 s{sSPIN}, 0")
        L = newlabel("pb"); Lc = newlabel("pbc"); Ld = newlabel("pbd")
        E.wait(lgkm=0)
        E.flush_haz()
        E(f"s_branch {Lc}")
        E.label(L)
        for pr in range(4):
            Ls = newlabel("pbl")
            E(f"s_bitcmp1_b32 s{sMK}, {pr}")
            E(f"s_cbranch_scc0 {Ls}")
            E(lb[1 + 2 * pr]); E(lb[2 + 2 * pr])
            E.out.append(Ls + ":")
        E.label(Lc)
        E.force_wait(vm=0)
        for pr in range(4):
            Ls = newlabel("pbk")
            g8 = of + 8 * pr
            E(f"s_bitcmp1_b32 s{sMK}, {pr}")
            E(f"s_cbranch_scc0 {Ls}")
            E(f"v_max3_u32 v{TMP}, v{g8}, v{g8 + 1}, v{g8 + 2}")
            E(f"v_max3_u32 v{TMP + 1}, v{g8 + 3}, v{g8 + 4}, v{g8 + 5}")
            E(f"v_max3_u32 v{TMP}, v{TMP}, v{g8 + 6}, v{g8 + 7}")
            E(f"v_max_u32 v{TMP}, v{TMP}, v{TMP + 1}")
            E(f"v_cmp_eq_u32 vcc, -1, v{TMP}")
            E(f"s_cbranch_vccnz {Ls}")
            for h2 in range(2):
                hl = 2 * pr + h2
                wf = WF + 16 * h2
                for c in range(4):
                    for j in range(2):
                        E(f"ds_read_b64_tr_b16 {vr(wf + 4 * c + 2 * j, 2)}, v{vWO + (c ^ (2 * (hl & 1)))} offset:{3584 * hl + 2048 * j}")
            for h2 in range(2):
                hl = 2 * pr + h2
                wf = WF + 16 * h2
                for c in (2, 3, 0, 1):
                    acc = AC[1] + 4 * c
                    E(f"v_mfma_f32_16x16x32_bf16 {vr(acc, 4)}, {vr(wf + 4 * c, 4)}, {vr(of + 4 * hl, 4)}, {vr(acc, 4)}")
            E(f"s_bitset0_b32 s{sMK}, {pr}")
            assert not E.lgq
            E.out.append(Ls + ":")
        E(f"s_cmp_eq_u32 s{sMK}, 0")
        E(f"s_cbranch_scc1 {Ld}")
        E(f"s_add_u32 s{sSPIN}, s{sSPIN}, 1")
        E(f"s_cmp_lt_u32 s{sSPIN}, {SPIN_MAX}")
        E(f"s_cbranch_scc0 {Ld}")
        E(f"s_branch {L}")
        E.out.append(Ld + ":")
        E.nop(9); E.clear_haz()
        stamp(E, 12)
    for i in range(2):
        E(f"ds_write_b128 v{vXO}, {vr(AC[1] + 8 + 4 * i, 4)} offset:{2048 + 1024 * i}")
    stamp(E, 13)
    E.barrier()
    for i in range(2):
        E(f"ds_read_b128 {vr(RA + 4 * i, 4)}, v{vXP} offset:{2048 + 1024 * i}")
    KB = AC[1]
    for i in range(8):
        E(f"v_add_f32 v{KB + i}, v{KB + i}, v{RA + i}")
    if OPT["round_final"]:
        E(round_pairs(KB, KB, 8, tp))
        for i in range(8):
            E(f"v_mul_f32 v{KB + i}, v{KB + i}, v{omg}")
        E(round_pairs(KB, KB, 8, tp))
        for i in range(8):
            E(f"v_add_f32 v{T1 + i}, v{T1 + i}, v{KB + i}")
    else:
        for i in range(8):
            E(f"v_fmac_f32 v{T1 + i}, v{KB + i}, v{omg}")
    for i in range(4):
        E(f"v_cvt_pk_bf16_f32 v{tp + i}, v{T1 + 2 * i}, v{T1 + 2 * i + 1}")
    for i in range(2):
        E(f"buffer_store_dwordx2 {vr(tp + 2 * i, 2)}, v{vOUT}, {sr(SOUT, 4)}, 0 offen offset:{32 * i}")
    stamp(E, 14)
    E.label("L_fin")
    if OPT["dbgspan"]:
        Lz = newlabel("sp")
        E(f"s_cmp_lg_u32 s{sWV}, 0")
        E(f"s_cbranch_scc1 {Lz}")
        E.force_wait(vm=0)
        E("s_memrealtime s[96:97]")
        E.force_wait(lgkm=0)
        E("s_not_b32 s94, s94")
        E("v_mov_b32 v144, s96")
        E("v_mov_b32 v145, s94")
        E("v_mov_b32 v146, 0")
        E("s_mov_b64 exec, 1")
        E(f"buffer_atomic_umax v144, v146, {sr(SDBG, 4)}, 0 offen")
        E(f"buffer_atomic_umax v145, v146, {sr(SDBG, 4)}, 0 offen offset:4")
        E("s_not_b32 s94, s94")
        E("v_mov_b32 v145, s94")
        E(f"buffer_atomic_umax v145, v146, {sr(SDBG, 4)}, 0 offen offset:8")
        E("s_mov_b64 exec, -1")
        E.label(Lz)
    if OPT["stamps"]:
        Lz = newlabel("st")
        E(f"s_cmp_lg_u32 s{sWV}, 0")
        E(f"s_cbranch_scc1 {Lz}")
        E.force_wait(vm=0, lgkm=0)
        E(f"s_lshl_b32 s{sT0}, s2, 7")
        E(f"s_add_u32 s{sT0}, s{sT0}, {WS_ST}")
        E(f"v_mov_b32 v{vA0}, s{sT0}")
        E("s_mov_b64 exec, 1")
        for i in range(15):
            E(f"v_mov_b32 v{TMP}, s{sSTAMP + 2 * i}")
            E(f"v_mov_b32 v{TMP + 1}, s{sSTAMP + 2 * i + 1}")
            E(f"buffer_store_dwordx2 {vr(TMP, 2)}, v{vA0}, {sr(SWS, 4)}, 0 offen offset:{8 * i}")
            E.force_wait(vm=0)
        E.label(Lz)

def main():
    hdr = open("cdna_kernels/" + NAME + ".s.ref").read().split("; Override launch geometry")[0]
    E.raw(hdr.rstrip())
    E.raw(f"; @launch grid=(256,1,1) block=(768,1,1) lds={LDS_BYTES}")
    E.raw('.amdgcn_target "amdgcn-amd-amdhsa--gfx950"')
    E.raw(".text")
    E.raw(f".globl {NAME}_kernel")
    E.raw(".p2align 8")
    E.raw(f".type {NAME}_kernel,@function")
    E.raw(f"{NAME}_kernel:")
    prologue(E)
    E(f"s_cmp_lt_u32 s{sWV}, 8")
    E.flush_haz()
    E("s_cbranch_scc1 L_cons")
    E(f"s_cmp_eq_u32 s{sWV}, 11")
    E("s_cbranch_scc1 L_ld3")
    E(f"s_cmp_eq_u32 s{sBR}, 0")
    E("s_cbranch_scc1 L_A_ld")
    for name, fn in (("L_B_ld", lambda: loader(E, "B", False)), ("L_ld3", None), ("L_B_ld3", lambda: loader(E, "B", True)),
                     ("L_A_ld", lambda: loader(E, "A", False)), ("L_A_ld3", lambda: loader(E, "A", True))):
        E.label(name); E.vmq = []; E.lgq = []
        if fn is None:
            E(f"s_cmp_eq_u32 s{sBR}, 0")
            E("s_cbranch_scc1 L_A_ld3")
        else:
            fn()
    E.label("L_cons")
    E(f"s_cmp_eq_u32 s{sBR}, 0")
    E("s_cbranch_scc0 L_B_main")
    E(f"s_cmp_lt_u32 s{sWV}, 2")
    E("s_cbranch_scc1 L_A_halo")
    for name, fn in (("L_A_main", lambda: cons_A(E, False)), ("L_A_halo", lambda: cons_A(E, True)), ("L_B_main", lambda: cons_B(E))):
        E.label(name); E.vmq = []; E.lgq = []
        fn()
        E.wait(lgkm=0)
        E.flush_haz()
        E("s_branch L_p3")
    phase3(E)
    E.label("L_end")
    E("s_endpgm")
    E.raw('.section .rodata,"a"')
    E.raw(".p2align 6")
    E.raw(f".amdhsa_kernel {NAME}_kernel")
    E.raw(f"  .amdhsa_next_free_vgpr {NVGPR}")
    E.raw("  .amdhsa_next_free_sgpr 102")
    E.raw(f"  .amdhsa_accum_offset {NVGPR}")
    E.raw("  .amdhsa_group_segment_fixed_size 0")
    E.raw("  .amdhsa_kernarg_size 88")
    E.raw("  .amdhsa_user_sgpr_count 2")
    E.raw("  .amdhsa_user_sgpr_kernarg_segment_ptr 1")
    E.raw("  .amdhsa_system_sgpr_workgroup_id_x 1")
    E.raw(".end_amdhsa_kernel")
    txt = E.text()
    import re
    mx = max(int(x) for x in re.findall(r"\bv\[?(\d+)", txt) + re.findall(r"\bv\[\d+:(\d+)\]", txt))
    assert mx < NVGPR, mx
    open(sys.argv[1], "w").write(txt)
    print("instructions:", E.nins, "max vgpr", mx)

main()
```

```python
import sys, struct, math
from asmlib import *

NAME = "gated_mix__sliding_local_dilated__linear_kernel_hedgehog__prompt"
OPT = dict(stamps=0, fine=0, round_final=1, pf=1, flag_at=5, ahead=2, nov=4, fill=5, mfsum=1, prio=1, pkfma=2, gat=90, no_comp=0, no_load=0, no_clr=0, lead=2, dbgspan=0, pf2=0, prog=0, ldst=0, pfA=0, atom=0, fk=0, psleep=2, sent=0, noflag=0)
for a in sys.argv[2:]:
    k, v = a.split("=")
    OPT[k] = int(v) if v.lstrip("-").isdigit() else v

LDS_BYTES = 163840
PHI_STRIDE, V_STRIDE = 264, 72
WS_OA, WS_OB, WS_KVP, WS_G, WS_ST = 0, 2 << 20, 4 << 20, 5 << 20, 8 << 20
WS_BYTES = 16 << 20
SPIN_MAX = 30000
SEGCOL = {"Q": 0, "K": 1, "V": 2}
SEGI = {"K": 0, "V": 1, "Q": 2}
WOA_BASE, WOB_BASE, XB3 = 58368, 0, 116736
B_SS = 39936
B_STAGES = [dict(m=m, segs=["K", "V", "Q"], base=B_SS * (m % 4)) for m in range(7)]
for i, st in enumerate(B_STAGES):
    prev = [j for j in range(i) if B_STAGES[j]["base"] == st["base"]]
    st["after"] = (prev[-1] + 2) if prev else -1
B_WPH = 159744
PHI_BASE = 0
VB = [128 * PHI_STRIDE, 128 * PHI_STRIDE + 128 * V_STRIDE]
KVF = 143360
A_SS = 39936
A_STAGES = [dict(m=m, segs=["K", "V", "Q"], base=A_SS * (m % 4)) for m in range(7)]
for i, st in enumerate(A_STAGES):
    prev = [j for j in range(i) if A_STAGES[j]["base"] == st["base"]]
    st["after"] = (prev[-1] + 2) if prev else -1
A_GATE = 159744
A_EXCH = XB3
def woff(br, k):
    return 18432 + 7168 * k

def f2u(x): return struct.unpack("<I", struct.pack("<f", x))[0]
LOG2E = f2u(1.4426950408889634)
SCALE = f2u(28 ** -0.5)

SX, SW, SWS, SDBG, SAUX, SWOA, SWOB, SOUT = 8, 12, 16, 20, 24, 28, 32, 36
sRB, sHP, sBR, sWV, sT, sCT, sJ, sT0, sT1, sM0 = 40, 41, 42, 43, 44, 45, 46, 47, 48, 49
sMASK = 50
sG3 = 66
sL2E, sSCL, sSPIN, sT2 = 68, 69, 70, 71
sKA = 72
sSTAMP = 72
sRG, sHH, s16K, sMP = 3, 4, 5, 6
sHIM = sG3 + 1

NVGPR = 168
vLANE, vL16, vG, vL16B = 0, 1, 2, 3
vXR, vTR, vPADB, vOOFF = 4, 6, 7, 8
vA0, vA1, vA2, vA3 = 9, 10, 11, 12
vSL, vXRH = 13, 13
ACC = [16, 32, 48]
T0 = 152

E = Emitter()
lblc = [0]
def newlabel(p):
    lblc[0] += 1
    return f"L_{p}_{lblc[0]}"

def stamp(E, idx, fine=False):
    if OPT["stamps"] and (idx == 0 or bool(OPT["fine"]) == fine):
        E(f"s_memrealtime {sr(sSTAMP + 2 * idx, 2)}")

def srd(E, d, lo, nbytes):
    E(f"s_mov_b32 s{d}, s{lo}")
    E(f"s_and_b32 s{d+1}, s{lo+1}, 0xffff")
    E(f"s_mov_b32 s{d+2}, {nbytes}")
    E(f"s_mov_b32 s{d+3}, 0x20000")

def dual_reduce(a, b, t, op):
    return [
        f"v_permlane32_swap_b32 v{a}, v{b}",
        f"{op} v{a}, v{a}, v{b}",
        f"v_mov_b32 v{t}, v{a}",
        f"v_permlane16_swap_b32 v{a}, v{t}",
        f"{op} v{a}, v{a}, v{t}",
        f"v_mov_b32 v{b}, v{a}",
        f"v_permlane32_swap_b32 v{a}, v{b}",
    ]

def round_pairs(src, dst, n, tmp):
    out = []
    for i in range(0, n, 2):
        out.append(f"v_cvt_pk_bf16_f32 v{tmp + i // 2}, v{src + i}, v{src + i + 1}")
    for i in range(0, n, 2):
        out.append(f"v_lshlrev_b32 v{dst + i}, 16, v{tmp + i // 2}")
        out.append(f"v_and_b32 v{dst + i + 1}, s{sHIM}, v{tmp + i // 2}")
    return out

def pack_op(acc, dst, zero_pad=True):
    out = [f"v_cvt_pk_bf16_f32 v{dst + i}, v{acc + 2 * i}, v{acc + 2 * i + 1}" for i in range(4)]
    if zero_pad:
        out += [f"v_cndmask_b32 v{dst + 2}, v{dst + 2}, 0, {sr(sG3, 2)}", f"v_cndmask_b32 v{dst + 3}, v{dst + 3}, 0, {sr(sG3, 2)}"]
    return out

def interleave_front(mm, rd):
    out = []
    n = max(1, (len(mm) * 3) // 4)
    j = 0
    for i, x in enumerate(mm):
        tgt = min(len(rd), ((i + 1) * len(rd) + n - 1) // n)
        while j < tgt:
            out.append(rd[j]); j += 1
        out.append(x)
    out += rd[j:]
    return out

def vadd_imm(reg, delta):
    if delta == 0:
        return []
    return [f"v_add_u32 v{reg}, {delta & 0xffffffff:#x}, v{reg}"]

def lstamp(E, i):
    if OPT["ldst"]:
        E(f"s_memrealtime {sr(54 + 2 * i, 2)}")

def prologue(E):
    E("s_cmp_ge_u32 s2, 256")
    E("s_cbranch_scc1 L_end")
    lstamp(E, 0)
    if OPT["dbgspan"]:
        E("s_memrealtime s[94:95]")
    E(f"s_load_dwordx16 {sr(sKA, 16)}, s[0:1], 0")
    E(f"s_load_dwordx4 {sr(sKA + 16, 4)}, s[0:1], 64")
    E(f"s_load_dwordx2 {sr(sKA + 20, 2)}, s[0:1], 80")
    E(f"v_lshrrev_b32 v{T0}, 6, v0")
    E(f"v_and_b32 v{vLANE}, 63, v0")
    E(f"v_readfirstlane_b32 s{sWV}, v{T0}")
    E(f"s_and_b32 s{sT0}, s2, 7")
    E(f"s_lshr_b32 s{sJ}, s2, 3")
    E(f"s_lshr_b32 s{sBR}, s{sJ}, 4")
    E(f"s_xor_b32 s{sBR}, s{sBR}, 1")
    E(f"s_and_b32 s{sRB}, s{sT0}, 3")
    E(f"s_lshl_b32 s{sRB}, s{sRB}, 2")
    E(f"s_bfe_u32 s{sT1}, s{sJ}, 0x20002")
    E(f"s_add_u32 s{sRB}, s{sRB}, s{sT1}")
    E(f"s_lshr_b32 s{sHP}, s{sT0}, 2")
    E(f"s_lshl_b32 s{sHP}, s{sHP}, 2")
    E(f"s_and_b32 s{sT1}, s{sJ}, 3")
    E(f"s_add_u32 s{sHP}, s{sHP}, s{sT1}")
    E(f"s_mul_i32 s{sT1}, s{sJ}, 37")
    E(f"s_lshr_b32 s{sT1}, s{sT1}, 8")
    E(f"s_lshl_b32 s{sT}, s{sT0}, 2")
    E(f"s_add_u32 s{sT}, s{sT}, s{sT1}")
    E(f"s_mul_i32 s{sT1}, s{sT1}, 7")
    E(f"s_sub_u32 s{sCT}, s{sJ}, s{sT1}")
    E(f"s_lshr_b32 s{sRG}, s{sWV}, 1")
    E(f"s_and_b32 s{sHH}, s{sWV}, 1")
    E(f"v_and_b32 v{vL16}, 15, v{vLANE}")
    E(f"v_lshrrev_b32 v{vG}, 4, v{vLANE}")
    E(f"v_lshlrev_b32 v{vL16B}, 4, v{vLANE}")
    E(f"s_mov_b32 s{sG3}, 0")
    E(f"s_mov_b32 s{sG3+1}, 0xffff0000")
    E(f"s_mov_b32 s{sL2E}, {LOG2E:#x}")
    E(f"s_mov_b32 s{sSCL}, {SCALE:#x}")

def srds(E):
    E.force_wait(lgkm=0)
    K = sKA
    srd(E, SX, K + 0, 2048 * 896)
    E(f"s_cmp_eq_u32 s{sBR}, 0")
    E(f"s_cselect_b32 s{sT0}, s{K+2}, s{K+8}")
    E(f"s_cselect_b32 s{sT1}, s{K+3}, s{K+9}")
    srd(E, SW, sT0, 448 * 2688)

def srds2(E):
    K = sKA
    E(f"s_mov_b32 s{sT2}, 25088")
    E(f"s_cmp_eq_u32 s{sBR}, 0")
    E(f"s_cselect_b32 s{sT0}, s{K+14}, s{K+10}")
    E(f"s_cselect_b32 s{sT1}, s{K+15}, s{K+11}")
    E(f"s_cselect_b32 s{sT2}, 896, s{sT2}")
    E(f"s_mov_b32 s{SAUX}, s{sT0}")
    E(f"s_and_b32 s{SAUX+1}, s{sT1}, 0xffff")
    E(f"s_mov_b32 s{SAUX+2}, s{sT2}")
    E(f"s_mov_b32 s{SAUX+3}, 0x20000")
    srd(E, SWS, K + 20, WS_BYTES)
    srd(E, SWOA, K + 4, 448 * 896)
    srd(E, SWOB, K + 12, 448 * 896)
    srd(E, SOUT, K + 16, 2048 * 896)
    srd(E, SDBG, K + 18, 256)

def stamps_init(E):
    if OPT["stamps"]:
        stamp(E, 0)
        for i in range(1, 15):
            E(f"s_mov_b64 {sr(sSTAMP + 2 * i, 2)}, 0")

def prefetch(E, sJ=sJ):
    K = sKA
    SP = sMASK + 2
    t0, t1, t2, t3 = T0, T0 + 1, T0 + 2, T0 + 3
    Lx = newlabel("pfx"); Ld = newlabel("pfd")
    E(f"s_cmp_ge_u32 s{sWV}, 6")
    E.flush_haz()
    E(f"s_cbranch_scc1 {Lx}")
    E(f"s_cmp_lt_u32 s{sWV}, 3")
    E(f"s_cselect_b32 s{sT0}, s{K+2}, s{K+8}")
    E(f"s_cselect_b32 s{sT1}, s{K+3}, s{K+9}")
    E(f"s_cselect_b32 s{sT2}, 0, 3")
    srd(E, SP, sT0, 448 * 2688)
    E(f"s_sub_u32 s{sT2}, s{sWV}, s{sT2}")
    E(f"s_lshl_b32 s{sT2}, s{sT2}, 6")
    E(f"v_add_u32 v{t0}, s{sT2}, v{vLANE}")
    E(f"v_mul_u32_u24 v{t1}, 5462, v{t0}")
    E(f"v_lshrrev_b32 v{t1}, 16, v{t1}")
    E(f"v_mul_u32_u24 v{t2}, 12, v{t1}")
    E(f"v_sub_u32 v{t2}, v{t0}, v{t2}")
    E(f"v_lshrrev_b32 v{t3}, 2, v{t2}")
    E(f"v_and_b32 v{t2}, 3, v{t2}")
    E(f"s_mul_i32 s{sT2}, s{sJ}, 14")
    E(f"v_add_u32 v{t1}, s{sT2}, v{t1}")
    E(f"v_mul_u32_u24 v{t1}, 2688, v{t1}")
    E(f"v_mul_u32_u24 v{t3}, 896, v{t3}")
    E(f"v_lshl_add_u32 v{t2}, v{t2}, 7, v{t3}")
    E(f"s_lshr_b32 s{sT2}, s{sHP}, 2")
    E(f"s_mul_i32 s{sT2}, s{sT2}, 384")
    E(f"v_add3_u32 v{t1}, v{t1}, v{t2}, s{sT2}")
    E(f"v_mov_b32 v{t2}, 0x1000000")
    E(f"v_cmp_gt_u32 vcc, 168, v{t0}")
    E(f"v_cndmask_b32 v{t1}, v{t2}, v{t1}, vcc")
    E(f"buffer_load_dword v15, v{t1}, {sr(SP, 4)}, 0 offen")
    E.flush_haz()
    E(f"s_branch {Ld}")
    E.label(Lx)
    E(f"s_sub_u32 s{sT2}, s{sWV}, 6")
    E(f"s_lshl_b32 s{sT2}, s{sT2}, 6")
    E(f"v_add_u32 v{t0}, s{sT2}, v{vLANE}")
    E(f"s_mul_i32 s{sT2}, s{sJ}, 112")
    E(f"s_lshr_b32 s{sT1}, s{sRB}, 2")
    E(f"s_mul_i32 s{sT1}, s{sT1}, 3584")
    E(f"s_add_u32 s{sT2}, s{sT2}, s{sT1}")
    E(f"v_add_u32 v{t1}, s{sT2}, v{t0}")
    E(f"v_lshlrev_b32 v{t1}, 7, v{t1}")
    E(f"v_mov_b32 v{t2}, 0x1000000")
    E(f"v_cmp_gt_u32 vcc, 112, v{t0}")
    E(f"v_cndmask_b32 v{t1}, v{t2}, v{t1}, vcc")
    E(f"buffer_load_dword v15, v{t1}, {sr(SX, 4)}, 0 offen")
    E.label(Ld)
    E.vmq = [{"dst": set(), "tag": "PF"}]

def prefetch2(E, t0, t1, dst):
    Ld = newlabel("p2d"); Lb = newlabel("p2b")
    E(f"s_and_b32 s{sT0}, s{sWV}, 3")
    E(f"s_lshl_b32 s{sT0}, s{sT0}, 6")
    E(f"v_add_u32 v{t0}, s{sT0}, v{vLANE}")
    E(f"s_and_b32 s{sT0}, s{sJ}, 15")
    E(f"s_mul_i32 s{sT0}, s{sT0}, 196")
    E(f"v_add_u32 v{t1}, s{sT0}, v{t0}")
    E(f"v_lshlrev_b32 v{t1}, 7, v{t1}")
    E(f"v_cmp_gt_u32 vcc, 196, v{t0}")
    E(f"v_mov_b32 v{t0}, 0x1000000")
    E(f"v_cndmask_b32 v{t1}, v{t0}, v{t1}, vcc")
    E(f"s_cmp_ge_u32 s{sWV}, 4")
    E.flush_haz()
    E(f"s_cbranch_scc1 {Lb}")
    E(f"buffer_load_dword v{dst}, v{t1}, {sr(SWOA, 4)}, 0 offen")
    E(f"s_branch {Ld}")
    E.label(Lb)
    E(f"buffer_load_dword v{dst}, v{t1}, {sr(SWOB, 4)}, 0 offen")
    E.label(Ld)

def flag_store(E, val, t0, t1, base=0):
    if OPT["noflag"]:
        return
    if OPT["atom"]:
        E(f"s_lshl_b32 s{sT0}, s{sRB}, 2")
        E(f"v_mov_b32 v{t0}, s{sT0}")
        E(f"v_mov_b32 v{t1}, 1")
        E("s_mov_b64 exec, 1")
        E(f"buffer_atomic_add v{t1}, v{t0}, {sr(SDBG, 4)}, 0 offen offset:{base} sc1")
        E("s_mov_b64 exec, -1")
        return
    E(f"s_lshl_b32 s{sT0}, s{sRB}, 3")
    E(f"s_add_u32 s{sT0}, s{sT0}, s{sHP}")
    if base:
        E(f"s_add_u32 s{sT0}, s{sT0}, {base}")
    E(f"v_mov_b32 v{t0}, s{sT0}")
    E(f"v_mov_b32 v{t1}, {val}")
    E("s_mov_b64 exec, 1")
    E(f"buffer_store_byte v{t1}, v{t0}, {sr(SDBG, 4)}, 0 offen sc1")
    E("s_mov_b64 exec, -1")

def spin_tail(E, L, Ld, sleep=2):
    E(f"s_cbranch_vccz {Ld}")
    E(f"s_add_u32 s{sSPIN}, s{sSPIN}, 1")
    E(f"s_cmp_lt_u32 s{sSPIN}, {SPIN_MAX}")
    E(f"s_cbranch_scc0 {Ld}")
    E(f"s_sleep {sleep}")
    E(f"s_branch {L}")
    E.label(Ld)

def flags_wait_all(E, t0, t1, base=0):
    if OPT["noflag"]:
        return
    L = newlabel("fl"); Ld = newlabel("fld")
    E(f"v_and_b32 v{t0}, {15 if OPT['atom'] else 31}, v{vLANE}")
    E(f"v_lshlrev_b32 v{t0}, 2, v{t0}")
    E(f"s_mov_b32 s{sSPIN}, 0")
    E(f"s_mov_b32 s{sT1}, {'8' if OPT['atom'] else '0x01010101'}")
    E.label(L)
    E(f"buffer_load_dword v{t1}, v{t0}, {sr(SDBG, 4)}, 0 offen offset:{base} sc1")
    E.force_wait(vm=0)
    E(f"v_cmp_ne_u32 vcc, s{sT1}, v{t1}")
    spin_tail(E, L, Ld, sleep=40)

def check_regs(E, regs, tmp):
    rs = list(regs)
    E(f"v_max_u32 v{tmp}, v{rs[0]}, v{rs[1]}")
    rest = rs[2:]
    while len(rest) >= 2:
        E(f"v_max3_u32 v{tmp}, v{tmp}, v{rest[0]}, v{rest[1]}"); rest = rest[2:]
    if rest:
        E(f"v_max_u32 v{tmp}, v{tmp}, v{rest[0]}")
    E(f"v_cmp_eq_u32 vcc, -1, v{tmp}")

def poll_loop(E, loads, regs, name, tmp, pre_issued=False):
    L = newlabel(name); Lc = newlabel(name + "c"); Ld = newlabel(name + "d")
    E(f"s_mov_b32 s{sSPIN}, 0")
    if pre_issued:
        E.flush_haz()
        E(f"s_branch {Lc}")
    E.label(L)
    E(loads)
    E.label(Lc)
    E.force_wait(vm=0)
    check_regs(E, regs, tmp)
    spin_tail(E, L, Ld, sleep=OPT["psleep"])

def cons_setup(E, br):
    t0, t1, t2 = T0, T0 + 1, T0 + 2
    E(f"v_bfe_u32 v{t0}, v{vLANE}, 2, 2")
    E(f"v_and_b32 v{t1}, 3, v{vLANE}")
    E(f"v_lshlrev_b32 v{t2}, 3, v{vG}")
    E(f"v_lshl_add_u32 v{t2}, v{t0}, 1, v{t2}")
    E(f"v_mul_u32_u24 v{t2}, 112, v{t2}")
    E(f"v_lshl_add_u32 v{vTR}, v{t1}, 3, v{t2}")
    E(f"s_mul_i32 s{sT0}, s{sHH}, 56")
    E(f"v_add_u32 v{vTR}, s{sT0}, v{vTR}")
    E(f"v_lshrrev_b32 v{t0}, 1, v{vL16}")
    E(f"v_xor_b32 v{t0}, v{t0}, v{vG}")
    E(f"v_lshlrev_b32 v{t0}, 4, v{t0}")
    E(f"v_lshl_add_u32 v{t0}, v{vL16}, 7, v{t0}")
    E(f"s_lshl_b32 s{sT0}, s{sRG}, 12")
    E(f"v_add_u32 v{vXR}, s{sT0}, v{t0}")
    E(f"v_xor_b32 v{vXR+1}, 64, v{vXR}")
    E(f"s_lshl_b32 s{sT0}, s{sRB}, 3")
    E(f"s_lshl_b32 s{sT1}, s{sRG}, 1")
    E(f"s_add_u32 s{sT0}, s{sT0}, s{sT1}")
    E(f"s_lshl_b32 s{sT0}, s{sT0}, 4")
    E(f"s_lshl_b32 s{sT1}, s{sHP}, 1")
    E(f"s_add_u32 s{sT0}, s{sT0}, s{sT1}")
    E(f"s_add_u32 s{sT0}, s{sT0}, s{sHH}")
    E(f"s_lshl_b32 s{sT0}, s{sT0}, 10")
    E(f"s_lshl_b32 s{sT1}, s{sBR}, 21")
    E(f"s_add_u32 s{sT0}, s{sT0}, s{sT1}")
    E(f"v_add_u32 v{vOOFF}, s{sT0}, v{vL16B}")
    E(f"s_mov_b32 s{s16K}, 16384")

def ostore(reg, u):
    return f"buffer_store_dwordx4 {vr(reg, 4)}, v{vOOFF}, {sr(SWS, 4)}, {'0' if u == 0 else 's' + str(s16K)} offen sc1"

class Cons:
    def __init__(self, E, br, stages, buf0, bufsz, nbuf, halo=False, HACC=None):
        self.E, self.br, self.stages = E, br, stages
        self.buf0, self.bufsz, self.nbuf, self.halo, self.HACC = buf0, bufsz, nbuf, halo, HACC
        self.cur_base = 0
        self.ks = 0; self.pending = []
        self.nbar = 0
        self.prebar = None

    def parts(self, s, tt, buf):
        st = self.stages[s]; m = st["m"]; t = 2 * m + tt
        first = t == 0
        B0 = self.buf0 + self.bufsz * buf
        rd, mm = [], []
        xr = [B0, B0 + 4]
        for u in range(2):
            rd.append(f"ds_read_b128 {vr(xr[u], 4)}, v{vXR + tt} offset:{2048 * u}")
        wb = B0 + 8
        if self.halo:
            hx = B0 + 8; wb = B0 + 12
            rd.append(f"ds_read_b128 {vr(hx, 4)}, v{vXR + tt} offset:16384")
        elif self.br == "A":
            wb = B0 + 12
        for k, seg in enumerate(st["segs"]):
            si = SEGI[seg]
            tr = not (self.br == "A" and seg == "V")
            for c in range(2):
                wf = wb + 8 * k + 4 * c
                for j in range(2):
                    rd.append(f"ds_read_b64_tr_b16 {vr(wf + 2 * j, 2)}, v{vTR} offset:{woff(self.br, k) + 3584 * tt + 112 * j + 32 * c}")
                for u in range(2):
                    acc = ACC[si] + 8 * u + 4 * c
                    a_, b_ = (vr(wf, 4), vr(xr[u], 4)) if tr else (vr(xr[u], 4), vr(wf, 4))
                    mm.append(f"v_mfma_f32_16x16x32_bf16 {vr(acc, 4)}, {a_}, {b_}, {'0' if first else vr(acc, 4)}")
                if self.halo and seg != "Q":
                    acc = self.HACC + 8 * si + 4 * c
                    a_, b_ = (vr(wf, 4), vr(hx, 4)) if tr else (vr(hx, 4), vr(wf, 4))
                    mm.append(f"v_mfma_f32_16x16x32_bf16 {vr(acc, 4)}, {a_}, {b_}, {'0' if first else vr(acc, 4)}")
        if OPT["no_comp"] == 1:
            return [], []
        if OPT["no_comp"] == 2:
            return rd, []
        if OPT["no_comp"] == 3:
            return [], mm
        return rd, mm

    def run(self, s0, s1):
        E = self.E
        prev = []
        for ks in range(2 * s0, 2 * s1 + 2):
            s, tt = divmod(ks, 2)
            pre = []
            if tt == 0:
                nlead = min(OPT["lead"], len(prev))
                E(prev[:nlead]); prev = prev[nlead:]
                if self.prebar:
                    self.prebar(E, s)
                E.barrier(lgkm0=False)
                self.nbar += 1
                if self.nbar <= 14:
                    stamp(E, self.nbar, fine=True)
                if OPT["stamps"] and OPT["fine"] and self.nbar in (2, 7):
                    E(f"s_memtime {sr(sSTAMP + 2 * (12 if self.nbar == 2 else 13), 2)}")
                d = self.stages[s]["base"] - self.cur_base
                self.cur_base = self.stages[s]["base"]
                for r in (vXR, vXR + 1, vTR):
                    E(vadd_imm(r, d))
            rd, mm = self.parts(s, tt, ks % 2)
            if prev:
                E(interleave_front(prev, rd))
            else:
                E(rd)
            prev = mm
        E(prev)

vL2E = 162
ONES = 164
def phi_path(si, outreg, tmps, WP):
    streams = []
    for u in range(2):
        T = tmps[u]
        P = ACC[si] + 8 * u
        op, pk, Ep, Em = T, T, P, T + 4
        mx, mn, mx1, mn1 = T + 12, T + 13, T + 14, T + 15
        t = T
        O = outreg + 8 * u
        o = []
        o += pack_op(P, op)
        for ft in range(2):
            o.append(f"v_mfma_f32_16x16x32_bf16 {vr(P + 4 * ft, 4)}, {vr(WP + 4 * ft, 4)}, {vr(op, 4)}, 0")
        o += round_pairs(P, P, 8, pk)
        o.append(f"v_max3_f32 v{mx}, v{P}, v{P+1}, v{P+2}")
        o.append(f"v_min3_f32 v{mn}, v{P}, v{P+1}, v{P+2}")
        o.append(f"v_max3_f32 v{mx}, v{mx}, v{P+3}, v{P+4}")
        o.append(f"v_min3_f32 v{mn}, v{mn}, v{P+3}, v{P+4}")
        o.append(f"v_max3_f32 v{mx}, v{mx}, v{P+5}, v{P+6}")
        o.append(f"v_min3_f32 v{mn}, v{mn}, v{P+5}, v{P+6}")
        o.append(f"v_max_f32 v{mx}, v{mx}, v{P+7}")
        o.append(f"v_max_f32 v{mn}, -v{mn}, -v{P+7}")
        o += dual_reduce(mx, mn, t, "v_max_f32")
        o.append(f"v_mul_f32 v{mx}, s{sL2E}, v{mx}")
        o.append(f"v_mul_f32 v{mn}, s{sL2E}, v{mn}")
        o.append(f"v_add_f32 v{mx1}, v{mx}, v{vPADB}")
        o.append(f"v_add_f32 v{mn1}, v{mn}, v{vPADB}")
        for i in (range(8) if not OPT["pkfma"] else []):
            o.append(f"v_fma_f32 v{Em+i}, -v{P+i}, s{sL2E}, -v{mn if i < 4 else mn1}")
            o.append(f"v_fma_f32 v{Ep+i}, v{P+i}, s{sL2E}, -v{mx if i < 4 else mx1}")
        for i in (range(0, 8, 2) if OPT["pkfma"] else []):
            mm_ = vr(mx if i < 4 else mx1, 2)
            if OPT["pkfma"] == 2:
                o.append(f"v_pk_fma_f32 {vr(Em+i, 2)}, {vr(P+i, 2)}, {vr(vL2E, 2)}, {mm_} op_sel:[0,0,1] op_sel_hi:[1,1,1] neg_lo:[1,0,1] neg_hi:[1,0,1]")
                o.append(f"v_pk_fma_f32 {vr(Ep+i, 2)}, {vr(P+i, 2)}, {vr(vL2E, 2)}, {mm_} op_sel_hi:[1,1,0] neg_lo:[0,0,1] neg_hi:[0,0,1]")
                continue
            o.append(f"v_pk_fma_f32 {vr(Em+i, 2)}, {vr(P+i, 2)}, {sr(sL2E, 2)}, {mm_} op_sel:[0,0,1] op_sel_hi:[1,0,1] neg_lo:[1,0,1] neg_hi:[1,0,1]")
            o.append(f"v_pk_fma_f32 {vr(Ep+i, 2)}, {vr(P+i, 2)}, {sr(sL2E, 2)}, {mm_} op_sel_hi:[1,0,0] neg_lo:[0,0,1] neg_hi:[0,0,1]")
        for i in range(8):
            o.append(f"v_exp_f32 v{Ep+i}, v{Ep+i}")
            o.append(f"v_exp_f32 v{Em+i}, v{Em+i}")
        if OPT["mfsum"]:
            for i in range(4):
                o.append(f"v_cvt_pk_bf16_f32 v{O + i}, v{Ep + 2 * i}, v{Ep + 2 * i + 1}")
                o.append(f"v_cvt_pk_bf16_f32 v{O + 4 + i}, v{Em + 2 * i}, v{Em + 2 * i + 1}")
            SP, SM = T, T + 12
            o.append(f"v_mfma_f32_16x16x32_bf16 {vr(SP, 4)}, {vr(ONES, 4)}, {vr(O, 4)}, 0")
            o.append(f"v_mfma_f32_16x16x32_bf16 {vr(SM, 4)}, {vr(ONES, 4)}, {vr(O + 4, 4)}, 0")
            sp, sm = SP, SM
        else:
            sp, sm = mx1, mn1
            o.append(f"v_add_f32 v{sp}, v{Ep}, v{Ep+1}")
            o.append(f"v_add_f32 v{sm}, v{Em}, v{Em+1}")
            for i in range(2, 8):
                o.append(f"v_add_f32 v{sp}, v{sp}, v{Ep+i}")
                o.append(f"v_add_f32 v{sm}, v{sm}, v{Em+i}")
            o += dual_reduce(sp, sm, t, "v_add_f32")
        o.append(f"v_rcp_f32 v{sp}, v{sp}")
        o.append(f"v_rcp_f32 v{sm}, v{sm}")
        for i in range(8):
            o.append(f"v_mul_f32 v{Ep+i}, v{Ep+i}, v{sp}")
            o.append(f"v_mul_f32 v{Em+i}, v{Em+i}, v{sm}")
        for i in range(4):
            o.append(f"v_cvt_pk_bf16_f32 v{O + i}, v{Ep + 2 * i}, v{Ep + 2 * i + 1}")
            o.append(f"v_cvt_pk_bf16_f32 v{O + 4 + i}, v{Em + 2 * i}, v{Em + 2 * i + 1}")
        streams.append(o)
    return interleave(streams[0], streams[1])

def cons_B(E):
    WP, PHI, BUF = 64, 72, 88
    cons_setup(E, "B")
    srds(E); srds2(E)
    if OPT["pf"] and not OPT["pfA"]:
        prefetch(E)
    stamps_init(E)
    ones = PHI
    for i in range(4):
        E(f"v_mov_b32 v{ones + i}, -1")
        E(f"v_mov_b32 v{ONES + i}, 0x3f803f80")
    E(f"v_mov_b32 v{vL2E}, s{sL2E}"); E(f"v_mov_b32 v{vL2E + 1}, s{sL2E}")
    vKV = 14
    E(f"s_lshl_b32 s{sT0}, s{sHP}, 4")
    E(f"s_add_u32 s{sT0}, s{sT0}, s{sRB}")
    E(f"s_lshl_b32 s{sT0}, s{sT0}, 3")
    E(f"s_add_u32 s{sT0}, s{sT0}, s{sWV}")
    E(f"s_lshl_b32 s{sT0}, s{sT0}, 10")
    E(f"s_add_u32 s{sT0}, s{sT0}, {WS_KVP}")
    E(f"v_add_u32 v{vKV}, s{sT0}, v{vL16B}")
    E(f"v_mov_b32 v{vPADB}, 0")
    E(f"v_mov_b32 v{T0}, 0x7149f2ca")
    E(f"v_cndmask_b32 v{vPADB}, v{vPADB}, v{T0}, {sr(sG3, 2)}")
    E(f"s_lshl_b32 s{sT2}, s{sRG}, 5")
    E(f"v_add_u32 v{vSL}, s{sT2}, v{vL16}")
    E(f"v_mul_u32_u24 v{vA0}, {PHI_STRIDE}, v{vSL}")
    E(f"v_lshl_add_u32 v{vA0}, v{vG}, 3, v{vA0}")
    E(f"s_lshl_b32 s{sT2}, s{sHH}, 7")
    E(f"v_add_u32 v{vA0}, s{sT2}, v{vA0}")
    E(f"v_mul_u32_u24 v{vA1}, {V_STRIDE}, v{vSL}")
    E(f"v_lshl_add_u32 v{vA1}, v{vG}, 3, v{vA1}")
    E(f"s_mul_i32 s{sT0}, s{sHH}, {VB[1] - VB[0]}")
    E(f"s_add_u32 s{sT0}, s{sT0}, {VB[0]}")
    E(f"v_add_u32 v{vA1}, s{sT0}, v{vA1}")
    t0, t1 = T0, T0 + 1
    E(f"v_and_b32 v{t0}, 1, v{vG}")
    E(f"v_lshlrev_b32 v{t0}, 4, v{t0}")
    E(f"v_bfe_u32 v{t1}, v{vLANE}, 2, 2")
    E(f"v_lshl_add_u32 v{t0}, v{t1}, 2, v{t0}")
    E(f"v_lshrrev_b32 v{t1}, 1, v{vG}")
    E(f"v_lshl_add_u32 v{t0}, v{t1}, 1, v{t0}")
    E(f"v_and_b32 v{t1}, 3, v{vLANE}")
    E(f"v_lshlrev_b32 v{t1}, 3, v{t1}")
    E(f"s_lshr_b32 s{sT0}, s{sWV}, 1")
    E(f"s_lshl_b32 s{sT0}, s{sT0}, 6")
    E(f"v_mul_u32_u24 v{vA2}, {PHI_STRIDE}, v{t0}")
    E(f"v_add3_u32 v{vA2}, v{vA2}, v{t1}, s{sT0}")
    E(f"s_lshr_b32 s{sT0}, s{sWV}, 2")
    E(f"s_mul_i32 s{sT0}, s{sT0}, {VB[1] - VB[0]}")
    E(f"s_add_u32 s{sT0}, s{sT0}, {VB[0]}")
    E(f"s_and_b32 s{sT1}, s{sWV}, 1")
    E(f"s_lshl_b32 s{sT1}, s{sT1}, 5")
    E(f"s_add_u32 s{sT0}, s{sT0}, s{sT1}")
    E(f"v_mul_u32_u24 v{vA3}, {V_STRIDE}, v{t0}")
    E(f"v_add3_u32 v{vA3}, v{vA3}, v{t1}, s{sT0}")
    w1, w2 = T0 + 8, T0 + 9
    E(f"v_bfe_u32 v{t0}, v{vLANE}, 2, 2")
    E(f"v_lshl_add_u32 v{t0}, v{vG}, 2, v{t0}")
    E(f"v_mul_u32_u24 v{t0}, 56, v{t0}")
    E(f"s_mul_i32 s{sT2}, s{sHH}, 1568")
    E(f"s_add_u32 s{sT2}, s{sT2}, {B_WPH}")
    E(f"v_add_u32 v{t0}, s{sT2}, v{t0}")
    E(f"v_and_b32 v{t1}, 3, v{vLANE}")
    E(f"v_min_u32 v{w2}, 2, v{t1}")
    E(f"v_lshl_add_u32 v{w1}, v{t1}, 3, v{t0}")
    E(f"v_lshl_add_u32 v{w2}, v{w2}, 3, v{t0}")
    C = Cons(E, "B", B_STAGES, BUF, 32, 2)
    def prebar(E, s):
        if s == 3:
            for ft in range(2):
                for j in range(2):
                    E(f"ds_read_b64_tr_b16 {vr(WP + 4 * ft + 2 * j, 2)}, v{w1 if ft == 0 else w2} offset:{896 * j + 32 * ft}")
            for ft in range(2):
                for i in (2, 3):
                    r = WP + 4 * ft + i
                    E(f"v_cndmask_b32 v{r}, v{r}, 0, {sr(sG3, 2)}")
    C.prebar = prebar
    C.run(0, 6)
    stamp(E, 1)
    SCR = BUF + 32
    vp0 = T0
    F = [f"v_mov_b32 v{vp0 + 8}, 0x3f80"]
    for u in range(2):
        vp = vp0 + 4 * u
        F += pack_op(ACC[1] + 8 * u, vp, zero_pad=False)
        F.append(f"v_cndmask_b32 v{vp + 2}, v{vp + 2}, v{vp0 + 8}, {sr(sG3, 2)}")
        F.append(f"v_cndmask_b32 v{vp + 3}, v{vp + 3}, 0, {sr(sG3, 2)}")
    for u in range(2):
        for dt in range(2):
            F.append(f"ds_write_b64 v{vA1}, {vr(vp0 + 4 * u + 2 * dt, 2)} offset:{16 * V_STRIDE * u + 32 * dt}")
    body = phi_path(0, PHI, [SCR, SCR + 16], WP)
    E(body[:16]); E(F); E(body[16:])
    for u in range(2):
        for sg in range(2):
            for ft in range(2):
                E(f"ds_write_b64 v{vA0}, {vr(PHI + 8 * u + 4 * sg + 2 * ft, 2)} offset:{PHI_BASE + 16 * PHI_STRIDE * u + 64 * sg + 32 * ft}")
    stamp(E, 3)
    E.barrier()
    KA, KB_, KD = ACC[0], SCR, SCR + 16
    for ks in range(4):
        for j in range(2):
            E(f"ds_read_b64_tr_b16 {vr(KB_ + 4 * ks + 2 * j, 2)}, v{vA3} offset:{(32 * ks + j) * V_STRIDE}")
        for ft in range(2):
            for j in range(2):
                E(f"ds_read_b64_tr_b16 {vr(KA + 8 * ks + 4 * ft + 2 * j, 2)}, v{vA2} offset:{PHI_BASE + (32 * ks + j) * PHI_STRIDE + 32 * ft}")
        if ks >= 1:
            for ft in range(2):
                cin = "0" if ks == 1 else vr(KD + 4 * ft, 4)
                E(f"v_mfma_f32_16x16x32_bf16 {vr(KD + 4 * ft, 4)}, {vr(KA + 8 * (ks - 1) + 4 * ft, 4)}, {vr(KB_ + 4 * (ks - 1), 4)}, {cin}")
    for ft in range(2):
        E(f"v_mfma_f32_16x16x32_bf16 {vr(KD + 4 * ft, 4)}, {vr(KA + 24 + 4 * ft, 4)}, {vr(KB_ + 12, 4)}, {vr(KD + 4 * ft, 4)}")
    kp = T0
    E(pack_op(KD, kp, zero_pad=False))
    for i in range(4):
        E(f"v_min_u32 v{kp + i}, -2, v{kp + i}")
    E(f"buffer_store_dwordx4 {vr(kp, 4)}, v{vKV}, {sr(SWS, 4)}, 0 offen sc1")
    stamp(E, 4)
    E.barrier()
    G = BUF
    E(f"s_lshl_b32 s{sT0}, s{sHP}, 17")
    E(f"s_lshl_b32 s{sT1}, s{sWV}, 10")
    E(f"s_add_u32 s{sT0}, s{sT0}, s{sT1}")
    E(f"s_add_u32 s{sT0}, s{sT0}, {WS_KVP}")
    E(f"v_add_u32 v{vA1}, s{sT0}, v{vL16B}")
    loads = []
    for p in range(16):
        loads.append(f"s_mov_b32 s{sT0}, {8192 * p}")
        loads.append(f"buffer_load_dwordx4 {vr(G + 4 * p, 4)}, v{vA1}, {sr(SWS, 4)}, s{sT0} offen sc1")
    body = phi_path(2, PHI, [ACC[0], ACC[1]], WP)
    h = len(body) * OPT["gat"] // 100
    E(body[:h])
    E.barrier()
    stamp(E, 5)
    E(loads)
    E(body[h:])
    E(p3_setup(E))
    stamp(E, 6)
    SEL = T0 + 2
    SUM = ACC[0]
    t0_, t1_ = ACC[0] + 8, ACC[0] + 9
    E(f"v_lshrrev_b32 v{t0_}, 2, v{vL16}")
    E(f"v_cmp_eq_u32 vcc, v{t0_}, v{vG}")
    E(f"v_and_b32 v{t0_}, 1, v{vL16}")
    E(f"v_lshlrev_b32 v{t0_}, 4, v{t0_}")
    E(f"v_mov_b32 v{t1_}, 0x3f80")
    E(f"v_lshlrev_b32 v{t0_}, v{t0_}, v{t1_}")
    E(f"v_cndmask_b32 v{t0_}, 0, v{t0_}, vcc")
    E(f"v_and_b32 v{t1_}, 2, v{vL16}")
    E(f"v_cmp_eq_u32 vcc, 0, v{t1_}")
    for r in (SEL, SEL + 1, SEL + 4, SEL + 5):
        E(f"v_mov_b32 v{r}, 0")
    E(f"v_cndmask_b32 v{SEL + 2}, 0, v{t0_}, vcc")
    E(f"v_cndmask_b32 v{SEL + 3}, v{t0_}, 0, vcc")
    L = newlabel("kv"); Lc = newlabel("kvc"); Ld = newlabel("kvd")
    E(f"s_mov_b32 s{sSPIN}, 0")
    saved = list(E.vmq)
    E.flush_haz()
    E(f"s_branch {Lc}")
    E.label(L)
    E.vmq = []
    E(loads)
    E.label(Lc)
    chk = T0
    for p in range(16):
        g4 = G + 4 * p
        E(f"v_mfma_f32_16x16x32_bf16 {vr(SUM, 4)}, {vr(SEL + 2, 4)}, {vr(g4, 4)}, {'0' if p == 0 else vr(SUM, 4)}")
        E(f"v_mfma_f32_16x16x32_bf16 {vr(SUM + 4, 4)}, {vr(SEL, 4)}, {vr(g4, 4)}, {'0' if p == 0 else vr(SUM + 4, 4)}")
        if p == 0:
            E(f"v_max_u32 v{chk}, v{g4}, v{g4 + 1}")
        else:
            E(f"v_max3_u32 v{chk}, v{chk}, v{g4}, v{g4 + 1}")
        E(f"v_max3_u32 v{chk}, v{chk}, v{g4 + 2}, v{g4 + 3}")
    E(f"v_cmp_eq_u32 vcc, -1, v{chk}")
    spin_tail(E, L, Ld)
    stamp(E, 7)
    kf = ACC[0] + 8
    E(pack_op(SUM, kf, zero_pad=False))
    E(f"s_lshl_b32 s{sT0}, s{sWV}, 10")
    E(f"s_add_u32 s{sT0}, s{sT0}, {KVF}")
    E(f"v_add_u32 v{vA1}, s{sT0}, v{vL16B}")
    E(f"ds_write_b128 v{vA1}, {vr(kf, 4)}")
    E(f"s_lshl_b32 s{sT0}, s{sHH}, 12")
    E(f"s_add_u32 s{sT0}, s{sT0}, {KVF}")
    E(f"v_add_u32 v{vA1}, s{sT0}, v{vL16B}")
    E(f"v_lshlrev_b32 v{vA2}, 8, v{vG}")
    E(f"s_add_u32 s{sT0}, s{sT0}, {12 * 16}")
    E(f"v_add_u32 v{vA2}, s{sT0}, v{vA2}")
    E.barrier()
    KF, ZF, NUM = BUF, BUF + 16, BUF + 24
    for w in range(4):
        E(f"ds_read_b128 {vr(KF + 4 * w, 4)}, v{vA1} offset:{1024 * w}")
    for sg in range(2):
        E(f"ds_read_b128 {vr(ZF + 4 * sg, 4)}, v{vA2} offset:{1024 * (2 * sg + 1)}")
    pre_a = p3_loads(0)[0]
    for u in range(2):
        for dt in range(2):
            for sg in range(2):
                d = NUM + 12 * u + 4 * dt
                E(f"v_mfma_f32_16x16x32_bf16 {vr(d, 4)}, {vr(KF + 4 * (2 * sg + dt), 4)}, {vr(PHI + 8 * u + 4 * sg, 4)}, {'0' if sg == 0 else vr(d, 4)}")
        for sg in range(2):
            d = NUM + 12 * u + 8
            E(f"v_mfma_f32_16x16x32_bf16 {vr(d, 4)}, {vr(ZF + 4 * sg, 4)}, {vr(PHI + 8 * u + 4 * sg, 4)}, {'0' if sg == 0 else vr(d, 4)}")
    E(pre_a)
    st = []
    for u in range(2):
        n = NUM + 12 * u; dn = n + 8
        t = BUF + 48 + 8 * u
        o = []
        o += round_pairs(n, n, 8, t)
        o.append(f"v_cvt_pk_bf16_f32 v{t + 4}, v{dn}, v{dn}")
        o.append(f"v_lshlrev_b32 v{dn}, 16, v{t + 4}")
        o.append(f"v_add_f32 v{dn}, 0x358637bd, v{dn}")
        o.append(f"v_cvt_pk_bf16_f32 v{t + 4}, v{dn}, v{dn}")
        o.append(f"v_lshlrev_b32 v{dn}, 16, v{t + 4}")
        o.append(f"v_rcp_f32 v{dn}, v{dn}")
        for i in range(8):
            o.append(f"v_mul_f32 v{n + i}, v{n + i}, v{dn}")
        o += pack_op(n, t)
        for i in range(4):
            o.append(f"v_min_u32 v{t + i}, -2, v{t + i}")
        o.append(ostore(t, u))
        st.append(o)
    E(interleave(st[0], st[1]))
    stamp(E, 8)

def att_masks():
    ms = []
    for tile in range(2):
        for i in range(4):
            m = 0
            for lane in range(64):
                q, g = lane & 15, lane >> 4
                d = q - (4 * g + i) + (16 if tile == 0 else 0)
                if 0 <= d <= 14 and d % 2 == 0:
                    m |= 1 << lane
            ms.append(m)
    return ms

def cons_A(E, halo):
    HACC, BUF = 64, 80
    cons_setup(E, "A")
    srds(E); srds2(E)
    ones = T0 + 4
    for i in range(4):
        E(f"v_mov_b32 v{ones + i}, -1")
    E(f"s_lshl_b32 s{sT0}, s{sHP}, 4")
    E(f"s_add_u32 s{sT0}, s{sT0}, s{sRB}")
    E(f"s_lshl_b32 s{sT0}, s{sT0}, 3")
    E(f"s_add_u32 s{sT0}, s{sT0}, s{sWV}")
    E(f"s_lshl_b32 s{sT0}, s{sT0}, 10")
    E(f"s_add_u32 s{sT0}, s{sT0}, {WS_KVP}")
    E(f"v_add_u32 v{vA0}, s{sT0}, v{vL16B}")
    E(f"buffer_store_dwordx4 {vr(ones, 4)}, v{vA0}, {sr(SWS, 4)}, 0 offen sc1")
    if OPT["pf"] and not OPT["pfA"]:
        prefetch(E)
    elif OPT["pf"]:
        E(f"s_and_b32 s{sMP}, s{sJ}, 15")
        prefetch(E, sMP)
        E(f"s_add_u32 s{sMP}, s{sMP}, 16")
        prefetch(E, sMP)
    stamps_init(E)
    ms = att_masks()
    for i, m in enumerate(ms):
        E(f"s_mov_b32 s{sMASK + 2 * i}, {m & 0xffffffff:#x}")
        E(f"s_mov_b32 s{sMASK + 2 * i + 1}, {m >> 32:#x}")
    E(f"s_lshl_b32 s{sT0}, s{sWV}, 11")
    E(f"s_add_u32 s{sT0}, s{sT0}, {A_EXCH}")
    E(f"v_add_u32 v{vA1}, s{sT0}, v{vL16B}")
    E(f"v_lshl_add_u32 v{vA2}, v{vLANE}, 3, s{sT0}")
    C = Cons(E, "A", A_STAGES, BUF, 36, 2, halo=halo, HACC=HACC)
    def fl(E, base):
        Lf = newlabel("fs")
        E(f"s_cmp_lg_u32 s{sWV}, 0")
        E.flush_haz()
        E(f"s_cbranch_scc1 {Lf}")
        flag_store(E, 1, T0, T0 + 1, base)
        E.label(Lf)
    def prebar(E, s):
        if s == OPT["fk"]:
            E.force_wait(vm=0 if OPT["fk"] else 1)
        if s == OPT["fk"] + 1 and halo:
            fl(E, 0)
        if s in (1, 2):
            E(f"s_mov_b32 s{sT0}, {WS_OB + 16384 * (s - 1)}")
            E(f"buffer_store_dwordx4 {vr(ones, 4)}, v{vOOFF}, {sr(SWS, 4)}, s{sT0} offen sc1")
            E(ostore(ones, s - 1))
        if s == 3 and OPT["pf2"]:
            sv = list(E.vmq); prefetch2(E, T0, T0 + 1, 15); E.vmq = sv
        if s == 5:
            E.force_wait(vm=0)
        if s == 6 and halo:
            fl(E, 128)
    C.prebar = prebar
    C.run(0, 6)
    stamp(E, 1)
    KT, VV = BUF, BUF + 12
    for u in range(2):
        E(pack_op(ACC[0] + 8 * u, KT + 4 + 4 * u))
        for dt in range(2):
            a = ACC[1] + 8 * u + 4 * dt
            d = VV + 8 * u + 4 * dt + 2
            E(f"v_cvt_pk_bf16_f32 v{d}, v{a}, v{a + 1}")
            E(f"v_cvt_pk_bf16_f32 v{d + 1}, v{a + 2}, v{a + 3}")
            if u == 0:
                E(f"v_mov_b32 v{d + 6}, v{d}")
                E(f"v_mov_b32 v{d + 7}, v{d + 1}")
    E.barrier()
    E(f"ds_write_b128 v{vA1}, {vr(KT + 8, 4)} offset:4096")
    for dt in range(2):
        E(f"ds_write_b64 v{vA2}, {vr(VV + 8 + 4 * dt + 2, 2)} offset:{4096 + 1024 + 512 * dt}")
    if halo:
        E(pack_op(HACC, KT))
        for dt in range(2):
            a = HACC + 8 + 4 * dt
            d = VV + 4 * dt
            E(f"v_cvt_pk_bf16_f32 v{d}, v{a}, v{a + 1}")
            E(f"v_cvt_pk_bf16_f32 v{d + 1}, v{a + 2}, v{a + 3}")
        E(f"s_cmp_eq_u32 s{sRB}, 0")
        E(f"s_cselect_b64 {sr(sMP, 2)}, 0, -1")
    T = BUF + 28
    NEG = T0 + 8
    E(f"v_mov_b32 v{NEG}, 0xf149f2ca")
    MX = [T0, T0 + 1]; SM = [T0 + 2, T0 + 3]; tt = T0 + 4
    pre0, pre, mid, post = [], [], [], []
    for u in range(2):
        B_ = T + 20 * u
        qo, L, pk, P = B_, B_ + 4, B_ + 12, B_ + 16
        O = ACC[1] + 8 * u
        pre0 += pack_op(ACC[2] + 8 * u, qo)
        o = []
        o.append(f"v_mfma_f32_16x16x32_bf16 {vr(L + 4, 4)}, {vr(KT + 4 * u + 4, 4)}, {vr(qo, 4)}, 0")
        o.append(f"v_mfma_f32_16x16x32_bf16 {vr(L, 4)}, {vr(KT + 4 * u, 4)}, {vr(qo, 4)}, 0")
        o += round_pairs(L, L, 8, pk)
        for i in range(8):
            o.append(f"v_mul_f32 v{L + i}, s{sSCL}, v{L + i}")
        o += round_pairs(L, L, 8, pk)
        for i in range(8):
            o.append(f"v_cndmask_b32 v{L + i}, v{NEG}, v{L + i}, {sr(sMASK + 2 * i, 2)}")
        if halo and u == 0:
            for i in range(4):
                o.append(f"v_cndmask_b32 v{L + i}, v{NEG}, v{L + i}, {sr(sMP, 2)}")
        mx = MX[u]
        o.append(f"v_max3_f32 v{mx}, v{L}, v{L+1}, v{L+2}")
        o.append(f"v_max3_f32 v{mx}, v{mx}, v{L+3}, v{L+4}")
        o.append(f"v_max3_f32 v{mx}, v{mx}, v{L+5}, v{L+6}")
        o.append(f"v_max_f32 v{mx}, v{mx}, v{L+7}")
        pre.append(o)
        o = []
        o.append(f"v_mul_f32 v{mx}, s{sL2E}, v{mx}")
        for i in range(8):
            o.append(f"v_fma_f32 v{L + i}, v{L + i}, s{sL2E}, -v{mx}")
        for i in range(8):
            o.append(f"v_exp_f32 v{L + i}, v{L + i}")
        sm = SM[u]
        o.append(f"v_add_f32 v{sm}, v{L}, v{L + 1}")
        for i in range(2, 8):
            o.append(f"v_add_f32 v{sm}, v{sm}, v{L + i}")
        mid.append(o)
        o = []
        o.append(f"v_rcp_f32 v{sm}, v{sm}")
        for i in range(8):
            o.append(f"v_mul_f32 v{L + i}, v{L + i}, v{sm}")
        for i in range(4):
            o.append(f"v_cvt_pk_bf16_f32 v{P + i}, v{L + 2 * i}, v{L + 2 * i + 1}")
        for dt in range(2):
            o.append(f"v_mfma_f32_16x16x32_bf16 {vr(O + 4 * dt, 4)}, {vr(VV + 8 * u + 4 * dt, 4)}, {vr(P, 4)}, 0")
        o += pack_op(O, qo)
        for i in range(4):
            o.append(f"v_min_u32 v{qo + i}, -2, v{qo + i}")
        o.append(ostore(qo, u))
        post.append(o)
    E(pre0)
    E.barrier()
    if not halo:
        E(f"ds_read_b128 {vr(KT, 4)}, v{vA1}")
        for dt in range(2):
            E(f"ds_read_b64 {vr(VV + 4 * dt, 2)}, v{vA2} offset:{1024 + 512 * dt}")
    E(interleave(pre[1], pre[0]))
    E(dual_reduce(MX[0], MX[1], tt, "v_max_f32"))
    E(interleave(mid[0], mid[1]))
    E(dual_reduce(SM[0], SM[1], tt, "v_add_f32"))
    E(interleave(post[0], post[1]))
    stamp(E, 8)
    E.barrier()
    E(p3_setup(E))

def loader(E, br, last):
    stages = A_STAGES if br == "A" else B_STAGES
    vX, vW0, vW1, vH0, vH1, vWO, vGX, vGF, vGOFF = 4, 5, 6, 7, 8, 9, 10, 12, 13
    t0, t1, t2, t3 = T0, T0 + 1, T0 + 2, T0 + 3
    sL = sRG
    if OPT["prio"]:
        E("s_setprio 3")
    E(f"s_sub_u32 s{sL}, s{sWV}, 8")
    E(f"v_lshrrev_b32 v{t0}, 3, v{vLANE}")
    E(f"v_bfe_u32 v{t1}, v{vLANE}, 4, 2")
    E(f"s_lshl_b32 s{sT1}, s{sHH}, 2")
    E(f"v_or_b32 v{t1}, s{sT1}, v{t1}")
    E(f"v_and_b32 v{t2}, 7, v{vLANE}")
    E(f"v_xor_b32 v{t1}, v{t1}, v{t2}")
    E(f"s_lshl_b32 s{sT0}, s{sRB}, 7")
    E(f"s_lshl_b32 s{sT1}, s{sL}, 3")
    E(f"s_add_u32 s{sT0}, s{sT0}, s{sT1}")
    E(f"v_add_u32 v{t0}, s{sT0}, v{t0}")
    E(f"v_mul_u32_u24 v{vX}, 896, v{t0}")
    E(f"v_lshl_add_u32 v{vX}, v{t1}, 4, v{vX}")
    for pi, vw in enumerate((vW0, vW1)):
        if last and pi == 1:
            break
        E(f"s_lshl_b32 s{sT1}, s{sL}, 6")
        if pi:
            E(f"s_add_u32 s{sT1}, s{sT1}, 256")
        E(f"v_add_u32 v{t0}, s{sT1}, v{vLANE}")
        E(f"v_mul_u32_u24 v{t1}, 9363, v{t0}")
        E(f"v_lshrrev_b32 v{t1}, 16, v{t1}")
        E(f"v_mul_u32_u24 v{t2}, 7, v{t1}")
        E(f"v_sub_u32 v{t2}, v{t0}, v{t2}")
        E(f"v_and_b32 v{t0}, 0x38, v{t1}")
        E(f"v_and_b32 v{t3}, 1, v{t1}")
        E(f"v_lshl_add_u32 v{t0}, v{t3}, 2, v{t0}")
        E(f"v_bfe_u32 v{t3}, v{t1}, 1, 2")
        E(f"v_add_u32 v{t0}, v{t0}, v{t3}")
        E(f"v_mul_u32_u24 v{vw}, 2688, v{t0}")
        E(f"v_lshl_add_u32 v{vw}, v{t2}, 4, v{vw}")
        E(f"s_mul_i32 s{sT1}, s{sHP}, 112")
        E(f"v_add_u32 v{vw}, s{sT1}, v{vw}")
    E(f"s_lshl_b32 s{sM0}, s{sL}, 10")
    if last and br == "A":
        E(f"v_subrev_u32 v{vH1}, {32 * 896}, v{vX}")
        E(f"v_xor_b32 v{vH0}, 64, v{vX}")
        E(f"v_subrev_u32 v{vH0}, {40 * 896}, v{vH0}")
    srds(E)
    lstamp(E, 1)
    def issue(s):
        if OPT["no_load"]:
            return
        st = stages[s]; m = st["m"]; base = st["base"]
        for i in range(4):
            E(f"s_add_u32 m0, s{sM0}, {base + 4096 * i}")
            E(f"s_mov_b32 s{sT0}, {128 * m + 28672 * i}")
            E(f"buffer_load_dwordx4 v{vX}, {sr(SX, 4)}, s{sT0} offen lds", tag=f"S{s}")
        for k, seg in enumerate(st["segs"]):
            for pi, vw in enumerate((vW0, vW1)):
                if last and pi == 1:
                    break
                E(f"s_add_u32 m0, s{sM0}, {base + woff(br, k) + 4096 * pi}")
                E(f"s_mov_b32 s{sT0}, {m * 64 * 2688 + SEGCOL[seg] * 896}")
                E(f"buffer_load_dwordx4 v{vw}, {sr(SW, 4)}, s{sT0} offen lds", tag=f"S{s}")
        if last and br == "A":
            for n2, vh in enumerate((vH0, vH1)):
                E(f"s_mov_b32 m0, {base + 16384 + 1024 * n2}")
                E(f"s_mov_b32 s{sT0}, {128 * m}")
                E(f"buffer_load_dwordx4 v{vh}, {sr(SX, 4)}, s{sT0} offen lds", tag=f"S{s}")
    nxt = 0
    issue(0); nxt = 1
    lstamp(E, 2)
    srds2(E)
    stamps_init(E)
    if last:
        if br == "B":
            E(f"s_mul_i32 s{sT1}, s{sHP}, 3136")
            E(f"v_add_u32 v{t0}, s{sT1}, v{vL16B}")
            for i in range(4):
                E(f"s_mov_b32 m0, {B_WPH + 1024 * i}")
                E(f"s_mov_b32 s{sT0}, {1024 * i}")
                E(f"buffer_load_dwordx4 v{t0}, {sr(SAUX, 4)}, s{sT0} offen lds", tag="S1")
        else:
            E(f"s_mov_b32 m0, {A_GATE}")
            E(f"buffer_load_dwordx4 v{vL16B}, {sr(SAUX, 4)}, 0 offen lds", tag="S0")
    while nxt < OPT["ahead"]:
        issue(nxt); nxt += 1
    lstamp(E, 3)
    E(f"v_lshrrev_b32 v{vWO}, 3, v{vLANE}")
    E(f"v_bfe_u32 v{t1}, v{vLANE}, 4, 2")
    E(f"v_lshlrev_b32 v{t1}, 1, v{t1}")
    E(f"v_and_b32 v{t2}, 7, v{vLANE}")
    E(f"v_xor_b32 v{t1}, v{t1}, v{t2}")
    E(f"v_mul_u32_u24 v{vWO}, 896, v{vWO}")
    E(f"v_lshl_add_u32 v{vWO}, v{t1}, 4, v{vWO}")
    E(f"s_lshl_b32 s{sT1}, s{sCT}, 7")
    E(f"s_mul_i32 s{sT2}, s{sL}, {8 * 896}")
    E(f"s_add_u32 s{sT1}, s{sT1}, s{sT2}")
    E(f"s_cmp_ge_u32 s{sJ}, 28")
    E(f"s_cselect_b32 s{sT1}, 0x1000000, s{sT1}")
    E(f"v_add_u32 v{vWO}, s{sT1}, v{vWO}")
    def wo(b2):
        for i in range(14):
            E(f"s_add_u32 m0, s{sM0}, {(WOB_BASE if b2 else WOA_BASE) + i * 4096}")
            E(f"s_mov_b32 s{sT0}, {i * 32 * 896}")
            E(f"buffer_load_dwordx4 v{vWO}, {sr(SWOA if b2 == 0 else SWOB, 4)}, s{sT0} offen lds", tag=f"WO{b2}")
        if last:
            E(f"s_mov_b32 m0, {(WOB_BASE if b2 else WOA_BASE) + 57344}")
            E(f"s_mov_b32 s{sT0}, {448 * 896}")
            E(f"buffer_load_dwordx4 v{vWO}, {sr(SWOA if b2 == 0 else SWOB, 4)}, s{sT0} offen lds", tag=f"WO{b2}")
    gate = last and br == "A"
    if gate:
        E(f"v_lshrrev_b32 v{t0}, 1, v{vL16}")
        E(f"v_xor_b32 v{t0}, v{t0}, v{vG}")
        E(f"v_lshlrev_b32 v{t0}, 4, v{t0}")
        E(f"v_lshl_add_u32 v{t0}, v{vL16}, 7, v{t0}")
        E(f"s_lshl_b32 s{sT0}, s{sHP}, 11")
        E(f"v_add_u32 v{vGX}, s{sT0}, v{t0}")
        E(f"v_xor_b32 v{vGX + 1}, 64, v{vGX}")
        E(f"v_lshlrev_b32 v{vGF}, 4, v{vG}")
        E(f"v_add_u32 v{vGF}, {A_GATE}, v{vGF}")
        E(f"s_lshl_b32 s{sT0}, s{sRB}, 7")
        E(f"s_lshl_b32 s{sT1}, s{sHP}, 4")
        E(f"s_add_u32 s{sT0}, s{sT0}, s{sT1}")
        E(f"s_lshl_b32 s{sT0}, s{sT0}, 2")
        E(f"s_add_u32 s{sT0}, s{sT0}, {WS_G}")
        E(f"v_lshl_add_u32 v{vGOFF}, v{vLANE}, 2, s{sT0}")
        E(f"v_mov_b32 v{t0}, {WS_BYTES}")
        E(f"v_cmp_gt_u32 vcc, 16, v{vLANE}")
        E(f"v_cndmask_b32 v{vGOFF}, v{t0}, v{vGOFF}, vcc")
        E(f"v_mov_b32 v{t1}, -1")
        E(f"buffer_store_dword v{t1}, v{vGOFF}, {sr(SWS, 4)}, 0 offen sc1", tag="GCLR")
    GL, GB = 16, 20
    cur = 0
    cleared = [False]
    def clears():
        on = 40
        for i in range(4):
            E(f"v_mov_b32 v{on + i}, -1")
        E(f"s_lshl_b32 s{sT0}, s{sRB}, 3")
        E(f"s_lshl_b32 s{sT1}, s{sL}, 1")
        E(f"s_add_u32 s{sT0}, s{sT0}, s{sT1}")
        E(f"s_lshl_b32 s{sT0}, s{sT0}, 4")
        E(f"s_lshl_b32 s{sT1}, s{sHP}, 1")
        E(f"s_add_u32 s{sT0}, s{sT0}, s{sT1}")
        E(f"s_lshl_b32 s{sT0}, s{sT0}, 10")
        E(f"s_lshl_b32 s{sT1}, s{sBR}, 21")
        E(f"s_add_u32 s{sT0}, s{sT0}, s{sT1}")
        E(f"v_add_u32 v{t2}, s{sT0}, v{vL16B}")
        E(f"s_mov_b32 s{sT1}, 16384")
        if br == "B":
            E(f"s_lshl_b32 s{sT0}, s{sHP}, 4")
            E(f"s_add_u32 s{sT0}, s{sT0}, s{sRB}")
            E(f"s_lshl_b32 s{sT0}, s{sT0}, 2")
            E(f"s_add_u32 s{sT0}, s{sT0}, s{sL}")
            E(f"s_lshl_b32 s{sT0}, s{sT0}, 11")
            E(f"s_add_u32 s{sT0}, s{sT0}, {WS_KVP}")
            E(f"v_add_u32 v{t3}, s{sT0}, v{vL16B}")
            for i in range(2):
                E(f"buffer_store_dwordx4 {vr(on, 4)}, v{t3}, {sr(SWS, 4)}, 0 offen offset:{1024 * i} sc1", tag="CLR")
        for u in range(2):
            for i in range(2):
                E(f"buffer_store_dwordx4 {vr(on, 4)}, v{t2}, {sr(SWS, 4)}, {'0' if u == 0 else 's' + str(sT1)} offen offset:{1024 * i} sc1", tag="CLR")
    def step(s):
        nonlocal nxt, cur
        E.wait_tag(f"S{s}")
        if s == 0:
            lstamp(E, 4)
        if gate and s == OPT["flag_at"]:
            E.wait_tag("GCLR")
        E.barrier(lgkm0=True)
        if s == 0:
            lstamp(E, 5)
        if gate:
            d = stages[s]["base"] - cur; cur = stages[s]["base"]
            E(vadd_imm(vGX, d)); E(vadd_imm(vGX + 1, d))
            m = stages[s]["m"]
            for tt in range(2):
                E(f"ds_read_b128 {vr(GB + 8 * tt, 4)}, v{vGX + tt}")
                E(f"ds_read_b128 {vr(GB + 8 * tt + 4, 4)}, v{vGF} offset:{64 * (2 * m + tt)}")
        while nxt < len(stages) and stages[nxt]["after"] <= s and nxt <= s + OPT["ahead"]:
            issue(nxt); nxt += 1
        if gate:
            m = stages[s]["m"]
            for tt in range(2):
                E(f"v_mfma_f32_16x16x32_bf16 {vr(GL, 4)}, {vr(GB + 8 * tt + 4, 4)}, {vr(GB + 8 * tt, 4)}, {'0' if (m == 0 and tt == 0) else vr(GL, 4)}")
    if br == "A":
        for s in range(7):
            step(s)
        if gate:
            g = GL
            E(f"v_cvt_pk_bf16_f32 v{g + 1}, v{g}, v{g}")
            E(f"v_lshlrev_b32 v{g}, 16, v{g + 1}")
            E(f"v_mul_f32 v{g}, s{sL2E}, v{g}")
            E(f"v_exp_f32 v{g}, -v{g}")
            E(f"v_add_f32 v{g}, 1.0, v{g}")
            E(f"v_rcp_f32 v{g}, v{g}")
            E(f"v_cvt_pk_bf16_f32 v{g + 1}, v{g}, v{g}")
            E(f"v_lshlrev_b32 v{g}, 16, v{g + 1}")
            E.wait_tag("GCLR")
            E(f"buffer_store_dword v{g}, v{vGOFF}, {sr(SWS, 4)}, 0 offen sc1")
        E.barrier()
        E.barrier()
        E.barrier()
        wo(0); wo(1)
        if last:
            flags_wait_all(E, t0, t1, 128)
    else:
        for s in range(7):
            step(s)
        if last:
            flags_wait_all(E, t0, t1)
        E.barrier()
        E.barrier()
        wo(0)
        E.barrier()
        if last:
            flags_wait_all(E, t0, t1, 128)
        E.barrier()
    E(f"s_cmp_ge_u32 s{sJ}, 28")
    E.flush_haz()
    E("s_cbranch_scc1 L_end")
    E.wait_tag("WO0")
    E.barrier()
    if br == "B":
        wo(1)
    E.force_wait(vm=0)
    E.barrier()
    if OPT["ldst"] and not last:
        Lz = newlabel("ls")
        E(f"s_cmp_lg_u32 s{sWV}, 8")
        E(f"s_cbranch_scc1 {Lz}")
        E.force_wait(vm=0, lgkm=0)
        E(f"s_lshl_b32 s{sT0}, s2, 7")
        E(f"s_add_u32 s{sT0}, s{sT0}, {WS_ST}")
        E(f"v_mov_b32 v20, s{sT0}")
        E("s_mov_b64 exec, 1")
        for i in range(6):
            E(f"v_mov_b32 v22, s{54 + 2 * i}")
            E(f"v_mov_b32 v23, s{54 + 2 * i + 1}")
            E(f"buffer_store_dwordx2 v[22:23], v20, {sr(SWS, 4)}, 0 offen offset:{8 * i}")
            E.force_wait(vm=0)
        E.label(Lz)
    E("s_branch L_end")

def p3_setup(E):
    rt, kh = sP3, sP3 + 1
    t0, t1, t2 = T0 + 8, T0 + 9, T0 + 1
    o = []
    o.append(f"s_and_b32 s{rt}, s{sWV}, 3")
    o.append(f"s_lshr_b32 s{kh}, s{sWV}, 2")
    o.append(f"s_lshl_b32 s{sT2}, s{sT}, 2")
    o.append(f"s_add_u32 s{sT2}, s{sT2}, s{rt}")
    o.append(f"s_lshl_b32 s{sP3 + 2}, s{sT2}, 14")
    o.append(f"s_lshl_b32 s{sP3 + 3}, s{kh}, 13")
    o.append(f"s_add_u32 s{sP3 + 2}, s{sP3 + 2}, s{sP3 + 3}")
    o.append(f"v_add_u32 v{pOF}, s{sP3 + 2}, v{vL16B}")
    o.append(f"s_lshl_b32 s{sT2}, s{sT2}, 4")
    o.append(f"v_add_u32 v{pROW}, s{sT2}, v{vL16}")
    o.append(f"v_bfe_u32 v{t0}, v{vLANE}, 2, 2")
    o.append(f"v_lshl_add_u32 v{t0}, v{vG}, 2, v{t0}")
    o.append(f"v_bfe_u32 v{t1}, v{t0}, 1, 2")
    o.append(f"v_and_b32 v{t2}, 3, v{vLANE}")
    o.append(f"v_lshlrev_b32 v{t2}, 3, v{t2}")
    o.append(f"v_lshl_add_u32 v{t2}, v{t0}, 7, v{t2}")
    o.append(f"s_mul_i32 s{sT2}, s{kh}, 28672")
    o.append(f"s_add_u32 s{sT2}, s{sT2}, {WOA_BASE}")
    o.append(f"v_add_u32 v{t2}, s{sT2}, v{t2}")
    o.append(f"s_lshl_b32 s{sT2}, s{kh}, 1")
    o.append(f"v_xor_b32 v{t1}, s{sT2}, v{t1}")
    for c in range(4):
        o.append(f"v_xor_b32 v{t0}, {c}, v{t1}")
        o.append(f"v_lshl_add_u32 v{pWO + c}, v{t0}, 5, v{t2}")
    o.append(f"v_add_u32 v7, 4096, v{pOF}")
    o.append(f"v_lshlrev_b32 v9, 2, v{pROW}")
    o.append(f"v_add_u32 v9, {WS_G}, v9")
    return o

sP3 = sMASK
pOF, pROW, pWO = 4, 5, 12
def p3_loads(br):
    of = 16 + 32 * br
    loads = [f"s_mov_b32 s{sT2}, {WS_OB if br else 0}"]
    for hl in range(8):
        loads.append(f"buffer_load_dwordx4 {vr(of + 4 * hl, 4)}, v{pOF if hl < 4 else 7}, {sr(SWS, 4)}, s{sT2} offen offset:{1024 * (hl & 3)} sc1")
    regs = list(range(of, of + 32))
    if br == 0:
        loads.append(f"buffer_load_dword v6, v9, {sr(SWS, 4)}, 0 offen sc1")
        regs.append(6)
    return loads, regs

def phase3(E):
    E.label("L_p3")
    E.vmq = []; E.lgq = []
    E(f"s_cmp_ge_u32 s{sJ}, 28")
    E("s_cbranch_scc1 L_fin")
    rt, kh = sP3, sP3 + 1
    vROW, vGV, vWO = pROW, 6, pWO
    vOF0, vOF1, vGA, vXO, vXP, vOUT = pOF, 7, 9, 8, 10, 11
    TMP = 144
    OF, AC, WF = 16, [80, 96], 112
    loads_for = p3_loads
    def gemm(br):
        of = OF + 32 * br
        prev = []
        for hl in range(8):
            wf = WF + 16 * (hl & 1)
            rd = []
            for c in range(4):
                for j in range(2):
                    rd.append(f"ds_read_b64_tr_b16 {vr(wf + 4 * c + 2 * j, 2)}, v{vWO + (c ^ (2 * (hl & 1)))} offset:{3584 * hl + 2048 * j}")
            E(interleave_front(prev, rd) if prev else rd)
            prev = []
            for c in (2, 3, 0, 1):
                acc = AC[br] + 4 * c
                prev.append(f"v_mfma_f32_16x16x32_bf16 {vr(acc, 4)}, {vr(wf + 4 * c, 4)}, {vr(of + 4 * hl, 4)}, {'0' if hl == 0 else vr(acc, 4)}")
        E(prev)
    E.barrier()
    stamp(E, 9)
    la, ra = loads_for(0)
    Lsk = newlabel("p3a")
    E(f"s_cmp_lg_u32 s{sBR}, 0")
    E.flush_haz()
    E(f"s_cbranch_scc1 {Lsk}")
    E(la)
    E.label(Lsk)
    E(f"s_lshl_b32 s{sT0}, s{sWV}, 12")
    E(f"s_add_u32 s{sT0}, s{sT0}, {XB3}")
    E(f"v_add_u32 v{vXO}, s{sT0}, v{vL16B}")
    E(f"s_xor_b32 s{sT0}, s{sWV}, 4")
    E(f"s_lshl_b32 s{sT0}, s{sT0}, 12")
    E(f"s_add_u32 s{sT0}, s{sT0}, {XB3}")
    E(f"v_add_u32 v{vXP}, s{sT0}, v{vL16B}")
    E(f"v_mul_u32_u24 v{vOUT}, 896, v{vROW}")
    E(f"v_lshl_add_u32 v{vOUT}, v{vG}, 3, v{vOUT}")
    E(f"s_lshl_b32 s{sT0}, s{sCT}, 7")
    E(f"s_lshl_b32 s{sT1}, s{kh}, 6")
    E(f"s_add_u32 s{sT0}, s{sT0}, s{sT1}")
    E(f"v_add_u32 v{vOUT}, s{sT0}, v{vOUT}")
    poll_loop(E, la, ra, "o", TMP, pre_issued=True)
    stamp(E, 10)
    gemm(0)
    for i in range(2):
        E(f"ds_write_b128 v{vXO}, {vr(AC[0] + 8 + 4 * i, 4)} offset:{1024 * i}")
    stamp(E, 11)
    lb, rb_ = loads_for(1)
    if not OPT["sent"]:
        E(lb)
    for c in range(4):
        E(vadd_imm(vWO + c, WOB_BASE - WOA_BASE))
    E.barrier()
    RA, T1, tp, omg = OF, OF + 8, OF + 16, OF + 24
    for i in range(2):
        E(f"ds_read_b128 {vr(RA + 4 * i, 4)}, v{vXP} offset:{1024 * i}")
    E(f"v_sub_f32 v{omg}, 1.0, v{vGV}")
    if OPT["round_final"]:
        E(f"v_cvt_pk_bf16_f32 v{omg + 1}, v{omg}, v{omg}")
        E(f"v_lshlrev_b32 v{omg}, 16, v{omg + 1}")
    for i in range(8):
        E(f"v_add_f32 v{T1 + i}, v{AC[0] + i}, v{RA + i}")
    if OPT["round_final"]:
        E(round_pairs(T1, T1, 8, tp))
    for i in range(8):
        E(f"v_mul_f32 v{T1 + i}, v{T1 + i}, v{vGV}")
    if OPT["round_final"]:
        E(round_pairs(T1, T1, 8, tp))
    if OPT["sent"]:
        vS = TMP + 2
        E(f"v_and_b32 v{vS}, 7, v{vLANE}")
        E(f"v_lshlrev_b32 v{vS}, 10, v{vS}")
        E(f"s_add_u32 s{sT0}, s{sP3 + 2}, {WS_OB + 1020}")
        E(f"v_add_u32 v{vS}, s{sT0}, v{vS}")
        Ls = newlabel("sn"); Lsd = newlabel("snd")
        E(f"s_mov_b32 s{sSPIN}, 0")
        E.label(Ls)
        E(f"buffer_load_dword v{TMP + 3}, v{vS}, {sr(SWS, 4)}, 0 offen sc1")
        E.force_wait(vm=0)
        E(f"v_cmp_eq_u32 vcc, -1, v{TMP + 3}")
        spin_tail(E, Ls, Lsd, sleep=OPT["sent"])
        poll_loop(E, lb, rb_, "o", TMP)
        stamp(E, 12)
        gemm(1)
    elif not OPT["prog"]:
        poll_loop(E, lb, rb_, "o", TMP, pre_issued=True)
        stamp(E, 12)
        gemm(1)
    else:
        of = OF + 32
        sMK = sP3 + 2
        for i in range(16):
            E(f"v_mov_b32 v{AC[1] + i}, 0")
        E(f"s_mov_b32 s{sMK}, 15")
        E(f"s_mov_b32 s{sSPIN}, 0")
        L = newlabel("pb"); Lc = newlabel("pbc"); Ld = newlabel("pbd")
        E.wait(lgkm=0)
        E.flush_haz()
        E(f"s_branch {Lc}")
        E.label(L)
        for pr in range(4):
            Ls = newlabel("pbl")
            E(f"s_bitcmp1_b32 s{sMK}, {pr}")
            E(f"s_cbranch_scc0 {Ls}")
            E(lb[1 + 2 * pr]); E(lb[2 + 2 * pr])
            E.out.append(Ls + ":")
        E.label(Lc)
        E.force_wait(vm=0)
        for pr in range(4):
            Ls = newlabel("pbk")
            g8 = of + 8 * pr
            E(f"s_bitcmp1_b32 s{sMK}, {pr}")
            E(f"s_cbranch_scc0 {Ls}")
            E(f"v_max3_u32 v{TMP}, v{g8}, v{g8 + 1}, v{g8 + 2}")
            E(f"v_max3_u32 v{TMP + 1}, v{g8 + 3}, v{g8 + 4}, v{g8 + 5}")
            E(f"v_max3_u32 v{TMP}, v{TMP}, v{g8 + 6}, v{g8 + 7}")
            E(f"v_max_u32 v{TMP}, v{TMP}, v{TMP + 1}")
            E(f"v_cmp_eq_u32 vcc, -1, v{TMP}")
            E(f"s_cbranch_vccnz {Ls}")
            for h2 in range(2):
                hl = 2 * pr + h2
                wf = WF + 16 * h2
                for c in range(4):
                    for j in range(2):
                        E(f"ds_read_b64_tr_b16 {vr(wf + 4 * c + 2 * j, 2)}, v{vWO + (c ^ (2 * (hl & 1)))} offset:{3584 * hl + 2048 * j}")
            for h2 in range(2):
                hl = 2 * pr + h2
                wf = WF + 16 * h2
                for c in (2, 3, 0, 1):
                    acc = AC[1] + 4 * c
                    E(f"v_mfma_f32_16x16x32_bf16 {vr(acc, 4)}, {vr(wf + 4 * c, 4)}, {vr(of + 4 * hl, 4)}, {vr(acc, 4)}")
            E(f"s_bitset0_b32 s{sMK}, {pr}")
            assert not E.lgq
            E.out.append(Ls + ":")
        E(f"s_cmp_eq_u32 s{sMK}, 0")
        E(f"s_cbranch_scc1 {Ld}")
        E(f"s_add_u32 s{sSPIN}, s{sSPIN}, 1")
        E(f"s_cmp_lt_u32 s{sSPIN}, {SPIN_MAX}")
        E(f"s_cbranch_scc0 {Ld}")
        E(f"s_branch {L}")
        E.out.append(Ld + ":")
        E.nop(9); E.clear_haz()
        stamp(E, 12)
    for i in range(2):
        E(f"ds_write_b128 v{vXO}, {vr(AC[1] + 8 + 4 * i, 4)} offset:{2048 + 1024 * i}")
    stamp(E, 13)
    E.barrier()
    for i in range(2):
        E(f"ds_read_b128 {vr(RA + 4 * i, 4)}, v{vXP} offset:{2048 + 1024 * i}")
    KB = AC[1]
    for i in range(8):
        E(f"v_add_f32 v{KB + i}, v{KB + i}, v{RA + i}")
    if OPT["round_final"]:
        E(round_pairs(KB, KB, 8, tp))
        for i in range(8):
            E(f"v_mul_f32 v{KB + i}, v{KB + i}, v{omg}")
        E(round_pairs(KB, KB, 8, tp))
        for i in range(8):
            E(f"v_add_f32 v{T1 + i}, v{T1 + i}, v{KB + i}")
    else:
        for i in range(8):
            E(f"v_fmac_f32 v{T1 + i}, v{KB + i}, v{omg}")
    for i in range(4):
        E(f"v_cvt_pk_bf16_f32 v{tp + i}, v{T1 + 2 * i}, v{T1 + 2 * i + 1}")
    for i in range(2):
        E(f"buffer_store_dwordx2 {vr(tp + 2 * i, 2)}, v{vOUT}, {sr(SOUT, 4)}, 0 offen offset:{32 * i}")
    stamp(E, 14)
    E.label("L_fin")
    if OPT["dbgspan"]:
        Lz = newlabel("sp")
        E(f"s_cmp_lg_u32 s{sWV}, 0")
        E(f"s_cbranch_scc1 {Lz}")
        E.force_wait(vm=0)
        E("s_memrealtime s[96:97]")
        E.force_wait(lgkm=0)
        E("s_not_b32 s94, s94")
        E("v_mov_b32 v144, s96")
        E("v_mov_b32 v145, s94")
        E("v_mov_b32 v146, 0")
        E("s_mov_b64 exec, 1")
        E(f"buffer_atomic_umax v144, v146, {sr(SDBG, 4)}, 0 offen")
        E(f"buffer_atomic_umax v145, v146, {sr(SDBG, 4)}, 0 offen offset:4")
        E("s_not_b32 s94, s94")
        E("v_mov_b32 v145, s94")
        E(f"buffer_atomic_umax v145, v146, {sr(SDBG, 4)}, 0 offen offset:8")
        E("s_mov_b64 exec, -1")
        E.label(Lz)
    if OPT["stamps"]:
        Lz = newlabel("st")
        E(f"s_cmp_lg_u32 s{sWV}, 0")
        E(f"s_cbranch_scc1 {Lz}")
        E.force_wait(vm=0, lgkm=0)
        E(f"s_lshl_b32 s{sT0}, s2, 7")
        E(f"s_add_u32 s{sT0}, s{sT0}, {WS_ST}")
        E(f"v_mov_b32 v{vA0}, s{sT0}")
        E("s_mov_b64 exec, 1")
        for i in range(15):
            E(f"v_mov_b32 v{TMP}, s{sSTAMP + 2 * i}")
            E(f"v_mov_b32 v{TMP + 1}, s{sSTAMP + 2 * i + 1}")
            E(f"buffer_store_dwordx2 {vr(TMP, 2)}, v{vA0}, {sr(SWS, 4)}, 0 offen offset:{8 * i}")
            E.force_wait(vm=0)
        E.label(Lz)

def main():
    hdr = open("cdna_kernels/" + NAME + ".s.ref").read().split("; Override launch geometry")[0]
    E.raw(hdr.rstrip())
    E.raw(f"; @launch grid=(256,1,1) block=(768,1,1) lds={LDS_BYTES}")
    E.raw('.amdgcn_target "amdgcn-amd-amdhsa--gfx950"')
    E.raw(".text")
    E.raw(f".globl {NAME}_kernel")
    E.raw(".p2align 8")
    E.raw(f".type {NAME}_kernel,@function")
    E.raw(f"{NAME}_kernel:")
    prologue(E)
    E(f"s_cmp_lt_u32 s{sWV}, 8")
    E.flush_haz()
    E("s_cbranch_scc1 L_cons")
    E(f"s_cmp_eq_u32 s{sWV}, 11")
    E("s_cbranch_scc1 L_ld3")
    E(f"s_cmp_eq_u32 s{sBR}, 0")
    E("s_cbranch_scc1 L_A_ld")
    for name, fn in (("L_B_ld", lambda: loader(E, "B", False)), ("L_ld3", None), ("L_B_ld3", lambda: loader(E, "B", True)),
                     ("L_A_ld", lambda: loader(E, "A", False)), ("L_A_ld3", lambda: loader(E, "A", True))):
        E.label(name); E.vmq = []; E.lgq = []
        if fn is None:
            E(f"s_cmp_eq_u32 s{sBR}, 0")
            E("s_cbranch_scc1 L_A_ld3")
        else:
            fn()
    E.label("L_cons")
    E(f"s_cmp_eq_u32 s{sBR}, 0")
    E("s_cbranch_scc0 L_B_main")
    E(f"s_cmp_lt_u32 s{sWV}, 2")
    E("s_cbranch_scc1 L_A_halo")
    for name, fn in (("L_A_main", lambda: cons_A(E, False)), ("L_A_halo", lambda: cons_A(E, True)), ("L_B_main", lambda: cons_B(E))):
        E.label(name); E.vmq = []; E.lgq = []
        fn()
        E.wait(lgkm=0)
        E.flush_haz()
        E("s_branch L_p3")
    phase3(E)
    E.label("L_end")
    E("s_endpgm")
    E.raw('.section .rodata,"a"')
    E.raw(".p2align 6")
    E.raw(f".amdhsa_kernel {NAME}_kernel")
    E.raw(f"  .amdhsa_next_free_vgpr {NVGPR}")
    E.raw("  .amdhsa_next_free_sgpr 102")
    E.raw(f"  .amdhsa_accum_offset {NVGPR}")
    E.raw("  .amdhsa_group_segment_fixed_size 0")
    E.raw("  .amdhsa_kernarg_size 88")
    E.raw("  .amdhsa_user_sgpr_count 2")
    E.raw("  .amdhsa_user_sgpr_kernarg_segment_ptr 1")
    E.raw("  .amdhsa_system_sgpr_workgroup_id_x 1")
    E.raw(".end_amdhsa_kernel")
    txt = E.text()
    import re
    mx = max(int(x) for x in re.findall(r"\bv\[?(\d+)", txt) + re.findall(r"\bv\[\d+:(\d+)\]", txt))
    assert mx < NVGPR, mx
    open(sys.argv[1], "w").write(txt)
    print("instructions:", E.nins, "max vgpr", mx)

main()
```

```python
import sys, struct, math
from asmlib import *

NAME = "gated_mix__sliding_local_dilated__linear_kernel_hedgehog__prompt"
OPT = dict(stamps=0, fine=0, round_final=1, pf=1, flag_at=5, ahead=2, nov=4, fill=5, mfsum=1, prio=1, pkfma=2, gat=90, no_comp=0, no_load=0, no_clr=0, lead=2, dbgspan=0, pf2=0, prog=0, ldst=0, pfA=0, atom=0, fk=0, psleep=2, sent=0, noflag=0, sbar=2, prea=1, outpol="")
for a in sys.argv[2:]:
    k, v = a.split("=")
    OPT[k] = int(v) if v.lstrip("-").isdigit() else v

LDS_BYTES = 163840
PHI_STRIDE, V_STRIDE = 264, 72
WS_OA, WS_OB, WS_KVP, WS_G, WS_ST = 0, 2 << 20, 4 << 20, 5 << 20, 8 << 20
WS_BYTES = 16 << 20
SPIN_MAX = 30000
SEGCOL = {"Q": 0, "K": 1, "V": 2}
SEGI = {"K": 0, "V": 1, "Q": 2}
WOA_BASE, WOB_BASE, XB3 = 58368, 0, 116736
B_SS = 39936
B_STAGES = [dict(m=m, segs=["K", "V", "Q"], base=B_SS * (m % 4)) for m in range(7)]
for i, st in enumerate(B_STAGES):
    prev = [j for j in range(i) if B_STAGES[j]["base"] == st["base"]]
    st["after"] = (prev[-1] + 2) if prev else -1
B_WPH = 159744
PHI_BASE = 0
VB = [128 * PHI_STRIDE, 128 * PHI_STRIDE + 128 * V_STRIDE]
KVF = 143360
A_SS = 39936
A_STAGES = [dict(m=m, segs=["K", "V", "Q"], base=A_SS * (m % 4)) for m in range(7)]
for i, st in enumerate(A_STAGES):
    prev = [j for j in range(i) if A_STAGES[j]["base"] == st["base"]]
    st["after"] = (prev[-1] + 2) if prev else -1
A_GATE = 159744
A_EXCH = XB3
def woff(br, k):
    return 18432 + 7168 * k

def f2u(x): return struct.unpack("<I", struct.pack("<f", x))[0]
LOG2E = f2u(1.4426950408889634)
SCALE = f2u(28 ** -0.5)

SX, SW, SWS, SDBG, SAUX, SWOA, SWOB, SOUT = 8, 12, 16, 20, 24, 28, 32, 36
sRB, sHP, sBR, sWV, sT, sCT, sJ, sT0, sT1, sM0 = 40, 41, 42, 43, 44, 45, 46, 47, 48, 49
sMASK = 50
sG3 = 66
sL2E, sSCL, sSPIN, sT2 = 68, 69, 70, 71
sKA = 72
sSTAMP = 72
sRG, sHH, s16K, sMP = 3, 4, 5, 6
sHIM = sG3 + 1

NVGPR = 168
vLANE, vL16, vG, vL16B = 0, 1, 2, 3
vXR, vTR, vPADB, vOOFF = 4, 6, 7, 8
vA0, vA1, vA2, vA3 = 9, 10, 11, 12
vSL, vXRH = 13, 13
ACC = [16, 32, 48]
T0 = 152

E = Emitter()
lblc = [0]
def newlabel(p):
    lblc[0] += 1
    return f"L_{p}_{lblc[0]}"

def stamp(E, idx, fine=False):
    if OPT["stamps"] and (idx == 0 or bool(OPT["fine"]) == fine):
        E(f"s_memrealtime {sr(sSTAMP + 2 * idx, 2)}")

def srd(E, d, lo, nbytes):
    E(f"s_mov_b32 s{d}, s{lo}")
    E(f"s_and_b32 s{d+1}, s{lo+1}, 0xffff")
    E(f"s_mov_b32 s{d+2}, {nbytes}")
    E(f"s_mov_b32 s{d+3}, 0x20000")

def dual_reduce(a, b, t, op):
    return [
        f"v_permlane32_swap_b32 v{a}, v{b}",
        f"{op} v{a}, v{a}, v{b}",
        f"v_mov_b32 v{t}, v{a}",
        f"v_permlane16_swap_b32 v{a}, v{t}",
        f"{op} v{a}, v{a}, v{t}",
        f"v_mov_b32 v{b}, v{a}",
        f"v_permlane32_swap_b32 v{a}, v{b}",
    ]

def round_pairs(src, dst, n, tmp):
    out = []
    for i in range(0, n, 2):
        out.append(f"v_cvt_pk_bf16_f32 v{tmp + i // 2}, v{src + i}, v{src + i + 1}")
    for i in range(0, n, 2):
        out.append(f"v_lshlrev_b32 v{dst + i}, 16, v{tmp + i // 2}")
        out.append(f"v_and_b32 v{dst + i + 1}, s{sHIM}, v{tmp + i // 2}")
    return out

def pack_op(acc, dst, zero_pad=True):
    out = [f"v_cvt_pk_bf16_f32 v{dst + i}, v{acc + 2 * i}, v{acc + 2 * i + 1}" for i in range(4)]
    if zero_pad:
        out += [f"v_cndmask_b32 v{dst + 2}, v{dst + 2}, 0, {sr(sG3, 2)}", f"v_cndmask_b32 v{dst + 3}, v{dst + 3}, 0, {sr(sG3, 2)}"]
    return out

def interleave_front(mm, rd):
    out = []
    n = max(1, (len(mm) * 3) // 4)
    j = 0
    for i, x in enumerate(mm):
        tgt = min(len(rd), ((i + 1) * len(rd) + n - 1) // n)
        while j < tgt:
            out.append(rd[j]); j += 1
        out.append(x)
    out += rd[j:]
    return out

def vadd_imm(reg, delta):
    if delta == 0:
        return []
    return [f"v_add_u32 v{reg}, {delta & 0xffffffff:#x}, v{reg}"]

def lstamp(E, i):
    if OPT["ldst"]:
        E(f"s_memrealtime {sr(54 + 2 * i, 2)}")

def prologue(E):
    E("s_cmp_ge_u32 s2, 256")
    E("s_cbranch_scc1 L_end")
    lstamp(E, 0)
    if OPT["dbgspan"]:
        E("s_memrealtime s[94:95]")
    E(f"s_load_dwordx16 {sr(sKA, 16)}, s[0:1], 0")
    E(f"s_load_dwordx4 {sr(sKA + 16, 4)}, s[0:1], 64")
    E(f"s_load_dwordx2 {sr(sKA + 20, 2)}, s[0:1], 80")
    E(f"v_lshrrev_b32 v{T0}, 6, v0")
    E(f"v_and_b32 v{vLANE}, 63, v0")
    E(f"v_readfirstlane_b32 s{sWV}, v{T0}")
    E(f"s_and_b32 s{sT0}, s2, 7")
    E(f"s_lshr_b32 s{sJ}, s2, 3")
    E(f"s_lshr_b32 s{sBR}, s{sJ}, 4")
    E(f"s_xor_b32 s{sBR}, s{sBR}, 1")
    E(f"s_and_b32 s{sRB}, s{sT0}, 3")
    E(f"s_lshl_b32 s{sRB}, s{sRB}, 2")
    E(f"s_bfe_u32 s{sT1}, s{sJ}, 0x20002")
    E(f"s_add_u32 s{sRB}, s{sRB}, s{sT1}")
    E(f"s_lshr_b32 s{sHP}, s{sT0}, 2")
    E(f"s_lshl_b32 s{sHP}, s{sHP}, 2")
    E(f"s_and_b32 s{sT1}, s{sJ}, 3")
    E(f"s_add_u32 s{sHP}, s{sHP}, s{sT1}")
    E(f"s_mul_i32 s{sT1}, s{sJ}, 37")
    E(f"s_lshr_b32 s{sT1}, s{sT1}, 8")
    E(f"s_lshl_b32 s{sT}, s{sT0}, 2")
    E(f"s_add_u32 s{sT}, s{sT}, s{sT1}")
    E(f"s_mul_i32 s{sT1}, s{sT1}, 7")
    E(f"s_sub_u32 s{sCT}, s{sJ}, s{sT1}")
    E(f"s_lshr_b32 s{sRG}, s{sWV}, 1")
    E(f"s_and_b32 s{sHH}, s{sWV}, 1")
    E(f"v_and_b32 v{vL16}, 15, v{vLANE}")
    E(f"v_lshrrev_b32 v{vG}, 4, v{vLANE}")
    E(f"v_lshlrev_b32 v{vL16B}, 4, v{vLANE}")
    E(f"s_mov_b32 s{sG3}, 0")
    E(f"s_mov_b32 s{sG3+1}, 0xffff0000")
    E(f"s_mov_b32 s{sL2E}, {LOG2E:#x}")
    E(f"s_mov_b32 s{sSCL}, {SCALE:#x}")

def srds(E):
    E.force_wait(lgkm=0)
    K = sKA
    srd(E, SX, K + 0, 2048 * 896)
    E(f"s_cmp_eq_u32 s{sBR}, 0")
    E(f"s_cselect_b32 s{sT0}, s{K+2}, s{K+8}")
    E(f"s_cselect_b32 s{sT1}, s{K+3}, s{K+9}")
    srd(E, SW, sT0, 448 * 2688)

def srds2(E):
    K = sKA
    E(f"s_mov_b32 s{sT2}, 25088")
    E(f"s_cmp_eq_u32 s{sBR}, 0")
    E(f"s_cselect_b32 s{sT0}, s{K+14}, s{K+10}")
    E(f"s_cselect_b32 s{sT1}, s{K+15}, s{K+11}")
    E(f"s_cselect_b32 s{sT2}, 896, s{sT2}")
    E(f"s_mov_b32 s{SAUX}, s{sT0}")
    E(f"s_and_b32 s{SAUX+1}, s{sT1}, 0xffff")
    E(f"s_mov_b32 s{SAUX+2}, s{sT2}")
    E(f"s_mov_b32 s{SAUX+3}, 0x20000")
    srd(E, SWS, K + 20, WS_BYTES)
    srd(E, SWOA, K + 4, 448 * 896)
    srd(E, SWOB, K + 12, 448 * 896)
    srd(E, SOUT, K + 16, 2048 * 896)
    srd(E, SDBG, K + 18, 256)

def stamps_init(E):
    if OPT["stamps"]:
        stamp(E, 0)
        for i in range(1, 15):
            E(f"s_mov_b64 {sr(sSTAMP + 2 * i, 2)}, 0")

def prefetch(E, sJ=sJ):
    K = sKA
    SP = sMASK + 2
    t0, t1, t2, t3 = T0, T0 + 1, T0 + 2, T0 + 3
    Lx = newlabel("pfx"); Ld = newlabel("pfd")
    E(f"s_cmp_ge_u32 s{sWV}, 6")
    E.flush_haz()
    E(f"s_cbranch_scc1 {Lx}")
    E(f"s_cmp_lt_u32 s{sWV}, 3")
    E(f"s_cselect_b32 s{sT0}, s{K+2}, s{K+8}")
    E(f"s_cselect_b32 s{sT1}, s{K+3}, s{K+9}")
    E(f"s_cselect_b32 s{sT2}, 0, 3")
    srd(E, SP, sT0, 448 * 2688)
    E(f"s_sub_u32 s{sT2}, s{sWV}, s{sT2}")
    E(f"s_lshl_b32 s{sT2}, s{sT2}, 6")
    E(f"v_add_u32 v{t0}, s{sT2}, v{vLANE}")
    E(f"v_mul_u32_u24 v{t1}, 5462, v{t0}")
    E(f"v_lshrrev_b32 v{t1}, 16, v{t1}")
    E(f"v_mul_u32_u24 v{t2}, 12, v{t1}")
    E(f"v_sub_u32 v{t2}, v{t0}, v{t2}")
    E(f"v_lshrrev_b32 v{t3}, 2, v{t2}")
    E(f"v_and_b32 v{t2}, 3, v{t2}")
    E(f"s_mul_i32 s{sT2}, s{sJ}, 14")
    E(f"v_add_u32 v{t1}, s{sT2}, v{t1}")
    E(f"v_mul_u32_u24 v{t1}, 2688, v{t1}")
    E(f"v_mul_u32_u24 v{t3}, 896, v{t3}")
    E(f"v_lshl_add_u32 v{t2}, v{t2}, 7, v{t3}")
    E(f"s_lshr_b32 s{sT2}, s{sHP}, 2")
    E(f"s_mul_i32 s{sT2}, s{sT2}, 384")
    E(f"v_add3_u32 v{t1}, v{t1}, v{t2}, s{sT2}")
    E(f"v_mov_b32 v{t2}, 0x1000000")
    E(f"v_cmp_gt_u32 vcc, 168, v{t0}")
    E(f"v_cndmask_b32 v{t1}, v{t2}, v{t1}, vcc")
    E(f"buffer_load_dword v15, v{t1}, {sr(SP, 4)}, 0 offen")
    E.flush_haz()
    E(f"s_branch {Ld}")
    E.label(Lx)
    E(f"s_sub_u32 s{sT2}, s{sWV}, 6")
    E(f"s_lshl_b32 s{sT2}, s{sT2}, 6")
    E(f"v_add_u32 v{t0}, s{sT2}, v{vLANE}")
    E(f"s_mul_i32 s{sT2}, s{sJ}, 112")
    E(f"s_lshr_b32 s{sT1}, s{sRB}, 2")
    E(f"s_mul_i32 s{sT1}, s{sT1}, 3584")
    E(f"s_add_u32 s{sT2}, s{sT2}, s{sT1}")
    E(f"v_add_u32 v{t1}, s{sT2}, v{t0}")
    E(f"v_lshlrev_b32 v{t1}, 7, v{t1}")
    E(f"v_mov_b32 v{t2}, 0x1000000")
    E(f"v_cmp_gt_u32 vcc, 112, v{t0}")
    E(f"v_cndmask_b32 v{t1}, v{t2}, v{t1}, vcc")
    E(f"buffer_load_dword v15, v{t1}, {sr(SX, 4)}, 0 offen")
    E.label(Ld)
    E.vmq = [{"dst": set(), "tag": "PF"}]

def prefetch2(E, t0, t1, dst):
    Ld = newlabel("p2d"); Lb = newlabel("p2b")
    E(f"s_and_b32 s{sT0}, s{sWV}, 3")
    E(f"s_lshl_b32 s{sT0}, s{sT0}, 6")
    E(f"v_add_u32 v{t0}, s{sT0}, v{vLANE}")
    E(f"s_and_b32 s{sT0}, s{sJ}, 15")
    E(f"s_mul_i32 s{sT0}, s{sT0}, 196")
    E(f"v_add_u32 v{t1}, s{sT0}, v{t0}")
    E(f"v_lshlrev_b32 v{t1}, 7, v{t1}")
    E(f"v_cmp_gt_u32 vcc, 196, v{t0}")
    E(f"v_mov_b32 v{t0}, 0x1000000")
    E(f"v_cndmask_b32 v{t1}, v{t0}, v{t1}, vcc")
    E(f"s_cmp_ge_u32 s{sWV}, 4")
    E.flush_haz()
    E(f"s_cbranch_scc1 {Lb}")
    E(f"buffer_load_dword v{dst}, v{t1}, {sr(SWOA, 4)}, 0 offen")
    E(f"s_branch {Ld}")
    E.label(Lb)
    E(f"buffer_load_dword v{dst}, v{t1}, {sr(SWOB, 4)}, 0 offen")
    E.label(Ld)

def flag_store(E, val, t0, t1, base=0):
    if OPT["noflag"]:
        return
    if OPT["atom"]:
        E(f"s_lshl_b32 s{sT0}, s{sRB}, 2")
        E(f"v_mov_b32 v{t0}, s{sT0}")
        E(f"v_mov_b32 v{t1}, 1")
        E("s_mov_b64 exec, 1")
        E(f"buffer_atomic_add v{t1}, v{t0}, {sr(SDBG, 4)}, 0 offen offset:{base} sc1")
        E("s_mov_b64 exec, -1")
        return
    E(f"s_lshl_b32 s{sT0}, s{sRB}, 3")
    E(f"s_add_u32 s{sT0}, s{sT0}, s{sHP}")
    if base:
        E(f"s_add_u32 s{sT0}, s{sT0}, {base}")
    E(f"v_mov_b32 v{t0}, s{sT0}")
    E(f"v_mov_b32 v{t1}, {val}")
    E("s_mov_b64 exec, 1")
    E(f"buffer_store_byte v{t1}, v{t0}, {sr(SDBG, 4)}, 0 offen sc1")
    E("s_mov_b64 exec, -1")

def spin_tail(E, L, Ld, sleep=2):
    E(f"s_cbranch_vccz {Ld}")
    E(f"s_add_u32 s{sSPIN}, s{sSPIN}, 1")
    E(f"s_cmp_lt_u32 s{sSPIN}, {SPIN_MAX}")
    E(f"s_cbranch_scc0 {Ld}")
    E(f"s_sleep {sleep}")
    E(f"s_branch {L}")
    E.label(Ld)

def flags_wait_all(E, t0, t1, base=0):
    if OPT["noflag"]:
        return
    L = newlabel("fl"); Ld = newlabel("fld")
    E(f"v_and_b32 v{t0}, {15 if OPT['atom'] else 31}, v{vLANE}")
    E(f"v_lshlrev_b32 v{t0}, 2, v{t0}")
    E(f"s_mov_b32 s{sSPIN}, 0")
    E(f"s_mov_b32 s{sT1}, {'8' if OPT['atom'] else '0x01010101'}")
    E.label(L)
    E(f"buffer_load_dword v{t1}, v{t0}, {sr(SDBG, 4)}, 0 offen offset:{base} sc1")
    E.force_wait(vm=0)
    E(f"v_cmp_ne_u32 vcc, s{sT1}, v{t1}")
    spin_tail(E, L, Ld, sleep=40)

def check_regs(E, regs, tmp):
    rs = list(regs)
    E(f"v_max_u32 v{tmp}, v{rs[0]}, v{rs[1]}")
    rest = rs[2:]
    while len(rest) >= 2:
        E(f"v_max3_u32 v{tmp}, v{tmp}, v{rest[0]}, v{rest[1]}"); rest = rest[2:]
    if rest:
        E(f"v_max_u32 v{tmp}, v{tmp}, v{rest[0]}")
    E(f"v_cmp_eq_u32 vcc, -1, v{tmp}")

def poll_loop(E, loads, regs, name, tmp, pre_issued=False):
    L = newlabel(name); Lc = newlabel(name + "c"); Ld = newlabel(name + "d")
    E(f"s_mov_b32 s{sSPIN}, 0")
    if pre_issued:
        E.flush_haz()
        E(f"s_branch {Lc}")
    E.label(L)
    E(loads)
    E.label(Lc)
    E.force_wait(vm=0)
    check_regs(E, regs, tmp)
    spin_tail(E, L, Ld, sleep=OPT["psleep"])

def cons_setup(E, br):
    t0, t1, t2 = T0, T0 + 1, T0 + 2
    E(f"v_bfe_u32 v{t0}, v{vLANE}, 2, 2")
    E(f"v_and_b32 v{t1}, 3, v{vLANE}")
    E(f"v_lshlrev_b32 v{t2}, 3, v{vG}")
    E(f"v_lshl_add_u32 v{t2}, v{t0}, 1, v{t2}")
    E(f"v_mul_u32_u24 v{t2}, 112, v{t2}")
    E(f"v_lshl_add_u32 v{vTR}, v{t1}, 3, v{t2}")
    E(f"s_mul_i32 s{sT0}, s{sHH}, 56")
    E(f"v_add_u32 v{vTR}, s{sT0}, v{vTR}")
    E(f"v_lshrrev_b32 v{t0}, 1, v{vL16}")
    E(f"v_xor_b32 v{t0}, v{t0}, v{vG}")
    E(f"v_lshlrev_b32 v{t0}, 4, v{t0}")
    E(f"v_lshl_add_u32 v{t0}, v{vL16}, 7, v{t0}")
    E(f"s_lshl_b32 s{sT0}, s{sRG}, 12")
    E(f"v_add_u32 v{vXR}, s{sT0}, v{t0}")
    E(f"v_xor_b32 v{vXR+1}, 64, v{vXR}")
    E(f"s_lshl_b32 s{sT0}, s{sRB}, 3")
    E(f"s_lshl_b32 s{sT1}, s{sRG}, 1")
    E(f"s_add_u32 s{sT0}, s{sT0}, s{sT1}")
    E(f"s_lshl_b32 s{sT0}, s{sT0}, 4")
    E(f"s_lshl_b32 s{sT1}, s{sHP}, 1")
    E(f"s_add_u32 s{sT0}, s{sT0}, s{sT1}")
    E(f"s_add_u32 s{sT0}, s{sT0}, s{sHH}")
    E(f"s_lshl_b32 s{sT0}, s{sT0}, 10")
    E(f"s_lshl_b32 s{sT1}, s{sBR}, 21")
    E(f"s_add_u32 s{sT0}, s{sT0}, s{sT1}")
    E(f"v_add_u32 v{vOOFF}, s{sT0}, v{vL16B}")
    E(f"s_mov_b32 s{s16K}, 16384")

def ostore(reg, u):
    return f"buffer_store_dwordx4 {vr(reg, 4)}, v{vOOFF}, {sr(SWS, 4)}, {'0' if u == 0 else 's' + str(s16K)} offen sc1"

class Cons:
    def __init__(self, E, br, stages, buf0, bufsz, nbuf, halo=False, HACC=None):
        self.E, self.br, self.stages = E, br, stages
        self.buf0, self.bufsz, self.nbuf, self.halo, self.HACC = buf0, bufsz, nbuf, halo, HACC
        self.cur_base = 0
        self.ks = 0; self.pending = []
        self.nbar = 0
        self.prebar = None

    def parts(self, s, tt, buf):
        st = self.stages[s]; m = st["m"]; t = 2 * m + tt
        first = t == 0
        B0 = self.buf0 + self.bufsz * buf
        rd, mm = [], []
        xr = [B0, B0 + 4]
        for u in range(2):
            rd.append(f"ds_read_b128 {vr(xr[u], 4)}, v{vXR + tt} offset:{2048 * u}")
        wb = B0 + 8
        if self.halo:
            hx = B0 + 8; wb = B0 + 12
            rd.append(f"ds_read_b128 {vr(hx, 4)}, v{vXR + tt} offset:16384")
        elif self.br == "A":
            wb = B0 + 12
        for k, seg in enumerate(st["segs"]):
            si = SEGI[seg]
            tr = not (self.br == "A" and seg == "V")
            for c in range(2):
                wf = wb + 8 * k + 4 * c
                for j in range(2):
                    rd.append(f"ds_read_b64_tr_b16 {vr(wf + 2 * j, 2)}, v{vTR} offset:{woff(self.br, k) + 3584 * tt + 112 * j + 32 * c}")
                for u in range(2):
                    acc = ACC[si] + 8 * u + 4 * c
                    a_, b_ = (vr(wf, 4), vr(xr[u], 4)) if tr else (vr(xr[u], 4), vr(wf, 4))
                    mm.append(f"v_mfma_f32_16x16x32_bf16 {vr(acc, 4)}, {a_}, {b_}, {'0' if first else vr(acc, 4)}")
                if self.halo and seg != "Q":
                    acc = self.HACC + 8 * si + 4 * c
                    a_, b_ = (vr(wf, 4), vr(hx, 4)) if tr else (vr(hx, 4), vr(wf, 4))
                    mm.append(f"v_mfma_f32_16x16x32_bf16 {vr(acc, 4)}, {a_}, {b_}, {'0' if first else vr(acc, 4)}")
        if OPT["no_comp"] == 1:
            return [], []
        if OPT["no_comp"] == 2:
            return rd, []
        if OPT["no_comp"] == 3:
            return [], mm
        return rd, mm

    def run(self, s0, s1):
        E = self.E
        prev = []
        for ks in range(2 * s0, 2 * s1 + 2):
            s, tt = divmod(ks, 2)
            pre = []
            if tt == 0:
                nlead = min(OPT["lead"], len(prev))
                E(prev[:nlead]); prev = prev[nlead:]
                if self.prebar:
                    self.prebar(E, s)
                E.barrier(lgkm0=False)
                self.nbar += 1
                if self.nbar <= 14:
                    stamp(E, self.nbar, fine=True)
                if OPT["stamps"] and OPT["fine"] and self.nbar in (2, 7):
                    E(f"s_memtime {sr(sSTAMP + 2 * (12 if self.nbar == 2 else 13), 2)}")
                d = self.stages[s]["base"] - self.cur_base
                self.cur_base = self.stages[s]["base"]
                for r in (vXR, vXR + 1, vTR):
                    E(vadd_imm(r, d))
            rd, mm = self.parts(s, tt, ks % 2)
            if prev:
                E(interleave_front(prev, rd))
            else:
                E(rd)
            prev = mm
        E(prev)

vL2E = 162
ONES = 164
def phi_path(si, outreg, tmps, WP):
    streams = []
    for u in range(2):
        T = tmps[u]
        P = ACC[si] + 8 * u
        op, pk, Ep, Em = T, T, P, T + 4
        mx, mn, mx1, mn1 = T + 12, T + 13, T + 14, T + 15
        t = T
        O = outreg + 8 * u
        o = []
        o += pack_op(P, op)
        for ft in range(2):
            o.append(f"v_mfma_f32_16x16x32_bf16 {vr(P + 4 * ft, 4)}, {vr(WP + 4 * ft, 4)}, {vr(op, 4)}, 0")
        o += round_pairs(P, P, 8, pk)
        o.append(f"v_max3_f32 v{mx}, v{P}, v{P+1}, v{P+2}")
        o.append(f"v_min3_f32 v{mn}, v{P}, v{P+1}, v{P+2}")
        o.append(f"v_max3_f32 v{mx}, v{mx}, v{P+3}, v{P+4}")
        o.append(f"v_min3_f32 v{mn}, v{mn}, v{P+3}, v{P+4}")
        o.append(f"v_max3_f32 v{mx}, v{mx}, v{P+5}, v{P+6}")
        o.append(f"v_min3_f32 v{mn}, v{mn}, v{P+5}, v{P+6}")
        o.append(f"v_max_f32 v{mx}, v{mx}, v{P+7}")
        o.append(f"v_max_f32 v{mn}, -v{mn}, -v{P+7}")
        o += dual_reduce(mx, mn, t, "v_max_f32")
        o.append(f"v_mul_f32 v{mx}, s{sL2E}, v{mx}")
        o.append(f"v_mul_f32 v{mn}, s{sL2E}, v{mn}")
        o.append(f"v_add_f32 v{mx1}, v{mx}, v{vPADB}")
        o.append(f"v_add_f32 v{mn1}, v{mn}, v{vPADB}")
        for i in (range(8) if not OPT["pkfma"] else []):
            o.append(f"v_fma_f32 v{Em+i}, -v{P+i}, s{sL2E}, -v{mn if i < 4 else mn1}")
            o.append(f"v_fma_f32 v{Ep+i}, v{P+i}, s{sL2E}, -v{mx if i < 4 else mx1}")
        for i in (range(0, 8, 2) if OPT["pkfma"] else []):
            mm_ = vr(mx if i < 4 else mx1, 2)
            if OPT["pkfma"] == 2:
                o.append(f"v_pk_fma_f32 {vr(Em+i, 2)}, {vr(P+i, 2)}, {vr(vL2E, 2)}, {mm_} op_sel:[0,0,1] op_sel_hi:[1,1,1] neg_lo:[1,0,1] neg_hi:[1,0,1]")
                o.append(f"v_pk_fma_f32 {vr(Ep+i, 2)}, {vr(P+i, 2)}, {vr(vL2E, 2)}, {mm_} op_sel_hi:[1,1,0] neg_lo:[0,0,1] neg_hi:[0,0,1]")
                continue
            o.append(f"v_pk_fma_f32 {vr(Em+i, 2)}, {vr(P+i, 2)}, {sr(sL2E, 2)}, {mm_} op_sel:[0,0,1] op_sel_hi:[1,0,1] neg_lo:[1,0,1] neg_hi:[1,0,1]")
            o.append(f"v_pk_fma_f32 {vr(Ep+i, 2)}, {vr(P+i, 2)}, {sr(sL2E, 2)}, {mm_} op_sel_hi:[1,0,0] neg_lo:[0,0,1] neg_hi:[0,0,1]")
        for i in range(8):
            o.append(f"v_exp_f32 v{Ep+i}, v{Ep+i}")
            o.append(f"v_exp_f32 v{Em+i}, v{Em+i}")
        if OPT["mfsum"]:
            for i in range(4):
                o.append(f"v_cvt_pk_bf16_f32 v{O + i}, v{Ep + 2 * i}, v{Ep + 2 * i + 1}")
                o.append(f"v_cvt_pk_bf16_f32 v{O + 4 + i}, v{Em + 2 * i}, v{Em + 2 * i + 1}")
            SP, SM = T, T + 12
            o.append(f"v_mfma_f32_16x16x32_bf16 {vr(SP, 4)}, {vr(ONES, 4)}, {vr(O, 4)}, 0")
            o.append(f"v_mfma_f32_16x16x32_bf16 {vr(SM, 4)}, {vr(ONES, 4)}, {vr(O + 4, 4)}, 0")
            sp, sm = SP, SM
        else:
            sp, sm = mx1, mn1
            o.append(f"v_add_f32 v{sp}, v{Ep}, v{Ep+1}")
            o.append(f"v_add_f32 v{sm}, v{Em}, v{Em+1}")
            for i in range(2, 8):
                o.append(f"v_add_f32 v{sp}, v{sp}, v{Ep+i}")
                o.append(f"v_add_f32 v{sm}, v{sm}, v{Em+i}")
            o += dual_reduce(sp, sm, t, "v_add_f32")
        o.append(f"v_rcp_f32 v{sp}, v{sp}")
        o.append(f"v_rcp_f32 v{sm}, v{sm}")
        for i in range(8):
            o.append(f"v_mul_f32 v{Ep+i}, v{Ep+i}, v{sp}")
            o.append(f"v_mul_f32 v{Em+i}, v{Em+i}, v{sm}")
        for i in range(4):
            o.append(f"v_cvt_pk_bf16_f32 v{O + i}, v{Ep + 2 * i}, v{Ep + 2 * i + 1}")
            o.append(f"v_cvt_pk_bf16_f32 v{O + 4 + i}, v{Em + 2 * i}, v{Em + 2 * i + 1}")
        streams.append(o)
    return interleave(streams[0], streams[1])

def cons_B(E):
    WP, PHI, BUF = 64, 72, 88
    cons_setup(E, "B")
    srds(E); srds2(E)
    if OPT["sbar"]:
        E.barrier()
    if OPT["pf"] and not OPT["pfA"]:
        prefetch(E)
    stamps_init(E)
    ones = PHI
    for i in range(4):
        E(f"v_mov_b32 v{ones + i}, -1")
        E(f"v_mov_b32 v{ONES + i}, 0x3f803f80")
    E(f"v_mov_b32 v{vL2E}, s{sL2E}"); E(f"v_mov_b32 v{vL2E + 1}, s{sL2E}")
    vKV = 14
    E(f"s_lshl_b32 s{sT0}, s{sHP}, 4")
    E(f"s_add_u32 s{sT0}, s{sT0}, s{sRB}")
    E(f"s_lshl_b32 s{sT0}, s{sT0}, 3")
    E(f"s_add_u32 s{sT0}, s{sT0}, s{sWV}")
    E(f"s_lshl_b32 s{sT0}, s{sT0}, 10")
    E(f"s_add_u32 s{sT0}, s{sT0}, {WS_KVP}")
    E(f"v_add_u32 v{vKV}, s{sT0}, v{vL16B}")
    E(f"v_mov_b32 v{vPADB}, 0")
    E(f"v_mov_b32 v{T0}, 0x7149f2ca")
    E(f"v_cndmask_b32 v{vPADB}, v{vPADB}, v{T0}, {sr(sG3, 2)}")
    E(f"s_lshl_b32 s{sT2}, s{sRG}, 5")
    E(f"v_add_u32 v{vSL}, s{sT2}, v{vL16}")
    E(f"v_mul_u32_u24 v{vA0}, {PHI_STRIDE}, v{vSL}")
    E(f"v_lshl_add_u32 v{vA0}, v{vG}, 3, v{vA0}")
    E(f"s_lshl_b32 s{sT2}, s{sHH}, 7")
    E(f"v_add_u32 v{vA0}, s{sT2}, v{vA0}")
    E(f"v_mul_u32_u24 v{vA1}, {V_STRIDE}, v{vSL}")
    E(f"v_lshl_add_u32 v{vA1}, v{vG}, 3, v{vA1}")
    E(f"s_mul_i32 s{sT0}, s{sHH}, {VB[1] - VB[0]}")
    E(f"s_add_u32 s{sT0}, s{sT0}, {VB[0]}")
    E(f"v_add_u32 v{vA1}, s{sT0}, v{vA1}")
    t0, t1 = T0, T0 + 1
    E(f"v_and_b32 v{t0}, 1, v{vG}")
    E(f"v_lshlrev_b32 v{t0}, 4, v{t0}")
    E(f"v_bfe_u32 v{t1}, v{vLANE}, 2, 2")
    E(f"v_lshl_add_u32 v{t0}, v{t1}, 2, v{t0}")
    E(f"v_lshrrev_b32 v{t1}, 1, v{vG}")
    E(f"v_lshl_add_u32 v{t0}, v{t1}, 1, v{t0}")
    E(f"v_and_b32 v{t1}, 3, v{vLANE}")
    E(f"v_lshlrev_b32 v{t1}, 3, v{t1}")
    E(f"s_lshr_b32 s{sT0}, s{sWV}, 1")
    E(f"s_lshl_b32 s{sT0}, s{sT0}, 6")
    E(f"v_mul_u32_u24 v{vA2}, {PHI_STRIDE}, v{t0}")
    E(f"v_add3_u32 v{vA2}, v{vA2}, v{t1}, s{sT0}")
    E(f"s_lshr_b32 s{sT0}, s{sWV}, 2")
    E(f"s_mul_i32 s{sT0}, s{sT0}, {VB[1] - VB[0]}")
    E(f"s_add_u32 s{sT0}, s{sT0}, {VB[0]}")
    E(f"s_and_b32 s{sT1}, s{sWV}, 1")
    E(f"s_lshl_b32 s{sT1}, s{sT1}, 5")
    E(f"s_add_u32 s{sT0}, s{sT0}, s{sT1}")
    E(f"v_mul_u32_u24 v{vA3}, {V_STRIDE}, v{t0}")
    E(f"v_add3_u32 v{vA3}, v{vA3}, v{t1}, s{sT0}")
    w1, w2 = T0 + 8, T0 + 9
    E(f"v_bfe_u32 v{t0}, v{vLANE}, 2, 2")
    E(f"v_lshl_add_u32 v{t0}, v{vG}, 2, v{t0}")
    E(f"v_mul_u32_u24 v{t0}, 56, v{t0}")
    E(f"s_mul_i32 s{sT2}, s{sHH}, 1568")
    E(f"s_add_u32 s{sT2}, s{sT2}, {B_WPH}")
    E(f"v_add_u32 v{t0}, s{sT2}, v{t0}")
    E(f"v_and_b32 v{t1}, 3, v{vLANE}")
    E(f"v_min_u32 v{w2}, 2, v{t1}")
    E(f"v_lshl_add_u32 v{w1}, v{t1}, 3, v{t0}")
    E(f"v_lshl_add_u32 v{w2}, v{w2}, 3, v{t0}")
    C = Cons(E, "B", B_STAGES, BUF, 32, 2)
    def prebar(E, s):
        if s == 3:
            for ft in range(2):
                for j in range(2):
                    E(f"ds_read_b64_tr_b16 {vr(WP + 4 * ft + 2 * j, 2)}, v{w1 if ft == 0 else w2} offset:{896 * j + 32 * ft}")
            for ft in range(2):
                for i in (2, 3):
                    r = WP + 4 * ft + i
                    E(f"v_cndmask_b32 v{r}, v{r}, 0, {sr(sG3, 2)}")
    C.prebar = prebar
    C.run(0, 6)
    stamp(E, 1)
    SCR = BUF + 32
    vp0 = T0
    F = [f"v_mov_b32 v{vp0 + 8}, 0x3f80"]
    for u in range(2):
        vp = vp0 + 4 * u
        F += pack_op(ACC[1] + 8 * u, vp, zero_pad=False)
        F.append(f"v_cndmask_b32 v{vp + 2}, v{vp + 2}, v{vp0 + 8}, {sr(sG3, 2)}")
        F.append(f"v_cndmask_b32 v{vp + 3}, v{vp + 3}, 0, {sr(sG3, 2)}")
    for u in range(2):
        for dt in range(2):
            F.append(f"ds_write_b64 v{vA1}, {vr(vp0 + 4 * u + 2 * dt, 2)} offset:{16 * V_STRIDE * u + 32 * dt}")
    body = phi_path(0, PHI, [SCR, SCR + 16], WP)
    E(body[:16]); E(F); E(body[16:])
    for u in range(2):
        for sg in range(2):
            for ft in range(2):
                E(f"ds_write_b64 v{vA0}, {vr(PHI + 8 * u + 4 * sg + 2 * ft, 2)} offset:{PHI_BASE + 16 * PHI_STRIDE * u + 64 * sg + 32 * ft}")
    stamp(E, 3)
    E.barrier()
    KA, KB_, KD = ACC[0], SCR, SCR + 16
    for ks in range(4):
        for j in range(2):
            E(f"ds_read_b64_tr_b16 {vr(KB_ + 4 * ks + 2 * j, 2)}, v{vA3} offset:{(32 * ks + j) * V_STRIDE}")
        for ft in range(2):
            for j in range(2):
                E(f"ds_read_b64_tr_b16 {vr(KA + 8 * ks + 4 * ft + 2 * j, 2)}, v{vA2} offset:{PHI_BASE + (32 * ks + j) * PHI_STRIDE + 32 * ft}")
        if ks >= 1:
            for ft in range(2):
                cin = "0" if ks == 1 else vr(KD + 4 * ft, 4)
                E(f"v_mfma_f32_16x16x32_bf16 {vr(KD + 4 * ft, 4)}, {vr(KA + 8 * (ks - 1) + 4 * ft, 4)}, {vr(KB_ + 4 * (ks - 1), 4)}, {cin}")
    for ft in range(2):
        E(f"v_mfma_f32_16x16x32_bf16 {vr(KD + 4 * ft, 4)}, {vr(KA + 24 + 4 * ft, 4)}, {vr(KB_ + 12, 4)}, {vr(KD + 4 * ft, 4)}")
    kp = T0
    E(pack_op(KD, kp, zero_pad=False))
    for i in range(4):
        E(f"v_min_u32 v{kp + i}, -2, v{kp + i}")
    E(f"buffer_store_dwordx4 {vr(kp, 4)}, v{vKV}, {sr(SWS, 4)}, 0 offen sc1")
    stamp(E, 4)
    E.barrier()
    G = BUF
    E(f"s_lshl_b32 s{sT0}, s{sHP}, 17")
    E(f"s_lshl_b32 s{sT1}, s{sWV}, 10")
    E(f"s_add_u32 s{sT0}, s{sT0}, s{sT1}")
    E(f"s_add_u32 s{sT0}, s{sT0}, {WS_KVP}")
    E(f"v_add_u32 v{vA1}, s{sT0}, v{vL16B}")
    loads = []
    for p in range(16):
        loads.append(f"s_mov_b32 s{sT0}, {8192 * p}")
        loads.append(f"buffer_load_dwordx4 {vr(G + 4 * p, 4)}, v{vA1}, {sr(SWS, 4)}, s{sT0} offen sc1")
    body = phi_path(2, PHI, [ACC[0], ACC[1]], WP)
    h = len(body) * OPT["gat"] // 100
    E(body[:h])
    E.barrier()
    stamp(E, 5)
    E(loads)
    E(body[h:])
    E(p3_setup(E))
    stamp(E, 6)
    SEL = T0 + 2
    SUM = ACC[0]
    t0_, t1_ = ACC[0] + 8, ACC[0] + 9
    E(f"v_lshrrev_b32 v{t0_}, 2, v{vL16}")
    E(f"v_cmp_eq_u32 vcc, v{t0_}, v{vG}")
    E(f"v_and_b32 v{t0_}, 1, v{vL16}")
    E(f"v_lshlrev_b32 v{t0_}, 4, v{t0_}")
    E(f"v_mov_b32 v{t1_}, 0x3f80")
    E(f"v_lshlrev_b32 v{t0_}, v{t0_}, v{t1_}")
    E(f"v_cndmask_b32 v{t0_}, 0, v{t0_}, vcc")
    E(f"v_and_b32 v{t1_}, 2, v{vL16}")
    E(f"v_cmp_eq_u32 vcc, 0, v{t1_}")
    for r in (SEL, SEL + 1, SEL + 4, SEL + 5):
        E(f"v_mov_b32 v{r}, 0")
    E(f"v_cndmask_b32 v{SEL + 2}, 0, v{t0_}, vcc")
    E(f"v_cndmask_b32 v{SEL + 3}, v{t0_}, 0, vcc")
    L = newlabel("kv"); Lc = newlabel("kvc"); Ld = newlabel("kvd")
    E(f"s_mov_b32 s{sSPIN}, 0")
    saved = list(E.vmq)
    E.flush_haz()
    E(f"s_branch {Lc}")
    E.label(L)
    E.vmq = []
    E(loads)
    E.label(Lc)
    chk = T0
    for p in range(16):
        g4 = G + 4 * p
        E(f"v_mfma_f32_16x16x32_bf16 {vr(SUM, 4)}, {vr(SEL + 2, 4)}, {vr(g4, 4)}, {'0' if p == 0 else vr(SUM, 4)}")
        E(f"v_mfma_f32_16x16x32_bf16 {vr(SUM + 4, 4)}, {vr(SEL, 4)}, {vr(g4, 4)}, {'0' if p == 0 else vr(SUM + 4, 4)}")
        if p == 0:
            E(f"v_max_u32 v{chk}, v{g4}, v{g4 + 1}")
        else:
            E(f"v_max3_u32 v{chk}, v{chk}, v{g4}, v{g4 + 1}")
        E(f"v_max3_u32 v{chk}, v{chk}, v{g4 + 2}, v{g4 + 3}")
    E(f"v_cmp_eq_u32 vcc, -1, v{chk}")
    spin_tail(E, L, Ld)
    stamp(E, 7)
    kf = ACC[0] + 8
    E(pack_op(SUM, kf, zero_pad=False))
    E(f"s_lshl_b32 s{sT0}, s{sWV}, 10")
    E(f"s_add_u32 s{sT0}, s{sT0}, {KVF}")
    E(f"v_add_u32 v{vA1}, s{sT0}, v{vL16B}")
    E(f"ds_write_b128 v{vA1}, {vr(kf, 4)}")
    E(f"s_lshl_b32 s{sT0}, s{sHH}, 12")
    E(f"s_add_u32 s{sT0}, s{sT0}, {KVF}")
    E(f"v_add_u32 v{vA1}, s{sT0}, v{vL16B}")
    E(f"v_lshlrev_b32 v{vA2}, 8, v{vG}")
    E(f"s_add_u32 s{sT0}, s{sT0}, {12 * 16}")
    E(f"v_add_u32 v{vA2}, s{sT0}, v{vA2}")
    E.barrier()
    KF, ZF, NUM = BUF, BUF + 16, BUF + 24
    for w in range(4):
        E(f"ds_read_b128 {vr(KF + 4 * w, 4)}, v{vA1} offset:{1024 * w}")
    for sg in range(2):
        E(f"ds_read_b128 {vr(ZF + 4 * sg, 4)}, v{vA2} offset:{1024 * (2 * sg + 1)}")
    pre_a = p3_loads(0)[0]
    for u in range(2):
        for dt in range(2):
            for sg in range(2):
                d = NUM + 12 * u + 4 * dt
                E(f"v_mfma_f32_16x16x32_bf16 {vr(d, 4)}, {vr(KF + 4 * (2 * sg + dt), 4)}, {vr(PHI + 8 * u + 4 * sg, 4)}, {'0' if sg == 0 else vr(d, 4)}")
        for sg in range(2):
            d = NUM + 12 * u + 8
            E(f"v_mfma_f32_16x16x32_bf16 {vr(d, 4)}, {vr(ZF + 4 * sg, 4)}, {vr(PHI + 8 * u + 4 * sg, 4)}, {'0' if sg == 0 else vr(d, 4)}")
    if OPT["prea"] == 0:
        E(pre_a)
    st = []
    for u in range(2):
        n = NUM + 12 * u; dn = n + 8
        t = BUF + 48 + 8 * u
        o = []
        o += round_pairs(n, n, 8, t)
        o.append(f"v_cvt_pk_bf16_f32 v{t + 4}, v{dn}, v{dn}")
        o.append(f"v_lshlrev_b32 v{dn}, 16, v{t + 4}")
        o.append(f"v_add_f32 v{dn}, 0x358637bd, v{dn}")
        o.append(f"v_cvt_pk_bf16_f32 v{t + 4}, v{dn}, v{dn}")
        o.append(f"v_lshlrev_b32 v{dn}, 16, v{t + 4}")
        o.append(f"v_rcp_f32 v{dn}, v{dn}")
        for i in range(8):
            o.append(f"v_mul_f32 v{n + i}, v{n + i}, v{dn}")
        o += pack_op(n, t)
        for i in range(4):
            o.append(f"v_min_u32 v{t + i}, -2, v{t + i}")
        o.append(ostore(t, u))
        st.append(o)
    E(interleave(st[0], st[1]))
    if OPT["prea"] == 1:
        E(pre_a)
    stamp(E, 8)

def att_masks():
    ms = []
    for tile in range(2):
        for i in range(4):
            m = 0
            for lane in range(64):
                q, g = lane & 15, lane >> 4
                d = q - (4 * g + i) + (16 if tile == 0 else 0)
                if 0 <= d <= 14 and d % 2 == 0:
                    m |= 1 << lane
            ms.append(m)
    return ms

def cons_A(E, halo):
    HACC, BUF = 64, 80
    cons_setup(E, "A")
    srds(E); srds2(E)
    ones = T0 + 4
    for i in range(4):
        E(f"v_mov_b32 v{ones + i}, -1")
    E(f"s_lshl_b32 s{sT0}, s{sHP}, 4")
    E(f"s_add_u32 s{sT0}, s{sT0}, s{sRB}")
    E(f"s_lshl_b32 s{sT0}, s{sT0}, 3")
    E(f"s_add_u32 s{sT0}, s{sT0}, s{sWV}")
    E(f"s_lshl_b32 s{sT0}, s{sT0}, 10")
    E(f"s_add_u32 s{sT0}, s{sT0}, {WS_KVP}")
    E(f"v_add_u32 v{vA0}, s{sT0}, v{vL16B}")
    E(f"buffer_store_dwordx4 {vr(ones, 4)}, v{vA0}, {sr(SWS, 4)}, 0 offen sc1")
    if OPT["sbar"]:
        E.barrier()
    if OPT["pf"] and not OPT["pfA"]:
        prefetch(E)
    elif OPT["pf"]:
        E(f"s_and_b32 s{sMP}, s{sJ}, 15")
        prefetch(E, sMP)
        E(f"s_add_u32 s{sMP}, s{sMP}, 16")
        prefetch(E, sMP)
    stamps_init(E)
    ms = att_masks()
    for i, m in enumerate(ms):
        E(f"s_mov_b32 s{sMASK + 2 * i}, {m & 0xffffffff:#x}")
        E(f"s_mov_b32 s{sMASK + 2 * i + 1}, {m >> 32:#x}")
    E(f"s_lshl_b32 s{sT0}, s{sWV}, 11")
    E(f"s_add_u32 s{sT0}, s{sT0}, {A_EXCH}")
    E(f"v_add_u32 v{vA1}, s{sT0}, v{vL16B}")
    E(f"v_lshl_add_u32 v{vA2}, v{vLANE}, 3, s{sT0}")
    C = Cons(E, "A", A_STAGES, BUF, 36, 2, halo=halo, HACC=HACC)
    def fl(E, base):
        Lf = newlabel("fs")
        E(f"s_cmp_lg_u32 s{sWV}, 0")
        E.flush_haz()
        E(f"s_cbranch_scc1 {Lf}")
        flag_store(E, 1, T0, T0 + 1, base)
        E.label(Lf)
    def prebar(E, s):
        if s == OPT["fk"]:
            E.force_wait(vm=0 if OPT["fk"] else 1)
        if s == OPT["fk"] + 1 and halo:
            fl(E, 0)
        if s in (1, 2):
            E(f"s_mov_b32 s{sT0}, {WS_OB + 16384 * (s - 1)}")
            E(f"buffer_store_dwordx4 {vr(ones, 4)}, v{vOOFF}, {sr(SWS, 4)}, s{sT0} offen sc1")
            E(ostore(ones, s - 1))
        if s == 3 and OPT["pf2"]:
            sv = list(E.vmq); prefetch2(E, T0, T0 + 1, 15); E.vmq = sv
        if s == 5:
            E.force_wait(vm=0)
        if s == 6 and halo:
            fl(E, 128)
    C.prebar = prebar
    C.run(0, 6)
    stamp(E, 1)
    KT, VV = BUF, BUF + 12
    for u in range(2):
        E(pack_op(ACC[0] + 8 * u, KT + 4 + 4 * u))
        for dt in range(2):
            a = ACC[1] + 8 * u + 4 * dt
            d = VV + 8 * u + 4 * dt + 2
            E(f"v_cvt_pk_bf16_f32 v{d}, v{a}, v{a + 1}")
            E(f"v_cvt_pk_bf16_f32 v{d + 1}, v{a + 2}, v{a + 3}")
            if u == 0:
                E(f"v_mov_b32 v{d + 6}, v{d}")
                E(f"v_mov_b32 v{d + 7}, v{d + 1}")
    E.barrier()
    E(f"ds_write_b128 v{vA1}, {vr(KT + 8, 4)} offset:4096")
    for dt in range(2):
        E(f"ds_write_b64 v{vA2}, {vr(VV + 8 + 4 * dt + 2, 2)} offset:{4096 + 1024 + 512 * dt}")
    if halo:
        E(pack_op(HACC, KT))
        for dt in range(2):
            a = HACC + 8 + 4 * dt
            d = VV + 4 * dt
            E(f"v_cvt_pk_bf16_f32 v{d}, v{a}, v{a + 1}")
            E(f"v_cvt_pk_bf16_f32 v{d + 1}, v{a + 2}, v{a + 3}")
        E(f"s_cmp_eq_u32 s{sRB}, 0")
        E(f"s_cselect_b64 {sr(sMP, 2)}, 0, -1")
    T = BUF + 28
    NEG = T0 + 8
    E(f"v_mov_b32 v{NEG}, 0xf149f2ca")
    MX = [T0, T0 + 1]; SM = [T0 + 2, T0 + 3]; tt = T0 + 4
    pre0, pre, mid, post = [], [], [], []
    for u in range(2):
        B_ = T + 20 * u
        qo, L, pk, P = B_, B_ + 4, B_ + 12, B_ + 16
        O = ACC[1] + 8 * u
        pre0 += pack_op(ACC[2] + 8 * u, qo)
        o = []
        o.append(f"v_mfma_f32_16x16x32_bf16 {vr(L + 4, 4)}, {vr(KT + 4 * u + 4, 4)}, {vr(qo, 4)}, 0")
        o.append(f"v_mfma_f32_16x16x32_bf16 {vr(L, 4)}, {vr(KT + 4 * u, 4)}, {vr(qo, 4)}, 0")
        o += round_pairs(L, L, 8, pk)
        for i in range(8):
            o.append(f"v_mul_f32 v{L + i}, s{sSCL}, v{L + i}")
        o += round_pairs(L, L, 8, pk)
        for i in range(8):
            o.append(f"v_cndmask_b32 v{L + i}, v{NEG}, v{L + i}, {sr(sMASK + 2 * i, 2)}")
        if halo and u == 0:
            for i in range(4):
                o.append(f"v_cndmask_b32 v{L + i}, v{NEG}, v{L + i}, {sr(sMP, 2)}")
        mx = MX[u]
        o.append(f"v_max3_f32 v{mx}, v{L}, v{L+1}, v{L+2}")
        o.append(f"v_max3_f32 v{mx}, v{mx}, v{L+3}, v{L+4}")
        o.append(f"v_max3_f32 v{mx}, v{mx}, v{L+5}, v{L+6}")
        o.append(f"v_max_f32 v{mx}, v{mx}, v{L+7}")
        pre.append(o)
        o = []
        o.append(f"v_mul_f32 v{mx}, s{sL2E}, v{mx}")
        for i in range(8):
            o.append(f"v_fma_f32 v{L + i}, v{L + i}, s{sL2E}, -v{mx}")
        for i in range(8):
            o.append(f"v_exp_f32 v{L + i}, v{L + i}")
        sm = SM[u]
        o.append(f"v_add_f32 v{sm}, v{L}, v{L + 1}")
        for i in range(2, 8):
            o.append(f"v_add_f32 v{sm}, v{sm}, v{L + i}")
        mid.append(o)
        o = []
        o.append(f"v_rcp_f32 v{sm}, v{sm}")
        for i in range(8):
            o.append(f"v_mul_f32 v{L + i}, v{L + i}, v{sm}")
        for i in range(4):
            o.append(f"v_cvt_pk_bf16_f32 v{P + i}, v{L + 2 * i}, v{L + 2 * i + 1}")
        for dt in range(2):
            o.append(f"v_mfma_f32_16x16x32_bf16 {vr(O + 4 * dt, 4)}, {vr(VV + 8 * u + 4 * dt, 4)}, {vr(P, 4)}, 0")
        o += pack_op(O, qo)
        for i in range(4):
            o.append(f"v_min_u32 v{qo + i}, -2, v{qo + i}")
        o.append(ostore(qo, u))
        post.append(o)
    E(pre0)
    E.barrier()
    if not halo:
        E(f"ds_read_b128 {vr(KT, 4)}, v{vA1}")
        for dt in range(2):
            E(f"ds_read_b64 {vr(VV + 4 * dt, 2)}, v{vA2} offset:{1024 + 512 * dt}")
    E(interleave(pre[1], pre[0]))
    E(dual_reduce(MX[0], MX[1], tt, "v_max_f32"))
    E(interleave(mid[0], mid[1]))
    E(dual_reduce(SM[0], SM[1], tt, "v_add_f32"))
    E(interleave(post[0], post[1]))
    stamp(E, 8)
    E.barrier()
    E(p3_setup(E))

def loader(E, br, last):
    stages = A_STAGES if br == "A" else B_STAGES
    vX, vW0, vW1, vH0, vH1, vWO, vGX, vGF, vGOFF = 4, 5, 6, 7, 8, 9, 10, 12, 13
    t0, t1, t2, t3 = T0, T0 + 1, T0 + 2, T0 + 3
    sL = sRG
    if OPT["prio"]:
        E("s_setprio 3")
    E(f"s_sub_u32 s{sL}, s{sWV}, 8")
    E(f"v_lshrrev_b32 v{t0}, 3, v{vLANE}")
    E(f"v_bfe_u32 v{t1}, v{vLANE}, 4, 2")
    E(f"s_lshl_b32 s{sT1}, s{sHH}, 2")
    E(f"v_or_b32 v{t1}, s{sT1}, v{t1}")
    E(f"v_and_b32 v{t2}, 7, v{vLANE}")
    E(f"v_xor_b32 v{t1}, v{t1}, v{t2}")
    E(f"s_lshl_b32 s{sT0}, s{sRB}, 7")
    E(f"s_lshl_b32 s{sT1}, s{sL}, 3")
    E(f"s_add_u32 s{sT0}, s{sT0}, s{sT1}")
    E(f"v_add_u32 v{t0}, s{sT0}, v{t0}")
    E(f"v_mul_u32_u24 v{vX}, 896, v{t0}")
    E(f"v_lshl_add_u32 v{vX}, v{t1}, 4, v{vX}")
    for pi, vw in enumerate((vW0, vW1)):
        if last and pi == 1:
            break
        E(f"s_lshl_b32 s{sT1}, s{sL}, 6")
        if pi:
            E(f"s_add_u32 s{sT1}, s{sT1}, 256")
        E(f"v_add_u32 v{t0}, s{sT1}, v{vLANE}")
        E(f"v_mul_u32_u24 v{t1}, 9363, v{t0}")
        E(f"v_lshrrev_b32 v{t1}, 16, v{t1}")
        E(f"v_mul_u32_u24 v{t2}, 7, v{t1}")
        E(f"v_sub_u32 v{t2}, v{t0}, v{t2}")
        E(f"v_and_b32 v{t0}, 0x38, v{t1}")
        E(f"v_and_b32 v{t3}, 1, v{t1}")
        E(f"v_lshl_add_u32 v{t0}, v{t3}, 2, v{t0}")
        E(f"v_bfe_u32 v{t3}, v{t1}, 1, 2")
        E(f"v_add_u32 v{t0}, v{t0}, v{t3}")
        E(f"v_mul_u32_u24 v{vw}, 2688, v{t0}")
        E(f"v_lshl_add_u32 v{vw}, v{t2}, 4, v{vw}")
        E(f"s_mul_i32 s{sT1}, s{sHP}, 112")
        E(f"v_add_u32 v{vw}, s{sT1}, v{vw}")
    E(f"s_lshl_b32 s{sM0}, s{sL}, 10")
    if last and br == "A":
        E(f"v_subrev_u32 v{vH1}, {32 * 896}, v{vX}")
        E(f"v_xor_b32 v{vH0}, 64, v{vX}")
        E(f"v_subrev_u32 v{vH0}, {40 * 896}, v{vH0}")
    srds(E)
    lstamp(E, 1)
    def issue(s):
        if OPT["no_load"]:
            return
        st = stages[s]; m = st["m"]; base = st["base"]
        for i in range(4):
            E(f"s_add_u32 m0, s{sM0}, {base + 4096 * i}")
            E(f"s_mov_b32 s{sT0}, {128 * m + 28672 * i}")
            E(f"buffer_load_dwordx4 v{vX}, {sr(SX, 4)}, s{sT0} offen lds", tag=f"S{s}")
        for k, seg in enumerate(st["segs"]):
            for pi, vw in enumerate((vW0, vW1)):
                if last and pi == 1:
                    break
                E(f"s_add_u32 m0, s{sM0}, {base + woff(br, k) + 4096 * pi}")
                E(f"s_mov_b32 s{sT0}, {m * 64 * 2688 + SEGCOL[seg] * 896}")
                E(f"buffer_load_dwordx4 v{vw}, {sr(SW, 4)}, s{sT0} offen lds", tag=f"S{s}")
        if last and br == "A":
            for n2, vh in enumerate((vH0, vH1)):
                E(f"s_mov_b32 m0, {base + 16384 + 1024 * n2}")
                E(f"s_mov_b32 s{sT0}, {128 * m}")
                E(f"buffer_load_dwordx4 v{vh}, {sr(SX, 4)}, s{sT0} offen lds", tag=f"S{s}")
    nxt = 0
    issue(0); nxt = 1
    if OPT["sbar"] == 1:
        E.barrier()
    lstamp(E, 2)
    srds2(E)
    stamps_init(E)
    if last:
        if br == "B":
            E(f"s_mul_i32 s{sT1}, s{sHP}, 3136")
            E(f"v_add_u32 v{t0}, s{sT1}, v{vL16B}")
            for i in range(4):
                E(f"s_mov_b32 m0, {B_WPH + 1024 * i}")
                E(f"s_mov_b32 s{sT0}, {1024 * i}")
                E(f"buffer_load_dwordx4 v{t0}, {sr(SAUX, 4)}, s{sT0} offen lds", tag="S1")
        else:
            E(f"s_mov_b32 m0, {A_GATE}")
            E(f"buffer_load_dwordx4 v{vL16B}, {sr(SAUX, 4)}, 0 offen lds", tag="S0")
    while nxt < OPT["ahead"]:
        issue(nxt); nxt += 1
    if OPT["sbar"] == 2:
        E.barrier()
    lstamp(E, 3)
    E(f"v_lshrrev_b32 v{vWO}, 3, v{vLANE}")
    E(f"v_bfe_u32 v{t1}, v{vLANE}, 4, 2")
    E(f"v_lshlrev_b32 v{t1}, 1, v{t1}")
    E(f"v_and_b32 v{t2}, 7, v{vLANE}")
    E(f"v_xor_b32 v{t1}, v{t1}, v{t2}")
    E(f"v_mul_u32_u24 v{vWO}, 896, v{vWO}")
    E(f"v_lshl_add_u32 v{vWO}, v{t1}, 4, v{vWO}")
    E(f"s_lshl_b32 s{sT1}, s{sCT}, 7")
    E(f"s_mul_i32 s{sT2}, s{sL}, {8 * 896}")
    E(f"s_add_u32 s{sT1}, s{sT1}, s{sT2}")
    E(f"s_cmp_ge_u32 s{sJ}, 28")
    E(f"s_cselect_b32 s{sT1}, 0x1000000, s{sT1}")
    E(f"v_add_u32 v{vWO}, s{sT1}, v{vWO}")
    def wo(b2):
        for i in range(14):
            E(f"s_add_u32 m0, s{sM0}, {(WOB_BASE if b2 else WOA_BASE) + i * 4096}")
            E(f"s_mov_b32 s{sT0}, {i * 32 * 896}")
            E(f"buffer_load_dwordx4 v{vWO}, {sr(SWOA if b2 == 0 else SWOB, 4)}, s{sT0} offen lds", tag=f"WO{b2}")
        if last:
            E(f"s_mov_b32 m0, {(WOB_BASE if b2 else WOA_BASE) + 57344}")
            E(f"s_mov_b32 s{sT0}, {448 * 896}")
            E(f"buffer_load_dwordx4 v{vWO}, {sr(SWOA if b2 == 0 else SWOB, 4)}, s{sT0} offen lds", tag=f"WO{b2}")
    gate = last and br == "A"
    if gate:
        E(f"v_lshrrev_b32 v{t0}, 1, v{vL16}")
        E(f"v_xor_b32 v{t0}, v{t0}, v{vG}")
        E(f"v_lshlrev_b32 v{t0}, 4, v{t0}")
        E(f"v_lshl_add_u32 v{t0}, v{vL16}, 7, v{t0}")
        E(f"s_lshl_b32 s{sT0}, s{sHP}, 11")
        E(f"v_add_u32 v{vGX}, s{sT0}, v{t0}")
        E(f"v_xor_b32 v{vGX + 1}, 64, v{vGX}")
        E(f"v_lshlrev_b32 v{vGF}, 4, v{vG}")
        E(f"v_add_u32 v{vGF}, {A_GATE}, v{vGF}")
        E(f"s_lshl_b32 s{sT0}, s{sRB}, 7")
        E(f"s_lshl_b32 s{sT1}, s{sHP}, 4")
        E(f"s_add_u32 s{sT0}, s{sT0}, s{sT1}")
        E(f"s_lshl_b32 s{sT0}, s{sT0}, 2")
        E(f"s_add_u32 s{sT0}, s{sT0}, {WS_G}")
        E(f"v_lshl_add_u32 v{vGOFF}, v{vLANE}, 2, s{sT0}")
        E(f"v_mov_b32 v{t0}, {WS_BYTES}")
        E(f"v_cmp_gt_u32 vcc, 16, v{vLANE}")
        E(f"v_cndmask_b32 v{vGOFF}, v{t0}, v{vGOFF}, vcc")
        E(f"v_mov_b32 v{t1}, -1")
        E(f"buffer_store_dword v{t1}, v{vGOFF}, {sr(SWS, 4)}, 0 offen sc1", tag="GCLR")
    GL, GB = 16, 20
    cur = 0
    cleared = [False]
    def clears():
        on = 40
        for i in range(4):
            E(f"v_mov_b32 v{on + i}, -1")
        E(f"s_lshl_b32 s{sT0}, s{sRB}, 3")
        E(f"s_lshl_b32 s{sT1}, s{sL}, 1")
        E(f"s_add_u32 s{sT0}, s{sT0}, s{sT1}")
        E(f"s_lshl_b32 s{sT0}, s{sT0}, 4")
        E(f"s_lshl_b32 s{sT1}, s{sHP}, 1")
        E(f"s_add_u32 s{sT0}, s{sT0}, s{sT1}")
        E(f"s_lshl_b32 s{sT0}, s{sT0}, 10")
        E(f"s_lshl_b32 s{sT1}, s{sBR}, 21")
        E(f"s_add_u32 s{sT0}, s{sT0}, s{sT1}")
        E(f"v_add_u32 v{t2}, s{sT0}, v{vL16B}")
        E(f"s_mov_b32 s{sT1}, 16384")
        if br == "B":
            E(f"s_lshl_b32 s{sT0}, s{sHP}, 4")
            E(f"s_add_u32 s{sT0}, s{sT0}, s{sRB}")
            E(f"s_lshl_b32 s{sT0}, s{sT0}, 2")
            E(f"s_add_u32 s{sT0}, s{sT0}, s{sL}")
            E(f"s_lshl_b32 s{sT0}, s{sT0}, 11")
            E(f"s_add_u32 s{sT0}, s{sT0}, {WS_KVP}")
            E(f"v_add_u32 v{t3}, s{sT0}, v{vL16B}")
            for i in range(2):
                E(f"buffer_store_dwordx4 {vr(on, 4)}, v{t3}, {sr(SWS, 4)}, 0 offen offset:{1024 * i} sc1", tag="CLR")
        for u in range(2):
            for i in range(2):
                E(f"buffer_store_dwordx4 {vr(on, 4)}, v{t2}, {sr(SWS, 4)}, {'0' if u == 0 else 's' + str(sT1)} offen offset:{1024 * i} sc1", tag="CLR")
    def step(s):
        nonlocal nxt, cur
        E.wait_tag(f"S{s}")
        if s == 0:
            lstamp(E, 4)
        if gate and s == OPT["flag_at"]:
            E.wait_tag("GCLR")
        E.barrier(lgkm0=True)
        if s == 0:
            lstamp(E, 5)
        if gate:
            d = stages[s]["base"] - cur; cur = stages[s]["base"]
            E(vadd_imm(vGX, d)); E(vadd_imm(vGX + 1, d))
            m = stages[s]["m"]
            for tt in range(2):
                E(f"ds_read_b128 {vr(GB + 8 * tt, 4)}, v{vGX + tt}")
                E(f"ds_read_b128 {vr(GB + 8 * tt + 4, 4)}, v{vGF} offset:{64 * (2 * m + tt)}")
        while nxt < len(stages) and stages[nxt]["after"] <= s and nxt <= s + OPT["ahead"]:
            issue(nxt); nxt += 1
        if gate:
            m = stages[s]["m"]
            for tt in range(2):
                E(f"v_mfma_f32_16x16x32_bf16 {vr(GL, 4)}, {vr(GB + 8 * tt + 4, 4)}, {vr(GB + 8 * tt, 4)}, {'0' if (m == 0 and tt == 0) else vr(GL, 4)}")
    if br == "A":
        for s in range(7):
            step(s)
        if gate:
            g = GL
            E(f"v_cvt_pk_bf16_f32 v{g + 1}, v{g}, v{g}")
            E(f"v_lshlrev_b32 v{g}, 16, v{g + 1}")
            E(f"v_mul_f32 v{g}, s{sL2E}, v{g}")
            E(f"v_exp_f32 v{g}, -v{g}")
            E(f"v_add_f32 v{g}, 1.0, v{g}")
            E(f"v_rcp_f32 v{g}, v{g}")
            E(f"v_cvt_pk_bf16_f32 v{g + 1}, v{g}, v{g}")
            E(f"v_lshlrev_b32 v{g}, 16, v{g + 1}")
            E.wait_tag("GCLR")
            E(f"buffer_store_dword v{g}, v{vGOFF}, {sr(SWS, 4)}, 0 offen sc1")
        E.barrier()
        E.barrier()
        E.barrier()
        wo(0); wo(1)
        if last:
            flags_wait_all(E, t0, t1, 128)
    else:
        for s in range(7):
            step(s)
        if last:
            flags_wait_all(E, t0, t1)
        E.barrier()
        E.barrier()
        wo(0)
        E.barrier()
        if last:
            flags_wait_all(E, t0, t1, 128)
        E.barrier()
    E(f"s_cmp_ge_u32 s{sJ}, 28")
    E.flush_haz()
    E("s_cbranch_scc1 L_end")
    E.wait_tag("WO0")
    E.barrier()
    if br == "B":
        wo(1)
    E.force_wait(vm=0)
    E.barrier()
    if OPT["ldst"] and not last:
        Lz = newlabel("ls")
        E(f"s_cmp_lg_u32 s{sWV}, 8")
        E(f"s_cbranch_scc1 {Lz}")
        E.force_wait(vm=0, lgkm=0)
        E(f"s_lshl_b32 s{sT0}, s2, 7")
        E(f"s_add_u32 s{sT0}, s{sT0}, {WS_ST}")
        E(f"v_mov_b32 v20, s{sT0}")
        E("s_mov_b64 exec, 1")
        for i in range(6):
            E(f"v_mov_b32 v22, s{54 + 2 * i}")
            E(f"v_mov_b32 v23, s{54 + 2 * i + 1}")
            E(f"buffer_store_dwordx2 v[22:23], v20, {sr(SWS, 4)}, 0 offen offset:{8 * i}")
            E.force_wait(vm=0)
        E.label(Lz)
    E("s_branch L_end")

def p3_setup(E):
    rt, kh = sP3, sP3 + 1
    t0, t1, t2 = T0 + 8, T0 + 9, T0 + 1
    o = []
    o.append(f"s_and_b32 s{rt}, s{sWV}, 3")
    o.append(f"s_lshr_b32 s{kh}, s{sWV}, 2")
    o.append(f"s_lshl_b32 s{sT2}, s{sT}, 2")
    o.append(f"s_add_u32 s{sT2}, s{sT2}, s{rt}")
    o.append(f"s_lshl_b32 s{sP3 + 2}, s{sT2}, 14")
    o.append(f"s_lshl_b32 s{sP3 + 3}, s{kh}, 13")
    o.append(f"s_add_u32 s{sP3 + 2}, s{sP3 + 2}, s{sP3 + 3}")
    o.append(f"v_add_u32 v{pOF}, s{sP3 + 2}, v{vL16B}")
    o.append(f"s_lshl_b32 s{sT2}, s{sT2}, 4")
    o.append(f"v_add_u32 v{pROW}, s{sT2}, v{vL16}")
    o.append(f"v_bfe_u32 v{t0}, v{vLANE}, 2, 2")
    o.append(f"v_lshl_add_u32 v{t0}, v{vG}, 2, v{t0}")
    o.append(f"v_bfe_u32 v{t1}, v{t0}, 1, 2")
    o.append(f"v_and_b32 v{t2}, 3, v{vLANE}")
    o.append(f"v_lshlrev_b32 v{t2}, 3, v{t2}")
    o.append(f"v_lshl_add_u32 v{t2}, v{t0}, 7, v{t2}")
    o.append(f"s_mul_i32 s{sT2}, s{kh}, 28672")
    o.append(f"s_add_u32 s{sT2}, s{sT2}, {WOA_BASE}")
    o.append(f"v_add_u32 v{t2}, s{sT2}, v{t2}")
    o.append(f"s_lshl_b32 s{sT2}, s{kh}, 1")
    o.append(f"v_xor_b32 v{t1}, s{sT2}, v{t1}")
    for c in range(4):
        o.append(f"v_xor_b32 v{t0}, {c}, v{t1}")
        o.append(f"v_lshl_add_u32 v{pWO + c}, v{t0}, 5, v{t2}")
    o.append(f"v_add_u32 v7, 4096, v{pOF}")
    o.append(f"v_lshlrev_b32 v9, 2, v{pROW}")
    o.append(f"v_add_u32 v9, {WS_G}, v9")
    return o

sP3 = sMASK
pOF, pROW, pWO = 4, 5, 12
def p3_loads(br):
    of = 16 + 32 * br
    loads = [f"s_mov_b32 s{sT2}, {WS_OB if br else 0}"]
    for hl in range(8):
        loads.append(f"buffer_load_dwordx4 {vr(of + 4 * hl, 4)}, v{pOF if hl < 4 else 7}, {sr(SWS, 4)}, s{sT2} offen offset:{1024 * (hl & 3)} sc1")
    regs = list(range(of, of + 32))
    if br == 0:
        loads.append(f"buffer_load_dword v6, v9, {sr(SWS, 4)}, 0 offen sc1")
        regs.append(6)
    return loads, regs

def phase3(E):
    E.label("L_p3")
    E.vmq = []; E.lgq = []
    E(f"s_cmp_ge_u32 s{sJ}, 28")
    E("s_cbranch_scc1 L_fin")
    rt, kh = sP3, sP3 + 1
    vROW, vGV, vWO = pROW, 6, pWO
    vOF0, vOF1, vGA, vXO, vXP, vOUT = pOF, 7, 9, 8, 10, 11
    TMP = 144
    OF, AC, WF = 16, [80, 96], 112
    loads_for = p3_loads
    def gemm(br):
        of = OF + 32 * br
        prev = []
        for hl in range(8):
            wf = WF + 16 * (hl & 1)
            rd = []
            for c in range(4):
                for j in range(2):
                    rd.append(f"ds_read_b64_tr_b16 {vr(wf + 4 * c + 2 * j, 2)}, v{vWO + (c ^ (2 * (hl & 1)))} offset:{3584 * hl + 2048 * j}")
            E(interleave_front(prev, rd) if prev else rd)
            prev = []
            for c in (2, 3, 0, 1):
                acc = AC[br] + 4 * c
                prev.append(f"v_mfma_f32_16x16x32_bf16 {vr(acc, 4)}, {vr(wf + 4 * c, 4)}, {vr(of + 4 * hl, 4)}, {'0' if hl == 0 else vr(acc, 4)}")
        E(prev)
    E.barrier()
    stamp(E, 9)
    la, ra = loads_for(0)
    Lsk = newlabel("p3a")
    E(f"s_cmp_lg_u32 s{sBR}, 0")
    E.flush_haz()
    E(f"s_cbranch_scc1 {Lsk}")
    E(la)
    E.label(Lsk)
    E(f"s_lshl_b32 s{sT0}, s{sWV}, 12")
    E(f"s_add_u32 s{sT0}, s{sT0}, {XB3}")
    E(f"v_add_u32 v{vXO}, s{sT0}, v{vL16B}")
    E(f"s_xor_b32 s{sT0}, s{sWV}, 4")
    E(f"s_lshl_b32 s{sT0}, s{sT0}, 12")
    E(f"s_add_u32 s{sT0}, s{sT0}, {XB3}")
    E(f"v_add_u32 v{vXP}, s{sT0}, v{vL16B}")
    E(f"v_mul_u32_u24 v{vOUT}, 896, v{vROW}")
    E(f"v_lshl_add_u32 v{vOUT}, v{vG}, 3, v{vOUT}")
    E(f"s_lshl_b32 s{sT0}, s{sCT}, 7")
    E(f"s_lshl_b32 s{sT1}, s{kh}, 6")
    E(f"s_add_u32 s{sT0}, s{sT0}, s{sT1}")
    E(f"v_add_u32 v{vOUT}, s{sT0}, v{vOUT}")
    poll_loop(E, la, ra, "o", TMP, pre_issued=True)
    stamp(E, 10)
    gemm(0)
    for i in range(2):
        E(f"ds_write_b128 v{vXO}, {vr(AC[0] + 8 + 4 * i, 4)} offset:{1024 * i}")
    stamp(E, 11)
    lb, rb_ = loads_for(1)
    if not OPT["sent"]:
        E(lb)
    for c in range(4):
        E(vadd_imm(vWO + c, WOB_BASE - WOA_BASE))
    E.barrier()
    RA, T1, tp, omg = OF, OF + 8, OF + 16, OF + 24
    for i in range(2):
        E(f"ds_read_b128 {vr(RA + 4 * i, 4)}, v{vXP} offset:{1024 * i}")
    E(f"v_sub_f32 v{omg}, 1.0, v{vGV}")
    if OPT["round_final"]:
        E(f"v_cvt_pk_bf16_f32 v{omg + 1}, v{omg}, v{omg}")
        E(f"v_lshlrev_b32 v{omg}, 16, v{omg + 1}")
    for i in range(8):
        E(f"v_add_f32 v{T1 + i}, v{AC[0] + i}, v{RA + i}")
    if OPT["round_final"]:
        E(round_pairs(T1, T1, 8, tp))
    for i in range(8):
        E(f"v_mul_f32 v{T1 + i}, v{T1 + i}, v{vGV}")
    if OPT["round_final"]:
        E(round_pairs(T1, T1, 8, tp))
    if OPT["sent"]:
        vS = TMP + 2
        E(f"v_and_b32 v{vS}, 7, v{vLANE}")
        E(f"v_lshlrev_b32 v{vS}, 10, v{vS}")
        E(f"s_add_u32 s{sT0}, s{sP3 + 2}, {WS_OB + 1020}")
        E(f"v_add_u32 v{vS}, s{sT0}, v{vS}")
        Ls = newlabel("sn"); Lsd = newlabel("snd")
        E(f"s_mov_b32 s{sSPIN}, 0")
        E.label(Ls)
        E(f"buffer_load_dword v{TMP + 3}, v{vS}, {sr(SWS, 4)}, 0 offen sc1")
        E.force_wait(vm=0)
        E(f"v_cmp_eq_u32 vcc, -1, v{TMP + 3}")
        spin_tail(E, Ls, Lsd, sleep=OPT["sent"])
        poll_loop(E, lb, rb_, "o", TMP)
        stamp(E, 12)
        gemm(1)
    elif not OPT["prog"]:
        poll_loop(E, lb, rb_, "o", TMP, pre_issued=True)
        stamp(E, 12)
        gemm(1)
    else:
        of = OF + 32
        sMK = sP3 + 2
        for i in range(16):
            E(f"v_mov_b32 v{AC[1] + i}, 0")
        E(f"s_mov_b32 s{sMK}, 15")
        E(f"s_mov_b32 s{sSPIN}, 0")
        L = newlabel("pb"); Lc = newlabel("pbc"); Ld = newlabel("pbd")
        E.wait(lgkm=0)
        E.flush_haz()
        E(f"s_branch {Lc}")
        E.label(L)
        for pr in range(4):
            Ls = newlabel("pbl")
            E(f"s_bitcmp1_b32 s{sMK}, {pr}")
            E(f"s_cbranch_scc0 {Ls}")
            E(lb[1 + 2 * pr]); E(lb[2 + 2 * pr])
            E.out.append(Ls + ":")
        E.label(Lc)
        E.force_wait(vm=0)
        for pr in range(4):
            Ls = newlabel("pbk")
            g8 = of + 8 * pr
            E(f"s_bitcmp1_b32 s{sMK}, {pr}")
            E(f"s_cbranch_scc0 {Ls}")
            E(f"v_max3_u32 v{TMP}, v{g8}, v{g8 + 1}, v{g8 + 2}")
            E(f"v_max3_u32 v{TMP + 1}, v{g8 + 3}, v{g8 + 4}, v{g8 + 5}")
            E(f"v_max3_u32 v{TMP}, v{TMP}, v{g8 + 6}, v{g8 + 7}")
            E(f"v_max_u32 v{TMP}, v{TMP}, v{TMP + 1}")
            E(f"v_cmp_eq_u32 vcc, -1, v{TMP}")
            E(f"s_cbranch_vccnz {Ls}")
            for h2 in range(2):
                hl = 2 * pr + h2
                wf = WF + 16 * h2
                for c in range(4):
                    for j in range(2):
                        E(f"ds_read_b64_tr_b16 {vr(wf + 4 * c + 2 * j, 2)}, v{vWO + (c ^ (2 * (hl & 1)))} offset:{3584 * hl + 2048 * j}")
            for h2 in range(2):
                hl = 2 * pr + h2
                wf = WF + 16 * h2
                for c in (2, 3, 0, 1):
                    acc = AC[1] + 4 * c
                    E(f"v_mfma_f32_16x16x32_bf16 {vr(acc, 4)}, {vr(wf + 4 * c, 4)}, {vr(of + 4 * hl, 4)}, {vr(acc, 4)}")
            E(f"s_bitset0_b32 s{sMK}, {pr}")
            assert not E.lgq
            E.out.append(Ls + ":")
        E(f"s_cmp_eq_u32 s{sMK}, 0")
        E(f"s_cbranch_scc1 {Ld}")
        E(f"s_add_u32 s{sSPIN}, s{sSPIN}, 1")
        E(f"s_cmp_lt_u32 s{sSPIN}, {SPIN_MAX}")
        E(f"s_cbranch_scc0 {Ld}")
        E(f"s_branch {L}")
        E.out.append(Ld + ":")
        E.nop(9); E.clear_haz()
        stamp(E, 12)
    for i in range(2):
        E(f"ds_write_b128 v{vXO}, {vr(AC[1] + 8 + 4 * i, 4)} offset:{2048 + 1024 * i}")
    stamp(E, 13)
    E.barrier()
    for i in range(2):
        E(f"ds_read_b128 {vr(RA + 4 * i, 4)}, v{vXP} offset:{2048 + 1024 * i}")
    KB = AC[1]
    for i in range(8):
        E(f"v_add_f32 v{KB + i}, v{KB + i}, v{RA + i}")
    if OPT["round_final"]:
        E(round_pairs(KB, KB, 8, tp))
        for i in range(8):
            E(f"v_mul_f32 v{KB + i}, v{KB + i}, v{omg}")
        E(round_pairs(KB, KB, 8, tp))
        for i in range(8):
            E(f"v_add_f32 v{T1 + i}, v{T1 + i}, v{KB + i}")
    else:
        for i in range(8):
            E(f"v_fmac_f32 v{T1 + i}, v{KB + i}, v{omg}")
    for i in range(4):
        E(f"v_cvt_pk_bf16_f32 v{tp + i}, v{T1 + 2 * i}, v{T1 + 2 * i + 1}")
    for i in range(2):
        E(f"buffer_store_dwordx2 {vr(tp + 2 * i, 2)}, v{vOUT}, {sr(SOUT, 4)}, 0 offen offset:{32 * i} {OPT['outpol']}")
    stamp(E, 14)
    E.label("L_fin")
    if OPT["dbgspan"]:
        Lz = newlabel("sp")
        E(f"s_cmp_lg_u32 s{sWV}, 0")
        E(f"s_cbranch_scc1 {Lz}")
        E.force_wait(vm=0)
        E("s_memrealtime s[96:97]")
        E.force_wait(lgkm=0)
        E("s_not_b32 s94, s94")
        E("v_mov_b32 v144, s96")
        E("v_mov_b32 v145, s94")
        E("v_mov_b32 v146, 0")
        E("s_mov_b64 exec, 1")
        E(f"buffer_atomic_umax v144, v146, {sr(SDBG, 4)}, 0 offen")
        E(f"buffer_atomic_umax v145, v146, {sr(SDBG, 4)}, 0 offen offset:4")
        E("s_not_b32 s94, s94")
        E("v_mov_b32 v145, s94")
        E(f"buffer_atomic_umax v145, v146, {sr(SDBG, 4)}, 0 offen offset:8")
        E("s_mov_b64 exec, -1")
        E.label(Lz)
    if OPT["stamps"]:
        Lz = newlabel("st")
        E(f"s_cmp_lg_u32 s{sWV}, 0")
        E(f"s_cbranch_scc1 {Lz}")
        E.force_wait(vm=0, lgkm=0)
        E(f"s_lshl_b32 s{sT0}, s2, 7")
        E(f"s_add_u32 s{sT0}, s{sT0}, {WS_ST}")
        E(f"v_mov_b32 v{vA0}, s{sT0}")
        E("s_mov_b64 exec, 1")
        for i in range(15):
            E(f"v_mov_b32 v{TMP}, s{sSTAMP + 2 * i}")
            E(f"v_mov_b32 v{TMP + 1}, s{sSTAMP + 2 * i + 1}")
            E(f"buffer_store_dwordx2 {vr(TMP, 2)}, v{vA0}, {sr(SWS, 4)}, 0 offen offset:{8 * i}")
            E.force_wait(vm=0)
        E.label(Lz)

def main():
    hdr = open("cdna_kernels/" + NAME + ".s.ref").read().split("; Override launch geometry")[0]
    E.raw(hdr.rstrip())
    E.raw(f"; @launch grid=(256,1,1) block=(768,1,1) lds={LDS_BYTES}")
    E.raw('.amdgcn_target "amdgcn-amd-amdhsa--gfx950"')
    E.raw(".text")
    E.raw(f".globl {NAME}_kernel")
    E.raw(".p2align 8")
    E.raw(f".type {NAME}_kernel,@function")
    E.raw(f"{NAME}_kernel:")
    prologue(E)
    E(f"s_cmp_lt_u32 s{sWV}, 8")
    E.flush_haz()
    E("s_cbranch_scc1 L_cons")
    E(f"s_cmp_eq_u32 s{sWV}, 11")
    E("s_cbranch_scc1 L_ld3")
    E(f"s_cmp_eq_u32 s{sBR}, 0")
    E("s_cbranch_scc1 L_A_ld")
    for name, fn in (("L_B_ld", lambda: loader(E, "B", False)), ("L_ld3", None), ("L_B_ld3", lambda: loader(E, "B", True)),
                     ("L_A_ld", lambda: loader(E, "A", False)), ("L_A_ld3", lambda: loader(E, "A", True))):
        E.label(name); E.vmq = []; E.lgq = []
        if fn is None:
            E(f"s_cmp_eq_u32 s{sBR}, 0")
            E("s_cbranch_scc1 L_A_ld3")
        else:
            fn()
    E.label("L_cons")
    E(f"s_cmp_eq_u32 s{sBR}, 0")
    E("s_cbranch_scc0 L_B_main")
    E(f"s_cmp_lt_u32 s{sWV}, 2")
    E("s_cbranch_scc1 L_A_halo")
    for name, fn in (("L_A_main", lambda: cons_A(E, False)), ("L_A_halo", lambda: cons_A(E, True)), ("L_B_main", lambda: cons_B(E))):
        E.label(name); E.vmq = []; E.lgq = []
        fn()
        E.wait(lgkm=0)
        E.flush_haz()
        E("s_branch L_p3")
    phase3(E)
    E.label("L_end")
    E("s_endpgm")
    E.raw('.section .rodata,"a"')
    E.raw(".p2align 6")
    E.raw(f".amdhsa_kernel {NAME}_kernel")
    E.raw(f"  .amdhsa_next_free_vgpr {NVGPR}")
    E.raw("  .amdhsa_next_free_sgpr 102")
    E.raw(f"  .amdhsa_accum_offset {NVGPR}")
    E.raw("  .amdhsa_group_segment_fixed_size 0")
    E.raw("  .amdhsa_kernarg_size 88")
    E.raw("  .amdhsa_user_sgpr_count 2")
    E.raw("  .amdhsa_user_sgpr_kernarg_segment_ptr 1")
    E.raw("  .amdhsa_system_sgpr_workgroup_id_x 1")
    E.raw(".end_amdhsa_kernel")
    txt = E.text()
    import re
    mx = max(int(x) for x in re.findall(r"\bv\[?(\d+)", txt) + re.findall(r"\bv\[\d+:(\d+)\]", txt))
    assert mx < NVGPR, mx
    open(sys.argv[1], "w").write(txt)
    print("instructions:", E.nins, "max vgpr", mx)

main()
```

```python
import sys, struct, math
from asmlib import *

NAME = "gated_mix__sliding_local_dilated__linear_kernel_hedgehog__prompt"
OPT = dict(stamps=0, fine=0, round_final=1, pf=1, flag_at=5, ahead=2, nov=4, fill=5, mfsum=1, prio=1, pkfma=2, gat=90, no_comp=0, no_load=0, no_clr=0, lead=2, dbgspan=0, pf2=0, prog=0, ldst=0, pfA=0, atom=0, fk=0, psleep=2, sent=0, noflag=0, sbar=2, prea=1, outpol="", stag=0, fo=5)
for a in sys.argv[2:]:
    k, v = a.split("=")
    OPT[k] = int(v) if v.lstrip("-").isdigit() else v

LDS_BYTES = 163840
PHI_STRIDE, V_STRIDE = 264, 72
WS_OA, WS_OB, WS_KVP, WS_G, WS_ST = 0, 2 << 20, 4 << 20, 5 << 20, 8 << 20
WS_BYTES = 16 << 20
SPIN_MAX = 30000
SEGCOL = {"Q": 0, "K": 1, "V": 2}
SEGI = {"K": 0, "V": 1, "Q": 2}
WOA_BASE, WOB_BASE, XB3 = 58368, 0, 116736
B_SS = 39936
B_STAGES = [dict(m=m, segs=["K", "V", "Q"], base=B_SS * (m % 4)) for m in range(7)]
for i, st in enumerate(B_STAGES):
    prev = [j for j in range(i) if B_STAGES[j]["base"] == st["base"]]
    st["after"] = (prev[-1] + 2) if prev else -1
B_WPH = 159744
PHI_BASE = 0
VB = [128 * PHI_STRIDE, 128 * PHI_STRIDE + 128 * V_STRIDE]
KVF = 143360
A_SS = 39936
A_STAGES = [dict(m=m, segs=["K", "V", "Q"], base=A_SS * (m % 4)) for m in range(7)]
for i, st in enumerate(A_STAGES):
    prev = [j for j in range(i) if A_STAGES[j]["base"] == st["base"]]
    st["after"] = (prev[-1] + 2) if prev else -1
A_GATE = 159744
A_EXCH = XB3
def woff(br, k):
    return 18432 + 7168 * k

def f2u(x): return struct.unpack("<I", struct.pack("<f", x))[0]
LOG2E = f2u(1.4426950408889634)
SCALE = f2u(28 ** -0.5)

SX, SW, SWS, SDBG, SAUX, SWOA, SWOB, SOUT = 8, 12, 16, 20, 24, 28, 32, 36
sRB, sHP, sBR, sWV, sT, sCT, sJ, sT0, sT1, sM0 = 40, 41, 42, 43, 44, 45, 46, 47, 48, 49
sMASK = 50
sG3 = 66
sL2E, sSCL, sSPIN, sT2 = 68, 69, 70, 71
sKA = 72
sSTAMP = 72
sRG, sHH, s16K, sMP = 3, 4, 5, 6
sHIM = sG3 + 1

NVGPR = 168
vLANE, vL16, vG, vL16B = 0, 1, 2, 3
vXR, vTR, vPADB, vOOFF = 4, 6, 7, 8
vA0, vA1, vA2, vA3 = 9, 10, 11, 12
vSL, vXRH = 13, 13
ACC = [16, 32, 48]
T0 = 152

E = Emitter()
lblc = [0]
def newlabel(p):
    lblc[0] += 1
    return f"L_{p}_{lblc[0]}"

def stamp(E, idx, fine=False):
    if OPT["stamps"] and (idx == 0 or bool(OPT["fine"]) == fine):
        E(f"s_memrealtime {sr(sSTAMP + 2 * idx, 2)}")

def srd(E, d, lo, nbytes):
    E(f"s_mov_b32 s{d}, s{lo}")
    E(f"s_and_b32 s{d+1}, s{lo+1}, 0xffff")
    E(f"s_mov_b32 s{d+2}, {nbytes}")
    E(f"s_mov_b32 s{d+3}, 0x20000")

def dual_reduce(a, b, t, op):
    return [
        f"v_permlane32_swap_b32 v{a}, v{b}",
        f"{op} v{a}, v{a}, v{b}",
        f"v_mov_b32 v{t}, v{a}",
        f"v_permlane16_swap_b32 v{a}, v{t}",
        f"{op} v{a}, v{a}, v{t}",
        f"v_mov_b32 v{b}, v{a}",
        f"v_permlane32_swap_b32 v{a}, v{b}",
    ]

def round_pairs(src, dst, n, tmp):
    out = []
    for i in range(0, n, 2):
        out.append(f"v_cvt_pk_bf16_f32 v{tmp + i // 2}, v{src + i}, v{src + i + 1}")
    for i in range(0, n, 2):
        out.append(f"v_lshlrev_b32 v{dst + i}, 16, v{tmp + i // 2}")
        out.append(f"v_and_b32 v{dst + i + 1}, s{sHIM}, v{tmp + i // 2}")
    return out

def pack_op(acc, dst, zero_pad=True):
    out = [f"v_cvt_pk_bf16_f32 v{dst + i}, v{acc + 2 * i}, v{acc + 2 * i + 1}" for i in range(4)]
    if zero_pad:
        out += [f"v_cndmask_b32 v{dst + 2}, v{dst + 2}, 0, {sr(sG3, 2)}", f"v_cndmask_b32 v{dst + 3}, v{dst + 3}, 0, {sr(sG3, 2)}"]
    return out

def interleave_front(mm, rd):
    out = []
    n = max(1, (len(mm) * 3) // 4)
    j = 0
    for i, x in enumerate(mm):
        tgt = min(len(rd), ((i + 1) * len(rd) + n - 1) // n)
        while j < tgt:
            out.append(rd[j]); j += 1
        out.append(x)
    out += rd[j:]
    return out

def vadd_imm(reg, delta):
    if delta == 0:
        return []
    return [f"v_add_u32 v{reg}, {delta & 0xffffffff:#x}, v{reg}"]

def lstamp(E, i):
    if OPT["ldst"]:
        E(f"s_memrealtime {sr(54 + 2 * i, 2)}")

def prologue(E):
    E("s_cmp_ge_u32 s2, 256")
    E("s_cbranch_scc1 L_end")
    lstamp(E, 0)
    if OPT["dbgspan"]:
        E("s_memrealtime s[94:95]")
    E(f"s_load_dwordx16 {sr(sKA, 16)}, s[0:1], 0")
    E(f"s_load_dwordx4 {sr(sKA + 16, 4)}, s[0:1], 64")
    E(f"s_load_dwordx2 {sr(sKA + 20, 2)}, s[0:1], 80")
    E(f"v_lshrrev_b32 v{T0}, 6, v0")
    E(f"v_and_b32 v{vLANE}, 63, v0")
    E(f"v_readfirstlane_b32 s{sWV}, v{T0}")
    E(f"s_and_b32 s{sT0}, s2, 7")
    E(f"s_lshr_b32 s{sJ}, s2, 3")
    E(f"s_lshr_b32 s{sBR}, s{sJ}, 4")
    E(f"s_xor_b32 s{sBR}, s{sBR}, 1")
    E(f"s_and_b32 s{sRB}, s{sT0}, 3")
    E(f"s_lshl_b32 s{sRB}, s{sRB}, 2")
    E(f"s_bfe_u32 s{sT1}, s{sJ}, 0x20002")
    E(f"s_add_u32 s{sRB}, s{sRB}, s{sT1}")
    E(f"s_lshr_b32 s{sHP}, s{sT0}, 2")
    E(f"s_lshl_b32 s{sHP}, s{sHP}, 2")
    E(f"s_and_b32 s{sT1}, s{sJ}, 3")
    E(f"s_add_u32 s{sHP}, s{sHP}, s{sT1}")
    E(f"s_mul_i32 s{sT1}, s{sJ}, 37")
    E(f"s_lshr_b32 s{sT1}, s{sT1}, 8")
    E(f"s_lshl_b32 s{sT}, s{sT0}, 2")
    E(f"s_add_u32 s{sT}, s{sT}, s{sT1}")
    E(f"s_mul_i32 s{sT1}, s{sT1}, 7")
    E(f"s_sub_u32 s{sCT}, s{sJ}, s{sT1}")
    E(f"s_lshr_b32 s{sRG}, s{sWV}, 1")
    E(f"s_and_b32 s{sHH}, s{sWV}, 1")
    E(f"v_and_b32 v{vL16}, 15, v{vLANE}")
    E(f"v_lshrrev_b32 v{vG}, 4, v{vLANE}")
    E(f"v_lshlrev_b32 v{vL16B}, 4, v{vLANE}")
    E(f"s_mov_b32 s{sG3}, 0")
    E(f"s_mov_b32 s{sG3+1}, 0xffff0000")
    E(f"s_mov_b32 s{sL2E}, {LOG2E:#x}")
    E(f"s_mov_b32 s{sSCL}, {SCALE:#x}")

def srds(E):
    E.force_wait(lgkm=0)
    K = sKA
    srd(E, SX, K + 0, 2048 * 896)
    E(f"s_cmp_eq_u32 s{sBR}, 0")
    E(f"s_cselect_b32 s{sT0}, s{K+2}, s{K+8}")
    E(f"s_cselect_b32 s{sT1}, s{K+3}, s{K+9}")
    srd(E, SW, sT0, 448 * 2688)

def srds2(E):
    K = sKA
    E(f"s_mov_b32 s{sT2}, 25088")
    E(f"s_cmp_eq_u32 s{sBR}, 0")
    E(f"s_cselect_b32 s{sT0}, s{K+14}, s{K+10}")
    E(f"s_cselect_b32 s{sT1}, s{K+15}, s{K+11}")
    E(f"s_cselect_b32 s{sT2}, 896, s{sT2}")
    E(f"s_mov_b32 s{SAUX}, s{sT0}")
    E(f"s_and_b32 s{SAUX+1}, s{sT1}, 0xffff")
    E(f"s_mov_b32 s{SAUX+2}, s{sT2}")
    E(f"s_mov_b32 s{SAUX+3}, 0x20000")
    srd(E, SWS, K + 20, WS_BYTES)
    srd(E, SWOA, K + 4, 448 * 896)
    srd(E, SWOB, K + 12, 448 * 896)
    srd(E, SOUT, K + 16, 2048 * 896)
    srd(E, SDBG, K + 18, 256)

def stamps_init(E):
    if OPT["stamps"]:
        stamp(E, 0)
        for i in range(1, 15):
            E(f"s_mov_b64 {sr(sSTAMP + 2 * i, 2)}, 0")

def prefetch(E, sJ=sJ):
    K = sKA
    SP = sMASK + 2
    t0, t1, t2, t3 = T0, T0 + 1, T0 + 2, T0 + 3
    Lx = newlabel("pfx"); Ld = newlabel("pfd")
    E(f"s_cmp_ge_u32 s{sWV}, 6")
    E.flush_haz()
    E(f"s_cbranch_scc1 {Lx}")
    E(f"s_cmp_lt_u32 s{sWV}, 3")
    E(f"s_cselect_b32 s{sT0}, s{K+2}, s{K+8}")
    E(f"s_cselect_b32 s{sT1}, s{K+3}, s{K+9}")
    E(f"s_cselect_b32 s{sT2}, 0, 3")
    srd(E, SP, sT0, 448 * 2688)
    E(f"s_sub_u32 s{sT2}, s{sWV}, s{sT2}")
    E(f"s_lshl_b32 s{sT2}, s{sT2}, 6")
    E(f"v_add_u32 v{t0}, s{sT2}, v{vLANE}")
    E(f"v_mul_u32_u24 v{t1}, 5462, v{t0}")
    E(f"v_lshrrev_b32 v{t1}, 16, v{t1}")
    E(f"v_mul_u32_u24 v{t2}, 12, v{t1}")
    E(f"v_sub_u32 v{t2}, v{t0}, v{t2}")
    E(f"v_lshrrev_b32 v{t3}, 2, v{t2}")
    E(f"v_and_b32 v{t2}, 3, v{t2}")
    E(f"s_mul_i32 s{sT2}, s{sJ}, 14")
    E(f"v_add_u32 v{t1}, s{sT2}, v{t1}")
    E(f"v_mul_u32_u24 v{t1}, 2688, v{t1}")
    E(f"v_mul_u32_u24 v{t3}, 896, v{t3}")
    E(f"v_lshl_add_u32 v{t2}, v{t2}, 7, v{t3}")
    E(f"s_lshr_b32 s{sT2}, s{sHP}, 2")
    E(f"s_mul_i32 s{sT2}, s{sT2}, 384")
    E(f"v_add3_u32 v{t1}, v{t1}, v{t2}, s{sT2}")
    E(f"v_mov_b32 v{t2}, 0x1000000")
    E(f"v_cmp_gt_u32 vcc, 168, v{t0}")
    E(f"v_cndmask_b32 v{t1}, v{t2}, v{t1}, vcc")
    E(f"buffer_load_dword v15, v{t1}, {sr(SP, 4)}, 0 offen")
    E.flush_haz()
    E(f"s_branch {Ld}")
    E.label(Lx)
    E(f"s_sub_u32 s{sT2}, s{sWV}, 6")
    E(f"s_lshl_b32 s{sT2}, s{sT2}, 6")
    E(f"v_add_u32 v{t0}, s{sT2}, v{vLANE}")
    E(f"s_mul_i32 s{sT2}, s{sJ}, 112")
    E(f"s_lshr_b32 s{sT1}, s{sRB}, 2")
    E(f"s_mul_i32 s{sT1}, s{sT1}, 3584")
    E(f"s_add_u32 s{sT2}, s{sT2}, s{sT1}")
    E(f"v_add_u32 v{t1}, s{sT2}, v{t0}")
    E(f"v_lshlrev_b32 v{t1}, 7, v{t1}")
    E(f"v_mov_b32 v{t2}, 0x1000000")
    E(f"v_cmp_gt_u32 vcc, 112, v{t0}")
    E(f"v_cndmask_b32 v{t1}, v{t2}, v{t1}, vcc")
    E(f"buffer_load_dword v15, v{t1}, {sr(SX, 4)}, 0 offen")
    E.label(Ld)
    E.vmq = [{"dst": set(), "tag": "PF"}]

def prefetch2(E, t0, t1, dst):
    Ld = newlabel("p2d"); Lb = newlabel("p2b")
    E(f"s_and_b32 s{sT0}, s{sWV}, 3")
    E(f"s_lshl_b32 s{sT0}, s{sT0}, 6")
    E(f"v_add_u32 v{t0}, s{sT0}, v{vLANE}")
    E(f"s_and_b32 s{sT0}, s{sJ}, 15")
    E(f"s_mul_i32 s{sT0}, s{sT0}, 196")
    E(f"v_add_u32 v{t1}, s{sT0}, v{t0}")
    E(f"v_lshlrev_b32 v{t1}, 7, v{t1}")
    E(f"v_cmp_gt_u32 vcc, 196, v{t0}")
    E(f"v_mov_b32 v{t0}, 0x1000000")
    E(f"v_cndmask_b32 v{t1}, v{t0}, v{t1}, vcc")
    E(f"s_cmp_ge_u32 s{sWV}, 4")
    E.flush_haz()
    E(f"s_cbranch_scc1 {Lb}")
    E(f"buffer_load_dword v{dst}, v{t1}, {sr(SWOA, 4)}, 0 offen")
    E(f"s_branch {Ld}")
    E.label(Lb)
    E(f"buffer_load_dword v{dst}, v{t1}, {sr(SWOB, 4)}, 0 offen")
    E.label(Ld)

def flag_store(E, val, t0, t1, base=0):
    if OPT["noflag"]:
        return
    if OPT["atom"]:
        E(f"s_lshl_b32 s{sT0}, s{sRB}, 2")
        E(f"v_mov_b32 v{t0}, s{sT0}")
        E(f"v_mov_b32 v{t1}, 1")
        E("s_mov_b64 exec, 1")
        E(f"buffer_atomic_add v{t1}, v{t0}, {sr(SDBG, 4)}, 0 offen offset:{base} sc1")
        E("s_mov_b64 exec, -1")
        return
    E(f"s_lshl_b32 s{sT0}, s{sRB}, 3")
    E(f"s_add_u32 s{sT0}, s{sT0}, s{sHP}")
    if base:
        E(f"s_add_u32 s{sT0}, s{sT0}, {base}")
    E(f"v_mov_b32 v{t0}, s{sT0}")
    E(f"v_mov_b32 v{t1}, {val}")
    E("s_mov_b64 exec, 1")
    E(f"buffer_store_byte v{t1}, v{t0}, {sr(SDBG, 4)}, 0 offen sc1")
    E("s_mov_b64 exec, -1")

def spin_tail(E, L, Ld, sleep=2):
    E(f"s_cbranch_vccz {Ld}")
    E(f"s_add_u32 s{sSPIN}, s{sSPIN}, 1")
    E(f"s_cmp_lt_u32 s{sSPIN}, {SPIN_MAX}")
    E(f"s_cbranch_scc0 {Ld}")
    E(f"s_sleep {sleep}")
    E(f"s_branch {L}")
    E.label(Ld)

def flags_wait_all(E, t0, t1, base=0):
    if OPT["noflag"]:
        return
    L = newlabel("fl"); Ld = newlabel("fld")
    E(f"v_and_b32 v{t0}, {15 if OPT['atom'] else 31}, v{vLANE}")
    E(f"v_lshlrev_b32 v{t0}, 2, v{t0}")
    E(f"s_mov_b32 s{sSPIN}, 0")
    E(f"s_mov_b32 s{sT1}, {'8' if OPT['atom'] else '0x01010101'}")
    E.label(L)
    E(f"buffer_load_dword v{t1}, v{t0}, {sr(SDBG, 4)}, 0 offen offset:{base} sc1")
    E.force_wait(vm=0)
    E(f"v_cmp_ne_u32 vcc, s{sT1}, v{t1}")
    spin_tail(E, L, Ld, sleep=40)

def check_regs(E, regs, tmp):
    rs = list(regs)
    E(f"v_max_u32 v{tmp}, v{rs[0]}, v{rs[1]}")
    rest = rs[2:]
    while len(rest) >= 2:
        E(f"v_max3_u32 v{tmp}, v{tmp}, v{rest[0]}, v{rest[1]}"); rest = rest[2:]
    if rest:
        E(f"v_max_u32 v{tmp}, v{tmp}, v{rest[0]}")
    E(f"v_cmp_eq_u32 vcc, -1, v{tmp}")

def poll_loop(E, loads, regs, name, tmp, pre_issued=False):
    L = newlabel(name); Lc = newlabel(name + "c"); Ld = newlabel(name + "d")
    E(f"s_mov_b32 s{sSPIN}, 0")
    if pre_issued:
        E.flush_haz()
        E(f"s_branch {Lc}")
    E.label(L)
    E(loads)
    E.label(Lc)
    E.force_wait(vm=0)
    check_regs(E, regs, tmp)
    spin_tail(E, L, Ld, sleep=OPT["psleep"])

def cons_setup(E, br):
    t0, t1, t2 = T0, T0 + 1, T0 + 2
    E(f"v_bfe_u32 v{t0}, v{vLANE}, 2, 2")
    E(f"v_and_b32 v{t1}, 3, v{vLANE}")
    E(f"v_lshlrev_b32 v{t2}, 3, v{vG}")
    E(f"v_lshl_add_u32 v{t2}, v{t0}, 1, v{t2}")
    E(f"v_mul_u32_u24 v{t2}, 112, v{t2}")
    E(f"v_lshl_add_u32 v{vTR}, v{t1}, 3, v{t2}")
    E(f"s_mul_i32 s{sT0}, s{sHH}, 56")
    E(f"v_add_u32 v{vTR}, s{sT0}, v{vTR}")
    E(f"v_lshrrev_b32 v{t0}, 1, v{vL16}")
    E(f"v_xor_b32 v{t0}, v{t0}, v{vG}")
    E(f"v_lshlrev_b32 v{t0}, 4, v{t0}")
    E(f"v_lshl_add_u32 v{t0}, v{vL16}, 7, v{t0}")
    E(f"s_lshl_b32 s{sT0}, s{sRG}, 12")
    E(f"v_add_u32 v{vXR}, s{sT0}, v{t0}")
    E(f"v_xor_b32 v{vXR+1}, 64, v{vXR}")
    E(f"s_lshl_b32 s{sT0}, s{sRB}, 3")
    E(f"s_lshl_b32 s{sT1}, s{sRG}, 1")
    E(f"s_add_u32 s{sT0}, s{sT0}, s{sT1}")
    E(f"s_lshl_b32 s{sT0}, s{sT0}, 4")
    E(f"s_lshl_b32 s{sT1}, s{sHP}, 1")
    E(f"s_add_u32 s{sT0}, s{sT0}, s{sT1}")
    E(f"s_add_u32 s{sT0}, s{sT0}, s{sHH}")
    E(f"s_lshl_b32 s{sT0}, s{sT0}, 10")
    E(f"s_lshl_b32 s{sT1}, s{sBR}, 21")
    E(f"s_add_u32 s{sT0}, s{sT0}, s{sT1}")
    E(f"v_add_u32 v{vOOFF}, s{sT0}, v{vL16B}")
    E(f"s_mov_b32 s{s16K}, 16384")

def ostore(reg, u):
    return f"buffer_store_dwordx4 {vr(reg, 4)}, v{vOOFF}, {sr(SWS, 4)}, {'0' if u == 0 else 's' + str(s16K)} offen sc1"

class Cons:
    def __init__(self, E, br, stages, buf0, bufsz, nbuf, halo=False, HACC=None):
        self.E, self.br, self.stages = E, br, stages
        self.buf0, self.bufsz, self.nbuf, self.halo, self.HACC = buf0, bufsz, nbuf, halo, HACC
        self.cur_base = 0
        self.ks = 0; self.pending = []
        self.nbar = 0
        self.prebar = None

    def parts(self, s, tt, buf):
        st = self.stages[s]; m = st["m"]; t = 2 * m + tt
        first = t == 0
        B0 = self.buf0 + self.bufsz * buf
        rd, mm = [], []
        xr = [B0, B0 + 4]
        for u in range(2):
            rd.append(f"ds_read_b128 {vr(xr[u], 4)}, v{vXR + tt} offset:{2048 * u}")
        wb = B0 + 8
        if self.halo:
            hx = B0 + 8; wb = B0 + 12
            rd.append(f"ds_read_b128 {vr(hx, 4)}, v{vXR + tt} offset:16384")
        elif self.br == "A":
            wb = B0 + 12
        for k, seg in enumerate(st["segs"]):
            si = SEGI[seg]
            tr = not (self.br == "A" and seg == "V")
            for c in range(2):
                wf = wb + 8 * k + 4 * c
                for j in range(2):
                    rd.append(f"ds_read_b64_tr_b16 {vr(wf + 2 * j, 2)}, v{vTR} offset:{woff(self.br, k) + 3584 * tt + 112 * j + 32 * c}")
                for u in range(2):
                    acc = ACC[si] + 8 * u + 4 * c
                    a_, b_ = (vr(wf, 4), vr(xr[u], 4)) if tr else (vr(xr[u], 4), vr(wf, 4))
                    mm.append(f"v_mfma_f32_16x16x32_bf16 {vr(acc, 4)}, {a_}, {b_}, {'0' if first else vr(acc, 4)}")
                if self.halo and seg != "Q":
                    acc = self.HACC + 8 * si + 4 * c
                    a_, b_ = (vr(wf, 4), vr(hx, 4)) if tr else (vr(hx, 4), vr(wf, 4))
                    mm.append(f"v_mfma_f32_16x16x32_bf16 {vr(acc, 4)}, {a_}, {b_}, {'0' if first else vr(acc, 4)}")
        if OPT["no_comp"] == 1:
            return [], []
        if OPT["no_comp"] == 2:
            return rd, []
        if OPT["no_comp"] == 3:
            return [], mm
        return rd, mm

    def run(self, s0, s1):
        E = self.E
        prev = []
        for ks in range(2 * s0, 2 * s1 + 2):
            s, tt = divmod(ks, 2)
            pre = []
            if tt == 0:
                nlead = min(OPT["lead"], len(prev))
                E(prev[:nlead]); prev = prev[nlead:]
                if self.prebar:
                    self.prebar(E, s)
                E.barrier(lgkm0=False)
                self.nbar += 1
                if self.nbar <= 14:
                    stamp(E, self.nbar, fine=True)
                if OPT["stamps"] and OPT["fine"] and self.nbar in (2, 7):
                    E(f"s_memtime {sr(sSTAMP + 2 * (12 if self.nbar == 2 else 13), 2)}")
                d = self.stages[s]["base"] - self.cur_base
                self.cur_base = self.stages[s]["base"]
                for r in (vXR, vXR + 1, vTR):
                    E(vadd_imm(r, d))
            rd, mm = self.parts(s, tt, ks % 2)
            if prev:
                E(interleave_front(prev, rd))
            else:
                E(rd)
            prev = mm
        E(prev)

vL2E = 162
ONES = 164
def phi_path(si, outreg, tmps, WP):
    streams = []
    for u in range(2):
        T = tmps[u]
        P = ACC[si] + 8 * u
        op, pk, Ep, Em = T, T, P, T + 4
        mx, mn, mx1, mn1 = T + 12, T + 13, T + 14, T + 15
        t = T
        O = outreg + 8 * u
        o = []
        o += pack_op(P, op)
        for ft in range(2):
            o.append(f"v_mfma_f32_16x16x32_bf16 {vr(P + 4 * ft, 4)}, {vr(WP + 4 * ft, 4)}, {vr(op, 4)}, 0")
        o += round_pairs(P, P, 8, pk)
        o.append(f"v_max3_f32 v{mx}, v{P}, v{P+1}, v{P+2}")
        o.append(f"v_min3_f32 v{mn}, v{P}, v{P+1}, v{P+2}")
        o.append(f"v_max3_f32 v{mx}, v{mx}, v{P+3}, v{P+4}")
        o.append(f"v_min3_f32 v{mn}, v{mn}, v{P+3}, v{P+4}")
        o.append(f"v_max3_f32 v{mx}, v{mx}, v{P+5}, v{P+6}")
        o.append(f"v_min3_f32 v{mn}, v{mn}, v{P+5}, v{P+6}")
        o.append(f"v_max_f32 v{mx}, v{mx}, v{P+7}")
        o.append(f"v_max_f32 v{mn}, -v{mn}, -v{P+7}")
        o += dual_reduce(mx, mn, t, "v_max_f32")
        o.append(f"v_mul_f32 v{mx}, s{sL2E}, v{mx}")
        o.append(f"v_mul_f32 v{mn}, s{sL2E}, v{mn}")
        o.append(f"v_add_f32 v{mx1}, v{mx}, v{vPADB}")
        o.append(f"v_add_f32 v{mn1}, v{mn}, v{vPADB}")
        for i in (range(8) if not OPT["pkfma"] else []):
            o.append(f"v_fma_f32 v{Em+i}, -v{P+i}, s{sL2E}, -v{mn if i < 4 else mn1}")
            o.append(f"v_fma_f32 v{Ep+i}, v{P+i}, s{sL2E}, -v{mx if i < 4 else mx1}")
        for i in (range(0, 8, 2) if OPT["pkfma"] else []):
            mm_ = vr(mx if i < 4 else mx1, 2)
            if OPT["pkfma"] == 2:
                o.append(f"v_pk_fma_f32 {vr(Em+i, 2)}, {vr(P+i, 2)}, {vr(vL2E, 2)}, {mm_} op_sel:[0,0,1] op_sel_hi:[1,1,1] neg_lo:[1,0,1] neg_hi:[1,0,1]")
                o.append(f"v_pk_fma_f32 {vr(Ep+i, 2)}, {vr(P+i, 2)}, {vr(vL2E, 2)}, {mm_} op_sel_hi:[1,1,0] neg_lo:[0,0,1] neg_hi:[0,0,1]")
                continue
            o.append(f"v_pk_fma_f32 {vr(Em+i, 2)}, {vr(P+i, 2)}, {sr(sL2E, 2)}, {mm_} op_sel:[0,0,1] op_sel_hi:[1,0,1] neg_lo:[1,0,1] neg_hi:[1,0,1]")
            o.append(f"v_pk_fma_f32 {vr(Ep+i, 2)}, {vr(P+i, 2)}, {sr(sL2E, 2)}, {mm_} op_sel_hi:[1,0,0] neg_lo:[0,0,1] neg_hi:[0,0,1]")
        for i in range(8):
            o.append(f"v_exp_f32 v{Ep+i}, v{Ep+i}")
            o.append(f"v_exp_f32 v{Em+i}, v{Em+i}")
        if OPT["mfsum"]:
            for i in range(4):
                o.append(f"v_cvt_pk_bf16_f32 v{O + i}, v{Ep + 2 * i}, v{Ep + 2 * i + 1}")
                o.append(f"v_cvt_pk_bf16_f32 v{O + 4 + i}, v{Em + 2 * i}, v{Em + 2 * i + 1}")
            SP, SM = T, T + 12
            o.append(f"v_mfma_f32_16x16x32_bf16 {vr(SP, 4)}, {vr(ONES, 4)}, {vr(O, 4)}, 0")
            o.append(f"v_mfma_f32_16x16x32_bf16 {vr(SM, 4)}, {vr(ONES, 4)}, {vr(O + 4, 4)}, 0")
            sp, sm = SP, SM
        else:
            sp, sm = mx1, mn1
            o.append(f"v_add_f32 v{sp}, v{Ep}, v{Ep+1}")
            o.append(f"v_add_f32 v{sm}, v{Em}, v{Em+1}")
            for i in range(2, 8):
                o.append(f"v_add_f32 v{sp}, v{sp}, v{Ep+i}")
                o.append(f"v_add_f32 v{sm}, v{sm}, v{Em+i}")
            o += dual_reduce(sp, sm, t, "v_add_f32")
        o.append(f"v_rcp_f32 v{sp}, v{sp}")
        o.append(f"v_rcp_f32 v{sm}, v{sm}")
        for i in range(8):
            o.append(f"v_mul_f32 v{Ep+i}, v{Ep+i}, v{sp}")
            o.append(f"v_mul_f32 v{Em+i}, v{Em+i}, v{sm}")
        for i in range(4):
            o.append(f"v_cvt_pk_bf16_f32 v{O + i}, v{Ep + 2 * i}, v{Ep + 2 * i + 1}")
            o.append(f"v_cvt_pk_bf16_f32 v{O + 4 + i}, v{Em + 2 * i}, v{Em + 2 * i + 1}")
        streams.append(o)
    k = OPT["stag"]
    if k:
        a_, b_ = streams
        head = interleave(a_[:8], b_[:8]); a_, b_ = a_[8:], b_[8:]
        return head + a_[:k] + interleave(a_[k:], b_[:len(b_) - k]) + b_[len(b_) - k:]
    return interleave(streams[0], streams[1])

def cons_B(E):
    WP, PHI, BUF = 64, 72, 88
    cons_setup(E, "B")
    srds(E); srds2(E)
    if OPT["sbar"]:
        E.barrier()
    if OPT["pf"] and not OPT["pfA"]:
        prefetch(E)
    stamps_init(E)
    ones = PHI
    for i in range(4):
        E(f"v_mov_b32 v{ones + i}, -1")
        E(f"v_mov_b32 v{ONES + i}, 0x3f803f80")
    E(f"v_mov_b32 v{vL2E}, s{sL2E}"); E(f"v_mov_b32 v{vL2E + 1}, s{sL2E}")
    vKV = 14
    E(f"s_lshl_b32 s{sT0}, s{sHP}, 4")
    E(f"s_add_u32 s{sT0}, s{sT0}, s{sRB}")
    E(f"s_lshl_b32 s{sT0}, s{sT0}, 3")
    E(f"s_add_u32 s{sT0}, s{sT0}, s{sWV}")
    E(f"s_lshl_b32 s{sT0}, s{sT0}, 10")
    E(f"s_add_u32 s{sT0}, s{sT0}, {WS_KVP}")
    E(f"v_add_u32 v{vKV}, s{sT0}, v{vL16B}")
    E(f"v_mov_b32 v{vPADB}, 0")
    E(f"v_mov_b32 v{T0}, 0x7149f2ca")
    E(f"v_cndmask_b32 v{vPADB}, v{vPADB}, v{T0}, {sr(sG3, 2)}")
    E(f"s_lshl_b32 s{sT2}, s{sRG}, 5")
    E(f"v_add_u32 v{vSL}, s{sT2}, v{vL16}")
    E(f"v_mul_u32_u24 v{vA0}, {PHI_STRIDE}, v{vSL}")
    E(f"v_lshl_add_u32 v{vA0}, v{vG}, 3, v{vA0}")
    E(f"s_lshl_b32 s{sT2}, s{sHH}, 7")
    E(f"v_add_u32 v{vA0}, s{sT2}, v{vA0}")
    E(f"v_mul_u32_u24 v{vA1}, {V_STRIDE}, v{vSL}")
    E(f"v_lshl_add_u32 v{vA1}, v{vG}, 3, v{vA1}")
    E(f"s_mul_i32 s{sT0}, s{sHH}, {VB[1] - VB[0]}")
    E(f"s_add_u32 s{sT0}, s{sT0}, {VB[0]}")
    E(f"v_add_u32 v{vA1}, s{sT0}, v{vA1}")
    t0, t1 = T0, T0 + 1
    E(f"v_and_b32 v{t0}, 1, v{vG}")
    E(f"v_lshlrev_b32 v{t0}, 4, v{t0}")
    E(f"v_bfe_u32 v{t1}, v{vLANE}, 2, 2")
    E(f"v_lshl_add_u32 v{t0}, v{t1}, 2, v{t0}")
    E(f"v_lshrrev_b32 v{t1}, 1, v{vG}")
    E(f"v_lshl_add_u32 v{t0}, v{t1}, 1, v{t0}")
    E(f"v_and_b32 v{t1}, 3, v{vLANE}")
    E(f"v_lshlrev_b32 v{t1}, 3, v{t1}")
    E(f"s_lshr_b32 s{sT0}, s{sWV}, 1")
    E(f"s_lshl_b32 s{sT0}, s{sT0}, 6")
    E(f"v_mul_u32_u24 v{vA2}, {PHI_STRIDE}, v{t0}")
    E(f"v_add3_u32 v{vA2}, v{vA2}, v{t1}, s{sT0}")
    E(f"s_lshr_b32 s{sT0}, s{sWV}, 2")
    E(f"s_mul_i32 s{sT0}, s{sT0}, {VB[1] - VB[0]}")
    E(f"s_add_u32 s{sT0}, s{sT0}, {VB[0]}")
    E(f"s_and_b32 s{sT1}, s{sWV}, 1")
    E(f"s_lshl_b32 s{sT1}, s{sT1}, 5")
    E(f"s_add_u32 s{sT0}, s{sT0}, s{sT1}")
    E(f"v_mul_u32_u24 v{vA3}, {V_STRIDE}, v{t0}")
    E(f"v_add3_u32 v{vA3}, v{vA3}, v{t1}, s{sT0}")
    w1, w2 = T0 + 8, T0 + 9
    E(f"v_bfe_u32 v{t0}, v{vLANE}, 2, 2")
    E(f"v_lshl_add_u32 v{t0}, v{vG}, 2, v{t0}")
    E(f"v_mul_u32_u24 v{t0}, 56, v{t0}")
    E(f"s_mul_i32 s{sT2}, s{sHH}, 1568")
    E(f"s_add_u32 s{sT2}, s{sT2}, {B_WPH}")
    E(f"v_add_u32 v{t0}, s{sT2}, v{t0}")
    E(f"v_and_b32 v{t1}, 3, v{vLANE}")
    E(f"v_min_u32 v{w2}, 2, v{t1}")
    E(f"v_lshl_add_u32 v{w1}, v{t1}, 3, v{t0}")
    E(f"v_lshl_add_u32 v{w2}, v{w2}, 3, v{t0}")
    C = Cons(E, "B", B_STAGES, BUF, 32, 2)
    def prebar(E, s):
        if s == 3:
            for ft in range(2):
                for j in range(2):
                    E(f"ds_read_b64_tr_b16 {vr(WP + 4 * ft + 2 * j, 2)}, v{w1 if ft == 0 else w2} offset:{896 * j + 32 * ft}")
            for ft in range(2):
                for i in (2, 3):
                    r = WP + 4 * ft + i
                    E(f"v_cndmask_b32 v{r}, v{r}, 0, {sr(sG3, 2)}")
    C.prebar = prebar
    C.run(0, 6)
    stamp(E, 1)
    SCR = BUF + 32
    vp0 = T0
    F = [f"v_mov_b32 v{vp0 + 8}, 0x3f80"]
    for u in range(2):
        vp = vp0 + 4 * u
        F += pack_op(ACC[1] + 8 * u, vp, zero_pad=False)
        F.append(f"v_cndmask_b32 v{vp + 2}, v{vp + 2}, v{vp0 + 8}, {sr(sG3, 2)}")
        F.append(f"v_cndmask_b32 v{vp + 3}, v{vp + 3}, 0, {sr(sG3, 2)}")
    for u in range(2):
        for dt in range(2):
            F.append(f"ds_write_b64 v{vA1}, {vr(vp0 + 4 * u + 2 * dt, 2)} offset:{16 * V_STRIDE * u + 32 * dt}")
    body = phi_path(0, PHI, [SCR, SCR + 16], WP)
    E(body[:16]); E(F); E(body[16:])
    for u in range(2):
        for sg in range(2):
            for ft in range(2):
                E(f"ds_write_b64 v{vA0}, {vr(PHI + 8 * u + 4 * sg + 2 * ft, 2)} offset:{PHI_BASE + 16 * PHI_STRIDE * u + 64 * sg + 32 * ft}")
    stamp(E, 3)
    E.barrier()
    KA, KB_, KD = ACC[0], SCR, SCR + 16
    for ks in range(4):
        for j in range(2):
            E(f"ds_read_b64_tr_b16 {vr(KB_ + 4 * ks + 2 * j, 2)}, v{vA3} offset:{(32 * ks + j) * V_STRIDE}")
        for ft in range(2):
            for j in range(2):
                E(f"ds_read_b64_tr_b16 {vr(KA + 8 * ks + 4 * ft + 2 * j, 2)}, v{vA2} offset:{PHI_BASE + (32 * ks + j) * PHI_STRIDE + 32 * ft}")
        if ks >= 1:
            for ft in range(2):
                cin = "0" if ks == 1 else vr(KD + 4 * ft, 4)
                E(f"v_mfma_f32_16x16x32_bf16 {vr(KD + 4 * ft, 4)}, {vr(KA + 8 * (ks - 1) + 4 * ft, 4)}, {vr(KB_ + 4 * (ks - 1), 4)}, {cin}")
    for ft in range(2):
        E(f"v_mfma_f32_16x16x32_bf16 {vr(KD + 4 * ft, 4)}, {vr(KA + 24 + 4 * ft, 4)}, {vr(KB_ + 12, 4)}, {vr(KD + 4 * ft, 4)}")
    kp = T0
    E(pack_op(KD, kp, zero_pad=False))
    for i in range(4):
        E(f"v_min_u32 v{kp + i}, -2, v{kp + i}")
    E(f"buffer_store_dwordx4 {vr(kp, 4)}, v{vKV}, {sr(SWS, 4)}, 0 offen sc1")
    stamp(E, 4)
    E.barrier()
    G = BUF
    E(f"s_lshl_b32 s{sT0}, s{sHP}, 17")
    E(f"s_lshl_b32 s{sT1}, s{sWV}, 10")
    E(f"s_add_u32 s{sT0}, s{sT0}, s{sT1}")
    E(f"s_add_u32 s{sT0}, s{sT0}, {WS_KVP}")
    E(f"v_add_u32 v{vA1}, s{sT0}, v{vL16B}")
    loads = []
    for p in range(16):
        loads.append(f"s_mov_b32 s{sT0}, {8192 * p}")
        loads.append(f"buffer_load_dwordx4 {vr(G + 4 * p, 4)}, v{vA1}, {sr(SWS, 4)}, s{sT0} offen sc1")
    body = phi_path(2, PHI, [ACC[0], ACC[1]], WP)
    h = len(body) * OPT["gat"] // 100
    E(body[:h])
    E.barrier()
    stamp(E, 5)
    E(loads)
    E(body[h:])
    E(p3_setup(E))
    stamp(E, 6)
    SEL = T0 + 2
    SUM = ACC[0]
    t0_, t1_ = ACC[0] + 8, ACC[0] + 9
    E(f"v_lshrrev_b32 v{t0_}, 2, v{vL16}")
    E(f"v_cmp_eq_u32 vcc, v{t0_}, v{vG}")
    E(f"v_and_b32 v{t0_}, 1, v{vL16}")
    E(f"v_lshlrev_b32 v{t0_}, 4, v{t0_}")
    E(f"v_mov_b32 v{t1_}, 0x3f80")
    E(f"v_lshlrev_b32 v{t0_}, v{t0_}, v{t1_}")
    E(f"v_cndmask_b32 v{t0_}, 0, v{t0_}, vcc")
    E(f"v_and_b32 v{t1_}, 2, v{vL16}")
    E(f"v_cmp_eq_u32 vcc, 0, v{t1_}")
    for r in (SEL, SEL + 1, SEL + 4, SEL + 5):
        E(f"v_mov_b32 v{r}, 0")
    E(f"v_cndmask_b32 v{SEL + 2}, 0, v{t0_}, vcc")
    E(f"v_cndmask_b32 v{SEL + 3}, v{t0_}, 0, vcc")
    L = newlabel("kv"); Lc = newlabel("kvc"); Ld = newlabel("kvd")
    E(f"s_mov_b32 s{sSPIN}, 0")
    saved = list(E.vmq)
    E.flush_haz()
    E(f"s_branch {Lc}")
    E.label(L)
    E.vmq = []
    E(loads)
    E.label(Lc)
    chk = T0
    for p in range(16):
        g4 = G + 4 * p
        E(f"v_mfma_f32_16x16x32_bf16 {vr(SUM, 4)}, {vr(SEL + 2, 4)}, {vr(g4, 4)}, {'0' if p == 0 else vr(SUM, 4)}")
        E(f"v_mfma_f32_16x16x32_bf16 {vr(SUM + 4, 4)}, {vr(SEL, 4)}, {vr(g4, 4)}, {'0' if p == 0 else vr(SUM + 4, 4)}")
        if p == 0:
            E(f"v_max_u32 v{chk}, v{g4}, v{g4 + 1}")
        else:
            E(f"v_max3_u32 v{chk}, v{chk}, v{g4}, v{g4 + 1}")
        E(f"v_max3_u32 v{chk}, v{chk}, v{g4 + 2}, v{g4 + 3}")
    E(f"v_cmp_eq_u32 vcc, -1, v{chk}")
    spin_tail(E, L, Ld)
    stamp(E, 7)
    kf = ACC[0] + 8
    E(pack_op(SUM, kf, zero_pad=False))
    E(f"s_lshl_b32 s{sT0}, s{sWV}, 10")
    E(f"s_add_u32 s{sT0}, s{sT0}, {KVF}")
    E(f"v_add_u32 v{vA1}, s{sT0}, v{vL16B}")
    E(f"ds_write_b128 v{vA1}, {vr(kf, 4)}")
    E(f"s_lshl_b32 s{sT0}, s{sHH}, 12")
    E(f"s_add_u32 s{sT0}, s{sT0}, {KVF}")
    E(f"v_add_u32 v{vA1}, s{sT0}, v{vL16B}")
    E(f"v_lshlrev_b32 v{vA2}, 8, v{vG}")
    E(f"s_add_u32 s{sT0}, s{sT0}, {12 * 16}")
    E(f"v_add_u32 v{vA2}, s{sT0}, v{vA2}")
    E.barrier()
    KF, ZF, NUM = BUF, BUF + 16, BUF + 24
    for w in range(4):
        E(f"ds_read_b128 {vr(KF + 4 * w, 4)}, v{vA1} offset:{1024 * w}")
    for sg in range(2):
        E(f"ds_read_b128 {vr(ZF + 4 * sg, 4)}, v{vA2} offset:{1024 * (2 * sg + 1)}")
    pre_a = p3_loads(0)[0]
    for u in range(2):
        for dt in range(2):
            for sg in range(2):
                d = NUM + 12 * u + 4 * dt
                E(f"v_mfma_f32_16x16x32_bf16 {vr(d, 4)}, {vr(KF + 4 * (2 * sg + dt), 4)}, {vr(PHI + 8 * u + 4 * sg, 4)}, {'0' if sg == 0 else vr(d, 4)}")
        for sg in range(2):
            d = NUM + 12 * u + 8
            E(f"v_mfma_f32_16x16x32_bf16 {vr(d, 4)}, {vr(ZF + 4 * sg, 4)}, {vr(PHI + 8 * u + 4 * sg, 4)}, {'0' if sg == 0 else vr(d, 4)}")
    if OPT["prea"] == 0:
        E(pre_a)
    st = []
    for u in range(2):
        n = NUM + 12 * u; dn = n + 8
        t = BUF + 48 + 8 * u
        o = []
        o += round_pairs(n, n, 8, t)
        o.append(f"v_cvt_pk_bf16_f32 v{t + 4}, v{dn}, v{dn}")
        o.append(f"v_lshlrev_b32 v{dn}, 16, v{t + 4}")
        o.append(f"v_add_f32 v{dn}, 0x358637bd, v{dn}")
        o.append(f"v_cvt_pk_bf16_f32 v{t + 4}, v{dn}, v{dn}")
        o.append(f"v_lshlrev_b32 v{dn}, 16, v{t + 4}")
        o.append(f"v_rcp_f32 v{dn}, v{dn}")
        for i in range(8):
            o.append(f"v_mul_f32 v{n + i}, v{n + i}, v{dn}")
        o += pack_op(n, t)
        for i in range(4):
            o.append(f"v_min_u32 v{t + i}, -2, v{t + i}")
        o.append(ostore(t, u))
        st.append(o)
    E(interleave(st[0], st[1]))
    if OPT["prea"] == 1:
        E(pre_a)
    stamp(E, 8)

def att_masks():
    ms = []
    for tile in range(2):
        for i in range(4):
            m = 0
            for lane in range(64):
                q, g = lane & 15, lane >> 4
                d = q - (4 * g + i) + (16 if tile == 0 else 0)
                if 0 <= d <= 14 and d % 2 == 0:
                    m |= 1 << lane
            ms.append(m)
    return ms

def cons_A(E, halo):
    HACC, BUF = 64, 80
    cons_setup(E, "A")
    srds(E); srds2(E)
    ones = T0 + 4
    for i in range(4):
        E(f"v_mov_b32 v{ones + i}, -1")
    E(f"s_lshl_b32 s{sT0}, s{sHP}, 4")
    E(f"s_add_u32 s{sT0}, s{sT0}, s{sRB}")
    E(f"s_lshl_b32 s{sT0}, s{sT0}, 3")
    E(f"s_add_u32 s{sT0}, s{sT0}, s{sWV}")
    E(f"s_lshl_b32 s{sT0}, s{sT0}, 10")
    E(f"s_add_u32 s{sT0}, s{sT0}, {WS_KVP}")
    E(f"v_add_u32 v{vA0}, s{sT0}, v{vL16B}")
    E(f"buffer_store_dwordx4 {vr(ones, 4)}, v{vA0}, {sr(SWS, 4)}, 0 offen sc1")
    if OPT["sbar"]:
        E.barrier()
    if OPT["pf"] and not OPT["pfA"]:
        prefetch(E)
    elif OPT["pf"]:
        E(f"s_and_b32 s{sMP}, s{sJ}, 15")
        prefetch(E, sMP)
        E(f"s_add_u32 s{sMP}, s{sMP}, 16")
        prefetch(E, sMP)
    stamps_init(E)
    ms = att_masks()
    for i, m in enumerate(ms):
        E(f"s_mov_b32 s{sMASK + 2 * i}, {m & 0xffffffff:#x}")
        E(f"s_mov_b32 s{sMASK + 2 * i + 1}, {m >> 32:#x}")
    E(f"s_lshl_b32 s{sT0}, s{sWV}, 11")
    E(f"s_add_u32 s{sT0}, s{sT0}, {A_EXCH}")
    E(f"v_add_u32 v{vA1}, s{sT0}, v{vL16B}")
    E(f"v_lshl_add_u32 v{vA2}, v{vLANE}, 3, s{sT0}")
    C = Cons(E, "A", A_STAGES, BUF, 36, 2, halo=halo, HACC=HACC)
    def fl(E, base):
        Lf = newlabel("fs")
        E(f"s_cmp_lg_u32 s{sWV}, 0")
        E.flush_haz()
        E(f"s_cbranch_scc1 {Lf}")
        flag_store(E, 1, T0, T0 + 1, base)
        E.label(Lf)
    def prebar(E, s):
        if s == OPT["fk"]:
            E.force_wait(vm=0 if OPT["fk"] else 1)
        if s == OPT["fk"] + 1 and halo:
            fl(E, 0)
        if s in (1, 2):
            E(f"s_mov_b32 s{sT0}, {WS_OB + 16384 * (s - 1)}")
            E(f"buffer_store_dwordx4 {vr(ones, 4)}, v{vOOFF}, {sr(SWS, 4)}, s{sT0} offen sc1")
            E(ostore(ones, s - 1))
        if s == 3 and OPT["pf2"]:
            sv = list(E.vmq); prefetch2(E, T0, T0 + 1, 15); E.vmq = sv
        if s == OPT["fo"]:
            E.force_wait(vm=0)
        if s == OPT["fo"] + 1 and halo:
            fl(E, 128)
    C.prebar = prebar
    C.run(0, 6)
    stamp(E, 1)
    KT, VV = BUF, BUF + 12
    for u in range(2):
        E(pack_op(ACC[0] + 8 * u, KT + 4 + 4 * u))
        for dt in range(2):
            a = ACC[1] + 8 * u + 4 * dt
            d = VV + 8 * u + 4 * dt + 2
            E(f"v_cvt_pk_bf16_f32 v{d}, v{a}, v{a + 1}")
            E(f"v_cvt_pk_bf16_f32 v{d + 1}, v{a + 2}, v{a + 3}")
            if u == 0:
                E(f"v_mov_b32 v{d + 6}, v{d}")
                E(f"v_mov_b32 v{d + 7}, v{d + 1}")
    E.barrier()
    E(f"ds_write_b128 v{vA1}, {vr(KT + 8, 4)} offset:4096")
    for dt in range(2):
        E(f"ds_write_b64 v{vA2}, {vr(VV + 8 + 4 * dt + 2, 2)} offset:{4096 + 1024 + 512 * dt}")
    if halo:
        E(pack_op(HACC, KT))
        for dt in range(2):
            a = HACC + 8 + 4 * dt
            d = VV + 4 * dt
            E(f"v_cvt_pk_bf16_f32 v{d}, v{a}, v{a + 1}")
            E(f"v_cvt_pk_bf16_f32 v{d + 1}, v{a + 2}, v{a + 3}")
        E(f"s_cmp_eq_u32 s{sRB}, 0")
        E(f"s_cselect_b64 {sr(sMP, 2)}, 0, -1")
    T = BUF + 28
    NEG = T0 + 8
    E(f"v_mov_b32 v{NEG}, 0xf149f2ca")
    MX = [T0, T0 + 1]; SM = [T0 + 2, T0 + 3]; tt = T0 + 4
    pre0, pre, mid, post = [], [], [], []
    for u in range(2):
        B_ = T + 20 * u
        qo, L, pk, P = B_, B_ + 4, B_ + 12, B_ + 16
        O = ACC[1] + 8 * u
        pre0 += pack_op(ACC[2] + 8 * u, qo)
        o = []
        o.append(f"v_mfma_f32_16x16x32_bf16 {vr(L + 4, 4)}, {vr(KT + 4 * u + 4, 4)}, {vr(qo, 4)}, 0")
        o.append(f"v_mfma_f32_16x16x32_bf16 {vr(L, 4)}, {vr(KT + 4 * u, 4)}, {vr(qo, 4)}, 0")
        o += round_pairs(L, L, 8, pk)
        for i in range(8):
            o.append(f"v_mul_f32 v{L + i}, s{sSCL}, v{L + i}")
        o += round_pairs(L, L, 8, pk)
        for i in range(8):
            o.append(f"v_cndmask_b32 v{L + i}, v{NEG}, v{L + i}, {sr(sMASK + 2 * i, 2)}")
        if halo and u == 0:
            for i in range(4):
                o.append(f"v_cndmask_b32 v{L + i}, v{NEG}, v{L + i}, {sr(sMP, 2)}")
        mx = MX[u]
        o.append(f"v_max3_f32 v{mx}, v{L}, v{L+1}, v{L+2}")
        o.append(f"v_max3_f32 v{mx}, v{mx}, v{L+3}, v{L+4}")
        o.append(f"v_max3_f32 v{mx}, v{mx}, v{L+5}, v{L+6}")
        o.append(f"v_max_f32 v{mx}, v{mx}, v{L+7}")
        pre.append(o)
        o = []
        o.append(f"v_mul_f32 v{mx}, s{sL2E}, v{mx}")
        for i in range(8):
            o.append(f"v_fma_f32 v{L + i}, v{L + i}, s{sL2E}, -v{mx}")
        for i in range(8):
            o.append(f"v_exp_f32 v{L + i}, v{L + i}")
        sm = SM[u]
        o.append(f"v_add_f32 v{sm}, v{L}, v{L + 1}")
        for i in range(2, 8):
            o.append(f"v_add_f32 v{sm}, v{sm}, v{L + i}")
        mid.append(o)
        o = []
        o.append(f"v_rcp_f32 v{sm}, v{sm}")
        for i in range(8):
            o.append(f"v_mul_f32 v{L + i}, v{L + i}, v{sm}")
        for i in range(4):
            o.append(f"v_cvt_pk_bf16_f32 v{P + i}, v{L + 2 * i}, v{L + 2 * i + 1}")
        for dt in range(2):
            o.append(f"v_mfma_f32_16x16x32_bf16 {vr(O + 4 * dt, 4)}, {vr(VV + 8 * u + 4 * dt, 4)}, {vr(P, 4)}, 0")
        o += pack_op(O, qo)
        for i in range(4):
            o.append(f"v_min_u32 v{qo + i}, -2, v{qo + i}")
        o.append(ostore(qo, u))
        post.append(o)
    E(pre0)
    E.barrier()
    if not halo:
        E(f"ds_read_b128 {vr(KT, 4)}, v{vA1}")
        for dt in range(2):
            E(f"ds_read_b64 {vr(VV + 4 * dt, 2)}, v{vA2} offset:{1024 + 512 * dt}")
    E(interleave(pre[1], pre[0]))
    E(dual_reduce(MX[0], MX[1], tt, "v_max_f32"))
    E(interleave(mid[0], mid[1]))
    E(dual_reduce(SM[0], SM[1], tt, "v_add_f32"))
    E(interleave(post[0], post[1]))
    stamp(E, 8)
    E.barrier()
    E(p3_setup(E))

def loader(E, br, last):
    stages = A_STAGES if br == "A" else B_STAGES
    vX, vW0, vW1, vH0, vH1, vWO, vGX, vGF, vGOFF = 4, 5, 6, 7, 8, 9, 10, 12, 13
    t0, t1, t2, t3 = T0, T0 + 1, T0 + 2, T0 + 3
    sL = sRG
    if OPT["prio"]:
        E("s_setprio 3")
    E(f"s_sub_u32 s{sL}, s{sWV}, 8")
    E(f"v_lshrrev_b32 v{t0}, 3, v{vLANE}")
    E(f"v_bfe_u32 v{t1}, v{vLANE}, 4, 2")
    E(f"s_lshl_b32 s{sT1}, s{sHH}, 2")
    E(f"v_or_b32 v{t1}, s{sT1}, v{t1}")
    E(f"v_and_b32 v{t2}, 7, v{vLANE}")
    E(f"v_xor_b32 v{t1}, v{t1}, v{t2}")
    E(f"s_lshl_b32 s{sT0}, s{sRB}, 7")
    E(f"s_lshl_b32 s{sT1}, s{sL}, 3")
    E(f"s_add_u32 s{sT0}, s{sT0}, s{sT1}")
    E(f"v_add_u32 v{t0}, s{sT0}, v{t0}")
    E(f"v_mul_u32_u24 v{vX}, 896, v{t0}")
    E(f"v_lshl_add_u32 v{vX}, v{t1}, 4, v{vX}")
    for pi, vw in enumerate((vW0, vW1)):
        if last and pi == 1:
            break
        E(f"s_lshl_b32 s{sT1}, s{sL}, 6")
        if pi:
            E(f"s_add_u32 s{sT1}, s{sT1}, 256")
        E(f"v_add_u32 v{t0}, s{sT1}, v{vLANE}")
        E(f"v_mul_u32_u24 v{t1}, 9363, v{t0}")
        E(f"v_lshrrev_b32 v{t1}, 16, v{t1}")
        E(f"v_mul_u32_u24 v{t2}, 7, v{t1}")
        E(f"v_sub_u32 v{t2}, v{t0}, v{t2}")
        E(f"v_and_b32 v{t0}, 0x38, v{t1}")
        E(f"v_and_b32 v{t3}, 1, v{t1}")
        E(f"v_lshl_add_u32 v{t0}, v{t3}, 2, v{t0}")
        E(f"v_bfe_u32 v{t3}, v{t1}, 1, 2")
        E(f"v_add_u32 v{t0}, v{t0}, v{t3}")
        E(f"v_mul_u32_u24 v{vw}, 2688, v{t0}")
        E(f"v_lshl_add_u32 v{vw}, v{t2}, 4, v{vw}")
        E(f"s_mul_i32 s{sT1}, s{sHP}, 112")
        E(f"v_add_u32 v{vw}, s{sT1}, v{vw}")
    E(f"s_lshl_b32 s{sM0}, s{sL}, 10")
    if last and br == "A":
        E(f"v_subrev_u32 v{vH1}, {32 * 896}, v{vX}")
        E(f"v_xor_b32 v{vH0}, 64, v{vX}")
        E(f"v_subrev_u32 v{vH0}, {40 * 896}, v{vH0}")
    srds(E)
    lstamp(E, 1)
    def issue(s):
        if OPT["no_load"]:
            return
        st = stages[s]; m = st["m"]; base = st["base"]
        for i in range(4):
            E(f"s_add_u32 m0, s{sM0}, {base + 4096 * i}")
            E(f"s_mov_b32 s{sT0}, {128 * m + 28672 * i}")
            E(f"buffer_load_dwordx4 v{vX}, {sr(SX, 4)}, s{sT0} offen lds", tag=f"S{s}")
        for k, seg in enumerate(st["segs"]):
            for pi, vw in enumerate((vW0, vW1)):
                if last and pi == 1:
                    break
                E(f"s_add_u32 m0, s{sM0}, {base + woff(br, k) + 4096 * pi}")
                E(f"s_mov_b32 s{sT0}, {m * 64 * 2688 + SEGCOL[seg] * 896}")
                E(f"buffer_load_dwordx4 v{vw}, {sr(SW, 4)}, s{sT0} offen lds", tag=f"S{s}")
        if last and br == "A":
            for n2, vh in enumerate((vH0, vH1)):
                E(f"s_mov_b32 m0, {base + 16384 + 1024 * n2}")
                E(f"s_mov_b32 s{sT0}, {128 * m}")
                E(f"buffer_load_dwordx4 v{vh}, {sr(SX, 4)}, s{sT0} offen lds", tag=f"S{s}")
    nxt = 0
    issue(0); nxt = 1
    if OPT["sbar"] == 1:
        E.barrier()
    lstamp(E, 2)
    srds2(E)
    stamps_init(E)
    if last:
        if br == "B":
            E(f"s_mul_i32 s{sT1}, s{sHP}, 3136")
            E(f"v_add_u32 v{t0}, s{sT1}, v{vL16B}")
            for i in range(4):
                E(f"s_mov_b32 m0, {B_WPH + 1024 * i}")
                E(f"s_mov_b32 s{sT0}, {1024 * i}")
                E(f"buffer_load_dwordx4 v{t0}, {sr(SAUX, 4)}, s{sT0} offen lds", tag="S1")
        else:
            E(f"s_mov_b32 m0, {A_GATE}")
            E(f"buffer_load_dwordx4 v{vL16B}, {sr(SAUX, 4)}, 0 offen lds", tag="S0")
    while nxt < OPT["ahead"]:
        issue(nxt); nxt += 1
    if OPT["sbar"] == 2:
        E.barrier()
    lstamp(E, 3)
    E(f"v_lshrrev_b32 v{vWO}, 3, v{vLANE}")
    E(f"v_bfe_u32 v{t1}, v{vLANE}, 4, 2")
    E(f"v_lshlrev_b32 v{t1}, 1, v{t1}")
    E(f"v_and_b32 v{t2}, 7, v{vLANE}")
    E(f"v_xor_b32 v{t1}, v{t1}, v{t2}")
    E(f"v_mul_u32_u24 v{vWO}, 896, v{vWO}")
    E(f"v_lshl_add_u32 v{vWO}, v{t1}, 4, v{vWO}")
    E(f"s_lshl_b32 s{sT1}, s{sCT}, 7")
    E(f"s_mul_i32 s{sT2}, s{sL}, {8 * 896}")
    E(f"s_add_u32 s{sT1}, s{sT1}, s{sT2}")
    E(f"s_cmp_ge_u32 s{sJ}, 28")
    E(f"s_cselect_b32 s{sT1}, 0x1000000, s{sT1}")
    E(f"v_add_u32 v{vWO}, s{sT1}, v{vWO}")
    def wo(b2):
        for i in range(14):
            E(f"s_add_u32 m0, s{sM0}, {(WOB_BASE if b2 else WOA_BASE) + i * 4096}")
            E(f"s_mov_b32 s{sT0}, {i * 32 * 896}")
            E(f"buffer_load_dwordx4 v{vWO}, {sr(SWOA if b2 == 0 else SWOB, 4)}, s{sT0} offen lds", tag=f"WO{b2}")
        if last:
            E(f"s_mov_b32 m0, {(WOB_BASE if b2 else WOA_BASE) + 57344}")
            E(f"s_mov_b32 s{sT0}, {448 * 896}")
            E(f"buffer_load_dwordx4 v{vWO}, {sr(SWOA if b2 == 0 else SWOB, 4)}, s{sT0} offen lds", tag=f"WO{b2}")
    gate = last and br == "A"
    if gate:
        E(f"v_lshrrev_b32 v{t0}, 1, v{vL16}")
        E(f"v_xor_b32 v{t0}, v{t0}, v{vG}")
        E(f"v_lshlrev_b32 v{t0}, 4, v{t0}")
        E(f"v_lshl_add_u32 v{t0}, v{vL16}, 7, v{t0}")
        E(f"s_lshl_b32 s{sT0}, s{sHP}, 11")
        E(f"v_add_u32 v{vGX}, s{sT0}, v{t0}")
        E(f"v_xor_b32 v{vGX + 1}, 64, v{vGX}")
        E(f"v_lshlrev_b32 v{vGF}, 4, v{vG}")
        E(f"v_add_u32 v{vGF}, {A_GATE}, v{vGF}")
        E(f"s_lshl_b32 s{sT0}, s{sRB}, 7")
        E(f"s_lshl_b32 s{sT1}, s{sHP}, 4")
        E(f"s_add_u32 s{sT0}, s{sT0}, s{sT1}")
        E(f"s_lshl_b32 s{sT0}, s{sT0}, 2")
        E(f"s_add_u32 s{sT0}, s{sT0}, {WS_G}")
        E(f"v_lshl_add_u32 v{vGOFF}, v{vLANE}, 2, s{sT0}")
        E(f"v_mov_b32 v{t0}, {WS_BYTES}")
        E(f"v_cmp_gt_u32 vcc, 16, v{vLANE}")
        E(f"v_cndmask_b32 v{vGOFF}, v{t0}, v{vGOFF}, vcc")
        E(f"v_mov_b32 v{t1}, -1")
        E(f"buffer_store_dword v{t1}, v{vGOFF}, {sr(SWS, 4)}, 0 offen sc1", tag="GCLR")
    GL, GB = 16, 20
    cur = 0
    cleared = [False]
    def clears():
        on = 40
        for i in range(4):
            E(f"v_mov_b32 v{on + i}, -1")
        E(f"s_lshl_b32 s{sT0}, s{sRB}, 3")
        E(f"s_lshl_b32 s{sT1}, s{sL}, 1")
        E(f"s_add_u32 s{sT0}, s{sT0}, s{sT1}")
        E(f"s_lshl_b32 s{sT0}, s{sT0}, 4")
        E(f"s_lshl_b32 s{sT1}, s{sHP}, 1")
        E(f"s_add_u32 s{sT0}, s{sT0}, s{sT1}")
        E(f"s_lshl_b32 s{sT0}, s{sT0}, 10")
        E(f"s_lshl_b32 s{sT1}, s{sBR}, 21")
        E(f"s_add_u32 s{sT0}, s{sT0}, s{sT1}")
        E(f"v_add_u32 v{t2}, s{sT0}, v{vL16B}")
        E(f"s_mov_b32 s{sT1}, 16384")
        if br == "B":
            E(f"s_lshl_b32 s{sT0}, s{sHP}, 4")
            E(f"s_add_u32 s{sT0}, s{sT0}, s{sRB}")
            E(f"s_lshl_b32 s{sT0}, s{sT0}, 2")
            E(f"s_add_u32 s{sT0}, s{sT0}, s{sL}")
            E(f"s_lshl_b32 s{sT0}, s{sT0}, 11")
            E(f"s_add_u32 s{sT0}, s{sT0}, {WS_KVP}")
            E(f"v_add_u32 v{t3}, s{sT0}, v{vL16B}")
            for i in range(2):
                E(f"buffer_store_dwordx4 {vr(on, 4)}, v{t3}, {sr(SWS, 4)}, 0 offen offset:{1024 * i} sc1", tag="CLR")
        for u in range(2):
            for i in range(2):
                E(f"buffer_store_dwordx4 {vr(on, 4)}, v{t2}, {sr(SWS, 4)}, {'0' if u == 0 else 's' + str(sT1)} offen offset:{1024 * i} sc1", tag="CLR")
    def step(s):
        nonlocal nxt, cur
        E.wait_tag(f"S{s}")
        if s == 0:
            lstamp(E, 4)
        if gate and s == OPT["fo"]:
            E.wait_tag("GCLR")
        E.barrier(lgkm0=True)
        if s == 0:
            lstamp(E, 5)
        if gate:
            d = stages[s]["base"] - cur; cur = stages[s]["base"]
            E(vadd_imm(vGX, d)); E(vadd_imm(vGX + 1, d))
            m = stages[s]["m"]
            for tt in range(2):
                E(f"ds_read_b128 {vr(GB + 8 * tt, 4)}, v{vGX + tt}")
                E(f"ds_read_b128 {vr(GB + 8 * tt + 4, 4)}, v{vGF} offset:{64 * (2 * m + tt)}")
        while nxt < len(stages) and stages[nxt]["after"] <= s and nxt <= s + OPT["ahead"]:
            issue(nxt); nxt += 1
        if gate:
            m = stages[s]["m"]
            for tt in range(2):
                E(f"v_mfma_f32_16x16x32_bf16 {vr(GL, 4)}, {vr(GB + 8 * tt + 4, 4)}, {vr(GB + 8 * tt, 4)}, {'0' if (m == 0 and tt == 0) else vr(GL, 4)}")
    if br == "A":
        for s in range(7):
            step(s)
        if gate:
            g = GL
            E(f"v_cvt_pk_bf16_f32 v{g + 1}, v{g}, v{g}")
            E(f"v_lshlrev_b32 v{g}, 16, v{g + 1}")
            E(f"v_mul_f32 v{g}, s{sL2E}, v{g}")
            E(f"v_exp_f32 v{g}, -v{g}")
            E(f"v_add_f32 v{g}, 1.0, v{g}")
            E(f"v_rcp_f32 v{g}, v{g}")
            E(f"v_cvt_pk_bf16_f32 v{g + 1}, v{g}, v{g}")
            E(f"v_lshlrev_b32 v{g}, 16, v{g + 1}")
            E.wait_tag("GCLR")
            E(f"buffer_store_dword v{g}, v{vGOFF}, {sr(SWS, 4)}, 0 offen sc1")
        E.barrier()
        E.barrier()
        E.barrier()
        wo(0); wo(1)
        if last:
            flags_wait_all(E, t0, t1, 128)
    else:
        for s in range(7):
            step(s)
        if last:
            flags_wait_all(E, t0, t1)
        E.barrier()
        E.barrier()
        wo(0)
        if last and OPT["fo"] < 5:
            flags_wait_all(E, t0, t1, 128)
        E.barrier()
        if last and OPT["fo"] >= 5:
            flags_wait_all(E, t0, t1, 128)
        E.barrier()
    E(f"s_cmp_ge_u32 s{sJ}, 28")
    E.flush_haz()
    E("s_cbranch_scc1 L_end")
    E.wait_tag("WO0")
    E.barrier()
    if br == "B":
        wo(1)
    E.force_wait(vm=0)
    E.barrier()
    if OPT["ldst"] and not last:
        Lz = newlabel("ls")
        E(f"s_cmp_lg_u32 s{sWV}, 8")
        E(f"s_cbranch_scc1 {Lz}")
        E.force_wait(vm=0, lgkm=0)
        E(f"s_lshl_b32 s{sT0}, s2, 7")
        E(f"s_add_u32 s{sT0}, s{sT0}, {WS_ST}")
        E(f"v_mov_b32 v20, s{sT0}")
        E("s_mov_b64 exec, 1")
        for i in range(6):
            E(f"v_mov_b32 v22, s{54 + 2 * i}")
            E(f"v_mov_b32 v23, s{54 + 2 * i + 1}")
            E(f"buffer_store_dwordx2 v[22:23], v20, {sr(SWS, 4)}, 0 offen offset:{8 * i}")
            E.force_wait(vm=0)
        E.label(Lz)
    E("s_branch L_end")

def p3_setup(E):
    rt, kh = sP3, sP3 + 1
    t0, t1, t2 = T0 + 8, T0 + 9, T0 + 1
    o = []
    o.append(f"s_and_b32 s{rt}, s{sWV}, 3")
    o.append(f"s_lshr_b32 s{kh}, s{sWV}, 2")
    o.append(f"s_lshl_b32 s{sT2}, s{sT}, 2")
    o.append(f"s_add_u32 s{sT2}, s{sT2}, s{rt}")
    o.append(f"s_lshl_b32 s{sP3 + 2}, s{sT2}, 14")
    o.append(f"s_lshl_b32 s{sP3 + 3}, s{kh}, 13")
    o.append(f"s_add_u32 s{sP3 + 2}, s{sP3 + 2}, s{sP3 + 3}")
    o.append(f"v_add_u32 v{pOF}, s{sP3 + 2}, v{vL16B}")
    o.append(f"s_lshl_b32 s{sT2}, s{sT2}, 4")
    o.append(f"v_add_u32 v{pROW}, s{sT2}, v{vL16}")
    o.append(f"v_bfe_u32 v{t0}, v{vLANE}, 2, 2")
    o.append(f"v_lshl_add_u32 v{t0}, v{vG}, 2, v{t0}")
    o.append(f"v_bfe_u32 v{t1}, v{t0}, 1, 2")
    o.append(f"v_and_b32 v{t2}, 3, v{vLANE}")
    o.append(f"v_lshlrev_b32 v{t2}, 3, v{t2}")
    o.append(f"v_lshl_add_u32 v{t2}, v{t0}, 7, v{t2}")
    o.append(f"s_mul_i32 s{sT2}, s{kh}, 28672")
    o.append(f"s_add_u32 s{sT2}, s{sT2}, {WOA_BASE}")
    o.append(f"v_add_u32 v{t2}, s{sT2}, v{t2}")
    o.append(f"s_lshl_b32 s{sT2}, s{kh}, 1")
    o.append(f"v_xor_b32 v{t1}, s{sT2}, v{t1}")
    for c in range(4):
        o.append(f"v_xor_b32 v{t0}, {c}, v{t1}")
        o.append(f"v_lshl_add_u32 v{pWO + c}, v{t0}, 5, v{t2}")
    o.append(f"v_add_u32 v7, 4096, v{pOF}")
    o.append(f"v_lshlrev_b32 v9, 2, v{pROW}")
    o.append(f"v_add_u32 v9, {WS_G}, v9")
    return o

sP3 = sMASK
pOF, pROW, pWO = 4, 5, 12
def p3_loads(br):
    of = 16 + 32 * br
    loads = [f"s_mov_b32 s{sT2}, {WS_OB if br else 0}"]
    for hl in range(8):
        loads.append(f"buffer_load_dwordx4 {vr(of + 4 * hl, 4)}, v{pOF if hl < 4 else 7}, {sr(SWS, 4)}, s{sT2} offen offset:{1024 * (hl & 3)} sc1")
    regs = list(range(of, of + 32))
    if br == 0:
        loads.append(f"buffer_load_dword v6, v9, {sr(SWS, 4)}, 0 offen sc1")
        regs.append(6)
    return loads, regs

def phase3(E):
    E.label("L_p3")
    E.vmq = []; E.lgq = []
    E(f"s_cmp_ge_u32 s{sJ}, 28")
    E("s_cbranch_scc1 L_fin")
    rt, kh = sP3, sP3 + 1
    vROW, vGV, vWO = pROW, 6, pWO
    vOF0, vOF1, vGA, vXO, vXP, vOUT = pOF, 7, 9, 8, 10, 11
    TMP = 144
    OF, AC, WF = 16, [80, 96], 112
    loads_for = p3_loads
    def gemm(br):
        of = OF + 32 * br
        prev = []
        for hl in range(8):
            wf = WF + 16 * (hl & 1)
            rd = []
            for c in range(4):
                for j in range(2):
                    rd.append(f"ds_read_b64_tr_b16 {vr(wf + 4 * c + 2 * j, 2)}, v{vWO + (c ^ (2 * (hl & 1)))} offset:{3584 * hl + 2048 * j}")
            E(interleave_front(prev, rd) if prev else rd)
            prev = []
            for c in (2, 3, 0, 1):
                acc = AC[br] + 4 * c
                prev.append(f"v_mfma_f32_16x16x32_bf16 {vr(acc, 4)}, {vr(wf + 4 * c, 4)}, {vr(of + 4 * hl, 4)}, {'0' if hl == 0 else vr(acc, 4)}")
        E(prev)
    E.barrier()
    stamp(E, 9)
    la, ra = loads_for(0)
    Lsk = newlabel("p3a")
    E(f"s_cmp_lg_u32 s{sBR}, 0")
    E.flush_haz()
    E(f"s_cbranch_scc1 {Lsk}")
    E(la)
    E.label(Lsk)
    E(f"s_lshl_b32 s{sT0}, s{sWV}, 12")
    E(f"s_add_u32 s{sT0}, s{sT0}, {XB3}")
    E(f"v_add_u32 v{vXO}, s{sT0}, v{vL16B}")
    E(f"s_xor_b32 s{sT0}, s{sWV}, 4")
    E(f"s_lshl_b32 s{sT0}, s{sT0}, 12")
    E(f"s_add_u32 s{sT0}, s{sT0}, {XB3}")
    E(f"v_add_u32 v{vXP}, s{sT0}, v{vL16B}")
    E(f"v_mul_u32_u24 v{vOUT}, 896, v{vROW}")
    E(f"v_lshl_add_u32 v{vOUT}, v{vG}, 3, v{vOUT}")
    E(f"s_lshl_b32 s{sT0}, s{sCT}, 7")
    E(f"s_lshl_b32 s{sT1}, s{kh}, 6")
    E(f"s_add_u32 s{sT0}, s{sT0}, s{sT1}")
    E(f"v_add_u32 v{vOUT}, s{sT0}, v{vOUT}")
    poll_loop(E, la, ra, "o", TMP, pre_issued=True)
    stamp(E, 10)
    gemm(0)
    for i in range(2):
        E(f"ds_write_b128 v{vXO}, {vr(AC[0] + 8 + 4 * i, 4)} offset:{1024 * i}")
    stamp(E, 11)
    lb, rb_ = loads_for(1)
    if not OPT["sent"]:
        E(lb)
    for c in range(4):
        E(vadd_imm(vWO + c, WOB_BASE - WOA_BASE))
    E.barrier()
    RA, T1, tp, omg = OF, OF + 8, OF + 16, OF + 24
    for i in range(2):
        E(f"ds_read_b128 {vr(RA + 4 * i, 4)}, v{vXP} offset:{1024 * i}")
    E(f"v_sub_f32 v{omg}, 1.0, v{vGV}")
    if OPT["round_final"]:
        E(f"v_cvt_pk_bf16_f32 v{omg + 1}, v{omg}, v{omg}")
        E(f"v_lshlrev_b32 v{omg}, 16, v{omg + 1}")
    for i in range(8):
        E(f"v_add_f32 v{T1 + i}, v{AC[0] + i}, v{RA + i}")
    if OPT["round_final"]:
        E(round_pairs(T1, T1, 8, tp))
    for i in range(8):
        E(f"v_mul_f32 v{T1 + i}, v{T1 + i}, v{vGV}")
    if OPT["round_final"]:
        E(round_pairs(T1, T1, 8, tp))
    if OPT["sent"]:
        vS = TMP + 2
        E(f"v_and_b32 v{vS}, 7, v{vLANE}")
        E(f"v_lshlrev_b32 v{vS}, 10, v{vS}")
        E(f"s_add_u32 s{sT0}, s{sP3 + 2}, {WS_OB + 1020}")
        E(f"v_add_u32 v{vS}, s{sT0}, v{vS}")
        Ls = newlabel("sn"); Lsd = newlabel("snd")
        E(f"s_mov_b32 s{sSPIN}, 0")
        E.label(Ls)
        E(f"buffer_load_dword v{TMP + 3}, v{vS}, {sr(SWS, 4)}, 0 offen sc1")
        E.force_wait(vm=0)
        E(f"v_cmp_eq_u32 vcc, -1, v{TMP + 3}")
        spin_tail(E, Ls, Lsd, sleep=OPT["sent"])
        poll_loop(E, lb, rb_, "o", TMP)
        stamp(E, 12)
        gemm(1)
    elif not OPT["prog"]:
        poll_loop(E, lb, rb_, "o", TMP, pre_issued=True)
        stamp(E, 12)
        gemm(1)
    else:
        of = OF + 32
        sMK = sP3 + 2
        for i in range(16):
            E(f"v_mov_b32 v{AC[1] + i}, 0")
        E(f"s_mov_b32 s{sMK}, 15")
        E(f"s_mov_b32 s{sSPIN}, 0")
        L = newlabel("pb"); Lc = newlabel("pbc"); Ld = newlabel("pbd")
        E.wait(lgkm=0)
        E.flush_haz()
        E(f"s_branch {Lc}")
        E.label(L)
        for pr in range(4):
            Ls = newlabel("pbl")
            E(f"s_bitcmp1_b32 s{sMK}, {pr}")
            E(f"s_cbranch_scc0 {Ls}")
            E(lb[1 + 2 * pr]); E(lb[2 + 2 * pr])
            E.out.append(Ls + ":")
        E.label(Lc)
        E.force_wait(vm=0)
        for pr in range(4):
            Ls = newlabel("pbk")
            g8 = of + 8 * pr
            E(f"s_bitcmp1_b32 s{sMK}, {pr}")
            E(f"s_cbranch_scc0 {Ls}")
            E(f"v_max3_u32 v{TMP}, v{g8}, v{g8 + 1}, v{g8 + 2}")
            E(f"v_max3_u32 v{TMP + 1}, v{g8 + 3}, v{g8 + 4}, v{g8 + 5}")
            E(f"v_max3_u32 v{TMP}, v{TMP}, v{g8 + 6}, v{g8 + 7}")
            E(f"v_max_u32 v{TMP}, v{TMP}, v{TMP + 1}")
            E(f"v_cmp_eq_u32 vcc, -1, v{TMP}")
            E(f"s_cbranch_vccnz {Ls}")
            for h2 in range(2):
                hl = 2 * pr + h2
                wf = WF + 16 * h2
                for c in range(4):
                    for j in range(2):
                        E(f"ds_read_b64_tr_b16 {vr(wf + 4 * c + 2 * j, 2)}, v{vWO + (c ^ (2 * (hl & 1)))} offset:{3584 * hl + 2048 * j}")
            for h2 in range(2):
                hl = 2 * pr + h2
                wf = WF + 16 * h2
                for c in (2, 3, 0, 1):
                    acc = AC[1] + 4 * c
                    E(f"v_mfma_f32_16x16x32_bf16 {vr(acc, 4)}, {vr(wf + 4 * c, 4)}, {vr(of + 4 * hl, 4)}, {vr(acc, 4)}")
            E(f"s_bitset0_b32 s{sMK}, {pr}")
            assert not E.lgq
            E.out.append(Ls + ":")
        E(f"s_cmp_eq_u32 s{sMK}, 0")
        E(f"s_cbranch_scc1 {Ld}")
        E(f"s_add_u32 s{sSPIN}, s{sSPIN}, 1")
        E(f"s_cmp_lt_u32 s{sSPIN}, {SPIN_MAX}")
        E(f"s_cbranch_scc0 {Ld}")
        E(f"s_branch {L}")
        E.out.append(Ld + ":")
        E.nop(9); E.clear_haz()
        stamp(E, 12)
    for i in range(2):
        E(f"ds_write_b128 v{vXO}, {vr(AC[1] + 8 + 4 * i, 4)} offset:{2048 + 1024 * i}")
    stamp(E, 13)
    E.barrier()
    for i in range(2):
        E(f"ds_read_b128 {vr(RA + 4 * i, 4)}, v{vXP} offset:{2048 + 1024 * i}")
    KB = AC[1]
    for i in range(8):
        E(f"v_add_f32 v{KB + i}, v{KB + i}, v{RA + i}")
    if OPT["round_final"]:
        E(round_pairs(KB, KB, 8, tp))
        for i in range(8):
            E(f"v_mul_f32 v{KB + i}, v{KB + i}, v{omg}")
        E(round_pairs(KB, KB, 8, tp))
        for i in range(8):
            E(f"v_add_f32 v{T1 + i}, v{T1 + i}, v{KB + i}")
    else:
        for i in range(8):
            E(f"v_fmac_f32 v{T1 + i}, v{KB + i}, v{omg}")
    for i in range(4):
        E(f"v_cvt_pk_bf16_f32 v{tp + i}, v{T1 + 2 * i}, v{T1 + 2 * i + 1}")
    for i in range(2):
        E(f"buffer_store_dwordx2 {vr(tp + 2 * i, 2)}, v{vOUT}, {sr(SOUT, 4)}, 0 offen offset:{32 * i} {OPT['outpol']}")
    stamp(E, 14)
    E.label("L_fin")
    if OPT["dbgspan"]:
        Lz = newlabel("sp")
        E(f"s_cmp_lg_u32 s{sWV}, 0")
        E(f"s_cbranch_scc1 {Lz}")
        E.force_wait(vm=0)
        E("s_memrealtime s[96:97]")
        E.force_wait(lgkm=0)
        E("s_not_b32 s94, s94")
        E("v_mov_b32 v144, s96")
        E("v_mov_b32 v145, s94")
        E("v_mov_b32 v146, 0")
        E("s_mov_b64 exec, 1")
        E(f"buffer_atomic_umax v144, v146, {sr(SDBG, 4)}, 0 offen")
        E(f"buffer_atomic_umax v145, v146, {sr(SDBG, 4)}, 0 offen offset:4")
        E("s_not_b32 s94, s94")
        E("v_mov_b32 v145, s94")
        E(f"buffer_atomic_umax v145, v146, {sr(SDBG, 4)}, 0 offen offset:8")
        E("s_mov_b64 exec, -1")
        E.label(Lz)
    if OPT["stamps"]:
        Lz = newlabel("st")
        E(f"s_cmp_lg_u32 s{sWV}, 0")
        E(f"s_cbranch_scc1 {Lz}")
        E.force_wait(vm=0, lgkm=0)
        E(f"s_lshl_b32 s{sT0}, s2, 7")
        E(f"s_add_u32 s{sT0}, s{sT0}, {WS_ST}")
        E(f"v_mov_b32 v{vA0}, s{sT0}")
        E("s_mov_b64 exec, 1")
        for i in range(15):
            E(f"v_mov_b32 v{TMP}, s{sSTAMP + 2 * i}")
            E(f"v_mov_b32 v{TMP + 1}, s{sSTAMP + 2 * i + 1}")
            E(f"buffer_store_dwordx2 {vr(TMP, 2)}, v{vA0}, {sr(SWS, 4)}, 0 offen offset:{8 * i}")
            E.force_wait(vm=0)
        E.label(Lz)

def main():
    hdr = open("cdna_kernels/" + NAME + ".s.ref").read().split("; Override launch geometry")[0]
    E.raw(hdr.rstrip())
    E.raw(f"; @launch grid=(256,1,1) block=(768,1,1) lds={LDS_BYTES}")
    E.raw('.amdgcn_target "amdgcn-amd-amdhsa--gfx950"')
    E.raw(".text")
    E.raw(f".globl {NAME}_kernel")
    E.raw(".p2align 8")
    E.raw(f".type {NAME}_kernel,@function")
    E.raw(f"{NAME}_kernel:")
    prologue(E)
    E(f"s_cmp_lt_u32 s{sWV}, 8")
    E.flush_haz()
    E("s_cbranch_scc1 L_cons")
    E(f"s_cmp_eq_u32 s{sWV}, 11")
    E("s_cbranch_scc1 L_ld3")
    E(f"s_cmp_eq_u32 s{sBR}, 0")
    E("s_cbranch_scc1 L_A_ld")
    for name, fn in (("L_B_ld", lambda: loader(E, "B", False)), ("L_ld3", None), ("L_B_ld3", lambda: loader(E, "B", True)),
                     ("L_A_ld", lambda: loader(E, "A", False)), ("L_A_ld3", lambda: loader(E, "A", True))):
        E.label(name); E.vmq = []; E.lgq = []
        if fn is None:
            E(f"s_cmp_eq_u32 s{sBR}, 0")
            E("s_cbranch_scc1 L_A_ld3")
        else:
            fn()
    E.label("L_cons")
    E(f"s_cmp_eq_u32 s{sBR}, 0")
    E("s_cbranch_scc0 L_B_main")
    E(f"s_cmp_lt_u32 s{sWV}, 2")
    E("s_cbranch_scc1 L_A_halo")
    for name, fn in (("L_A_main", lambda: cons_A(E, False)), ("L_A_halo", lambda: cons_A(E, True)), ("L_B_main", lambda: cons_B(E))):
        E.label(name); E.vmq = []; E.lgq = []
        fn()
        E.wait(lgkm=0)
        E.flush_haz()
        E("s_branch L_p3")
    phase3(E)
    E.label("L_end")
    E("s_endpgm")
    E.raw('.section .rodata,"a"')
    E.raw(".p2align 6")
    E.raw(f".amdhsa_kernel {NAME}_kernel")
    E.raw(f"  .amdhsa_next_free_vgpr {NVGPR}")
    E.raw("  .amdhsa_next_free_sgpr 102")
    E.raw(f"  .amdhsa_accum_offset {NVGPR}")
    E.raw("  .amdhsa_group_segment_fixed_size 0")
    E.raw("  .amdhsa_kernarg_size 88")
    E.raw("  .amdhsa_user_sgpr_count 2")
    E.raw("  .amdhsa_user_sgpr_kernarg_segment_ptr 1")
    E.raw("  .amdhsa_system_sgpr_workgroup_id_x 1")
    E.raw(".end_amdhsa_kernel")
    txt = E.text()
    import re
    mx = max(int(x) for x in re.findall(r"\bv\[?(\d+)", txt) + re.findall(r"\bv\[\d+:(\d+)\]", txt))
    assert mx < NVGPR, mx
    open(sys.argv[1], "w").write(txt)
    print("instructions:", E.nins, "max vgpr", mx)

main()
```

```python
import sys, struct, math
from asmlib import *

NAME = "gated_mix__sliding_local_dilated__linear_kernel_hedgehog__prompt"
OPT = dict(stamps=0, fine=0, round_final=1, pf=1, flag_at=5, ahead=2, nov=4, fill=5, mfsum=0, prio=1, pkfma=2, gat=90, no_comp=0, no_load=0, no_clr=0, lead=2, dbgspan=0, pf2=0, prog=0, ldst=0, pfA=0, atom=0, fk=0, psleep=2, sent=0, noflag=0, sbar=2, prea=1, outpol="", stag=0, fo=5, bearly=0, wobe=0)
for a in sys.argv[2:]:
    k, v = a.split("=")
    OPT[k] = int(v) if v.lstrip("-").isdigit() else v

LDS_BYTES = 163840
PHI_STRIDE, V_STRIDE = 264, 72
WS_OA, WS_OB, WS_KVP, WS_G, WS_ST = 0, 2 << 20, 4 << 20, 5 << 20, 8 << 20
WS_BYTES = 16 << 20
SPIN_MAX = 30000
SEGCOL = {"Q": 0, "K": 1, "V": 2}
SEGI = {"K": 0, "V": 1, "Q": 2}
WOA_BASE, WOB_BASE, XB3 = 58368, 0, 116736
B_SS = 39936
B_STAGES = [dict(m=m, segs=["K", "V", "Q"], base=B_SS * (m % 4)) for m in range(7)]
for i, st in enumerate(B_STAGES):
    prev = [j for j in range(i) if B_STAGES[j]["base"] == st["base"]]
    st["after"] = (prev[-1] + 2) if prev else -1
B_WPH = 159744
PHI_BASE = 0
VB = [128 * PHI_STRIDE, 128 * PHI_STRIDE + 128 * V_STRIDE]
KVF = 143360
A_SS = 39936
A_STAGES = [dict(m=m, segs=["K", "V", "Q"], base=A_SS * (m % 4)) for m in range(7)]
for i, st in enumerate(A_STAGES):
    prev = [j for j in range(i) if A_STAGES[j]["base"] == st["base"]]
    st["after"] = (prev[-1] + 2) if prev else -1
A_GATE = 159744
A_EXCH = XB3
def woff(br, k):
    return 18432 + 7168 * k

def f2u(x): return struct.unpack("<I", struct.pack("<f", x))[0]
LOG2E = f2u(1.4426950408889634)
SCALE = f2u(28 ** -0.5)

SX, SW, SWS, SDBG, SAUX, SWOA, SWOB, SOUT = 8, 12, 16, 20, 24, 28, 32, 36
sRB, sHP, sBR, sWV, sT, sCT, sJ, sT0, sT1, sM0 = 40, 41, 42, 43, 44, 45, 46, 47, 48, 49
sMASK = 50
sG3 = 66
sL2E, sSCL, sSPIN, sT2 = 68, 69, 70, 71
sKA = 72
sSTAMP = 72
sRG, sHH, s16K, sMP = 3, 4, 5, 6
sHIM = sG3 + 1

NVGPR = 168
vLANE, vL16, vG, vL16B = 0, 1, 2, 3
vXR, vTR, vPADB, vOOFF = 4, 6, 7, 8
vA0, vA1, vA2, vA3 = 9, 10, 11, 12
vSL, vXRH = 13, 13
ACC = [16, 32, 48]
T0 = 152

E = Emitter()
lblc = [0]
def newlabel(p):
    lblc[0] += 1
    return f"L_{p}_{lblc[0]}"

def stamp(E, idx, fine=False):
    if OPT["stamps"] and (idx == 0 or bool(OPT["fine"]) == fine):
        E(f"s_memrealtime {sr(sSTAMP + 2 * idx, 2)}")

def srd(E, d, lo, nbytes):
    E(f"s_mov_b32 s{d}, s{lo}")
    E(f"s_and_b32 s{d+1}, s{lo+1}, 0xffff")
    E(f"s_mov_b32 s{d+2}, {nbytes}")
    E(f"s_mov_b32 s{d+3}, 0x20000")

def dual_reduce(a, b, t, op):
    return [
        f"v_permlane32_swap_b32 v{a}, v{b}",
        f"{op} v{a}, v{a}, v{b}",
        f"v_mov_b32 v{t}, v{a}",
        f"v_permlane16_swap_b32 v{a}, v{t}",
        f"{op} v{a}, v{a}, v{t}",
        f"v_mov_b32 v{b}, v{a}",
        f"v_permlane32_swap_b32 v{a}, v{b}",
    ]

def round_pairs(src, dst, n, tmp):
    out = []
    for i in range(0, n, 2):
        out.append(f"v_cvt_pk_bf16_f32 v{tmp + i // 2}, v{src + i}, v{src + i + 1}")
    for i in range(0, n, 2):
        out.append(f"v_lshlrev_b32 v{dst + i}, 16, v{tmp + i // 2}")
        out.append(f"v_and_b32 v{dst + i + 1}, s{sHIM}, v{tmp + i // 2}")
    return out

def pack_op(acc, dst, zero_pad=True):
    out = [f"v_cvt_pk_bf16_f32 v{dst + i}, v{acc + 2 * i}, v{acc + 2 * i + 1}" for i in range(4)]
    if zero_pad:
        out += [f"v_cndmask_b32 v{dst + 2}, v{dst + 2}, 0, {sr(sG3, 2)}", f"v_cndmask_b32 v{dst + 3}, v{dst + 3}, 0, {sr(sG3, 2)}"]
    return out

def interleave_front(mm, rd):
    out = []
    n = max(1, (len(mm) * 3) // 4)
    j = 0
    for i, x in enumerate(mm):
        tgt = min(len(rd), ((i + 1) * len(rd) + n - 1) // n)
        while j < tgt:
            out.append(rd[j]); j += 1
        out.append(x)
    out += rd[j:]
    return out

def vadd_imm(reg, delta):
    if delta == 0:
        return []
    return [f"v_add_u32 v{reg}, {delta & 0xffffffff:#x}, v{reg}"]

def lstamp(E, i):
    if OPT["ldst"]:
        E(f"s_memrealtime {sr(54 + 2 * i, 2)}")

def prologue(E):
    E("s_cmp_ge_u32 s2, 256")
    E("s_cbranch_scc1 L_end")
    lstamp(E, 0)
    if OPT["dbgspan"]:
        E("s_memrealtime s[94:95]")
    E(f"s_load_dwordx16 {sr(sKA, 16)}, s[0:1], 0")
    E(f"s_load_dwordx4 {sr(sKA + 16, 4)}, s[0:1], 64")
    E(f"s_load_dwordx2 {sr(sKA + 20, 2)}, s[0:1], 80")
    E(f"v_lshrrev_b32 v{T0}, 6, v0")
    E(f"v_and_b32 v{vLANE}, 63, v0")
    E(f"v_readfirstlane_b32 s{sWV}, v{T0}")
    E(f"s_and_b32 s{sT0}, s2, 7")
    E(f"s_lshr_b32 s{sJ}, s2, 3")
    E(f"s_lshr_b32 s{sBR}, s{sJ}, 4")
    E(f"s_xor_b32 s{sBR}, s{sBR}, 1")
    E(f"s_and_b32 s{sRB}, s{sT0}, 3")
    E(f"s_lshl_b32 s{sRB}, s{sRB}, 2")
    E(f"s_bfe_u32 s{sT1}, s{sJ}, 0x20002")
    E(f"s_add_u32 s{sRB}, s{sRB}, s{sT1}")
    E(f"s_lshr_b32 s{sHP}, s{sT0}, 2")
    E(f"s_lshl_b32 s{sHP}, s{sHP}, 2")
    E(f"s_and_b32 s{sT1}, s{sJ}, 3")
    E(f"s_add_u32 s{sHP}, s{sHP}, s{sT1}")
    E(f"s_mul_i32 s{sT1}, s{sJ}, 37")
    E(f"s_lshr_b32 s{sT1}, s{sT1}, 8")
    E(f"s_lshl_b32 s{sT}, s{sT0}, 2")
    E(f"s_add_u32 s{sT}, s{sT}, s{sT1}")
    E(f"s_mul_i32 s{sT1}, s{sT1}, 7")
    E(f"s_sub_u32 s{sCT}, s{sJ}, s{sT1}")
    E(f"s_lshr_b32 s{sRG}, s{sWV}, 1")
    E(f"s_and_b32 s{sHH}, s{sWV}, 1")
    E(f"v_and_b32 v{vL16}, 15, v{vLANE}")
    E(f"v_lshrrev_b32 v{vG}, 4, v{vLANE}")
    E(f"v_lshlrev_b32 v{vL16B}, 4, v{vLANE}")
    E(f"s_mov_b32 s{sG3}, 0")
    E(f"s_mov_b32 s{sG3+1}, 0xffff0000")
    E(f"s_mov_b32 s{sL2E}, {LOG2E:#x}")
    E(f"s_mov_b32 s{sSCL}, {SCALE:#x}")

def srds(E):
    E.force_wait(lgkm=0)
    K = sKA
    srd(E, SX, K + 0, 2048 * 896)
    E(f"s_cmp_eq_u32 s{sBR}, 0")
    E(f"s_cselect_b32 s{sT0}, s{K+2}, s{K+8}")
    E(f"s_cselect_b32 s{sT1}, s{K+3}, s{K+9}")
    srd(E, SW, sT0, 448 * 2688)

def srds2(E):
    K = sKA
    E(f"s_mov_b32 s{sT2}, 25088")
    E(f"s_cmp_eq_u32 s{sBR}, 0")
    E(f"s_cselect_b32 s{sT0}, s{K+14}, s{K+10}")
    E(f"s_cselect_b32 s{sT1}, s{K+15}, s{K+11}")
    E(f"s_cselect_b32 s{sT2}, 896, s{sT2}")
    E(f"s_mov_b32 s{SAUX}, s{sT0}")
    E(f"s_and_b32 s{SAUX+1}, s{sT1}, 0xffff")
    E(f"s_mov_b32 s{SAUX+2}, s{sT2}")
    E(f"s_mov_b32 s{SAUX+3}, 0x20000")
    srd(E, SWS, K + 20, WS_BYTES)
    srd(E, SWOA, K + 4, 448 * 896)
    srd(E, SWOB, K + 12, 448 * 896)
    srd(E, SOUT, K + 16, 2048 * 896)
    srd(E, SDBG, K + 18, 256)

def stamps_init(E):
    if OPT["stamps"]:
        stamp(E, 0)
        for i in range(1, 15):
            E(f"s_mov_b64 {sr(sSTAMP + 2 * i, 2)}, 0")

def prefetch(E, sJ=sJ):
    K = sKA
    SP = sMASK + 2
    t0, t1, t2, t3 = T0, T0 + 1, T0 + 2, T0 + 3
    Lx = newlabel("pfx"); Ld = newlabel("pfd")
    E(f"s_cmp_ge_u32 s{sWV}, 6")
    E.flush_haz()
    E(f"s_cbranch_scc1 {Lx}")
    E(f"s_cmp_lt_u32 s{sWV}, 3")
    E(f"s_cselect_b32 s{sT0}, s{K+2}, s{K+8}")
    E(f"s_cselect_b32 s{sT1}, s{K+3}, s{K+9}")
    E(f"s_cselect_b32 s{sT2}, 0, 3")
    srd(E, SP, sT0, 448 * 2688)
    E(f"s_sub_u32 s{sT2}, s{sWV}, s{sT2}")
    E(f"s_lshl_b32 s{sT2}, s{sT2}, 6")
    E(f"v_add_u32 v{t0}, s{sT2}, v{vLANE}")
    E(f"v_mul_u32_u24 v{t1}, 5462, v{t0}")
    E(f"v_lshrrev_b32 v{t1}, 16, v{t1}")
    E(f"v_mul_u32_u24 v{t2}, 12, v{t1}")
    E(f"v_sub_u32 v{t2}, v{t0}, v{t2}")
    E(f"v_lshrrev_b32 v{t3}, 2, v{t2}")
    E(f"v_and_b32 v{t2}, 3, v{t2}")
    E(f"s_mul_i32 s{sT2}, s{sJ}, 14")
    E(f"v_add_u32 v{t1}, s{sT2}, v{t1}")
    E(f"v_mul_u32_u24 v{t1}, 2688, v{t1}")
    E(f"v_mul_u32_u24 v{t3}, 896, v{t3}")
    E(f"v_lshl_add_u32 v{t2}, v{t2}, 7, v{t3}")
    E(f"s_lshr_b32 s{sT2}, s{sHP}, 2")
    E(f"s_mul_i32 s{sT2}, s{sT2}, 384")
    E(f"v_add3_u32 v{t1}, v{t1}, v{t2}, s{sT2}")
    E(f"v_mov_b32 v{t2}, 0x1000000")
    E(f"v_cmp_gt_u32 vcc, 168, v{t0}")
    E(f"v_cndmask_b32 v{t1}, v{t2}, v{t1}, vcc")
    E(f"buffer_load_dword v15, v{t1}, {sr(SP, 4)}, 0 offen")
    E.flush_haz()
    E(f"s_branch {Ld}")
    E.label(Lx)
    E(f"s_sub_u32 s{sT2}, s{sWV}, 6")
    E(f"s_lshl_b32 s{sT2}, s{sT2}, 6")
    E(f"v_add_u32 v{t0}, s{sT2}, v{vLANE}")
    E(f"s_mul_i32 s{sT2}, s{sJ}, 112")
    E(f"s_lshr_b32 s{sT1}, s{sRB}, 2")
    E(f"s_mul_i32 s{sT1}, s{sT1}, 3584")
    E(f"s_add_u32 s{sT2}, s{sT2}, s{sT1}")
    E(f"v_add_u32 v{t1}, s{sT2}, v{t0}")
    E(f"v_lshlrev_b32 v{t1}, 7, v{t1}")
    E(f"v_mov_b32 v{t2}, 0x1000000")
    E(f"v_cmp_gt_u32 vcc, 112, v{t0}")
    E(f"v_cndmask_b32 v{t1}, v{t2}, v{t1}, vcc")
    E(f"buffer_load_dword v15, v{t1}, {sr(SX, 4)}, 0 offen")
    E.label(Ld)
    E.vmq = [{"dst": set(), "tag": "PF"}]

def prefetch2(E, t0, t1, dst):
    Ld = newlabel("p2d"); Lb = newlabel("p2b")
    E(f"s_and_b32 s{sT0}, s{sWV}, 3")
    E(f"s_lshl_b32 s{sT0}, s{sT0}, 6")
    E(f"v_add_u32 v{t0}, s{sT0}, v{vLANE}")
    E(f"s_and_b32 s{sT0}, s{sJ}, 15")
    E(f"s_mul_i32 s{sT0}, s{sT0}, 196")
    E(f"v_add_u32 v{t1}, s{sT0}, v{t0}")
    E(f"v_lshlrev_b32 v{t1}, 7, v{t1}")
    E(f"v_cmp_gt_u32 vcc, 196, v{t0}")
    E(f"v_mov_b32 v{t0}, 0x1000000")
    E(f"v_cndmask_b32 v{t1}, v{t0}, v{t1}, vcc")
    E(f"s_cmp_ge_u32 s{sWV}, 4")
    E.flush_haz()
    E(f"s_cbranch_scc1 {Lb}")
    E(f"buffer_load_dword v{dst}, v{t1}, {sr(SWOA, 4)}, 0 offen")
    E(f"s_branch {Ld}")
    E.label(Lb)
    E(f"buffer_load_dword v{dst}, v{t1}, {sr(SWOB, 4)}, 0 offen")
    E.label(Ld)

def flag_store(E, val, t0, t1, base=0):
    if OPT["noflag"]:
        return
    if OPT["atom"]:
        E(f"s_lshl_b32 s{sT0}, s{sRB}, 2")
        E(f"v_mov_b32 v{t0}, s{sT0}")
        E(f"v_mov_b32 v{t1}, 1")
        E("s_mov_b64 exec, 1")
        E(f"buffer_atomic_add v{t1}, v{t0}, {sr(SDBG, 4)}, 0 offen offset:{base} sc1")
        E("s_mov_b64 exec, -1")
        return
    E(f"s_lshl_b32 s{sT0}, s{sRB}, 3")
    E(f"s_add_u32 s{sT0}, s{sT0}, s{sHP}")
    if base:
        E(f"s_add_u32 s{sT0}, s{sT0}, {base}")
    E(f"v_mov_b32 v{t0}, s{sT0}")
    E(f"v_mov_b32 v{t1}, {val}")
    E("s_mov_b64 exec, 1")
    E(f"buffer_store_byte v{t1}, v{t0}, {sr(SDBG, 4)}, 0 offen sc1")
    E("s_mov_b64 exec, -1")

def spin_tail(E, L, Ld, sleep=2):
    E(f"s_cbranch_vccz {Ld}")
    E(f"s_add_u32 s{sSPIN}, s{sSPIN}, 1")
    E(f"s_cmp_lt_u32 s{sSPIN}, {SPIN_MAX}")
    E(f"s_cbranch_scc0 {Ld}")
    E(f"s_sleep {sleep}")
    E(f"s_branch {L}")
    E.label(Ld)

def flags_wait_all(E, t0, t1, base=0):
    if OPT["noflag"]:
        return
    L = newlabel("fl"); Ld = newlabel("fld")
    E(f"v_and_b32 v{t0}, {15 if OPT['atom'] else 31}, v{vLANE}")
    E(f"v_lshlrev_b32 v{t0}, 2, v{t0}")
    E(f"s_mov_b32 s{sSPIN}, 0")
    E(f"s_mov_b32 s{sT1}, {'8' if OPT['atom'] else '0x01010101'}")
    E.label(L)
    E(f"buffer_load_dword v{t1}, v{t0}, {sr(SDBG, 4)}, 0 offen offset:{base} sc1")
    E.force_wait(vm=0)
    E(f"v_cmp_ne_u32 vcc, s{sT1}, v{t1}")
    spin_tail(E, L, Ld, sleep=40)

def check_regs(E, regs, tmp):
    rs = list(regs)
    E(f"v_max_u32 v{tmp}, v{rs[0]}, v{rs[1]}")
    rest = rs[2:]
    while len(rest) >= 2:
        E(f"v_max3_u32 v{tmp}, v{tmp}, v{rest[0]}, v{rest[1]}"); rest = rest[2:]
    if rest:
        E(f"v_max_u32 v{tmp}, v{tmp}, v{rest[0]}")
    E(f"v_cmp_eq_u32 vcc, -1, v{tmp}")

def poll_loop(E, loads, regs, name, tmp, pre_issued=False):
    L = newlabel(name); Lc = newlabel(name + "c"); Ld = newlabel(name + "d")
    E(f"s_mov_b32 s{sSPIN}, 0")
    if pre_issued:
        E.flush_haz()
        E(f"s_branch {Lc}")
    E.label(L)
    E(loads)
    E.label(Lc)
    E.force_wait(vm=0)
    check_regs(E, regs, tmp)
    spin_tail(E, L, Ld, sleep=OPT["psleep"])

def cons_setup(E, br):
    t0, t1, t2 = T0, T0 + 1, T0 + 2
    E(f"v_bfe_u32 v{t0}, v{vLANE}, 2, 2")
    E(f"v_and_b32 v{t1}, 3, v{vLANE}")
    E(f"v_lshlrev_b32 v{t2}, 3, v{vG}")
    E(f"v_lshl_add_u32 v{t2}, v{t0}, 1, v{t2}")
    E(f"v_mul_u32_u24 v{t2}, 112, v{t2}")
    E(f"v_lshl_add_u32 v{vTR}, v{t1}, 3, v{t2}")
    E(f"s_mul_i32 s{sT0}, s{sHH}, 56")
    E(f"v_add_u32 v{vTR}, s{sT0}, v{vTR}")
    E(f"v_lshrrev_b32 v{t0}, 1, v{vL16}")
    E(f"v_xor_b32 v{t0}, v{t0}, v{vG}")
    E(f"v_lshlrev_b32 v{t0}, 4, v{t0}")
    E(f"v_lshl_add_u32 v{t0}, v{vL16}, 7, v{t0}")
    E(f"s_lshl_b32 s{sT0}, s{sRG}, 12")
    E(f"v_add_u32 v{vXR}, s{sT0}, v{t0}")
    E(f"v_xor_b32 v{vXR+1}, 64, v{vXR}")
    E(f"s_lshl_b32 s{sT0}, s{sRB}, 3")
    E(f"s_lshl_b32 s{sT1}, s{sRG}, 1")
    E(f"s_add_u32 s{sT0}, s{sT0}, s{sT1}")
    E(f"s_lshl_b32 s{sT0}, s{sT0}, 4")
    E(f"s_lshl_b32 s{sT1}, s{sHP}, 1")
    E(f"s_add_u32 s{sT0}, s{sT0}, s{sT1}")
    E(f"s_add_u32 s{sT0}, s{sT0}, s{sHH}")
    E(f"s_lshl_b32 s{sT0}, s{sT0}, 10")
    E(f"s_lshl_b32 s{sT1}, s{sBR}, 21")
    E(f"s_add_u32 s{sT0}, s{sT0}, s{sT1}")
    E(f"v_add_u32 v{vOOFF}, s{sT0}, v{vL16B}")
    E(f"s_mov_b32 s{s16K}, 16384")

def ostore(reg, u):
    return f"buffer_store_dwordx4 {vr(reg, 4)}, v{vOOFF}, {sr(SWS, 4)}, {'0' if u == 0 else 's' + str(s16K)} offen sc1"

class Cons:
    def __init__(self, E, br, stages, buf0, bufsz, nbuf, halo=False, HACC=None):
        self.E, self.br, self.stages = E, br, stages
        self.buf0, self.bufsz, self.nbuf, self.halo, self.HACC = buf0, bufsz, nbuf, halo, HACC
        self.cur_base = 0
        self.ks = 0; self.pending = []
        self.nbar = 0
        self.prebar = None

    def parts(self, s, tt, buf):
        st = self.stages[s]; m = st["m"]; t = 2 * m + tt
        first = t == 0
        B0 = self.buf0 + self.bufsz * buf
        rd, mm = [], []
        xr = [B0, B0 + 4]
        for u in range(2):
            rd.append(f"ds_read_b128 {vr(xr[u], 4)}, v{vXR + tt} offset:{2048 * u}")
        wb = B0 + 8
        if self.halo:
            hx = B0 + 8; wb = B0 + 12
            rd.append(f"ds_read_b128 {vr(hx, 4)}, v{vXR + tt} offset:16384")
        elif self.br == "A":
            wb = B0 + 12
        for k, seg in enumerate(st["segs"]):
            si = SEGI[seg]
            tr = not (self.br == "A" and seg == "V")
            for c in range(2):
                wf = wb + 8 * k + 4 * c
                for j in range(2):
                    rd.append(f"ds_read_b64_tr_b16 {vr(wf + 2 * j, 2)}, v{vTR} offset:{woff(self.br, k) + 3584 * tt + 112 * j + 32 * c}")
                for u in range(2):
                    acc = ACC[si] + 8 * u + 4 * c
                    a_, b_ = (vr(wf, 4), vr(xr[u], 4)) if tr else (vr(xr[u], 4), vr(wf, 4))
                    mm.append(f"v_mfma_f32_16x16x32_bf16 {vr(acc, 4)}, {a_}, {b_}, {'0' if first else vr(acc, 4)}")
                if self.halo and seg != "Q":
                    acc = self.HACC + 8 * si + 4 * c
                    a_, b_ = (vr(wf, 4), vr(hx, 4)) if tr else (vr(hx, 4), vr(wf, 4))
                    mm.append(f"v_mfma_f32_16x16x32_bf16 {vr(acc, 4)}, {a_}, {b_}, {'0' if first else vr(acc, 4)}")
        if OPT["no_comp"] == 1:
            return [], []
        if OPT["no_comp"] == 2:
            return rd, []
        if OPT["no_comp"] == 3:
            return [], mm
        return rd, mm

    def run(self, s0, s1):
        E = self.E
        prev = []
        for ks in range(2 * s0, 2 * s1 + 2):
            s, tt = divmod(ks, 2)
            pre = []
            if tt == 0:
                nlead = min(OPT["lead"], len(prev))
                E(prev[:nlead]); prev = prev[nlead:]
                if self.prebar:
                    self.prebar(E, s)
                E.barrier(lgkm0=False)
                self.nbar += 1
                if self.nbar <= 14:
                    stamp(E, self.nbar, fine=True)
                if OPT["stamps"] and OPT["fine"] and self.nbar in (2, 7):
                    E(f"s_memtime {sr(sSTAMP + 2 * (12 if self.nbar == 2 else 13), 2)}")
                d = self.stages[s]["base"] - self.cur_base
                self.cur_base = self.stages[s]["base"]
                for r in (vXR, vXR + 1, vTR):
                    E(vadd_imm(r, d))
            rd, mm = self.parts(s, tt, ks % 2)
            if prev:
                E(interleave_front(prev, rd))
            else:
                E(rd)
            prev = mm
        E(prev)

vL2E = 162
ONES = 164
def phi_path(si, outreg, tmps, WP):
    streams = []
    for u in range(2):
        T = tmps[u]
        P = ACC[si] + 8 * u
        op, pk, Ep, Em = T, T, P, T + 4
        mx, mn, mx1, mn1 = T + 12, T + 13, T + 14, T + 15
        t = T
        O = outreg + 8 * u
        o = []
        o += pack_op(P, op)
        for ft in range(2):
            o.append(f"v_mfma_f32_16x16x32_bf16 {vr(P + 4 * ft, 4)}, {vr(WP + 4 * ft, 4)}, {vr(op, 4)}, 0")
        o += round_pairs(P, P, 8, pk)
        o.append(f"v_max3_f32 v{mx}, v{P}, v{P+1}, v{P+2}")
        o.append(f"v_min3_f32 v{mn}, v{P}, v{P+1}, v{P+2}")
        o.append(f"v_max3_f32 v{mx}, v{mx}, v{P+3}, v{P+4}")
        o.append(f"v_min3_f32 v{mn}, v{mn}, v{P+3}, v{P+4}")
        o.append(f"v_max3_f32 v{mx}, v{mx}, v{P+5}, v{P+6}")
        o.append(f"v_min3_f32 v{mn}, v{mn}, v{P+5}, v{P+6}")
        o.append(f"v_max_f32 v{mx}, v{mx}, v{P+7}")
        o.append(f"v_max_f32 v{mn}, -v{mn}, -v{P+7}")
        o += dual_reduce(mx, mn, t, "v_max_f32")
        o.append(f"v_mul_f32 v{mx}, s{sL2E}, v{mx}")
        o.append(f"v_mul_f32 v{mn}, s{sL2E}, v{mn}")
        o.append(f"v_add_f32 v{mx1}, v{mx}, v{vPADB}")
        o.append(f"v_add_f32 v{mn1}, v{mn}, v{vPADB}")
        for i in (range(8) if not OPT["pkfma"] else []):
            o.append(f"v_fma_f32 v{Em+i}, -v{P+i}, s{sL2E}, -v{mn if i < 4 else mn1}")
            o.append(f"v_fma_f32 v{Ep+i}, v{P+i}, s{sL2E}, -v{mx if i < 4 else mx1}")
        for i in (range(0, 8, 2) if OPT["pkfma"] else []):
            mm_ = vr(mx if i < 4 else mx1, 2)
            if OPT["pkfma"] == 2:
                o.append(f"v_pk_fma_f32 {vr(Em+i, 2)}, {vr(P+i, 2)}, {vr(vL2E, 2)}, {mm_} op_sel:[0,0,1] op_sel_hi:[1,1,1] neg_lo:[1,0,1] neg_hi:[1,0,1]")
                o.append(f"v_pk_fma_f32 {vr(Ep+i, 2)}, {vr(P+i, 2)}, {vr(vL2E, 2)}, {mm_} op_sel_hi:[1,1,0] neg_lo:[0,0,1] neg_hi:[0,0,1]")
                continue
            o.append(f"v_pk_fma_f32 {vr(Em+i, 2)}, {vr(P+i, 2)}, {sr(sL2E, 2)}, {mm_} op_sel:[0,0,1] op_sel_hi:[1,0,1] neg_lo:[1,0,1] neg_hi:[1,0,1]")
            o.append(f"v_pk_fma_f32 {vr(Ep+i, 2)}, {vr(P+i, 2)}, {sr(sL2E, 2)}, {mm_} op_sel_hi:[1,0,0] neg_lo:[0,0,1] neg_hi:[0,0,1]")
        for i in range(8):
            o.append(f"v_exp_f32 v{Ep+i}, v{Ep+i}")
            o.append(f"v_exp_f32 v{Em+i}, v{Em+i}")
        if OPT["mfsum"]:
            for i in range(4):
                o.append(f"v_cvt_pk_bf16_f32 v{O + i}, v{Ep + 2 * i}, v{Ep + 2 * i + 1}")
                o.append(f"v_cvt_pk_bf16_f32 v{O + 4 + i}, v{Em + 2 * i}, v{Em + 2 * i + 1}")
            SP, SM = T, T + 12
            o.append(f"v_mfma_f32_16x16x32_bf16 {vr(SP, 4)}, {vr(ONES, 4)}, {vr(O, 4)}, 0")
            o.append(f"v_mfma_f32_16x16x32_bf16 {vr(SM, 4)}, {vr(ONES, 4)}, {vr(O + 4, 4)}, 0")
            sp, sm = SP, SM
        else:
            sp, sm = mx1, mn1
            o.append(f"v_add_f32 v{sp}, v{Ep}, v{Ep+1}")
            o.append(f"v_add_f32 v{sm}, v{Em}, v{Em+1}")
            for i in range(2, 8):
                o.append(f"v_add_f32 v{sp}, v{sp}, v{Ep+i}")
                o.append(f"v_add_f32 v{sm}, v{sm}, v{Em+i}")
            o += dual_reduce(sp, sm, t, "v_add_f32")
        o.append(f"v_rcp_f32 v{sp}, v{sp}")
        o.append(f"v_rcp_f32 v{sm}, v{sm}")
        for i in range(8):
            o.append(f"v_mul_f32 v{Ep+i}, v{Ep+i}, v{sp}")
            o.append(f"v_mul_f32 v{Em+i}, v{Em+i}, v{sm}")
        for i in range(4):
            o.append(f"v_cvt_pk_bf16_f32 v{O + i}, v{Ep + 2 * i}, v{Ep + 2 * i + 1}")
            o.append(f"v_cvt_pk_bf16_f32 v{O + 4 + i}, v{Em + 2 * i}, v{Em + 2 * i + 1}")
        streams.append(o)
    k = OPT["stag"]
    if k:
        a_, b_ = streams
        head = interleave(a_[:8], b_[:8]); a_, b_ = a_[8:], b_[8:]
        return head + a_[:k] + interleave(a_[k:], b_[:len(b_) - k]) + b_[len(b_) - k:]
    return interleave(streams[0], streams[1])

def cons_B(E):
    WP, PHI, BUF = 64, 72, 88
    cons_setup(E, "B")
    srds(E); srds2(E)
    if OPT["sbar"]:
        E.barrier()
    if OPT["pf"] and not OPT["pfA"]:
        prefetch(E)
    stamps_init(E)
    ones = PHI
    for i in range(4):
        E(f"v_mov_b32 v{ones + i}, -1")
        E(f"v_mov_b32 v{ONES + i}, 0x3f803f80")
    E(f"v_mov_b32 v{vL2E}, s{sL2E}"); E(f"v_mov_b32 v{vL2E + 1}, s{sL2E}")
    vKV = 14
    E(f"s_lshl_b32 s{sT0}, s{sHP}, 4")
    E(f"s_add_u32 s{sT0}, s{sT0}, s{sRB}")
    E(f"s_lshl_b32 s{sT0}, s{sT0}, 3")
    E(f"s_add_u32 s{sT0}, s{sT0}, s{sWV}")
    E(f"s_lshl_b32 s{sT0}, s{sT0}, 10")
    E(f"s_add_u32 s{sT0}, s{sT0}, {WS_KVP}")
    E(f"v_add_u32 v{vKV}, s{sT0}, v{vL16B}")
    E(f"v_mov_b32 v{vPADB}, 0")
    E(f"v_mov_b32 v{T0}, 0x7149f2ca")
    E(f"v_cndmask_b32 v{vPADB}, v{vPADB}, v{T0}, {sr(sG3, 2)}")
    E(f"s_lshl_b32 s{sT2}, s{sRG}, 5")
    E(f"v_add_u32 v{vSL}, s{sT2}, v{vL16}")
    E(f"v_mul_u32_u24 v{vA0}, {PHI_STRIDE}, v{vSL}")
    E(f"v_lshl_add_u32 v{vA0}, v{vG}, 3, v{vA0}")
    E(f"s_lshl_b32 s{sT2}, s{sHH}, 7")
    E(f"v_add_u32 v{vA0}, s{sT2}, v{vA0}")
    E(f"v_mul_u32_u24 v{vA1}, {V_STRIDE}, v{vSL}")
    E(f"v_lshl_add_u32 v{vA1}, v{vG}, 3, v{vA1}")
    E(f"s_mul_i32 s{sT0}, s{sHH}, {VB[1] - VB[0]}")
    E(f"s_add_u32 s{sT0}, s{sT0}, {VB[0]}")
    E(f"v_add_u32 v{vA1}, s{sT0}, v{vA1}")
    t0, t1 = T0, T0 + 1
    E(f"v_and_b32 v{t0}, 1, v{vG}")
    E(f"v_lshlrev_b32 v{t0}, 4, v{t0}")
    E(f"v_bfe_u32 v{t1}, v{vLANE}, 2, 2")
    E(f"v_lshl_add_u32 v{t0}, v{t1}, 2, v{t0}")
    E(f"v_lshrrev_b32 v{t1}, 1, v{vG}")
    E(f"v_lshl_add_u32 v{t0}, v{t1}, 1, v{t0}")
    E(f"v_and_b32 v{t1}, 3, v{vLANE}")
    E(f"v_lshlrev_b32 v{t1}, 3, v{t1}")
    E(f"s_lshr_b32 s{sT0}, s{sWV}, 1")
    E(f"s_lshl_b32 s{sT0}, s{sT0}, 6")
    E(f"v_mul_u32_u24 v{vA2}, {PHI_STRIDE}, v{t0}")
    E(f"v_add3_u32 v{vA2}, v{vA2}, v{t1}, s{sT0}")
    E(f"s_lshr_b32 s{sT0}, s{sWV}, 2")
    E(f"s_mul_i32 s{sT0}, s{sT0}, {VB[1] - VB[0]}")
    E(f"s_add_u32 s{sT0}, s{sT0}, {VB[0]}")
    E(f"s_and_b32 s{sT1}, s{sWV}, 1")
    E(f"s_lshl_b32 s{sT1}, s{sT1}, 5")
    E(f"s_add_u32 s{sT0}, s{sT0}, s{sT1}")
    E(f"v_mul_u32_u24 v{vA3}, {V_STRIDE}, v{t0}")
    E(f"v_add3_u32 v{vA3}, v{vA3}, v{t1}, s{sT0}")
    w1, w2 = T0 + 8, T0 + 9
    E(f"v_bfe_u32 v{t0}, v{vLANE}, 2, 2")
    E(f"v_lshl_add_u32 v{t0}, v{vG}, 2, v{t0}")
    E(f"v_mul_u32_u24 v{t0}, 56, v{t0}")
    E(f"s_mul_i32 s{sT2}, s{sHH}, 1568")
    E(f"s_add_u32 s{sT2}, s{sT2}, {B_WPH}")
    E(f"v_add_u32 v{t0}, s{sT2}, v{t0}")
    E(f"v_and_b32 v{t1}, 3, v{vLANE}")
    E(f"v_min_u32 v{w2}, 2, v{t1}")
    E(f"v_lshl_add_u32 v{w1}, v{t1}, 3, v{t0}")
    E(f"v_lshl_add_u32 v{w2}, v{w2}, 3, v{t0}")
    C = Cons(E, "B", B_STAGES, BUF, 32, 2)
    def prebar(E, s):
        if s == 3:
            for ft in range(2):
                for j in range(2):
                    E(f"ds_read_b64_tr_b16 {vr(WP + 4 * ft + 2 * j, 2)}, v{w1 if ft == 0 else w2} offset:{896 * j + 32 * ft}")
            for ft in range(2):
                for i in (2, 3):
                    r = WP + 4 * ft + i
                    E(f"v_cndmask_b32 v{r}, v{r}, 0, {sr(sG3, 2)}")
    C.prebar = prebar
    C.run(0, 6)
    stamp(E, 1)
    SCR = BUF + 32
    vp0 = T0
    F = [f"v_mov_b32 v{vp0 + 8}, 0x3f80"]
    for u in range(2):
        vp = vp0 + 4 * u
        F += pack_op(ACC[1] + 8 * u, vp, zero_pad=False)
        F.append(f"v_cndmask_b32 v{vp + 2}, v{vp + 2}, v{vp0 + 8}, {sr(sG3, 2)}")
        F.append(f"v_cndmask_b32 v{vp + 3}, v{vp + 3}, 0, {sr(sG3, 2)}")
    for u in range(2):
        for dt in range(2):
            F.append(f"ds_write_b64 v{vA1}, {vr(vp0 + 4 * u + 2 * dt, 2)} offset:{16 * V_STRIDE * u + 32 * dt}")
    body = phi_path(0, PHI, [SCR, SCR + 16], WP)
    E(body[:16]); E(F); E(body[16:])
    for u in range(2):
        for sg in range(2):
            for ft in range(2):
                E(f"ds_write_b64 v{vA0}, {vr(PHI + 8 * u + 4 * sg + 2 * ft, 2)} offset:{PHI_BASE + 16 * PHI_STRIDE * u + 64 * sg + 32 * ft}")
    stamp(E, 3)
    E.barrier()
    KA, KB_, KD = ACC[0], SCR, SCR + 16
    for ks in range(4):
        for j in range(2):
            E(f"ds_read_b64_tr_b16 {vr(KB_ + 4 * ks + 2 * j, 2)}, v{vA3} offset:{(32 * ks + j) * V_STRIDE}")
        for ft in range(2):
            for j in range(2):
                E(f"ds_read_b64_tr_b16 {vr(KA + 8 * ks + 4 * ft + 2 * j, 2)}, v{vA2} offset:{PHI_BASE + (32 * ks + j) * PHI_STRIDE + 32 * ft}")
        if ks >= 1:
            for ft in range(2):
                cin = "0" if ks == 1 else vr(KD + 4 * ft, 4)
                E(f"v_mfma_f32_16x16x32_bf16 {vr(KD + 4 * ft, 4)}, {vr(KA + 8 * (ks - 1) + 4 * ft, 4)}, {vr(KB_ + 4 * (ks - 1), 4)}, {cin}")
    for ft in range(2):
        E(f"v_mfma_f32_16x16x32_bf16 {vr(KD + 4 * ft, 4)}, {vr(KA + 24 + 4 * ft, 4)}, {vr(KB_ + 12, 4)}, {vr(KD + 4 * ft, 4)}")
    kp = T0
    E(pack_op(KD, kp, zero_pad=False))
    for i in range(4):
        E(f"v_min_u32 v{kp + i}, -2, v{kp + i}")
    E(f"buffer_store_dwordx4 {vr(kp, 4)}, v{vKV}, {sr(SWS, 4)}, 0 offen sc1")
    stamp(E, 4)
    E.barrier()
    G = BUF
    E(f"s_lshl_b32 s{sT0}, s{sHP}, 17")
    E(f"s_lshl_b32 s{sT1}, s{sWV}, 10")
    E(f"s_add_u32 s{sT0}, s{sT0}, s{sT1}")
    E(f"s_add_u32 s{sT0}, s{sT0}, {WS_KVP}")
    E(f"v_add_u32 v{vA1}, s{sT0}, v{vL16B}")
    loads = []
    for p in range(16):
        loads.append(f"s_mov_b32 s{sT0}, {8192 * p}")
        loads.append(f"buffer_load_dwordx4 {vr(G + 4 * p, 4)}, v{vA1}, {sr(SWS, 4)}, s{sT0} offen sc1")
    body = phi_path(2, PHI, [ACC[0], ACC[1]], WP)
    h = len(body) * OPT["gat"] // 100
    E(body[:h])
    E.barrier()
    stamp(E, 5)
    E(loads)
    E(body[h:])
    E(p3_setup(E))
    stamp(E, 6)
    SEL = T0 + 2
    SUM = ACC[0]
    t0_, t1_ = ACC[0] + 8, ACC[0] + 9
    E(f"v_lshrrev_b32 v{t0_}, 2, v{vL16}")
    E(f"v_cmp_eq_u32 vcc, v{t0_}, v{vG}")
    E(f"v_and_b32 v{t0_}, 1, v{vL16}")
    E(f"v_lshlrev_b32 v{t0_}, 4, v{t0_}")
    E(f"v_mov_b32 v{t1_}, 0x3f80")
    E(f"v_lshlrev_b32 v{t0_}, v{t0_}, v{t1_}")
    E(f"v_cndmask_b32 v{t0_}, 0, v{t0_}, vcc")
    E(f"v_and_b32 v{t1_}, 2, v{vL16}")
    E(f"v_cmp_eq_u32 vcc, 0, v{t1_}")
    for r in (SEL, SEL + 1, SEL + 4, SEL + 5):
        E(f"v_mov_b32 v{r}, 0")
    E(f"v_cndmask_b32 v{SEL + 2}, 0, v{t0_}, vcc")
    E(f"v_cndmask_b32 v{SEL + 3}, v{t0_}, 0, vcc")
    L = newlabel("kv"); Lc = newlabel("kvc"); Ld = newlabel("kvd")
    E(f"s_mov_b32 s{sSPIN}, 0")
    saved = list(E.vmq)
    E.flush_haz()
    E(f"s_branch {Lc}")
    E.label(L)
    E.vmq = []
    E(loads)
    E.label(Lc)
    chk = T0
    for p in range(16):
        g4 = G + 4 * p
        E(f"v_mfma_f32_16x16x32_bf16 {vr(SUM, 4)}, {vr(SEL + 2, 4)}, {vr(g4, 4)}, {'0' if p == 0 else vr(SUM, 4)}")
        E(f"v_mfma_f32_16x16x32_bf16 {vr(SUM + 4, 4)}, {vr(SEL, 4)}, {vr(g4, 4)}, {'0' if p == 0 else vr(SUM + 4, 4)}")
        if p == 0:
            E(f"v_max_u32 v{chk}, v{g4}, v{g4 + 1}")
        else:
            E(f"v_max3_u32 v{chk}, v{chk}, v{g4}, v{g4 + 1}")
        E(f"v_max3_u32 v{chk}, v{chk}, v{g4 + 2}, v{g4 + 3}")
    E(f"v_cmp_eq_u32 vcc, -1, v{chk}")
    spin_tail(E, L, Ld)
    stamp(E, 7)
    kf = ACC[0] + 8
    E(pack_op(SUM, kf, zero_pad=False))
    E(f"s_lshl_b32 s{sT0}, s{sWV}, 10")
    E(f"s_add_u32 s{sT0}, s{sT0}, {KVF}")
    E(f"v_add_u32 v{vA1}, s{sT0}, v{vL16B}")
    E(f"ds_write_b128 v{vA1}, {vr(kf, 4)}")
    E(f"s_lshl_b32 s{sT0}, s{sHH}, 12")
    E(f"s_add_u32 s{sT0}, s{sT0}, {KVF}")
    E(f"v_add_u32 v{vA1}, s{sT0}, v{vL16B}")
    E(f"v_lshlrev_b32 v{vA2}, 8, v{vG}")
    E(f"s_add_u32 s{sT0}, s{sT0}, {12 * 16}")
    E(f"v_add_u32 v{vA2}, s{sT0}, v{vA2}")
    E.barrier()
    KF, ZF, NUM = BUF, BUF + 16, BUF + 24
    for w in range(4):
        E(f"ds_read_b128 {vr(KF + 4 * w, 4)}, v{vA1} offset:{1024 * w}")
    for sg in range(2):
        E(f"ds_read_b128 {vr(ZF + 4 * sg, 4)}, v{vA2} offset:{1024 * (2 * sg + 1)}")
    pre_a = p3_loads(0)[0]
    for u in range(2):
        for dt in range(2):
            for sg in range(2):
                d = NUM + 12 * u + 4 * dt
                E(f"v_mfma_f32_16x16x32_bf16 {vr(d, 4)}, {vr(KF + 4 * (2 * sg + dt), 4)}, {vr(PHI + 8 * u + 4 * sg, 4)}, {'0' if sg == 0 else vr(d, 4)}")
        for sg in range(2):
            d = NUM + 12 * u + 8
            E(f"v_mfma_f32_16x16x32_bf16 {vr(d, 4)}, {vr(ZF + 4 * sg, 4)}, {vr(PHI + 8 * u + 4 * sg, 4)}, {'0' if sg == 0 else vr(d, 4)}")
    if OPT["prea"] == 0:
        E(pre_a)
    st = []
    for u in range(2):
        n = NUM + 12 * u; dn = n + 8
        t = BUF + 48 + 8 * u
        o = []
        o += round_pairs(n, n, 8, t)
        o.append(f"v_cvt_pk_bf16_f32 v{t + 4}, v{dn}, v{dn}")
        o.append(f"v_lshlrev_b32 v{dn}, 16, v{t + 4}")
        o.append(f"v_add_f32 v{dn}, 0x358637bd, v{dn}")
        o.append(f"v_cvt_pk_bf16_f32 v{t + 4}, v{dn}, v{dn}")
        o.append(f"v_lshlrev_b32 v{dn}, 16, v{t + 4}")
        o.append(f"v_rcp_f32 v{dn}, v{dn}")
        for i in range(8):
            o.append(f"v_mul_f32 v{n + i}, v{n + i}, v{dn}")
        o += pack_op(n, t)
        for i in range(4):
            o.append(f"v_min_u32 v{t + i}, -2, v{t + i}")
        o.append(ostore(t, u))
        st.append(o)
    E(interleave(st[0], st[1]))
    if OPT["prea"] == 1:
        E(pre_a)
    stamp(E, 8)

def att_masks():
    ms = []
    for tile in range(2):
        for i in range(4):
            m = 0
            for lane in range(64):
                q, g = lane & 15, lane >> 4
                d = q - (4 * g + i) + (16 if tile == 0 else 0)
                if 0 <= d <= 14 and d % 2 == 0:
                    m |= 1 << lane
            ms.append(m)
    return ms

def cons_A(E, halo):
    HACC, BUF = 64, 80
    cons_setup(E, "A")
    srds(E); srds2(E)
    ones = T0 + 4
    for i in range(4):
        E(f"v_mov_b32 v{ones + i}, -1")
    E(f"s_lshl_b32 s{sT0}, s{sHP}, 4")
    E(f"s_add_u32 s{sT0}, s{sT0}, s{sRB}")
    E(f"s_lshl_b32 s{sT0}, s{sT0}, 3")
    E(f"s_add_u32 s{sT0}, s{sT0}, s{sWV}")
    E(f"s_lshl_b32 s{sT0}, s{sT0}, 10")
    E(f"s_add_u32 s{sT0}, s{sT0}, {WS_KVP}")
    E(f"v_add_u32 v{vA0}, s{sT0}, v{vL16B}")
    E(f"buffer_store_dwordx4 {vr(ones, 4)}, v{vA0}, {sr(SWS, 4)}, 0 offen sc1")
    if OPT["sbar"]:
        E.barrier()
    if OPT["pf"] and not OPT["pfA"]:
        prefetch(E)
    elif OPT["pf"]:
        E(f"s_and_b32 s{sMP}, s{sJ}, 15")
        prefetch(E, sMP)
        E(f"s_add_u32 s{sMP}, s{sMP}, 16")
        prefetch(E, sMP)
    stamps_init(E)
    ms = att_masks()
    for i, m in enumerate(ms):
        E(f"s_mov_b32 s{sMASK + 2 * i}, {m & 0xffffffff:#x}")
        E(f"s_mov_b32 s{sMASK + 2 * i + 1}, {m >> 32:#x}")
    E(f"s_lshl_b32 s{sT0}, s{sWV}, 11")
    E(f"s_add_u32 s{sT0}, s{sT0}, {A_EXCH}")
    E(f"v_add_u32 v{vA1}, s{sT0}, v{vL16B}")
    E(f"v_lshl_add_u32 v{vA2}, v{vLANE}, 3, s{sT0}")
    C = Cons(E, "A", A_STAGES, BUF, 36, 2, halo=halo, HACC=HACC)
    def fl(E, base):
        Lf = newlabel("fs")
        E(f"s_cmp_lg_u32 s{sWV}, 0")
        E.flush_haz()
        E(f"s_cbranch_scc1 {Lf}")
        flag_store(E, 1, T0, T0 + 1, base)
        E.label(Lf)
    def prebar(E, s):
        if s == OPT["fk"]:
            E.force_wait(vm=0 if OPT["fk"] else 1)
        if s == OPT["fk"] + 1 and halo:
            fl(E, 0)
        if s in (1, 2):
            E(f"s_mov_b32 s{sT0}, {WS_OB + 16384 * (s - 1)}")
            E(f"buffer_store_dwordx4 {vr(ones, 4)}, v{vOOFF}, {sr(SWS, 4)}, s{sT0} offen sc1")
            E(ostore(ones, s - 1))
        if s == 3 and OPT["pf2"]:
            sv = list(E.vmq); prefetch2(E, T0, T0 + 1, 15); E.vmq = sv
        if s == OPT["fo"]:
            E.force_wait(vm=0)
        if s == OPT["fo"] + 1 and halo:
            fl(E, 128)
    C.prebar = prebar
    C.run(0, 6)
    stamp(E, 1)
    KT, VV = BUF, BUF + 12
    for u in range(2):
        E(pack_op(ACC[0] + 8 * u, KT + 4 + 4 * u))
        for dt in range(2):
            a = ACC[1] + 8 * u + 4 * dt
            d = VV + 8 * u + 4 * dt + 2
            E(f"v_cvt_pk_bf16_f32 v{d}, v{a}, v{a + 1}")
            E(f"v_cvt_pk_bf16_f32 v{d + 1}, v{a + 2}, v{a + 3}")
            if u == 0:
                E(f"v_mov_b32 v{d + 6}, v{d}")
                E(f"v_mov_b32 v{d + 7}, v{d + 1}")
    E.barrier()
    E(f"ds_write_b128 v{vA1}, {vr(KT + 8, 4)} offset:4096")
    for dt in range(2):
        E(f"ds_write_b64 v{vA2}, {vr(VV + 8 + 4 * dt + 2, 2)} offset:{4096 + 1024 + 512 * dt}")
    if halo:
        E(pack_op(HACC, KT))
        for dt in range(2):
            a = HACC + 8 + 4 * dt
            d = VV + 4 * dt
            E(f"v_cvt_pk_bf16_f32 v{d}, v{a}, v{a + 1}")
            E(f"v_cvt_pk_bf16_f32 v{d + 1}, v{a + 2}, v{a + 3}")
        E(f"s_cmp_eq_u32 s{sRB}, 0")
        E(f"s_cselect_b64 {sr(sMP, 2)}, 0, -1")
    T = BUF + 28
    NEG = T0 + 8
    E(f"v_mov_b32 v{NEG}, 0xf149f2ca")
    MX = [T0, T0 + 1]; SM = [T0 + 2, T0 + 3]; tt = T0 + 4
    pre0, pre, mid, post = [], [], [], []
    for u in range(2):
        B_ = T + 20 * u
        qo, L, pk, P = B_, B_ + 4, B_ + 12, B_ + 16
        O = ACC[1] + 8 * u
        pre0 += pack_op(ACC[2] + 8 * u, qo)
        o = []
        o.append(f"v_mfma_f32_16x16x32_bf16 {vr(L + 4, 4)}, {vr(KT + 4 * u + 4, 4)}, {vr(qo, 4)}, 0")
        o.append(f"v_mfma_f32_16x16x32_bf16 {vr(L, 4)}, {vr(KT + 4 * u, 4)}, {vr(qo, 4)}, 0")
        o += round_pairs(L, L, 8, pk)
        for i in range(8):
            o.append(f"v_mul_f32 v{L + i}, s{sSCL}, v{L + i}")
        o += round_pairs(L, L, 8, pk)
        for i in range(8):
            o.append(f"v_cndmask_b32 v{L + i}, v{NEG}, v{L + i}, {sr(sMASK + 2 * i, 2)}")
        if halo and u == 0:
            for i in range(4):
                o.append(f"v_cndmask_b32 v{L + i}, v{NEG}, v{L + i}, {sr(sMP, 2)}")
        mx = MX[u]
        o.append(f"v_max3_f32 v{mx}, v{L}, v{L+1}, v{L+2}")
        o.append(f"v_max3_f32 v{mx}, v{mx}, v{L+3}, v{L+4}")
        o.append(f"v_max3_f32 v{mx}, v{mx}, v{L+5}, v{L+6}")
        o.append(f"v_max_f32 v{mx}, v{mx}, v{L+7}")
        pre.append(o)
        o = []
        o.append(f"v_mul_f32 v{mx}, s{sL2E}, v{mx}")
        for i in range(8):
            o.append(f"v_fma_f32 v{L + i}, v{L + i}, s{sL2E}, -v{mx}")
        for i in range(8):
            o.append(f"v_exp_f32 v{L + i}, v{L + i}")
        sm = SM[u]
        o.append(f"v_add_f32 v{sm}, v{L}, v{L + 1}")
        for i in range(2, 8):
            o.append(f"v_add_f32 v{sm}, v{sm}, v{L + i}")
        mid.append(o)
        o = []
        o.append(f"v_rcp_f32 v{sm}, v{sm}")
        for i in range(8):
            o.append(f"v_mul_f32 v{L + i}, v{L + i}, v{sm}")
        for i in range(4):
            o.append(f"v_cvt_pk_bf16_f32 v{P + i}, v{L + 2 * i}, v{L + 2 * i + 1}")
        for dt in range(2):
            o.append(f"v_mfma_f32_16x16x32_bf16 {vr(O + 4 * dt, 4)}, {vr(VV + 8 * u + 4 * dt, 4)}, {vr(P, 4)}, 0")
        o += pack_op(O, qo)
        for i in range(4):
            o.append(f"v_min_u32 v{qo + i}, -2, v{qo + i}")
        o.append(ostore(qo, u))
        post.append(o)
    E(pre0)
    E.barrier()
    if not halo:
        E(f"ds_read_b128 {vr(KT, 4)}, v{vA1}")
        for dt in range(2):
            E(f"ds_read_b64 {vr(VV + 4 * dt, 2)}, v{vA2} offset:{1024 + 512 * dt}")
    E(interleave(pre[1], pre[0]))
    E(dual_reduce(MX[0], MX[1], tt, "v_max_f32"))
    E(interleave(mid[0], mid[1]))
    E(dual_reduce(SM[0], SM[1], tt, "v_add_f32"))
    E(interleave(post[0], post[1]))
    stamp(E, 8)
    E.barrier()
    E(p3_setup(E))

def loader(E, br, last):
    stages = A_STAGES if br == "A" else B_STAGES
    vX, vW0, vW1, vH0, vH1, vWO, vGX, vGF, vGOFF = 4, 5, 6, 7, 8, 9, 10, 12, 13
    t0, t1, t2, t3 = T0, T0 + 1, T0 + 2, T0 + 3
    sL = sRG
    if OPT["prio"]:
        E("s_setprio 3")
    E(f"s_sub_u32 s{sL}, s{sWV}, 8")
    E(f"v_lshrrev_b32 v{t0}, 3, v{vLANE}")
    E(f"v_bfe_u32 v{t1}, v{vLANE}, 4, 2")
    E(f"s_lshl_b32 s{sT1}, s{sHH}, 2")
    E(f"v_or_b32 v{t1}, s{sT1}, v{t1}")
    E(f"v_and_b32 v{t2}, 7, v{vLANE}")
    E(f"v_xor_b32 v{t1}, v{t1}, v{t2}")
    E(f"s_lshl_b32 s{sT0}, s{sRB}, 7")
    E(f"s_lshl_b32 s{sT1}, s{sL}, 3")
    E(f"s_add_u32 s{sT0}, s{sT0}, s{sT1}")
    E(f"v_add_u32 v{t0}, s{sT0}, v{t0}")
    E(f"v_mul_u32_u24 v{vX}, 896, v{t0}")
    E(f"v_lshl_add_u32 v{vX}, v{t1}, 4, v{vX}")
    for pi, vw in enumerate((vW0, vW1)):
        if last and pi == 1:
            break
        E(f"s_lshl_b32 s{sT1}, s{sL}, 6")
        if pi:
            E(f"s_add_u32 s{sT1}, s{sT1}, 256")
        E(f"v_add_u32 v{t0}, s{sT1}, v{vLANE}")
        E(f"v_mul_u32_u24 v{t1}, 9363, v{t0}")
        E(f"v_lshrrev_b32 v{t1}, 16, v{t1}")
        E(f"v_mul_u32_u24 v{t2}, 7, v{t1}")
        E(f"v_sub_u32 v{t2}, v{t0}, v{t2}")
        E(f"v_and_b32 v{t0}, 0x38, v{t1}")
        E(f"v_and_b32 v{t3}, 1, v{t1}")
        E(f"v_lshl_add_u32 v{t0}, v{t3}, 2, v{t0}")
        E(f"v_bfe_u32 v{t3}, v{t1}, 1, 2")
        E(f"v_add_u32 v{t0}, v{t0}, v{t3}")
        E(f"v_mul_u32_u24 v{vw}, 2688, v{t0}")
        E(f"v_lshl_add_u32 v{vw}, v{t2}, 4, v{vw}")
        E(f"s_mul_i32 s{sT1}, s{sHP}, 112")
        E(f"v_add_u32 v{vw}, s{sT1}, v{vw}")
    E(f"s_lshl_b32 s{sM0}, s{sL}, 10")
    if last and br == "A":
        E(f"v_subrev_u32 v{vH1}, {32 * 896}, v{vX}")
        E(f"v_xor_b32 v{vH0}, 64, v{vX}")
        E(f"v_subrev_u32 v{vH0}, {40 * 896}, v{vH0}")
    srds(E)
    lstamp(E, 1)
    def issue(s):
        if OPT["no_load"]:
            return
        st = stages[s]; m = st["m"]; base = st["base"]
        for i in range(4):
            E(f"s_add_u32 m0, s{sM0}, {base + 4096 * i}")
            E(f"s_mov_b32 s{sT0}, {128 * m + 28672 * i}")
            E(f"buffer_load_dwordx4 v{vX}, {sr(SX, 4)}, s{sT0} offen lds", tag=f"S{s}")
        for k, seg in enumerate(st["segs"]):
            for pi, vw in enumerate((vW0, vW1)):
                if last and pi == 1:
                    break
                E(f"s_add_u32 m0, s{sM0}, {base + woff(br, k) + 4096 * pi}")
                E(f"s_mov_b32 s{sT0}, {m * 64 * 2688 + SEGCOL[seg] * 896}")
                E(f"buffer_load_dwordx4 v{vw}, {sr(SW, 4)}, s{sT0} offen lds", tag=f"S{s}")
        if last and br == "A":
            for n2, vh in enumerate((vH0, vH1)):
                E(f"s_mov_b32 m0, {base + 16384 + 1024 * n2}")
                E(f"s_mov_b32 s{sT0}, {128 * m}")
                E(f"buffer_load_dwordx4 v{vh}, {sr(SX, 4)}, s{sT0} offen lds", tag=f"S{s}")
    nxt = 0
    issue(0); nxt = 1
    if OPT["sbar"] == 1:
        E.barrier()
    lstamp(E, 2)
    srds2(E)
    stamps_init(E)
    if last:
        if br == "B":
            E(f"s_mul_i32 s{sT1}, s{sHP}, 3136")
            E(f"v_add_u32 v{t0}, s{sT1}, v{vL16B}")
            for i in range(4):
                E(f"s_mov_b32 m0, {B_WPH + 1024 * i}")
                E(f"s_mov_b32 s{sT0}, {1024 * i}")
                E(f"buffer_load_dwordx4 v{t0}, {sr(SAUX, 4)}, s{sT0} offen lds", tag="S1")
        else:
            E(f"s_mov_b32 m0, {A_GATE}")
            E(f"buffer_load_dwordx4 v{vL16B}, {sr(SAUX, 4)}, 0 offen lds", tag="S0")
    while nxt < OPT["ahead"]:
        issue(nxt); nxt += 1
    if OPT["sbar"] == 2:
        E.barrier()
    lstamp(E, 3)
    E(f"v_lshrrev_b32 v{vWO}, 3, v{vLANE}")
    E(f"v_bfe_u32 v{t1}, v{vLANE}, 4, 2")
    E(f"v_lshlrev_b32 v{t1}, 1, v{t1}")
    E(f"v_and_b32 v{t2}, 7, v{vLANE}")
    E(f"v_xor_b32 v{t1}, v{t1}, v{t2}")
    E(f"v_mul_u32_u24 v{vWO}, 896, v{vWO}")
    E(f"v_lshl_add_u32 v{vWO}, v{t1}, 4, v{vWO}")
    E(f"s_lshl_b32 s{sT1}, s{sCT}, 7")
    E(f"s_mul_i32 s{sT2}, s{sL}, {8 * 896}")
    E(f"s_add_u32 s{sT1}, s{sT1}, s{sT2}")
    E(f"s_cmp_ge_u32 s{sJ}, 28")
    E(f"s_cselect_b32 s{sT1}, 0x1000000, s{sT1}")
    E(f"v_add_u32 v{vWO}, s{sT1}, v{vWO}")
    def wo(b2):
        for i in range(14):
            E(f"s_add_u32 m0, s{sM0}, {(WOB_BASE if b2 else WOA_BASE) + i * 4096}")
            E(f"s_mov_b32 s{sT0}, {i * 32 * 896}")
            E(f"buffer_load_dwordx4 v{vWO}, {sr(SWOA if b2 == 0 else SWOB, 4)}, s{sT0} offen lds", tag=f"WO{b2}")
        if last:
            E(f"s_mov_b32 m0, {(WOB_BASE if b2 else WOA_BASE) + 57344}")
            E(f"s_mov_b32 s{sT0}, {448 * 896}")
            E(f"buffer_load_dwordx4 v{vWO}, {sr(SWOA if b2 == 0 else SWOB, 4)}, s{sT0} offen lds", tag=f"WO{b2}")
    gate = last and br == "A"
    if gate:
        E(f"v_lshrrev_b32 v{t0}, 1, v{vL16}")
        E(f"v_xor_b32 v{t0}, v{t0}, v{vG}")
        E(f"v_lshlrev_b32 v{t0}, 4, v{t0}")
        E(f"v_lshl_add_u32 v{t0}, v{vL16}, 7, v{t0}")
        E(f"s_lshl_b32 s{sT0}, s{sHP}, 11")
        E(f"v_add_u32 v{vGX}, s{sT0}, v{t0}")
        E(f"v_xor_b32 v{vGX + 1}, 64, v{vGX}")
        E(f"v_lshlrev_b32 v{vGF}, 4, v{vG}")
        E(f"v_add_u32 v{vGF}, {A_GATE}, v{vGF}")
        E(f"s_lshl_b32 s{sT0}, s{sRB}, 7")
        E(f"s_lshl_b32 s{sT1}, s{sHP}, 4")
        E(f"s_add_u32 s{sT0}, s{sT0}, s{sT1}")
        E(f"s_lshl_b32 s{sT0}, s{sT0}, 2")
        E(f"s_add_u32 s{sT0}, s{sT0}, {WS_G}")
        E(f"v_lshl_add_u32 v{vGOFF}, v{vLANE}, 2, s{sT0}")
        E(f"v_mov_b32 v{t0}, {WS_BYTES}")
        E(f"v_cmp_gt_u32 vcc, 16, v{vLANE}")
        E(f"v_cndmask_b32 v{vGOFF}, v{t0}, v{vGOFF}, vcc")
        E(f"v_mov_b32 v{t1}, -1")
        E(f"buffer_store_dword v{t1}, v{vGOFF}, {sr(SWS, 4)}, 0 offen sc1", tag="GCLR")
    GL, GB = 16, 20
    cur = 0
    cleared = [False]
    def clears():
        on = 40
        for i in range(4):
            E(f"v_mov_b32 v{on + i}, -1")
        E(f"s_lshl_b32 s{sT0}, s{sRB}, 3")
        E(f"s_lshl_b32 s{sT1}, s{sL}, 1")
        E(f"s_add_u32 s{sT0}, s{sT0}, s{sT1}")
        E(f"s_lshl_b32 s{sT0}, s{sT0}, 4")
        E(f"s_lshl_b32 s{sT1}, s{sHP}, 1")
        E(f"s_add_u32 s{sT0}, s{sT0}, s{sT1}")
        E(f"s_lshl_b32 s{sT0}, s{sT0}, 10")
        E(f"s_lshl_b32 s{sT1}, s{sBR}, 21")
        E(f"s_add_u32 s{sT0}, s{sT0}, s{sT1}")
        E(f"v_add_u32 v{t2}, s{sT0}, v{vL16B}")
        E(f"s_mov_b32 s{sT1}, 16384")
        if br == "B":
            E(f"s_lshl_b32 s{sT0}, s{sHP}, 4")
            E(f"s_add_u32 s{sT0}, s{sT0}, s{sRB}")
            E(f"s_lshl_b32 s{sT0}, s{sT0}, 2")
            E(f"s_add_u32 s{sT0}, s{sT0}, s{sL}")
            E(f"s_lshl_b32 s{sT0}, s{sT0}, 11")
            E(f"s_add_u32 s{sT0}, s{sT0}, {WS_KVP}")
            E(f"v_add_u32 v{t3}, s{sT0}, v{vL16B}")
            for i in range(2):
                E(f"buffer_store_dwordx4 {vr(on, 4)}, v{t3}, {sr(SWS, 4)}, 0 offen offset:{1024 * i} sc1", tag="CLR")
        for u in range(2):
            for i in range(2):
                E(f"buffer_store_dwordx4 {vr(on, 4)}, v{t2}, {sr(SWS, 4)}, {'0' if u == 0 else 's' + str(sT1)} offen offset:{1024 * i} sc1", tag="CLR")
    def step(s):
        nonlocal nxt, cur
        E.wait_tag(f"S{s}")
        if s == 0:
            lstamp(E, 4)
        if gate and s == OPT["fo"]:
            E.wait_tag("GCLR")
        E.barrier(lgkm0=True)
        if s == 0:
            lstamp(E, 5)
        if gate:
            d = stages[s]["base"] - cur; cur = stages[s]["base"]
            E(vadd_imm(vGX, d)); E(vadd_imm(vGX + 1, d))
            m = stages[s]["m"]
            for tt in range(2):
                E(f"ds_read_b128 {vr(GB + 8 * tt, 4)}, v{vGX + tt}")
                E(f"ds_read_b128 {vr(GB + 8 * tt + 4, 4)}, v{vGF} offset:{64 * (2 * m + tt)}")
        while nxt < len(stages) and stages[nxt]["after"] <= s and nxt <= s + OPT["ahead"]:
            issue(nxt); nxt += 1
        if gate:
            m = stages[s]["m"]
            for tt in range(2):
                E(f"v_mfma_f32_16x16x32_bf16 {vr(GL, 4)}, {vr(GB + 8 * tt + 4, 4)}, {vr(GB + 8 * tt, 4)}, {'0' if (m == 0 and tt == 0) else vr(GL, 4)}")
    if br == "A":
        for s in range(7):
            step(s)
        if gate:
            g = GL
            E(f"v_cvt_pk_bf16_f32 v{g + 1}, v{g}, v{g}")
            E(f"v_lshlrev_b32 v{g}, 16, v{g + 1}")
            E(f"v_mul_f32 v{g}, s{sL2E}, v{g}")
            E(f"v_exp_f32 v{g}, -v{g}")
            E(f"v_add_f32 v{g}, 1.0, v{g}")
            E(f"v_rcp_f32 v{g}, v{g}")
            E(f"v_cvt_pk_bf16_f32 v{g + 1}, v{g}, v{g}")
            E(f"v_lshlrev_b32 v{g}, 16, v{g + 1}")
            E.wait_tag("GCLR")
            E(f"buffer_store_dword v{g}, v{vGOFF}, {sr(SWS, 4)}, 0 offen sc1")
        E.barrier()
        E.barrier()
        E.barrier()
        wo(0); wo(1)
        if last:
            flags_wait_all(E, t0, t1, 128)
    else:
        for s in range(7):
            step(s)
        if last:
            flags_wait_all(E, t0, t1)
        E.barrier()
        E.barrier()
        wo(0)
        if OPT["wobe"]:
            wo(1)
        if last and OPT["fo"] < 5:
            flags_wait_all(E, t0, t1, 128)
        E.barrier()
        if last and OPT["fo"] >= 5:
            flags_wait_all(E, t0, t1, 128)
        E.barrier()
    E(f"s_cmp_ge_u32 s{sJ}, 28")
    E.flush_haz()
    E("s_cbranch_scc1 L_end")
    E.wait_tag("WO0")
    E.barrier()
    if br == "B" and not OPT["wobe"]:
        wo(1)
    E.force_wait(vm=0)
    E.barrier()
    if OPT["ldst"] and not last:
        Lz = newlabel("ls")
        E(f"s_cmp_lg_u32 s{sWV}, 8")
        E(f"s_cbranch_scc1 {Lz}")
        E.force_wait(vm=0, lgkm=0)
        E(f"s_lshl_b32 s{sT0}, s2, 7")
        E(f"s_add_u32 s{sT0}, s{sT0}, {WS_ST}")
        E(f"v_mov_b32 v20, s{sT0}")
        E("s_mov_b64 exec, 1")
        for i in range(6):
            E(f"v_mov_b32 v22, s{54 + 2 * i}")
            E(f"v_mov_b32 v23, s{54 + 2 * i + 1}")
            E(f"buffer_store_dwordx2 v[22:23], v20, {sr(SWS, 4)}, 0 offen offset:{8 * i}")
            E.force_wait(vm=0)
        E.label(Lz)
    E("s_branch L_end")

def p3_setup(E):
    rt, kh = sP3, sP3 + 1
    t0, t1, t2 = T0 + 8, T0 + 9, T0 + 1
    o = []
    o.append(f"s_and_b32 s{rt}, s{sWV}, 3")
    o.append(f"s_lshr_b32 s{kh}, s{sWV}, 2")
    o.append(f"s_lshl_b32 s{sT2}, s{sT}, 2")
    o.append(f"s_add_u32 s{sT2}, s{sT2}, s{rt}")
    o.append(f"s_lshl_b32 s{sP3 + 2}, s{sT2}, 14")
    o.append(f"s_lshl_b32 s{sP3 + 3}, s{kh}, 13")
    o.append(f"s_add_u32 s{sP3 + 2}, s{sP3 + 2}, s{sP3 + 3}")
    o.append(f"v_add_u32 v{pOF}, s{sP3 + 2}, v{vL16B}")
    o.append(f"s_lshl_b32 s{sT2}, s{sT2}, 4")
    o.append(f"v_add_u32 v{pROW}, s{sT2}, v{vL16}")
    o.append(f"v_bfe_u32 v{t0}, v{vLANE}, 2, 2")
    o.append(f"v_lshl_add_u32 v{t0}, v{vG}, 2, v{t0}")
    o.append(f"v_bfe_u32 v{t1}, v{t0}, 1, 2")
    o.append(f"v_and_b32 v{t2}, 3, v{vLANE}")
    o.append(f"v_lshlrev_b32 v{t2}, 3, v{t2}")
    o.append(f"v_lshl_add_u32 v{t2}, v{t0}, 7, v{t2}")
    o.append(f"s_mul_i32 s{sT2}, s{kh}, 28672")
    o.append(f"s_add_u32 s{sT2}, s{sT2}, {WOA_BASE}")
    o.append(f"v_add_u32 v{t2}, s{sT2}, v{t2}")
    o.append(f"s_lshl_b32 s{sT2}, s{kh}, 1")
    o.append(f"v_xor_b32 v{t1}, s{sT2}, v{t1}")
    for c in range(4):
        o.append(f"v_xor_b32 v{t0}, {c}, v{t1}")
        o.append(f"v_lshl_add_u32 v{pWO + c}, v{t0}, 5, v{t2}")
    o.append(f"v_add_u32 v7, 4096, v{pOF}")
    o.append(f"v_lshlrev_b32 v9, 2, v{pROW}")
    o.append(f"v_add_u32 v9, {WS_G}, v9")
    return o

sP3 = sMASK
pOF, pROW, pWO = 4, 5, 12
def p3_loads(br):
    of = 16 + 32 * br
    loads = [f"s_mov_b32 s{sT2}, {WS_OB if br else 0}"]
    for hl in range(8):
        loads.append(f"buffer_load_dwordx4 {vr(of + 4 * hl, 4)}, v{pOF if hl < 4 else 7}, {sr(SWS, 4)}, s{sT2} offen offset:{1024 * (hl & 3)} sc1")
    regs = list(range(of, of + 32))
    if br == 0:
        loads.append(f"buffer_load_dword v6, v9, {sr(SWS, 4)}, 0 offen sc1")
        regs.append(6)
    return loads, regs

def phase3(E):
    E.label("L_p3")
    E.vmq = []; E.lgq = []
    E(f"s_cmp_ge_u32 s{sJ}, 28")
    E("s_cbranch_scc1 L_fin")
    rt, kh = sP3, sP3 + 1
    vROW, vGV, vWO = pROW, 6, pWO
    vOF0, vOF1, vGA, vXO, vXP, vOUT = pOF, 7, 9, 8, 10, 11
    TMP = 144
    OF, AC, WF = 16, [80, 96], 112
    loads_for = p3_loads
    def gemm(br):
        of = OF + 32 * br
        prev = []
        for hl in range(8):
            wf = WF + 16 * (hl & 1)
            rd = []
            for c in range(4):
                for j in range(2):
                    rd.append(f"ds_read_b64_tr_b16 {vr(wf + 4 * c + 2 * j, 2)}, v{vWO + (c ^ (2 * (hl & 1)))} offset:{3584 * hl + 2048 * j}")
            E(interleave_front(prev, rd) if prev else rd)
            prev = []
            for c in (2, 3, 0, 1):
                acc = AC[br] + 4 * c
                prev.append(f"v_mfma_f32_16x16x32_bf16 {vr(acc, 4)}, {vr(wf + 4 * c, 4)}, {vr(of + 4 * hl, 4)}, {'0' if hl == 0 else vr(acc, 4)}")
        E(prev)
    E.barrier()
    stamp(E, 9)
    la, ra = loads_for(0)
    Lsk = newlabel("p3a")
    E(f"s_cmp_lg_u32 s{sBR}, 0")
    E.flush_haz()
    E(f"s_cbranch_scc1 {Lsk}")
    E(la)
    E.label(Lsk)
    E(f"s_lshl_b32 s{sT0}, s{sWV}, 12")
    E(f"s_add_u32 s{sT0}, s{sT0}, {XB3}")
    E(f"v_add_u32 v{vXO}, s{sT0}, v{vL16B}")
    E(f"s_xor_b32 s{sT0}, s{sWV}, 4")
    E(f"s_lshl_b32 s{sT0}, s{sT0}, 12")
    E(f"s_add_u32 s{sT0}, s{sT0}, {XB3}")
    E(f"v_add_u32 v{vXP}, s{sT0}, v{vL16B}")
    E(f"v_mul_u32_u24 v{vOUT}, 896, v{vROW}")
    E(f"v_lshl_add_u32 v{vOUT}, v{vG}, 3, v{vOUT}")
    E(f"s_lshl_b32 s{sT0}, s{sCT}, 7")
    E(f"s_lshl_b32 s{sT1}, s{kh}, 6")
    E(f"s_add_u32 s{sT0}, s{sT0}, s{sT1}")
    E(f"v_add_u32 v{vOUT}, s{sT0}, v{vOUT}")
    poll_loop(E, la, ra, "o", TMP, pre_issued=True)
    stamp(E, 10)
    if OPT["bearly"]:
        E(loads_for(1)[0])
    gemm(0)
    for i in range(2):
        E(f"ds_write_b128 v{vXO}, {vr(AC[0] + 8 + 4 * i, 4)} offset:{1024 * i}")
    stamp(E, 11)
    lb, rb_ = loads_for(1)
    if not OPT["sent"] and not OPT["bearly"]:
        E(lb)
    for c in range(4):
        E(vadd_imm(vWO + c, WOB_BASE - WOA_BASE))
    E.barrier()
    RA, T1, tp, omg = OF, OF + 8, OF + 16, OF + 24
    for i in range(2):
        E(f"ds_read_b128 {vr(RA + 4 * i, 4)}, v{vXP} offset:{1024 * i}")
    E(f"v_sub_f32 v{omg}, 1.0, v{vGV}")
    if OPT["round_final"]:
        E(f"v_cvt_pk_bf16_f32 v{omg + 1}, v{omg}, v{omg}")
        E(f"v_lshlrev_b32 v{omg}, 16, v{omg + 1}")
    for i in range(8):
        E(f"v_add_f32 v{T1 + i}, v{AC[0] + i}, v{RA + i}")
    if OPT["round_final"]:
        E(round_pairs(T1, T1, 8, tp))
    for i in range(8):
        E(f"v_mul_f32 v{T1 + i}, v{T1 + i}, v{vGV}")
    if OPT["round_final"]:
        E(round_pairs(T1, T1, 8, tp))
    if OPT["sent"]:
        vS = TMP + 2
        E(f"v_and_b32 v{vS}, 7, v{vLANE}")
        E(f"v_lshlrev_b32 v{vS}, 10, v{vS}")
        E(f"s_add_u32 s{sT0}, s{sP3 + 2}, {WS_OB + 1020}")
        E(f"v_add_u32 v{vS}, s{sT0}, v{vS}")
        Ls = newlabel("sn"); Lsd = newlabel("snd")
        E(f"s_mov_b32 s{sSPIN}, 0")
        E.label(Ls)
        E(f"buffer_load_dword v{TMP + 3}, v{vS}, {sr(SWS, 4)}, 0 offen sc1")
        E.force_wait(vm=0)
        E(f"v_cmp_eq_u32 vcc, -1, v{TMP + 3}")
        spin_tail(E, Ls, Lsd, sleep=OPT["sent"])
        poll_loop(E, lb, rb_, "o", TMP)
        stamp(E, 12)
        gemm(1)
    elif not OPT["prog"]:
        poll_loop(E, lb, rb_, "o", TMP, pre_issued=True)
        stamp(E, 12)
        gemm(1)
    else:
        of = OF + 32
        sMK = sP3 + 2
        for i in range(16):
            E(f"v_mov_b32 v{AC[1] + i}, 0")
        E(f"s_mov_b32 s{sMK}, 15")
        E(f"s_mov_b32 s{sSPIN}, 0")
        L = newlabel("pb"); Lc = newlabel("pbc"); Ld = newlabel("pbd")
        E.wait(lgkm=0)
        E.flush_haz()
        E(f"s_branch {Lc}")
        E.label(L)
        for pr in range(4):
            Ls = newlabel("pbl")
            E(f"s_bitcmp1_b32 s{sMK}, {pr}")
            E(f"s_cbranch_scc0 {Ls}")
            E(lb[1 + 2 * pr]); E(lb[2 + 2 * pr])
            E.out.append(Ls + ":")
        E.label(Lc)
        E.force_wait(vm=0)
        for pr in range(4):
            Ls = newlabel("pbk")
            g8 = of + 8 * pr
            E(f"s_bitcmp1_b32 s{sMK}, {pr}")
            E(f"s_cbranch_scc0 {Ls}")
            E(f"v_max3_u32 v{TMP}, v{g8}, v{g8 + 1}, v{g8 + 2}")
            E(f"v_max3_u32 v{TMP + 1}, v{g8 + 3}, v{g8 + 4}, v{g8 + 5}")
            E(f"v_max3_u32 v{TMP}, v{TMP}, v{g8 + 6}, v{g8 + 7}")
            E(f"v_max_u32 v{TMP}, v{TMP}, v{TMP + 1}")
            E(f"v_cmp_eq_u32 vcc, -1, v{TMP}")
            E(f"s_cbranch_vccnz {Ls}")
            for h2 in range(2):
                hl = 2 * pr + h2
                wf = WF + 16 * h2
                for c in range(4):
                    for j in range(2):
                        E(f"ds_read_b64_tr_b16 {vr(wf + 4 * c + 2 * j, 2)}, v{vWO + (c ^ (2 * (hl & 1)))} offset:{3584 * hl + 2048 * j}")
            for h2 in range(2):
                hl = 2 * pr + h2
                wf = WF + 16 * h2
                for c in (2, 3, 0, 1):
                    acc = AC[1] + 4 * c
                    E(f"v_mfma_f32_16x16x32_bf16 {vr(acc, 4)}, {vr(wf + 4 * c, 4)}, {vr(of + 4 * hl, 4)}, {vr(acc, 4)}")
            E(f"s_bitset0_b32 s{sMK}, {pr}")
            assert not E.lgq
            E.out.append(Ls + ":")
        E(f"s_cmp_eq_u32 s{sMK}, 0")
        E(f"s_cbranch_scc1 {Ld}")
        E(f"s_add_u32 s{sSPIN}, s{sSPIN}, 1")
        E(f"s_cmp_lt_u32 s{sSPIN}, {SPIN_MAX}")
        E(f"s_cbranch_scc0 {Ld}")
        E(f"s_branch {L}")
        E.out.append(Ld + ":")
        E.nop(9); E.clear_haz()
        stamp(E, 12)
    for i in range(2):
        E(f"ds_write_b128 v{vXO}, {vr(AC[1] + 8 + 4 * i, 4)} offset:{2048 + 1024 * i}")
    stamp(E, 13)
    E.barrier()
    for i in range(2):
        E(f"ds_read_b128 {vr(RA + 4 * i, 4)}, v{vXP} offset:{2048 + 1024 * i}")
    KB = AC[1]
    for i in range(8):
        E(f"v_add_f32 v{KB + i}, v{KB + i}, v{RA + i}")
    if OPT["round_final"]:
        E(round_pairs(KB, KB, 8, tp))
        for i in range(8):
            E(f"v_mul_f32 v{KB + i}, v{KB + i}, v{omg}")
        E(round_pairs(KB, KB, 8, tp))
        for i in range(8):
            E(f"v_add_f32 v{T1 + i}, v{T1 + i}, v{KB + i}")
    else:
        for i in range(8):
            E(f"v_fmac_f32 v{T1 + i}, v{KB + i}, v{omg}")
    for i in range(4):
        E(f"v_cvt_pk_bf16_f32 v{tp + i}, v{T1 + 2 * i}, v{T1 + 2 * i + 1}")
    for i in range(2):
        E(f"buffer_store_dwordx2 {vr(tp + 2 * i, 2)}, v{vOUT}, {sr(SOUT, 4)}, 0 offen offset:{32 * i} {OPT['outpol']}")
    stamp(E, 14)
    E.label("L_fin")
    if OPT["dbgspan"]:
        Lz = newlabel("sp")
        E(f"s_cmp_lg_u32 s{sWV}, 0")
        E(f"s_cbranch_scc1 {Lz}")
        E.force_wait(vm=0)
        E("s_memrealtime s[96:97]")
        E.force_wait(lgkm=0)
        E("s_not_b32 s94, s94")
        E("v_mov_b32 v144, s96")
        E("v_mov_b32 v145, s94")
        E("v_mov_b32 v146, 0")
        E("s_mov_b64 exec, 1")
        E(f"buffer_atomic_umax v144, v146, {sr(SDBG, 4)}, 0 offen")
        E(f"buffer_atomic_umax v145, v146, {sr(SDBG, 4)}, 0 offen offset:4")
        E("s_not_b32 s94, s94")
        E("v_mov_b32 v145, s94")
        E(f"buffer_atomic_umax v145, v146, {sr(SDBG, 4)}, 0 offen offset:8")
        E("s_mov_b64 exec, -1")
        E.label(Lz)
    if OPT["stamps"]:
        Lz = newlabel("st")
        E(f"s_cmp_lg_u32 s{sWV}, 0")
        E(f"s_cbranch_scc1 {Lz}")
        E.force_wait(vm=0, lgkm=0)
        E(f"s_lshl_b32 s{sT0}, s2, 7")
        E(f"s_add_u32 s{sT0}, s{sT0}, {WS_ST}")
        E(f"v_mov_b32 v{vA0}, s{sT0}")
        E("s_mov_b64 exec, 1")
        for i in range(15):
            E(f"v_mov_b32 v{TMP}, s{sSTAMP + 2 * i}")
            E(f"v_mov_b32 v{TMP + 1}, s{sSTAMP + 2 * i + 1}")
            E(f"buffer_store_dwordx2 {vr(TMP, 2)}, v{vA0}, {sr(SWS, 4)}, 0 offen offset:{8 * i}")
            E.force_wait(vm=0)
        E.label(Lz)

def main():
    hdr = open("cdna_kernels/" + NAME + ".s.ref").read().split("; Override launch geometry")[0]
    E.raw(hdr.rstrip())
    E.raw(f"; @launch grid=(256,1,1) block=(768,1,1) lds={LDS_BYTES}")
    E.raw('.amdgcn_target "amdgcn-amd-amdhsa--gfx950"')
    E.raw(".text")
    E.raw(f".globl {NAME}_kernel")
    E.raw(".p2align 8")
    E.raw(f".type {NAME}_kernel,@function")
    E.raw(f"{NAME}_kernel:")
    prologue(E)
    E(f"s_cmp_lt_u32 s{sWV}, 8")
    E.flush_haz()
    E("s_cbranch_scc1 L_cons")
    E(f"s_cmp_eq_u32 s{sWV}, 11")
    E("s_cbranch_scc1 L_ld3")
    E(f"s_cmp_eq_u32 s{sBR}, 0")
    E("s_cbranch_scc1 L_A_ld")
    for name, fn in (("L_B_ld", lambda: loader(E, "B", False)), ("L_ld3", None), ("L_B_ld3", lambda: loader(E, "B", True)),
                     ("L_A_ld", lambda: loader(E, "A", False)), ("L_A_ld3", lambda: loader(E, "A", True))):
        E.label(name); E.vmq = []; E.lgq = []
        if fn is None:
            E(f"s_cmp_eq_u32 s{sBR}, 0")
            E("s_cbranch_scc1 L_A_ld3")
        else:
            fn()
    E.label("L_cons")
    E(f"s_cmp_eq_u32 s{sBR}, 0")
    E("s_cbranch_scc0 L_B_main")
    E(f"s_cmp_lt_u32 s{sWV}, 2")
    E("s_cbranch_scc1 L_A_halo")
    for name, fn in (("L_A_main", lambda: cons_A(E, False)), ("L_A_halo", lambda: cons_A(E, True)), ("L_B_main", lambda: cons_B(E))):
        E.label(name); E.vmq = []; E.lgq = []
        fn()
        E.wait(lgkm=0)
        E.flush_haz()
        E("s_branch L_p3")
    phase3(E)
    E.label("L_end")
    E("s_endpgm")
    E.raw('.section .rodata,"a"')
    E.raw(".p2align 6")
    E.raw(f".amdhsa_kernel {NAME}_kernel")
    E.raw(f"  .amdhsa_next_free_vgpr {NVGPR}")
    E.raw("  .amdhsa_next_free_sgpr 102")
    E.raw(f"  .amdhsa_accum_offset {NVGPR}")
    E.raw("  .amdhsa_group_segment_fixed_size 0")
    E.raw("  .amdhsa_kernarg_size 88")
    E.raw("  .amdhsa_user_sgpr_count 2")
    E.raw("  .amdhsa_user_sgpr_kernarg_segment_ptr 1")
    E.raw("  .amdhsa_system_sgpr_workgroup_id_x 1")
    E.raw(".end_amdhsa_kernel")
    txt = E.text()
    import re
    mx = max(int(x) for x in re.findall(r"\bv\[?(\d+)", txt) + re.findall(r"\bv\[\d+:(\d+)\]", txt))
    assert mx < NVGPR, mx
    open(sys.argv[1], "w").write(txt)
    print("instructions:", E.nins, "max vgpr", mx)

main()
```

```python
import sys, struct, math
from asmlib import *

NAME = "gated_mix__sliding_local_dilated__linear_kernel_hedgehog__prompt"
OPT = dict(stamps=0, fine=0, round_final=1, pf=1, flag_at=5, ahead=2, nov=4, fill=5, mfsum=0, prio=1, pkfma=2, gat=90, no_comp=0, no_load=0, no_clr=0, lead=2, dbgspan=0, pf2=0, prog=0, ldst=0, pfA=0, atom=0, fk=0, psleep=2, sent=0, noflag=0, sbar=2, prea=1, outpol="", stag=0, fo=5, bearly=0, wobe=0, cpf=1)
for a in sys.argv[2:]:
    k, v = a.split("=")
    OPT[k] = int(v) if v.lstrip("-").isdigit() else v

LDS_BYTES = 163840
PHI_STRIDE, V_STRIDE = 264, 72
WS_OA, WS_OB, WS_KVP, WS_G, WS_ST = 0, 2 << 20, 4 << 20, 5 << 20, 8 << 20
WS_BYTES = 16 << 20
SPIN_MAX = 30000
SEGCOL = {"Q": 0, "K": 1, "V": 2}
SEGI = {"K": 0, "V": 1, "Q": 2}
WOA_BASE, WOB_BASE, XB3 = 58368, 0, 116736
B_SS = 39936
B_STAGES = [dict(m=m, segs=["K", "V", "Q"], base=B_SS * (m % 4)) for m in range(7)]
for i, st in enumerate(B_STAGES):
    prev = [j for j in range(i) if B_STAGES[j]["base"] == st["base"]]
    st["after"] = (prev[-1] + 2) if prev else -1
B_WPH = 159744
PHI_BASE = 0
VB = [128 * PHI_STRIDE, 128 * PHI_STRIDE + 128 * V_STRIDE]
KVF = 143360
A_SS = 39936
A_STAGES = [dict(m=m, segs=["K", "V", "Q"], base=A_SS * (m % 4)) for m in range(7)]
for i, st in enumerate(A_STAGES):
    prev = [j for j in range(i) if A_STAGES[j]["base"] == st["base"]]
    st["after"] = (prev[-1] + 2) if prev else -1
A_GATE = 159744
A_EXCH = XB3
def woff(br, k):
    return 18432 + 7168 * k

def f2u(x): return struct.unpack("<I", struct.pack("<f", x))[0]
LOG2E = f2u(1.4426950408889634)
SCALE = f2u(28 ** -0.5)

SX, SW, SWS, SDBG, SAUX, SWOA, SWOB, SOUT = 8, 12, 16, 20, 24, 28, 32, 36
sRB, sHP, sBR, sWV, sT, sCT, sJ, sT0, sT1, sM0 = 40, 41, 42, 43, 44, 45, 46, 47, 48, 49
sMASK = 50
sG3 = 66
sL2E, sSCL, sSPIN, sT2 = 68, 69, 70, 71
sKA = 72
sSTAMP = 72
sRG, sHH, s16K, sMP = 3, 4, 5, 6
sHIM = sG3 + 1

NVGPR = 168
vLANE, vL16, vG, vL16B = 0, 1, 2, 3
vXR, vTR, vPADB, vOOFF = 4, 6, 7, 8
vA0, vA1, vA2, vA3 = 9, 10, 11, 12
vSL, vXRH = 13, 13
ACC = [16, 32, 48]
T0 = 152

E = Emitter()
lblc = [0]
def newlabel(p):
    lblc[0] += 1
    return f"L_{p}_{lblc[0]}"

def stamp(E, idx, fine=False):
    if OPT["stamps"] and (idx == 0 or bool(OPT["fine"]) == fine):
        E(f"s_memrealtime {sr(sSTAMP + 2 * idx, 2)}")

def srd(E, d, lo, nbytes):
    E(f"s_mov_b32 s{d}, s{lo}")
    E(f"s_and_b32 s{d+1}, s{lo+1}, 0xffff")
    E(f"s_mov_b32 s{d+2}, {nbytes}")
    E(f"s_mov_b32 s{d+3}, 0x20000")

def dual_reduce(a, b, t, op):
    return [
        f"v_permlane32_swap_b32 v{a}, v{b}",
        f"{op} v{a}, v{a}, v{b}",
        f"v_mov_b32 v{t}, v{a}",
        f"v_permlane16_swap_b32 v{a}, v{t}",
        f"{op} v{a}, v{a}, v{t}",
        f"v_mov_b32 v{b}, v{a}",
        f"v_permlane32_swap_b32 v{a}, v{b}",
    ]

def round_pairs(src, dst, n, tmp):
    out = []
    for i in range(0, n, 2):
        out.append(f"v_cvt_pk_bf16_f32 v{tmp + i // 2}, v{src + i}, v{src + i + 1}")
    for i in range(0, n, 2):
        out.append(f"v_lshlrev_b32 v{dst + i}, 16, v{tmp + i // 2}")
        out.append(f"v_and_b32 v{dst + i + 1}, s{sHIM}, v{tmp + i // 2}")
    return out

def pack_op(acc, dst, zero_pad=True):
    out = [f"v_cvt_pk_bf16_f32 v{dst + i}, v{acc + 2 * i}, v{acc + 2 * i + 1}" for i in range(4)]
    if zero_pad:
        out += [f"v_cndmask_b32 v{dst + 2}, v{dst + 2}, 0, {sr(sG3, 2)}", f"v_cndmask_b32 v{dst + 3}, v{dst + 3}, 0, {sr(sG3, 2)}"]
    return out

def interleave_front(mm, rd):
    out = []
    n = max(1, (len(mm) * 3) // 4)
    j = 0
    for i, x in enumerate(mm):
        tgt = min(len(rd), ((i + 1) * len(rd) + n - 1) // n)
        while j < tgt:
            out.append(rd[j]); j += 1
        out.append(x)
    out += rd[j:]
    return out

def vadd_imm(reg, delta):
    if delta == 0:
        return []
    return [f"v_add_u32 v{reg}, {delta & 0xffffffff:#x}, v{reg}"]

def lstamp(E, i):
    if OPT["ldst"]:
        E(f"s_memrealtime {sr(54 + 2 * i, 2)}")

def prologue(E):
    E("s_cmp_ge_u32 s2, 256")
    E("s_cbranch_scc1 L_end")
    lstamp(E, 0)
    if OPT["cpf"]:
        NS = OPT["cpf"] if OPT["cpf"] > 1 else 6
        E("s_getpc_b64 s[98:99]")
        E.raw("L_pc0:")
        E(f"v_cmp_gt_u32 vcc, 64, v0")
        E(f"s_lshr_b32 s{sT0}, s2, 3")
        E(f"s_mul_i32 s{sT1}, s{sT0}, 43")
        E(f"s_lshr_b32 s{sT1}, s{sT1}, 8")
        E(f"s_mul_i32 s{sT1}, s{sT1}, 6")
        E(f"s_sub_u32 s{sT0}, s{sT0}, s{sT1}")
        for j in range(32):
            assert (j * 43) >> 8 == j // 6
        E(f"s_lshl_b32 s{sT0}, s{sT0}, 13")
        E(f"v_lshl_add_u32 v{T0 + 2}, v0, 7, s{sT0}")
        E(f"v_cmp_gt_u32 s[100:101], s97, v{T0 + 2}") if False else None
        E(f"v_min_u32 v{T0 + 2}, (L_end - L_pc0) & 0xffffff80, v{T0 + 2}")
        E(f"s_cbranch_vccz L_pc1")
        E(f"global_load_dword v15, v{T0 + 2}, s[98:99]")
        E.raw("L_pc1:")
        E.vmq = []
    if OPT["dbgspan"]:
        E("s_memrealtime s[94:95]")
    E(f"s_load_dwordx16 {sr(sKA, 16)}, s[0:1], 0")
    E(f"s_load_dwordx4 {sr(sKA + 16, 4)}, s[0:1], 64")
    E(f"s_load_dwordx2 {sr(sKA + 20, 2)}, s[0:1], 80")
    E(f"v_lshrrev_b32 v{T0}, 6, v0")
    E(f"v_and_b32 v{vLANE}, 63, v0")
    E(f"v_readfirstlane_b32 s{sWV}, v{T0}")
    E(f"s_and_b32 s{sT0}, s2, 7")
    E(f"s_lshr_b32 s{sJ}, s2, 3")
    E(f"s_lshr_b32 s{sBR}, s{sJ}, 4")
    E(f"s_xor_b32 s{sBR}, s{sBR}, 1")
    E(f"s_and_b32 s{sRB}, s{sT0}, 3")
    E(f"s_lshl_b32 s{sRB}, s{sRB}, 2")
    E(f"s_bfe_u32 s{sT1}, s{sJ}, 0x20002")
    E(f"s_add_u32 s{sRB}, s{sRB}, s{sT1}")
    E(f"s_lshr_b32 s{sHP}, s{sT0}, 2")
    E(f"s_lshl_b32 s{sHP}, s{sHP}, 2")
    E(f"s_and_b32 s{sT1}, s{sJ}, 3")
    E(f"s_add_u32 s{sHP}, s{sHP}, s{sT1}")
    E(f"s_mul_i32 s{sT1}, s{sJ}, 37")
    E(f"s_lshr_b32 s{sT1}, s{sT1}, 8")
    E(f"s_lshl_b32 s{sT}, s{sT0}, 2")
    E(f"s_add_u32 s{sT}, s{sT}, s{sT1}")
    E(f"s_mul_i32 s{sT1}, s{sT1}, 7")
    E(f"s_sub_u32 s{sCT}, s{sJ}, s{sT1}")
    E(f"s_lshr_b32 s{sRG}, s{sWV}, 1")
    E(f"s_and_b32 s{sHH}, s{sWV}, 1")
    E(f"v_and_b32 v{vL16}, 15, v{vLANE}")
    E(f"v_lshrrev_b32 v{vG}, 4, v{vLANE}")
    E(f"v_lshlrev_b32 v{vL16B}, 4, v{vLANE}")
    E(f"s_mov_b32 s{sG3}, 0")
    E(f"s_mov_b32 s{sG3+1}, 0xffff0000")
    E(f"s_mov_b32 s{sL2E}, {LOG2E:#x}")
    E(f"s_mov_b32 s{sSCL}, {SCALE:#x}")

def srds(E):
    E.force_wait(lgkm=0)
    K = sKA
    srd(E, SX, K + 0, 2048 * 896)
    E(f"s_cmp_eq_u32 s{sBR}, 0")
    E(f"s_cselect_b32 s{sT0}, s{K+2}, s{K+8}")
    E(f"s_cselect_b32 s{sT1}, s{K+3}, s{K+9}")
    srd(E, SW, sT0, 448 * 2688)

def srds2(E):
    K = sKA
    E(f"s_mov_b32 s{sT2}, 25088")
    E(f"s_cmp_eq_u32 s{sBR}, 0")
    E(f"s_cselect_b32 s{sT0}, s{K+14}, s{K+10}")
    E(f"s_cselect_b32 s{sT1}, s{K+15}, s{K+11}")
    E(f"s_cselect_b32 s{sT2}, 896, s{sT2}")
    E(f"s_mov_b32 s{SAUX}, s{sT0}")
    E(f"s_and_b32 s{SAUX+1}, s{sT1}, 0xffff")
    E(f"s_mov_b32 s{SAUX+2}, s{sT2}")
    E(f"s_mov_b32 s{SAUX+3}, 0x20000")
    srd(E, SWS, K + 20, WS_BYTES)
    srd(E, SWOA, K + 4, 448 * 896)
    srd(E, SWOB, K + 12, 448 * 896)
    srd(E, SOUT, K + 16, 2048 * 896)
    srd(E, SDBG, K + 18, 256)

def stamps_init(E):
    if OPT["stamps"]:
        stamp(E, 0)
        for i in range(1, 15):
            E(f"s_mov_b64 {sr(sSTAMP + 2 * i, 2)}, 0")

def prefetch(E, sJ=sJ):
    K = sKA
    SP = sMASK + 2
    t0, t1, t2, t3 = T0, T0 + 1, T0 + 2, T0 + 3
    Lx = newlabel("pfx"); Ld = newlabel("pfd")
    E(f"s_cmp_ge_u32 s{sWV}, 6")
    E.flush_haz()
    E(f"s_cbranch_scc1 {Lx}")
    E(f"s_cmp_lt_u32 s{sWV}, 3")
    E(f"s_cselect_b32 s{sT0}, s{K+2}, s{K+8}")
    E(f"s_cselect_b32 s{sT1}, s{K+3}, s{K+9}")
    E(f"s_cselect_b32 s{sT2}, 0, 3")
    srd(E, SP, sT0, 448 * 2688)
    E(f"s_sub_u32 s{sT2}, s{sWV}, s{sT2}")
    E(f"s_lshl_b32 s{sT2}, s{sT2}, 6")
    E(f"v_add_u32 v{t0}, s{sT2}, v{vLANE}")
    E(f"v_mul_u32_u24 v{t1}, 5462, v{t0}")
    E(f"v_lshrrev_b32 v{t1}, 16, v{t1}")
    E(f"v_mul_u32_u24 v{t2}, 12, v{t1}")
    E(f"v_sub_u32 v{t2}, v{t0}, v{t2}")
    E(f"v_lshrrev_b32 v{t3}, 2, v{t2}")
    E(f"v_and_b32 v{t2}, 3, v{t2}")
    E(f"s_mul_i32 s{sT2}, s{sJ}, 14")
    E(f"v_add_u32 v{t1}, s{sT2}, v{t1}")
    E(f"v_mul_u32_u24 v{t1}, 2688, v{t1}")
    E(f"v_mul_u32_u24 v{t3}, 896, v{t3}")
    E(f"v_lshl_add_u32 v{t2}, v{t2}, 7, v{t3}")
    E(f"s_lshr_b32 s{sT2}, s{sHP}, 2")
    E(f"s_mul_i32 s{sT2}, s{sT2}, 384")
    E(f"v_add3_u32 v{t1}, v{t1}, v{t2}, s{sT2}")
    E(f"v_mov_b32 v{t2}, 0x1000000")
    E(f"v_cmp_gt_u32 vcc, 168, v{t0}")
    E(f"v_cndmask_b32 v{t1}, v{t2}, v{t1}, vcc")
    E(f"buffer_load_dword v15, v{t1}, {sr(SP, 4)}, 0 offen")
    E.flush_haz()
    E(f"s_branch {Ld}")
    E.label(Lx)
    E(f"s_sub_u32 s{sT2}, s{sWV}, 6")
    E(f"s_lshl_b32 s{sT2}, s{sT2}, 6")
    E(f"v_add_u32 v{t0}, s{sT2}, v{vLANE}")
    E(f"s_mul_i32 s{sT2}, s{sJ}, 112")
    E(f"s_lshr_b32 s{sT1}, s{sRB}, 2")
    E(f"s_mul_i32 s{sT1}, s{sT1}, 3584")
    E(f"s_add_u32 s{sT2}, s{sT2}, s{sT1}")
    E(f"v_add_u32 v{t1}, s{sT2}, v{t0}")
    E(f"v_lshlrev_b32 v{t1}, 7, v{t1}")
    E(f"v_mov_b32 v{t2}, 0x1000000")
    E(f"v_cmp_gt_u32 vcc, 112, v{t0}")
    E(f"v_cndmask_b32 v{t1}, v{t2}, v{t1}, vcc")
    E(f"buffer_load_dword v15, v{t1}, {sr(SX, 4)}, 0 offen")
    E.label(Ld)
    E.vmq = [{"dst": set(), "tag": "PF"}]

def prefetch2(E, t0, t1, dst):
    Ld = newlabel("p2d"); Lb = newlabel("p2b")
    E(f"s_and_b32 s{sT0}, s{sWV}, 3")
    E(f"s_lshl_b32 s{sT0}, s{sT0}, 6")
    E(f"v_add_u32 v{t0}, s{sT0}, v{vLANE}")
    E(f"s_and_b32 s{sT0}, s{sJ}, 15")
    E(f"s_mul_i32 s{sT0}, s{sT0}, 196")
    E(f"v_add_u32 v{t1}, s{sT0}, v{t0}")
    E(f"v_lshlrev_b32 v{t1}, 7, v{t1}")
    E(f"v_cmp_gt_u32 vcc, 196, v{t0}")
    E(f"v_mov_b32 v{t0}, 0x1000000")
    E(f"v_cndmask_b32 v{t1}, v{t0}, v{t1}, vcc")
    E(f"s_cmp_ge_u32 s{sWV}, 4")
    E.flush_haz()
    E(f"s_cbranch_scc1 {Lb}")
    E(f"buffer_load_dword v{dst}, v{t1}, {sr(SWOA, 4)}, 0 offen")
    E(f"s_branch {Ld}")
    E.label(Lb)
    E(f"buffer_load_dword v{dst}, v{t1}, {sr(SWOB, 4)}, 0 offen")
    E.label(Ld)

def flag_store(E, val, t0, t1, base=0):
    if OPT["noflag"]:
        return
    if OPT["atom"]:
        E(f"s_lshl_b32 s{sT0}, s{sRB}, 2")
        E(f"v_mov_b32 v{t0}, s{sT0}")
        E(f"v_mov_b32 v{t1}, 1")
        E("s_mov_b64 exec, 1")
        E(f"buffer_atomic_add v{t1}, v{t0}, {sr(SDBG, 4)}, 0 offen offset:{base} sc1")
        E("s_mov_b64 exec, -1")
        return
    E(f"s_lshl_b32 s{sT0}, s{sRB}, 3")
    E(f"s_add_u32 s{sT0}, s{sT0}, s{sHP}")
    if base:
        E(f"s_add_u32 s{sT0}, s{sT0}, {base}")
    E(f"v_mov_b32 v{t0}, s{sT0}")
    E(f"v_mov_b32 v{t1}, {val}")
    E("s_mov_b64 exec, 1")
    E(f"buffer_store_byte v{t1}, v{t0}, {sr(SDBG, 4)}, 0 offen sc1")
    E("s_mov_b64 exec, -1")

def spin_tail(E, L, Ld, sleep=2):
    E(f"s_cbranch_vccz {Ld}")
    E(f"s_add_u32 s{sSPIN}, s{sSPIN}, 1")
    E(f"s_cmp_lt_u32 s{sSPIN}, {SPIN_MAX}")
    E(f"s_cbranch_scc0 {Ld}")
    E(f"s_sleep {sleep}")
    E(f"s_branch {L}")
    E.label(Ld)

def flags_wait_all(E, t0, t1, base=0):
    if OPT["noflag"]:
        return
    L = newlabel("fl"); Ld = newlabel("fld")
    E(f"v_and_b32 v{t0}, {15 if OPT['atom'] else 31}, v{vLANE}")
    E(f"v_lshlrev_b32 v{t0}, 2, v{t0}")
    E(f"s_mov_b32 s{sSPIN}, 0")
    E(f"s_mov_b32 s{sT1}, {'8' if OPT['atom'] else '0x01010101'}")
    E.label(L)
    E(f"buffer_load_dword v{t1}, v{t0}, {sr(SDBG, 4)}, 0 offen offset:{base} sc1")
    E.force_wait(vm=0)
    E(f"v_cmp_ne_u32 vcc, s{sT1}, v{t1}")
    spin_tail(E, L, Ld, sleep=40)

def check_regs(E, regs, tmp):
    rs = list(regs)
    E(f"v_max_u32 v{tmp}, v{rs[0]}, v{rs[1]}")
    rest = rs[2:]
    while len(rest) >= 2:
        E(f"v_max3_u32 v{tmp}, v{tmp}, v{rest[0]}, v{rest[1]}"); rest = rest[2:]
    if rest:
        E(f"v_max_u32 v{tmp}, v{tmp}, v{rest[0]}")
    E(f"v_cmp_eq_u32 vcc, -1, v{tmp}")

def poll_loop(E, loads, regs, name, tmp, pre_issued=False):
    L = newlabel(name); Lc = newlabel(name + "c"); Ld = newlabel(name + "d")
    E(f"s_mov_b32 s{sSPIN}, 0")
    if pre_issued:
        E.flush_haz()
        E(f"s_branch {Lc}")
    E.label(L)
    E(loads)
    E.label(Lc)
    E.force_wait(vm=0)
    check_regs(E, regs, tmp)
    spin_tail(E, L, Ld, sleep=OPT["psleep"])

def cons_setup(E, br):
    t0, t1, t2 = T0, T0 + 1, T0 + 2
    E(f"v_bfe_u32 v{t0}, v{vLANE}, 2, 2")
    E(f"v_and_b32 v{t1}, 3, v{vLANE}")
    E(f"v_lshlrev_b32 v{t2}, 3, v{vG}")
    E(f"v_lshl_add_u32 v{t2}, v{t0}, 1, v{t2}")
    E(f"v_mul_u32_u24 v{t2}, 112, v{t2}")
    E(f"v_lshl_add_u32 v{vTR}, v{t1}, 3, v{t2}")
    E(f"s_mul_i32 s{sT0}, s{sHH}, 56")
    E(f"v_add_u32 v{vTR}, s{sT0}, v{vTR}")
    E(f"v_lshrrev_b32 v{t0}, 1, v{vL16}")
    E(f"v_xor_b32 v{t0}, v{t0}, v{vG}")
    E(f"v_lshlrev_b32 v{t0}, 4, v{t0}")
    E(f"v_lshl_add_u32 v{t0}, v{vL16}, 7, v{t0}")
    E(f"s_lshl_b32 s{sT0}, s{sRG}, 12")
    E(f"v_add_u32 v{vXR}, s{sT0}, v{t0}")
    E(f"v_xor_b32 v{vXR+1}, 64, v{vXR}")
    E(f"s_lshl_b32 s{sT0}, s{sRB}, 3")
    E(f"s_lshl_b32 s{sT1}, s{sRG}, 1")
    E(f"s_add_u32 s{sT0}, s{sT0}, s{sT1}")
    E(f"s_lshl_b32 s{sT0}, s{sT0}, 4")
    E(f"s_lshl_b32 s{sT1}, s{sHP}, 1")
    E(f"s_add_u32 s{sT0}, s{sT0}, s{sT1}")
    E(f"s_add_u32 s{sT0}, s{sT0}, s{sHH}")
    E(f"s_lshl_b32 s{sT0}, s{sT0}, 10")
    E(f"s_lshl_b32 s{sT1}, s{sBR}, 21")
    E(f"s_add_u32 s{sT0}, s{sT0}, s{sT1}")
    E(f"v_add_u32 v{vOOFF}, s{sT0}, v{vL16B}")
    E(f"s_mov_b32 s{s16K}, 16384")

def ostore(reg, u):
    return f"buffer_store_dwordx4 {vr(reg, 4)}, v{vOOFF}, {sr(SWS, 4)}, {'0' if u == 0 else 's' + str(s16K)} offen sc1"

class Cons:
    def __init__(self, E, br, stages, buf0, bufsz, nbuf, halo=False, HACC=None):
        self.E, self.br, self.stages = E, br, stages
        self.buf0, self.bufsz, self.nbuf, self.halo, self.HACC = buf0, bufsz, nbuf, halo, HACC
        self.cur_base = 0
        self.ks = 0; self.pending = []
        self.nbar = 0
        self.prebar = None

    def parts(self, s, tt, buf):
        st = self.stages[s]; m = st["m"]; t = 2 * m + tt
        first = t == 0
        B0 = self.buf0 + self.bufsz * buf
        rd, mm = [], []
        xr = [B0, B0 + 4]
        for u in range(2):
            rd.append(f"ds_read_b128 {vr(xr[u], 4)}, v{vXR + tt} offset:{2048 * u}")
        wb = B0 + 8
        if self.halo:
            hx = B0 + 8; wb = B0 + 12
            rd.append(f"ds_read_b128 {vr(hx, 4)}, v{vXR + tt} offset:16384")
        elif self.br == "A":
            wb = B0 + 12
        for k, seg in enumerate(st["segs"]):
            si = SEGI[seg]
            tr = not (self.br == "A" and seg == "V")
            for c in range(2):
                wf = wb + 8 * k + 4 * c
                for j in range(2):
                    rd.append(f"ds_read_b64_tr_b16 {vr(wf + 2 * j, 2)}, v{vTR} offset:{woff(self.br, k) + 3584 * tt + 112 * j + 32 * c}")
                for u in range(2):
                    acc = ACC[si] + 8 * u + 4 * c
                    a_, b_ = (vr(wf, 4), vr(xr[u], 4)) if tr else (vr(xr[u], 4), vr(wf, 4))
                    mm.append(f"v_mfma_f32_16x16x32_bf16 {vr(acc, 4)}, {a_}, {b_}, {'0' if first else vr(acc, 4)}")
                if self.halo and seg != "Q":
                    acc = self.HACC + 8 * si + 4 * c
                    a_, b_ = (vr(wf, 4), vr(hx, 4)) if tr else (vr(hx, 4), vr(wf, 4))
                    mm.append(f"v_mfma_f32_16x16x32_bf16 {vr(acc, 4)}, {a_}, {b_}, {'0' if first else vr(acc, 4)}")
        if OPT["no_comp"] == 1:
            return [], []
        if OPT["no_comp"] == 2:
            return rd, []
        if OPT["no_comp"] == 3:
            return [], mm
        return rd, mm

    def run(self, s0, s1):
        E = self.E
        prev = []
        for ks in range(2 * s0, 2 * s1 + 2):
            s, tt = divmod(ks, 2)
            pre = []
            if tt == 0:
                nlead = min(OPT["lead"], len(prev))
                E(prev[:nlead]); prev = prev[nlead:]
                if self.prebar:
                    self.prebar(E, s)
                E.barrier(lgkm0=False)
                self.nbar += 1
                if self.nbar <= 14:
                    stamp(E, self.nbar, fine=True)
                if OPT["stamps"] and OPT["fine"] and self.nbar in (2, 7):
                    E(f"s_memtime {sr(sSTAMP + 2 * (12 if self.nbar == 2 else 13), 2)}")
                d = self.stages[s]["base"] - self.cur_base
                self.cur_base = self.stages[s]["base"]
                for r in (vXR, vXR + 1, vTR):
                    E(vadd_imm(r, d))
            rd, mm = self.parts(s, tt, ks % 2)
            if prev:
                E(interleave_front(prev, rd))
            else:
                E(rd)
            prev = mm
        E(prev)

vL2E = 162
ONES = 164
def phi_path(si, outreg, tmps, WP):
    streams = []
    for u in range(2):
        T = tmps[u]
        P = ACC[si] + 8 * u
        op, pk, Ep, Em = T, T, P, T + 4
        mx, mn, mx1, mn1 = T + 12, T + 13, T + 14, T + 15
        t = T
        O = outreg + 8 * u
        o = []
        o += pack_op(P, op)
        for ft in range(2):
            o.append(f"v_mfma_f32_16x16x32_bf16 {vr(P + 4 * ft, 4)}, {vr(WP + 4 * ft, 4)}, {vr(op, 4)}, 0")
        o += round_pairs(P, P, 8, pk)
        o.append(f"v_max3_f32 v{mx}, v{P}, v{P+1}, v{P+2}")
        o.append(f"v_min3_f32 v{mn}, v{P}, v{P+1}, v{P+2}")
        o.append(f"v_max3_f32 v{mx}, v{mx}, v{P+3}, v{P+4}")
        o.append(f"v_min3_f32 v{mn}, v{mn}, v{P+3}, v{P+4}")
        o.append(f"v_max3_f32 v{mx}, v{mx}, v{P+5}, v{P+6}")
        o.append(f"v_min3_f32 v{mn}, v{mn}, v{P+5}, v{P+6}")
        o.append(f"v_max_f32 v{mx}, v{mx}, v{P+7}")
        o.append(f"v_max_f32 v{mn}, -v{mn}, -v{P+7}")
        o += dual_reduce(mx, mn, t, "v_max_f32")
        o.append(f"v_mul_f32 v{mx}, s{sL2E}, v{mx}")
        o.append(f"v_mul_f32 v{mn}, s{sL2E}, v{mn}")
        o.append(f"v_add_f32 v{mx1}, v{mx}, v{vPADB}")
        o.append(f"v_add_f32 v{mn1}, v{mn}, v{vPADB}")
        for i in (range(8) if not OPT["pkfma"] else []):
            o.append(f"v_fma_f32 v{Em+i}, -v{P+i}, s{sL2E}, -v{mn if i < 4 else mn1}")
            o.append(f"v_fma_f32 v{Ep+i}, v{P+i}, s{sL2E}, -v{mx if i < 4 else mx1}")
        for i in (range(0, 8, 2) if OPT["pkfma"] else []):
            mm_ = vr(mx if i < 4 else mx1, 2)
            if OPT["pkfma"] == 2:
                o.append(f"v_pk_fma_f32 {vr(Em+i, 2)}, {vr(P+i, 2)}, {vr(vL2E, 2)}, {mm_} op_sel:[0,0,1] op_sel_hi:[1,1,1] neg_lo:[1,0,1] neg_hi:[1,0,1]")
                o.append(f"v_pk_fma_f32 {vr(Ep+i, 2)}, {vr(P+i, 2)}, {vr(vL2E, 2)}, {mm_} op_sel_hi:[1,1,0] neg_lo:[0,0,1] neg_hi:[0,0,1]")
                continue
            o.append(f"v_pk_fma_f32 {vr(Em+i, 2)}, {vr(P+i, 2)}, {sr(sL2E, 2)}, {mm_} op_sel:[0,0,1] op_sel_hi:[1,0,1] neg_lo:[1,0,1] neg_hi:[1,0,1]")
            o.append(f"v_pk_fma_f32 {vr(Ep+i, 2)}, {vr(P+i, 2)}, {sr(sL2E, 2)}, {mm_} op_sel_hi:[1,0,0] neg_lo:[0,0,1] neg_hi:[0,0,1]")
        for i in range(8):
            o.append(f"v_exp_f32 v{Ep+i}, v{Ep+i}")
            o.append(f"v_exp_f32 v{Em+i}, v{Em+i}")
        if OPT["mfsum"]:
            for i in range(4):
                o.append(f"v_cvt_pk_bf16_f32 v{O + i}, v{Ep + 2 * i}, v{Ep + 2 * i + 1}")
                o.append(f"v_cvt_pk_bf16_f32 v{O + 4 + i}, v{Em + 2 * i}, v{Em + 2 * i + 1}")
            SP, SM = T, T + 12
            o.append(f"v_mfma_f32_16x16x32_bf16 {vr(SP, 4)}, {vr(ONES, 4)}, {vr(O, 4)}, 0")
            o.append(f"v_mfma_f32_16x16x32_bf16 {vr(SM, 4)}, {vr(ONES, 4)}, {vr(O + 4, 4)}, 0")
            sp, sm = SP, SM
        else:
            sp, sm = mx1, mn1
            o.append(f"v_add_f32 v{sp}, v{Ep}, v{Ep+1}")
            o.append(f"v_add_f32 v{sm}, v{Em}, v{Em+1}")
            for i in range(2, 8):
                o.append(f"v_add_f32 v{sp}, v{sp}, v{Ep+i}")
                o.append(f"v_add_f32 v{sm}, v{sm}, v{Em+i}")
            o += dual_reduce(sp, sm, t, "v_add_f32")
        o.append(f"v_rcp_f32 v{sp}, v{sp}")
        o.append(f"v_rcp_f32 v{sm}, v{sm}")
        for i in range(8):
            o.append(f"v_mul_f32 v{Ep+i}, v{Ep+i}, v{sp}")
            o.append(f"v_mul_f32 v{Em+i}, v{Em+i}, v{sm}")
        for i in range(4):
            o.append(f"v_cvt_pk_bf16_f32 v{O + i}, v{Ep + 2 * i}, v{Ep + 2 * i + 1}")
            o.append(f"v_cvt_pk_bf16_f32 v{O + 4 + i}, v{Em + 2 * i}, v{Em + 2 * i + 1}")
        streams.append(o)
    k = OPT["stag"]
    if k:
        a_, b_ = streams
        head = interleave(a_[:8], b_[:8]); a_, b_ = a_[8:], b_[8:]
        return head + a_[:k] + interleave(a_[k:], b_[:len(b_) - k]) + b_[len(b_) - k:]
    return interleave(streams[0], streams[1])

def cons_B(E):
    WP, PHI, BUF = 64, 72, 88
    cons_setup(E, "B")
    srds(E); srds2(E)
    if OPT["sbar"]:
        E.barrier()
    if OPT["pf"] and not OPT["pfA"]:
        prefetch(E)
    stamps_init(E)
    ones = PHI
    for i in range(4):
        E(f"v_mov_b32 v{ones + i}, -1")
        E(f"v_mov_b32 v{ONES + i}, 0x3f803f80")
    E(f"v_mov_b32 v{vL2E}, s{sL2E}"); E(f"v_mov_b32 v{vL2E + 1}, s{sL2E}")
    vKV = 14
    E(f"s_lshl_b32 s{sT0}, s{sHP}, 4")
    E(f"s_add_u32 s{sT0}, s{sT0}, s{sRB}")
    E(f"s_lshl_b32 s{sT0}, s{sT0}, 3")
    E(f"s_add_u32 s{sT0}, s{sT0}, s{sWV}")
    E(f"s_lshl_b32 s{sT0}, s{sT0}, 10")
    E(f"s_add_u32 s{sT0}, s{sT0}, {WS_KVP}")
    E(f"v_add_u32 v{vKV}, s{sT0}, v{vL16B}")
    E(f"v_mov_b32 v{vPADB}, 0")
    E(f"v_mov_b32 v{T0}, 0x7149f2ca")
    E(f"v_cndmask_b32 v{vPADB}, v{vPADB}, v{T0}, {sr(sG3, 2)}")
    E(f"s_lshl_b32 s{sT2}, s{sRG}, 5")
    E(f"v_add_u32 v{vSL}, s{sT2}, v{vL16}")
    E(f"v_mul_u32_u24 v{vA0}, {PHI_STRIDE}, v{vSL}")
    E(f"v_lshl_add_u32 v{vA0}, v{vG}, 3, v{vA0}")
    E(f"s_lshl_b32 s{sT2}, s{sHH}, 7")
    E(f"v_add_u32 v{vA0}, s{sT2}, v{vA0}")
    E(f"v_mul_u32_u24 v{vA1}, {V_STRIDE}, v{vSL}")
    E(f"v_lshl_add_u32 v{vA1}, v{vG}, 3, v{vA1}")
    E(f"s_mul_i32 s{sT0}, s{sHH}, {VB[1] - VB[0]}")
    E(f"s_add_u32 s{sT0}, s{sT0}, {VB[0]}")
    E(f"v_add_u32 v{vA1}, s{sT0}, v{vA1}")
    t0, t1 = T0, T0 + 1
    E(f"v_and_b32 v{t0}, 1, v{vG}")
    E(f"v_lshlrev_b32 v{t0}, 4, v{t0}")
    E(f"v_bfe_u32 v{t1}, v{vLANE}, 2, 2")
    E(f"v_lshl_add_u32 v{t0}, v{t1}, 2, v{t0}")
    E(f"v_lshrrev_b32 v{t1}, 1, v{vG}")
    E(f"v_lshl_add_u32 v{t0}, v{t1}, 1, v{t0}")
    E(f"v_and_b32 v{t1}, 3, v{vLANE}")
    E(f"v_lshlrev_b32 v{t1}, 3, v{t1}")
    E(f"s_lshr_b32 s{sT0}, s{sWV}, 1")
    E(f"s_lshl_b32 s{sT0}, s{sT0}, 6")
    E(f"v_mul_u32_u24 v{vA2}, {PHI_STRIDE}, v{t0}")
    E(f"v_add3_u32 v{vA2}, v{vA2}, v{t1}, s{sT0}")
    E(f"s_lshr_b32 s{sT0}, s{sWV}, 2")
    E(f"s_mul_i32 s{sT0}, s{sT0}, {VB[1] - VB[0]}")
    E(f"s_add_u32 s{sT0}, s{sT0}, {VB[0]}")
    E(f"s_and_b32 s{sT1}, s{sWV}, 1")
    E(f"s_lshl_b32 s{sT1}, s{sT1}, 5")
    E(f"s_add_u32 s{sT0}, s{sT0}, s{sT1}")
    E(f"v_mul_u32_u24 v{vA3}, {V_STRIDE}, v{t0}")
    E(f"v_add3_u32 v{vA3}, v{vA3}, v{t1}, s{sT0}")
    w1, w2 = T0 + 8, T0 + 9
    E(f"v_bfe_u32 v{t0}, v{vLANE}, 2, 2")
    E(f"v_lshl_add_u32 v{t0}, v{vG}, 2, v{t0}")
    E(f"v_mul_u32_u24 v{t0}, 56, v{t0}")
    E(f"s_mul_i32 s{sT2}, s{sHH}, 1568")
    E(f"s_add_u32 s{sT2}, s{sT2}, {B_WPH}")
    E(f"v_add_u32 v{t0}, s{sT2}, v{t0}")
    E(f"v_and_b32 v{t1}, 3, v{vLANE}")
    E(f"v_min_u32 v{w2}, 2, v{t1}")
    E(f"v_lshl_add_u32 v{w1}, v{t1}, 3, v{t0}")
    E(f"v_lshl_add_u32 v{w2}, v{w2}, 3, v{t0}")
    C = Cons(E, "B", B_STAGES, BUF, 32, 2)
    def prebar(E, s):
        if s == 3:
            for ft in range(2):
                for j in range(2):
                    E(f"ds_read_b64_tr_b16 {vr(WP + 4 * ft + 2 * j, 2)}, v{w1 if ft == 0 else w2} offset:{896 * j + 32 * ft}")
            for ft in range(2):
                for i in (2, 3):
                    r = WP + 4 * ft + i
                    E(f"v_cndmask_b32 v{r}, v{r}, 0, {sr(sG3, 2)}")
    C.prebar = prebar
    C.run(0, 6)
    stamp(E, 1)
    SCR = BUF + 32
    vp0 = T0
    F = [f"v_mov_b32 v{vp0 + 8}, 0x3f80"]
    for u in range(2):
        vp = vp0 + 4 * u
        F += pack_op(ACC[1] + 8 * u, vp, zero_pad=False)
        F.append(f"v_cndmask_b32 v{vp + 2}, v{vp + 2}, v{vp0 + 8}, {sr(sG3, 2)}")
        F.append(f"v_cndmask_b32 v{vp + 3}, v{vp + 3}, 0, {sr(sG3, 2)}")
    for u in range(2):
        for dt in range(2):
            F.append(f"ds_write_b64 v{vA1}, {vr(vp0 + 4 * u + 2 * dt, 2)} offset:{16 * V_STRIDE * u + 32 * dt}")
    body = phi_path(0, PHI, [SCR, SCR + 16], WP)
    E(body[:16]); E(F); E(body[16:])
    for u in range(2):
        for sg in range(2):
            for ft in range(2):
                E(f"ds_write_b64 v{vA0}, {vr(PHI + 8 * u + 4 * sg + 2 * ft, 2)} offset:{PHI_BASE + 16 * PHI_STRIDE * u + 64 * sg + 32 * ft}")
    stamp(E, 3)
    E.barrier()
    KA, KB_, KD = ACC[0], SCR, SCR + 16
    for ks in range(4):
        for j in range(2):
            E(f"ds_read_b64_tr_b16 {vr(KB_ + 4 * ks + 2 * j, 2)}, v{vA3} offset:{(32 * ks + j) * V_STRIDE}")
        for ft in range(2):
            for j in range(2):
                E(f"ds_read_b64_tr_b16 {vr(KA + 8 * ks + 4 * ft + 2 * j, 2)}, v{vA2} offset:{PHI_BASE + (32 * ks + j) * PHI_STRIDE + 32 * ft}")
        if ks >= 1:
            for ft in range(2):
                cin = "0" if ks == 1 else vr(KD + 4 * ft, 4)
                E(f"v_mfma_f32_16x16x32_bf16 {vr(KD + 4 * ft, 4)}, {vr(KA + 8 * (ks - 1) + 4 * ft, 4)}, {vr(KB_ + 4 * (ks - 1), 4)}, {cin}")
    for ft in range(2):
        E(f"v_mfma_f32_16x16x32_bf16 {vr(KD + 4 * ft, 4)}, {vr(KA + 24 + 4 * ft, 4)}, {vr(KB_ + 12, 4)}, {vr(KD + 4 * ft, 4)}")
    kp = T0
    E(pack_op(KD, kp, zero_pad=False))
    for i in range(4):
        E(f"v_min_u32 v{kp + i}, -2, v{kp + i}")
    E(f"buffer_store_dwordx4 {vr(kp, 4)}, v{vKV}, {sr(SWS, 4)}, 0 offen sc1")
    stamp(E, 4)
    E.barrier()
    G = BUF
    E(f"s_lshl_b32 s{sT0}, s{sHP}, 17")
    E(f"s_lshl_b32 s{sT1}, s{sWV}, 10")
    E(f"s_add_u32 s{sT0}, s{sT0}, s{sT1}")
    E(f"s_add_u32 s{sT0}, s{sT0}, {WS_KVP}")
    E(f"v_add_u32 v{vA1}, s{sT0}, v{vL16B}")
    loads = []
    for p in range(16):
        loads.append(f"s_mov_b32 s{sT0}, {8192 * p}")
        loads.append(f"buffer_load_dwordx4 {vr(G + 4 * p, 4)}, v{vA1}, {sr(SWS, 4)}, s{sT0} offen sc1")
    body = phi_path(2, PHI, [ACC[0], ACC[1]], WP)
    h = len(body) * OPT["gat"] // 100
    E(body[:h])
    E.barrier()
    stamp(E, 5)
    E(loads)
    E(body[h:])
    E(p3_setup(E))
    stamp(E, 6)
    SEL = T0 + 2
    SUM = ACC[0]
    t0_, t1_ = ACC[0] + 8, ACC[0] + 9
    E(f"v_lshrrev_b32 v{t0_}, 2, v{vL16}")
    E(f"v_cmp_eq_u32 vcc, v{t0_}, v{vG}")
    E(f"v_and_b32 v{t0_}, 1, v{vL16}")
    E(f"v_lshlrev_b32 v{t0_}, 4, v{t0_}")
    E(f"v_mov_b32 v{t1_}, 0x3f80")
    E(f"v_lshlrev_b32 v{t0_}, v{t0_}, v{t1_}")
    E(f"v_cndmask_b32 v{t0_}, 0, v{t0_}, vcc")
    E(f"v_and_b32 v{t1_}, 2, v{vL16}")
    E(f"v_cmp_eq_u32 vcc, 0, v{t1_}")
    for r in (SEL, SEL + 1, SEL + 4, SEL + 5):
        E(f"v_mov_b32 v{r}, 0")
    E(f"v_cndmask_b32 v{SEL + 2}, 0, v{t0_}, vcc")
    E(f"v_cndmask_b32 v{SEL + 3}, v{t0_}, 0, vcc")
    L = newlabel("kv"); Lc = newlabel("kvc"); Ld = newlabel("kvd")
    E(f"s_mov_b32 s{sSPIN}, 0")
    saved = list(E.vmq)
    E.flush_haz()
    E(f"s_branch {Lc}")
    E.label(L)
    E.vmq = []
    E(loads)
    E.label(Lc)
    chk = T0
    for p in range(16):
        g4 = G + 4 * p
        E(f"v_mfma_f32_16x16x32_bf16 {vr(SUM, 4)}, {vr(SEL + 2, 4)}, {vr(g4, 4)}, {'0' if p == 0 else vr(SUM, 4)}")
        E(f"v_mfma_f32_16x16x32_bf16 {vr(SUM + 4, 4)}, {vr(SEL, 4)}, {vr(g4, 4)}, {'0' if p == 0 else vr(SUM + 4, 4)}")
        if p == 0:
            E(f"v_max_u32 v{chk}, v{g4}, v{g4 + 1}")
        else:
            E(f"v_max3_u32 v{chk}, v{chk}, v{g4}, v{g4 + 1}")
        E(f"v_max3_u32 v{chk}, v{chk}, v{g4 + 2}, v{g4 + 3}")
    E(f"v_cmp_eq_u32 vcc, -1, v{chk}")
    spin_tail(E, L, Ld)
    stamp(E, 7)
    kf = ACC[0] + 8
    E(pack_op(SUM, kf, zero_pad=False))
    E(f"s_lshl_b32 s{sT0}, s{sWV}, 10")
    E(f"s_add_u32 s{sT0}, s{sT0}, {KVF}")
    E(f"v_add_u32 v{vA1}, s{sT0}, v{vL16B}")
    E(f"ds_write_b128 v{vA1}, {vr(kf, 4)}")
    E(f"s_lshl_b32 s{sT0}, s{sHH}, 12")
    E(f"s_add_u32 s{sT0}, s{sT0}, {KVF}")
    E(f"v_add_u32 v{vA1}, s{sT0}, v{vL16B}")
    E(f"v_lshlrev_b32 v{vA2}, 8, v{vG}")
    E(f"s_add_u32 s{sT0}, s{sT0}, {12 * 16}")
    E(f"v_add_u32 v{vA2}, s{sT0}, v{vA2}")
    E.barrier()
    KF, ZF, NUM = BUF, BUF + 16, BUF + 24
    for w in range(4):
        E(f"ds_read_b128 {vr(KF + 4 * w, 4)}, v{vA1} offset:{1024 * w}")
    for sg in range(2):
        E(f"ds_read_b128 {vr(ZF + 4 * sg, 4)}, v{vA2} offset:{1024 * (2 * sg + 1)}")
    pre_a = p3_loads(0)[0]
    for u in range(2):
        for dt in range(2):
            for sg in range(2):
                d = NUM + 12 * u + 4 * dt
                E(f"v_mfma_f32_16x16x32_bf16 {vr(d, 4)}, {vr(KF + 4 * (2 * sg + dt), 4)}, {vr(PHI + 8 * u + 4 * sg, 4)}, {'0' if sg == 0 else vr(d, 4)}")
        for sg in range(2):
            d = NUM + 12 * u + 8
            E(f"v_mfma_f32_16x16x32_bf16 {vr(d, 4)}, {vr(ZF + 4 * sg, 4)}, {vr(PHI + 8 * u + 4 * sg, 4)}, {'0' if sg == 0 else vr(d, 4)}")
    if OPT["prea"] == 0:
        E(pre_a)
    st = []
    for u in range(2):
        n = NUM + 12 * u; dn = n + 8
        t = BUF + 48 + 8 * u
        o = []
        o += round_pairs(n, n, 8, t)
        o.append(f"v_cvt_pk_bf16_f32 v{t + 4}, v{dn}, v{dn}")
        o.append(f"v_lshlrev_b32 v{dn}, 16, v{t + 4}")
        o.append(f"v_add_f32 v{dn}, 0x358637bd, v{dn}")
        o.append(f"v_cvt_pk_bf16_f32 v{t + 4}, v{dn}, v{dn}")
        o.append(f"v_lshlrev_b32 v{dn}, 16, v{t + 4}")
        o.append(f"v_rcp_f32 v{dn}, v{dn}")
        for i in range(8):
            o.append(f"v_mul_f32 v{n + i}, v{n + i}, v{dn}")
        o += pack_op(n, t)
        for i in range(4):
            o.append(f"v_min_u32 v{t + i}, -2, v{t + i}")
        o.append(ostore(t, u))
        st.append(o)
    E(interleave(st[0], st[1]))
    if OPT["prea"] == 1:
        E(pre_a)
    stamp(E, 8)

def att_masks():
    ms = []
    for tile in range(2):
        for i in range(4):
            m = 0
            for lane in range(64):
                q, g = lane & 15, lane >> 4
                d = q - (4 * g + i) + (16 if tile == 0 else 0)
                if 0 <= d <= 14 and d % 2 == 0:
                    m |= 1 << lane
            ms.append(m)
    return ms

def cons_A(E, halo):
    HACC, BUF = 64, 80
    cons_setup(E, "A")
    srds(E); srds2(E)
    ones = T0 + 4
    for i in range(4):
        E(f"v_mov_b32 v{ones + i}, -1")
    E(f"s_lshl_b32 s{sT0}, s{sHP}, 4")
    E(f"s_add_u32 s{sT0}, s{sT0}, s{sRB}")
    E(f"s_lshl_b32 s{sT0}, s{sT0}, 3")
    E(f"s_add_u32 s{sT0}, s{sT0}, s{sWV}")
    E(f"s_lshl_b32 s{sT0}, s{sT0}, 10")
    E(f"s_add_u32 s{sT0}, s{sT0}, {WS_KVP}")
    E(f"v_add_u32 v{vA0}, s{sT0}, v{vL16B}")
    E(f"buffer_store_dwordx4 {vr(ones, 4)}, v{vA0}, {sr(SWS, 4)}, 0 offen sc1")
    if OPT["sbar"]:
        E.barrier()
    if OPT["pf"] and not OPT["pfA"]:
        prefetch(E)
    elif OPT["pf"]:
        E(f"s_and_b32 s{sMP}, s{sJ}, 15")
        prefetch(E, sMP)
        E(f"s_add_u32 s{sMP}, s{sMP}, 16")
        prefetch(E, sMP)
    stamps_init(E)
    ms = att_masks()
    for i, m in enumerate(ms):
        E(f"s_mov_b32 s{sMASK + 2 * i}, {m & 0xffffffff:#x}")
        E(f"s_mov_b32 s{sMASK + 2 * i + 1}, {m >> 32:#x}")
    E(f"s_lshl_b32 s{sT0}, s{sWV}, 11")
    E(f"s_add_u32 s{sT0}, s{sT0}, {A_EXCH}")
    E(f"v_add_u32 v{vA1}, s{sT0}, v{vL16B}")
    E(f"v_lshl_add_u32 v{vA2}, v{vLANE}, 3, s{sT0}")
    C = Cons(E, "A", A_STAGES, BUF, 36, 2, halo=halo, HACC=HACC)
    def fl(E, base):
        Lf = newlabel("fs")
        E(f"s_cmp_lg_u32 s{sWV}, 0")
        E.flush_haz()
        E(f"s_cbranch_scc1 {Lf}")
        flag_store(E, 1, T0, T0 + 1, base)
        E.label(Lf)
    def prebar(E, s):
        if s == OPT["fk"]:
            E.force_wait(vm=0 if OPT["fk"] else 1)
        if s == OPT["fk"] + 1 and halo:
            fl(E, 0)
        if s in (1, 2):
            E(f"s_mov_b32 s{sT0}, {WS_OB + 16384 * (s - 1)}")
            E(f"buffer_store_dwordx4 {vr(ones, 4)}, v{vOOFF}, {sr(SWS, 4)}, s{sT0} offen sc1")
            E(ostore(ones, s - 1))
        if s == 3 and OPT["pf2"]:
            sv = list(E.vmq); prefetch2(E, T0, T0 + 1, 15); E.vmq = sv
        if s == OPT["fo"]:
            E.force_wait(vm=0)
        if s == OPT["fo"] + 1 and halo:
            fl(E, 128)
    C.prebar = prebar
    C.run(0, 6)
    stamp(E, 1)
    KT, VV = BUF, BUF + 12
    for u in range(2):
        E(pack_op(ACC[0] + 8 * u, KT + 4 + 4 * u))
        for dt in range(2):
            a = ACC[1] + 8 * u + 4 * dt
            d = VV + 8 * u + 4 * dt + 2
            E(f"v_cvt_pk_bf16_f32 v{d}, v{a}, v{a + 1}")
            E(f"v_cvt_pk_bf16_f32 v{d + 1}, v{a + 2}, v{a + 3}")
            if u == 0:
                E(f"v_mov_b32 v{d + 6}, v{d}")
                E(f"v_mov_b32 v{d + 7}, v{d + 1}")
    E.barrier()
    E(f"ds_write_b128 v{vA1}, {vr(KT + 8, 4)} offset:4096")
    for dt in range(2):
        E(f"ds_write_b64 v{vA2}, {vr(VV + 8 + 4 * dt + 2, 2)} offset:{4096 + 1024 + 512 * dt}")
    if halo:
        E(pack_op(HACC, KT))
        for dt in range(2):
            a = HACC + 8 + 4 * dt
            d = VV + 4 * dt
            E(f"v_cvt_pk_bf16_f32 v{d}, v{a}, v{a + 1}")
            E(f"v_cvt_pk_bf16_f32 v{d + 1}, v{a + 2}, v{a + 3}")
        E(f"s_cmp_eq_u32 s{sRB}, 0")
        E(f"s_cselect_b64 {sr(sMP, 2)}, 0, -1")
    T = BUF + 28
    NEG = T0 + 8
    E(f"v_mov_b32 v{NEG}, 0xf149f2ca")
    MX = [T0, T0 + 1]; SM = [T0 + 2, T0 + 3]; tt = T0 + 4
    pre0, pre, mid, post = [], [], [], []
    for u in range(2):
        B_ = T + 20 * u
        qo, L, pk, P = B_, B_ + 4, B_ + 12, B_ + 16
        O = ACC[1] + 8 * u
        pre0 += pack_op(ACC[2] + 8 * u, qo)
        o = []
        o.append(f"v_mfma_f32_16x16x32_bf16 {vr(L + 4, 4)}, {vr(KT + 4 * u + 4, 4)}, {vr(qo, 4)}, 0")
        o.append(f"v_mfma_f32_16x16x32_bf16 {vr(L, 4)}, {vr(KT + 4 * u, 4)}, {vr(qo, 4)}, 0")
        o += round_pairs(L, L, 8, pk)
        for i in range(8):
            o.append(f"v_mul_f32 v{L + i}, s{sSCL}, v{L + i}")
        o += round_pairs(L, L, 8, pk)
        for i in range(8):
            o.append(f"v_cndmask_b32 v{L + i}, v{NEG}, v{L + i}, {sr(sMASK + 2 * i, 2)}")
        if halo and u == 0:
            for i in range(4):
                o.append(f"v_cndmask_b32 v{L + i}, v{NEG}, v{L + i}, {sr(sMP, 2)}")
        mx = MX[u]
        o.append(f"v_max3_f32 v{mx}, v{L}, v{L+1}, v{L+2}")
        o.append(f"v_max3_f32 v{mx}, v{mx}, v{L+3}, v{L+4}")
        o.append(f"v_max3_f32 v{mx}, v{mx}, v{L+5}, v{L+6}")
        o.append(f"v_max_f32 v{mx}, v{mx}, v{L+7}")
        pre.append(o)
        o = []
        o.append(f"v_mul_f32 v{mx}, s{sL2E}, v{mx}")
        for i in range(8):
            o.append(f"v_fma_f32 v{L + i}, v{L + i}, s{sL2E}, -v{mx}")
        for i in range(8):
            o.append(f"v_exp_f32 v{L + i}, v{L + i}")
        sm = SM[u]
        o.append(f"v_add_f32 v{sm}, v{L}, v{L + 1}")
        for i in range(2, 8):
            o.append(f"v_add_f32 v{sm}, v{sm}, v{L + i}")
        mid.append(o)
        o = []
        o.append(f"v_rcp_f32 v{sm}, v{sm}")
        for i in range(8):
            o.append(f"v_mul_f32 v{L + i}, v{L + i}, v{sm}")
        for i in range(4):
            o.append(f"v_cvt_pk_bf16_f32 v{P + i}, v{L + 2 * i}, v{L + 2 * i + 1}")
        for dt in range(2):
            o.append(f"v_mfma_f32_16x16x32_bf16 {vr(O + 4 * dt, 4)}, {vr(VV + 8 * u + 4 * dt, 4)}, {vr(P, 4)}, 0")
        o += pack_op(O, qo)
        for i in range(4):
            o.append(f"v_min_u32 v{qo + i}, -2, v{qo + i}")
        o.append(ostore(qo, u))
        post.append(o)
    E(pre0)
    E.barrier()
    if not halo:
        E(f"ds_read_b128 {vr(KT, 4)}, v{vA1}")
        for dt in range(2):
            E(f"ds_read_b64 {vr(VV + 4 * dt, 2)}, v{vA2} offset:{1024 + 512 * dt}")
    E(interleave(pre[1], pre[0]))
    E(dual_reduce(MX[0], MX[1], tt, "v_max_f32"))
    E(interleave(mid[0], mid[1]))
    E(dual_reduce(SM[0], SM[1], tt, "v_add_f32"))
    E(interleave(post[0], post[1]))
    stamp(E, 8)
    E.barrier()
    E(p3_setup(E))

def loader(E, br, last):
    stages = A_STAGES if br == "A" else B_STAGES
    vX, vW0, vW1, vH0, vH1, vWO, vGX, vGF, vGOFF = 4, 5, 6, 7, 8, 9, 10, 12, 13
    t0, t1, t2, t3 = T0, T0 + 1, T0 + 2, T0 + 3
    sL = sRG
    if OPT["prio"]:
        E("s_setprio 3")
    E(f"s_sub_u32 s{sL}, s{sWV}, 8")
    E(f"v_lshrrev_b32 v{t0}, 3, v{vLANE}")
    E(f"v_bfe_u32 v{t1}, v{vLANE}, 4, 2")
    E(f"s_lshl_b32 s{sT1}, s{sHH}, 2")
    E(f"v_or_b32 v{t1}, s{sT1}, v{t1}")
    E(f"v_and_b32 v{t2}, 7, v{vLANE}")
    E(f"v_xor_b32 v{t1}, v{t1}, v{t2}")
    E(f"s_lshl_b32 s{sT0}, s{sRB}, 7")
    E(f"s_lshl_b32 s{sT1}, s{sL}, 3")
    E(f"s_add_u32 s{sT0}, s{sT0}, s{sT1}")
    E(f"v_add_u32 v{t0}, s{sT0}, v{t0}")
    E(f"v_mul_u32_u24 v{vX}, 896, v{t0}")
    E(f"v_lshl_add_u32 v{vX}, v{t1}, 4, v{vX}")
    for pi, vw in enumerate((vW0, vW1)):
        if last and pi == 1:
            break
        E(f"s_lshl_b32 s{sT1}, s{sL}, 6")
        if pi:
            E(f"s_add_u32 s{sT1}, s{sT1}, 256")
        E(f"v_add_u32 v{t0}, s{sT1}, v{vLANE}")
        E(f"v_mul_u32_u24 v{t1}, 9363, v{t0}")
        E(f"v_lshrrev_b32 v{t1}, 16, v{t1}")
        E(f"v_mul_u32_u24 v{t2}, 7, v{t1}")
        E(f"v_sub_u32 v{t2}, v{t0}, v{t2}")
        E(f"v_and_b32 v{t0}, 0x38, v{t1}")
        E(f"v_and_b32 v{t3}, 1, v{t1}")
        E(f"v_lshl_add_u32 v{t0}, v{t3}, 2, v{t0}")
        E(f"v_bfe_u32 v{t3}, v{t1}, 1, 2")
        E(f"v_add_u32 v{t0}, v{t0}, v{t3}")
        E(f"v_mul_u32_u24 v{vw}, 2688, v{t0}")
        E(f"v_lshl_add_u32 v{vw}, v{t2}, 4, v{vw}")
        E(f"s_mul_i32 s{sT1}, s{sHP}, 112")
        E(f"v_add_u32 v{vw}, s{sT1}, v{vw}")
    E(f"s_lshl_b32 s{sM0}, s{sL}, 10")
    if last and br == "A":
        E(f"v_subrev_u32 v{vH1}, {32 * 896}, v{vX}")
        E(f"v_xor_b32 v{vH0}, 64, v{vX}")
        E(f"v_subrev_u32 v{vH0}, {40 * 896}, v{vH0}")
    srds(E)
    lstamp(E, 1)
    def issue(s):
        if OPT["no_load"]:
            return
        st = stages[s]; m = st["m"]; base = st["base"]
        for i in range(4):
            E(f"s_add_u32 m0, s{sM0}, {base + 4096 * i}")
            E(f"s_mov_b32 s{sT0}, {128 * m + 28672 * i}")
            E(f"buffer_load_dwordx4 v{vX}, {sr(SX, 4)}, s{sT0} offen lds", tag=f"S{s}")
        for k, seg in enumerate(st["segs"]):
            for pi, vw in enumerate((vW0, vW1)):
                if last and pi == 1:
                    break
                E(f"s_add_u32 m0, s{sM0}, {base + woff(br, k) + 4096 * pi}")
                E(f"s_mov_b32 s{sT0}, {m * 64 * 2688 + SEGCOL[seg] * 896}")
                E(f"buffer_load_dwordx4 v{vw}, {sr(SW, 4)}, s{sT0} offen lds", tag=f"S{s}")
        if last and br == "A":
            for n2, vh in enumerate((vH0, vH1)):
                E(f"s_mov_b32 m0, {base + 16384 + 1024 * n2}")
                E(f"s_mov_b32 s{sT0}, {128 * m}")
                E(f"buffer_load_dwordx4 v{vh}, {sr(SX, 4)}, s{sT0} offen lds", tag=f"S{s}")
    nxt = 0
    issue(0); nxt = 1
    if OPT["sbar"] == 1:
        E.barrier()
    lstamp(E, 2)
    srds2(E)
    stamps_init(E)
    if last:
        if br == "B":
            E(f"s_mul_i32 s{sT1}, s{sHP}, 3136")
            E(f"v_add_u32 v{t0}, s{sT1}, v{vL16B}")
            for i in range(4):
                E(f"s_mov_b32 m0, {B_WPH + 1024 * i}")
                E(f"s_mov_b32 s{sT0}, {1024 * i}")
                E(f"buffer_load_dwordx4 v{t0}, {sr(SAUX, 4)}, s{sT0} offen lds", tag="S1")
        else:
            E(f"s_mov_b32 m0, {A_GATE}")
            E(f"buffer_load_dwordx4 v{vL16B}, {sr(SAUX, 4)}, 0 offen lds", tag="S0")
    while nxt < OPT["ahead"]:
        issue(nxt); nxt += 1
    if OPT["sbar"] == 2:
        E.barrier()
    lstamp(E, 3)
    E(f"v_lshrrev_b32 v{vWO}, 3, v{vLANE}")
    E(f"v_bfe_u32 v{t1}, v{vLANE}, 4, 2")
    E(f"v_lshlrev_b32 v{t1}, 1, v{t1}")
    E(f"v_and_b32 v{t2}, 7, v{vLANE}")
    E(f"v_xor_b32 v{t1}, v{t1}, v{t2}")
    E(f"v_mul_u32_u24 v{vWO}, 896, v{vWO}")
    E(f"v_lshl_add_u32 v{vWO}, v{t1}, 4, v{vWO}")
    E(f"s_lshl_b32 s{sT1}, s{sCT}, 7")
    E(f"s_mul_i32 s{sT2}, s{sL}, {8 * 896}")
    E(f"s_add_u32 s{sT1}, s{sT1}, s{sT2}")
    E(f"s_cmp_ge_u32 s{sJ}, 28")
    E(f"s_cselect_b32 s{sT1}, 0x1000000, s{sT1}")
    E(f"v_add_u32 v{vWO}, s{sT1}, v{vWO}")
    def wo(b2):
        for i in range(14):
            E(f"s_add_u32 m0, s{sM0}, {(WOB_BASE if b2 else WOA_BASE) + i * 4096}")
            E(f"s_mov_b32 s{sT0}, {i * 32 * 896}")
            E(f"buffer_load_dwordx4 v{vWO}, {sr(SWOA if b2 == 0 else SWOB, 4)}, s{sT0} offen lds", tag=f"WO{b2}")
        if last:
            E(f"s_mov_b32 m0, {(WOB_BASE if b2 else WOA_BASE) + 57344}")
            E(f"s_mov_b32 s{sT0}, {448 * 896}")
            E(f"buffer_load_dwordx4 v{vWO}, {sr(SWOA if b2 == 0 else SWOB, 4)}, s{sT0} offen lds", tag=f"WO{b2}")
    gate = last and br == "A"
    if gate:
        E(f"v_lshrrev_b32 v{t0}, 1, v{vL16}")
        E(f"v_xor_b32 v{t0}, v{t0}, v{vG}")
        E(f"v_lshlrev_b32 v{t0}, 4, v{t0}")
        E(f"v_lshl_add_u32 v{t0}, v{vL16}, 7, v{t0}")
        E(f"s_lshl_b32 s{sT0}, s{sHP}, 11")
        E(f"v_add_u32 v{vGX}, s{sT0}, v{t0}")
        E(f"v_xor_b32 v{vGX + 1}, 64, v{vGX}")
        E(f"v_lshlrev_b32 v{vGF}, 4, v{vG}")
        E(f"v_add_u32 v{vGF}, {A_GATE}, v{vGF}")
        E(f"s_lshl_b32 s{sT0}, s{sRB}, 7")
        E(f"s_lshl_b32 s{sT1}, s{sHP}, 4")
        E(f"s_add_u32 s{sT0}, s{sT0}, s{sT1}")
        E(f"s_lshl_b32 s{sT0}, s{sT0}, 2")
        E(f"s_add_u32 s{sT0}, s{sT0}, {WS_G}")
        E(f"v_lshl_add_u32 v{vGOFF}, v{vLANE}, 2, s{sT0}")
        E(f"v_mov_b32 v{t0}, {WS_BYTES}")
        E(f"v_cmp_gt_u32 vcc, 16, v{vLANE}")
        E(f"v_cndmask_b32 v{vGOFF}, v{t0}, v{vGOFF}, vcc")
        E(f"v_mov_b32 v{t1}, -1")
        E(f"buffer_store_dword v{t1}, v{vGOFF}, {sr(SWS, 4)}, 0 offen sc1", tag="GCLR")
    GL, GB = 16, 20
    cur = 0
    cleared = [False]
    def clears():
        on = 40
        for i in range(4):
            E(f"v_mov_b32 v{on + i}, -1")
        E(f"s_lshl_b32 s{sT0}, s{sRB}, 3")
        E(f"s_lshl_b32 s{sT1}, s{sL}, 1")
        E(f"s_add_u32 s{sT0}, s{sT0}, s{sT1}")
        E(f"s_lshl_b32 s{sT0}, s{sT0}, 4")
        E(f"s_lshl_b32 s{sT1}, s{sHP}, 1")
        E(f"s_add_u32 s{sT0}, s{sT0}, s{sT1}")
        E(f"s_lshl_b32 s{sT0}, s{sT0}, 10")
        E(f"s_lshl_b32 s{sT1}, s{sBR}, 21")
        E(f"s_add_u32 s{sT0}, s{sT0}, s{sT1}")
        E(f"v_add_u32 v{t2}, s{sT0}, v{vL16B}")
        E(f"s_mov_b32 s{sT1}, 16384")
        if br == "B":
            E(f"s_lshl_b32 s{sT0}, s{sHP}, 4")
            E(f"s_add_u32 s{sT0}, s{sT0}, s{sRB}")
            E(f"s_lshl_b32 s{sT0}, s{sT0}, 2")
            E(f"s_add_u32 s{sT0}, s{sT0}, s{sL}")
            E(f"s_lshl_b32 s{sT0}, s{sT0}, 11")
            E(f"s_add_u32 s{sT0}, s{sT0}, {WS_KVP}")
            E(f"v_add_u32 v{t3}, s{sT0}, v{vL16B}")
            for i in range(2):
                E(f"buffer_store_dwordx4 {vr(on, 4)}, v{t3}, {sr(SWS, 4)}, 0 offen offset:{1024 * i} sc1", tag="CLR")
        for u in range(2):
            for i in range(2):
                E(f"buffer_store_dwordx4 {vr(on, 4)}, v{t2}, {sr(SWS, 4)}, {'0' if u == 0 else 's' + str(sT1)} offen offset:{1024 * i} sc1", tag="CLR")
    def step(s):
        nonlocal nxt, cur
        E.wait_tag(f"S{s}")
        if s == 0:
            lstamp(E, 4)
        if gate and s == OPT["fo"]:
            E.wait_tag("GCLR")
        E.barrier(lgkm0=True)
        if s == 0:
            lstamp(E, 5)
        if gate:
            d = stages[s]["base"] - cur; cur = stages[s]["base"]
            E(vadd_imm(vGX, d)); E(vadd_imm(vGX + 1, d))
            m = stages[s]["m"]
            for tt in range(2):
                E(f"ds_read_b128 {vr(GB + 8 * tt, 4)}, v{vGX + tt}")
                E(f"ds_read_b128 {vr(GB + 8 * tt + 4, 4)}, v{vGF} offset:{64 * (2 * m + tt)}")
        while nxt < len(stages) and stages[nxt]["after"] <= s and nxt <= s + OPT["ahead"]:
            issue(nxt); nxt += 1
        if gate:
            m = stages[s]["m"]
            for tt in range(2):
                E(f"v_mfma_f32_16x16x32_bf16 {vr(GL, 4)}, {vr(GB + 8 * tt + 4, 4)}, {vr(GB + 8 * tt, 4)}, {'0' if (m == 0 and tt == 0) else vr(GL, 4)}")
    if br == "A":
        for s in range(7):
            step(s)
        if gate:
            g = GL
            E(f"v_cvt_pk_bf16_f32 v{g + 1}, v{g}, v{g}")
            E(f"v_lshlrev_b32 v{g}, 16, v{g + 1}")
            E(f"v_mul_f32 v{g}, s{sL2E}, v{g}")
            E(f"v_exp_f32 v{g}, -v{g}")
            E(f"v_add_f32 v{g}, 1.0, v{g}")
            E(f"v_rcp_f32 v{g}, v{g}")
            E(f"v_cvt_pk_bf16_f32 v{g + 1}, v{g}, v{g}")
            E(f"v_lshlrev_b32 v{g}, 16, v{g + 1}")
            E.wait_tag("GCLR")
            E(f"buffer_store_dword v{g}, v{vGOFF}, {sr(SWS, 4)}, 0 offen sc1")
        E.barrier()
        E.barrier()
        E.barrier()
        wo(0); wo(1)
        if last:
            flags_wait_all(E, t0, t1, 128)
    else:
        for s in range(7):
            step(s)
        if last:
            flags_wait_all(E, t0, t1)
        E.barrier()
        E.barrier()
        wo(0)
        if OPT["wobe"]:
            wo(1)
        if last and OPT["fo"] < 5:
            flags_wait_all(E, t0, t1, 128)
        E.barrier()
        if last and OPT["fo"] >= 5:
            flags_wait_all(E, t0, t1, 128)
        E.barrier()
    E(f"s_cmp_ge_u32 s{sJ}, 28")
    E.flush_haz()
    E("s_cbranch_scc1 L_end")
    E.wait_tag("WO0")
    E.barrier()
    if br == "B" and not OPT["wobe"]:
        wo(1)
    E.force_wait(vm=0)
    E.barrier()
    if OPT["ldst"] and not last:
        Lz = newlabel("ls")
        E(f"s_cmp_lg_u32 s{sWV}, 8")
        E(f"s_cbranch_scc1 {Lz}")
        E.force_wait(vm=0, lgkm=0)
        E(f"s_lshl_b32 s{sT0}, s2, 7")
        E(f"s_add_u32 s{sT0}, s{sT0}, {WS_ST}")
        E(f"v_mov_b32 v20, s{sT0}")
        E("s_mov_b64 exec, 1")
        for i in range(6):
            E(f"v_mov_b32 v22, s{54 + 2 * i}")
            E(f"v_mov_b32 v23, s{54 + 2 * i + 1}")
            E(f"buffer_store_dwordx2 v[22:23], v20, {sr(SWS, 4)}, 0 offen offset:{8 * i}")
            E.force_wait(vm=0)
        E.label(Lz)
    E("s_branch L_end")

def p3_setup(E):
    rt, kh = sP3, sP3 + 1
    t0, t1, t2 = T0 + 8, T0 + 9, T0 + 1
    o = []
    o.append(f"s_and_b32 s{rt}, s{sWV}, 3")
    o.append(f"s_lshr_b32 s{kh}, s{sWV}, 2")
    o.append(f"s_lshl_b32 s{sT2}, s{sT}, 2")
    o.append(f"s_add_u32 s{sT2}, s{sT2}, s{rt}")
    o.append(f"s_lshl_b32 s{sP3 + 2}, s{sT2}, 14")
    o.append(f"s_lshl_b32 s{sP3 + 3}, s{kh}, 13")
    o.append(f"s_add_u32 s{sP3 + 2}, s{sP3 + 2}, s{sP3 + 3}")
    o.append(f"v_add_u32 v{pOF}, s{sP3 + 2}, v{vL16B}")
    o.append(f"s_lshl_b32 s{sT2}, s{sT2}, 4")
    o.append(f"v_add_u32 v{pROW}, s{sT2}, v{vL16}")
    o.append(f"v_bfe_u32 v{t0}, v{vLANE}, 2, 2")
    o.append(f"v_lshl_add_u32 v{t0}, v{vG}, 2, v{t0}")
    o.append(f"v_bfe_u32 v{t1}, v{t0}, 1, 2")
    o.append(f"v_and_b32 v{t2}, 3, v{vLANE}")
    o.append(f"v_lshlrev_b32 v{t2}, 3, v{t2}")
    o.append(f"v_lshl_add_u32 v{t2}, v{t0}, 7, v{t2}")
    o.append(f"s_mul_i32 s{sT2}, s{kh}, 28672")
    o.append(f"s_add_u32 s{sT2}, s{sT2}, {WOA_BASE}")
    o.append(f"v_add_u32 v{t2}, s{sT2}, v{t2}")
    o.append(f"s_lshl_b32 s{sT2}, s{kh}, 1")
    o.append(f"v_xor_b32 v{t1}, s{sT2}, v{t1}")
    for c in range(4):
        o.append(f"v_xor_b32 v{t0}, {c}, v{t1}")
        o.append(f"v_lshl_add_u32 v{pWO + c}, v{t0}, 5, v{t2}")
    o.append(f"v_add_u32 v7, 4096, v{pOF}")
    o.append(f"v_lshlrev_b32 v9, 2, v{pROW}")
    o.append(f"v_add_u32 v9, {WS_G}, v9")
    return o

sP3 = sMASK
pOF, pROW, pWO = 4, 5, 12
def p3_loads(br):
    of = 16 + 32 * br
    loads = [f"s_mov_b32 s{sT2}, {WS_OB if br else 0}"]
    for hl in range(8):
        loads.append(f"buffer_load_dwordx4 {vr(of + 4 * hl, 4)}, v{pOF if hl < 4 else 7}, {sr(SWS, 4)}, s{sT2} offen offset:{1024 * (hl & 3)} sc1")
    regs = list(range(of, of + 32))
    if br == 0:
        loads.append(f"buffer_load_dword v6, v9, {sr(SWS, 4)}, 0 offen sc1")
        regs.append(6)
    return loads, regs

def phase3(E):
    E.label("L_p3")
    E.vmq = []; E.lgq = []
    E(f"s_cmp_ge_u32 s{sJ}, 28")
    E("s_cbranch_scc1 L_fin")
    rt, kh = sP3, sP3 + 1
    vROW, vGV, vWO = pROW, 6, pWO
    vOF0, vOF1, vGA, vXO, vXP, vOUT = pOF, 7, 9, 8, 10, 11
    TMP = 144
    OF, AC, WF = 16, [80, 96], 112
    loads_for = p3_loads
    def gemm(br):
        of = OF + 32 * br
        prev = []
        for hl in range(8):
            wf = WF + 16 * (hl & 1)
            rd = []
            for c in range(4):
                for j in range(2):
                    rd.append(f"ds_read_b64_tr_b16 {vr(wf + 4 * c + 2 * j, 2)}, v{vWO + (c ^ (2 * (hl & 1)))} offset:{3584 * hl + 2048 * j}")
            E(interleave_front(prev, rd) if prev else rd)
            prev = []
            for c in (2, 3, 0, 1):
                acc = AC[br] + 4 * c
                prev.append(f"v_mfma_f32_16x16x32_bf16 {vr(acc, 4)}, {vr(wf + 4 * c, 4)}, {vr(of + 4 * hl, 4)}, {'0' if hl == 0 else vr(acc, 4)}")
        E(prev)
    E.barrier()
    stamp(E, 9)
    la, ra = loads_for(0)
    Lsk = newlabel("p3a")
    E(f"s_cmp_lg_u32 s{sBR}, 0")
    E.flush_haz()
    E(f"s_cbranch_scc1 {Lsk}")
    E(la)
    E.label(Lsk)
    E(f"s_lshl_b32 s{sT0}, s{sWV}, 12")
    E(f"s_add_u32 s{sT0}, s{sT0}, {XB3}")
    E(f"v_add_u32 v{vXO}, s{sT0}, v{vL16B}")
    E(f"s_xor_b32 s{sT0}, s{sWV}, 4")
    E(f"s_lshl_b32 s{sT0}, s{sT0}, 12")
    E(f"s_add_u32 s{sT0}, s{sT0}, {XB3}")
    E(f"v_add_u32 v{vXP}, s{sT0}, v{vL16B}")
    E(f"v_mul_u32_u24 v{vOUT}, 896, v{vROW}")
    E(f"v_lshl_add_u32 v{vOUT}, v{vG}, 3, v{vOUT}")
    E(f"s_lshl_b32 s{sT0}, s{sCT}, 7")
    E(f"s_lshl_b32 s{sT1}, s{kh}, 6")
    E(f"s_add_u32 s{sT0}, s{sT0}, s{sT1}")
    E(f"v_add_u32 v{vOUT}, s{sT0}, v{vOUT}")
    poll_loop(E, la, ra, "o", TMP, pre_issued=True)
    stamp(E, 10)
    if OPT["bearly"]:
        E(loads_for(1)[0])
    gemm(0)
    for i in range(2):
        E(f"ds_write_b128 v{vXO}, {vr(AC[0] + 8 + 4 * i, 4)} offset:{1024 * i}")
    stamp(E, 11)
    lb, rb_ = loads_for(1)
    if not OPT["sent"] and not OPT["bearly"]:
        E(lb)
    for c in range(4):
        E(vadd_imm(vWO + c, WOB_BASE - WOA_BASE))
    E.barrier()
    RA, T1, tp, omg = OF, OF + 8, OF + 16, OF + 24
    for i in range(2):
        E(f"ds_read_b128 {vr(RA + 4 * i, 4)}, v{vXP} offset:{1024 * i}")
    E(f"v_sub_f32 v{omg}, 1.0, v{vGV}")
    if OPT["round_final"]:
        E(f"v_cvt_pk_bf16_f32 v{omg + 1}, v{omg}, v{omg}")
        E(f"v_lshlrev_b32 v{omg}, 16, v{omg + 1}")
    for i in range(8):
        E(f"v_add_f32 v{T1 + i}, v{AC[0] + i}, v{RA + i}")
    if OPT["round_final"]:
        E(round_pairs(T1, T1, 8, tp))
    for i in range(8):
        E(f"v_mul_f32 v{T1 + i}, v{T1 + i}, v{vGV}")
    if OPT["round_final"]:
        E(round_pairs(T1, T1, 8, tp))
    if OPT["sent"]:
        vS = TMP + 2
        E(f"v_and_b32 v{vS}, 7, v{vLANE}")
        E(f"v_lshlrev_b32 v{vS}, 10, v{vS}")
        E(f"s_add_u32 s{sT0}, s{sP3 + 2}, {WS_OB + 1020}")
        E(f"v_add_u32 v{vS}, s{sT0}, v{vS}")
        Ls = newlabel("sn"); Lsd = newlabel("snd")
        E(f"s_mov_b32 s{sSPIN}, 0")
        E.label(Ls)
        E(f"buffer_load_dword v{TMP + 3}, v{vS}, {sr(SWS, 4)}, 0 offen sc1")
        E.force_wait(vm=0)
        E(f"v_cmp_eq_u32 vcc, -1, v{TMP + 3}")
        spin_tail(E, Ls, Lsd, sleep=OPT["sent"])
        poll_loop(E, lb, rb_, "o", TMP)
        stamp(E, 12)
        gemm(1)
    elif not OPT["prog"]:
        poll_loop(E, lb, rb_, "o", TMP, pre_issued=True)
        stamp(E, 12)
        gemm(1)
    else:
        of = OF + 32
        sMK = sP3 + 2
        for i in range(16):
            E(f"v_mov_b32 v{AC[1] + i}, 0")
        E(f"s_mov_b32 s{sMK}, 15")
        E(f"s_mov_b32 s{sSPIN}, 0")
        L = newlabel("pb"); Lc = newlabel("pbc"); Ld = newlabel("pbd")
        E.wait(lgkm=0)
        E.flush_haz()
        E(f"s_branch {Lc}")
        E.label(L)
        for pr in range(4):
            Ls = newlabel("pbl")
            E(f"s_bitcmp1_b32 s{sMK}, {pr}")
            E(f"s_cbranch_scc0 {Ls}")
            E(lb[1 + 2 * pr]); E(lb[2 + 2 * pr])
            E.out.append(Ls + ":")
        E.label(Lc)
        E.force_wait(vm=0)
        for pr in range(4):
            Ls = newlabel("pbk")
            g8 = of + 8 * pr
            E(f"s_bitcmp1_b32 s{sMK}, {pr}")
            E(f"s_cbranch_scc0 {Ls}")
            E(f"v_max3_u32 v{TMP}, v{g8}, v{g8 + 1}, v{g8 + 2}")
            E(f"v_max3_u32 v{TMP + 1}, v{g8 + 3}, v{g8 + 4}, v{g8 + 5}")
            E(f"v_max3_u32 v{TMP}, v{TMP}, v{g8 + 6}, v{g8 + 7}")
            E(f"v_max_u32 v{TMP}, v{TMP}, v{TMP + 1}")
            E(f"v_cmp_eq_u32 vcc, -1, v{TMP}")
            E(f"s_cbranch_vccnz {Ls}")
            for h2 in range(2):
                hl = 2 * pr + h2
                wf = WF + 16 * h2
                for c in range(4):
                    for j in range(2):
                        E(f"ds_read_b64_tr_b16 {vr(wf + 4 * c + 2 * j, 2)}, v{vWO + (c ^ (2 * (hl & 1)))} offset:{3584 * hl + 2048 * j}")
            for h2 in range(2):
                hl = 2 * pr + h2
                wf = WF + 16 * h2
                for c in (2, 3, 0, 1):
                    acc = AC[1] + 4 * c
                    E(f"v_mfma_f32_16x16x32_bf16 {vr(acc, 4)}, {vr(wf + 4 * c, 4)}, {vr(of + 4 * hl, 4)}, {vr(acc, 4)}")
            E(f"s_bitset0_b32 s{sMK}, {pr}")
            assert not E.lgq
            E.out.append(Ls + ":")
        E(f"s_cmp_eq_u32 s{sMK}, 0")
        E(f"s_cbranch_scc1 {Ld}")
        E(f"s_add_u32 s{sSPIN}, s{sSPIN}, 1")
        E(f"s_cmp_lt_u32 s{sSPIN}, {SPIN_MAX}")
        E(f"s_cbranch_scc0 {Ld}")
        E(f"s_branch {L}")
        E.out.append(Ld + ":")
        E.nop(9); E.clear_haz()
        stamp(E, 12)
    for i in range(2):
        E(f"ds_write_b128 v{vXO}, {vr(AC[1] + 8 + 4 * i, 4)} offset:{2048 + 1024 * i}")
    stamp(E, 13)
    E.barrier()
    for i in range(2):
        E(f"ds_read_b128 {vr(RA + 4 * i, 4)}, v{vXP} offset:{2048 + 1024 * i}")
    KB = AC[1]
    for i in range(8):
        E(f"v_add_f32 v{KB + i}, v{KB + i}, v{RA + i}")
    if OPT["round_final"]:
        E(round_pairs(KB, KB, 8, tp))
        for i in range(8):
            E(f"v_mul_f32 v{KB + i}, v{KB + i}, v{omg}")
        E(round_pairs(KB, KB, 8, tp))
        for i in range(8):
            E(f"v_add_f32 v{T1 + i}, v{T1 + i}, v{KB + i}")
    else:
        for i in range(8):
            E(f"v_fmac_f32 v{T1 + i}, v{KB + i}, v{omg}")
    for i in range(4):
        E(f"v_cvt_pk_bf16_f32 v{tp + i}, v{T1 + 2 * i}, v{T1 + 2 * i + 1}")
    for i in range(2):
        E(f"buffer_store_dwordx2 {vr(tp + 2 * i, 2)}, v{vOUT}, {sr(SOUT, 4)}, 0 offen offset:{32 * i} {OPT['outpol']}")
    stamp(E, 14)
    E.label("L_fin")
    if OPT["dbgspan"]:
        Lz = newlabel("sp")
        E(f"s_cmp_lg_u32 s{sWV}, 0")
        E(f"s_cbranch_scc1 {Lz}")
        E.force_wait(vm=0)
        E("s_memrealtime s[96:97]")
        E.force_wait(lgkm=0)
        E("s_not_b32 s94, s94")
        E("v_mov_b32 v144, s96")
        E("v_mov_b32 v145, s94")
        E("v_mov_b32 v146, 0")
        E("s_mov_b64 exec, 1")
        E(f"buffer_atomic_umax v144, v146, {sr(SDBG, 4)}, 0 offen")
        E(f"buffer_atomic_umax v145, v146, {sr(SDBG, 4)}, 0 offen offset:4")
        E("s_not_b32 s94, s94")
        E("v_mov_b32 v145, s94")
        E(f"buffer_atomic_umax v145, v146, {sr(SDBG, 4)}, 0 offen offset:8")
        E("s_mov_b64 exec, -1")
        E.label(Lz)
    if OPT["stamps"]:
        Lz = newlabel("st")
        E(f"s_cmp_lg_u32 s{sWV}, 0")
        E(f"s_cbranch_scc1 {Lz}")
        E.force_wait(vm=0, lgkm=0)
        E(f"s_lshl_b32 s{sT0}, s2, 7")
        E(f"s_add_u32 s{sT0}, s{sT0}, {WS_ST}")
        E(f"v_mov_b32 v{vA0}, s{sT0}")
        E("s_mov_b64 exec, 1")
        for i in range(15):
            E(f"v_mov_b32 v{TMP}, s{sSTAMP + 2 * i}")
            E(f"v_mov_b32 v{TMP + 1}, s{sSTAMP + 2 * i + 1}")
            E(f"buffer_store_dwordx2 {vr(TMP, 2)}, v{vA0}, {sr(SWS, 4)}, 0 offen offset:{8 * i}")
            E.force_wait(vm=0)
        E.label(Lz)

def main():
    hdr = open("cdna_kernels/" + NAME + ".s.ref").read().split("; Override launch geometry")[0]
    E.raw(hdr.rstrip())
    E.raw(f"; @launch grid=(256,1,1) block=(768,1,1) lds={LDS_BYTES}")
    E.raw('.amdgcn_target "amdgcn-amd-amdhsa--gfx950"')
    E.raw(".text")
    E.raw(f".globl {NAME}_kernel")
    E.raw(".p2align 8")
    E.raw(f".type {NAME}_kernel,@function")
    E.raw(f"{NAME}_kernel:")
    prologue(E)
    E(f"s_cmp_lt_u32 s{sWV}, 8")
    E.flush_haz()
    E("s_cbranch_scc1 L_cons")
    E(f"s_cmp_eq_u32 s{sWV}, 11")
    E("s_cbranch_scc1 L_ld3")
    E(f"s_cmp_eq_u32 s{sBR}, 0")
    E("s_cbranch_scc1 L_A_ld")
    for name, fn in (("L_B_ld", lambda: loader(E, "B", False)), ("L_ld3", None), ("L_B_ld3", lambda: loader(E, "B", True)),
                     ("L_A_ld", lambda: loader(E, "A", False)), ("L_A_ld3", lambda: loader(E, "A", True))):
        E.label(name); E.vmq = []; E.lgq = []
        if fn is None:
            E(f"s_cmp_eq_u32 s{sBR}, 0")
            E("s_cbranch_scc1 L_A_ld3")
        else:
            fn()
    E.label("L_cons")
    E(f"s_cmp_eq_u32 s{sBR}, 0")
    E("s_cbranch_scc0 L_B_main")
    E(f"s_cmp_lt_u32 s{sWV}, 2")
    E("s_cbranch_scc1 L_A_halo")
    for name, fn in (("L_A_main", lambda: cons_A(E, False)), ("L_A_halo", lambda: cons_A(E, True)), ("L_B_main", lambda: cons_B(E))):
        E.label(name); E.vmq = []; E.lgq = []
        fn()
        E.wait(lgkm=0)
        E.flush_haz()
        E("s_branch L_p3")
    phase3(E)
    E.label("L_end")
    E("s_endpgm")
    E.raw('.section .rodata,"a"')
    E.raw(".p2align 6")
    E.raw(f".amdhsa_kernel {NAME}_kernel")
    E.raw(f"  .amdhsa_next_free_vgpr {NVGPR}")
    E.raw("  .amdhsa_next_free_sgpr 102")
    E.raw(f"  .amdhsa_accum_offset {NVGPR}")
    E.raw("  .amdhsa_group_segment_fixed_size 0")
    E.raw("  .amdhsa_kernarg_size 88")
    E.raw("  .amdhsa_user_sgpr_count 2")
    E.raw("  .amdhsa_user_sgpr_kernarg_segment_ptr 1")
    E.raw("  .amdhsa_system_sgpr_workgroup_id_x 1")
    E.raw(".end_amdhsa_kernel")
    txt = E.text()
    import re
    mx = max(int(x) for x in re.findall(r"\bv\[?(\d+)", txt) + re.findall(r"\bv\[\d+:(\d+)\]", txt))
    assert mx < NVGPR, mx
    open(sys.argv[1], "w").write(txt)
    print("instructions:", E.nins, "max vgpr", mx)

main()
```

```python
import sys, struct, math
from asmlib import *

NAME = "gated_mix__sliding_local_dilated__linear_kernel_hedgehog__prompt"
OPT = dict(stamps=0, fine=0, round_final=1, pf=1, flag_at=5, ahead=2, nov=4, fill=5, mfsum=0, prio=1, pkfma=2, gat=90, no_comp=0, no_load=0, no_clr=0, lead=2, dbgspan=0, pf2=0, prog=0, ldst=0, pfA=0, atom=0, fk=0, psleep=2, sent=0, noflag=0, sbar=2, prea=1, outpol="", stag=0, fo=5, bearly=0, wobe=0, cpf=0, loops=1)
for a in sys.argv[2:]:
    k, v = a.split("=")
    OPT[k] = int(v) if v.lstrip("-").isdigit() else v

LDS_BYTES = 163840
PHI_STRIDE, V_STRIDE = 264, 72
WS_OA, WS_OB, WS_KVP, WS_G, WS_ST = 0, 2 << 20, 4 << 20, 5 << 20, 8 << 20
WS_BYTES = 16 << 20
SPIN_MAX = 30000
SEGCOL = {"Q": 0, "K": 1, "V": 2}
SEGI = {"K": 0, "V": 1, "Q": 2}
WOA_BASE, WOB_BASE, XB3 = 58368, 0, 116736
B_SS = 39936
B_STAGES = [dict(m=m, segs=["K", "V", "Q"], base=B_SS * (m % 4)) for m in range(7)]
for i, st in enumerate(B_STAGES):
    prev = [j for j in range(i) if B_STAGES[j]["base"] == st["base"]]
    st["after"] = (prev[-1] + 2) if prev else -1
B_WPH = 159744
PHI_BASE = 0
VB = [128 * PHI_STRIDE, 128 * PHI_STRIDE + 128 * V_STRIDE]
KVF = 143360
A_SS = 39936
A_STAGES = [dict(m=m, segs=["K", "V", "Q"], base=A_SS * (m % 4)) for m in range(7)]
for i, st in enumerate(A_STAGES):
    prev = [j for j in range(i) if A_STAGES[j]["base"] == st["base"]]
    st["after"] = (prev[-1] + 2) if prev else -1
A_GATE = 159744
A_EXCH = XB3
def woff(br, k):
    return 18432 + 7168 * k

def f2u(x): return struct.unpack("<I", struct.pack("<f", x))[0]
LOG2E = f2u(1.4426950408889634)
SCALE = f2u(28 ** -0.5)

SX, SW, SWS, SDBG, SAUX, SWOA, SWOB, SOUT = 8, 12, 16, 20, 24, 28, 32, 36
sRB, sHP, sBR, sWV, sT, sCT, sJ, sT0, sT1, sM0 = 40, 41, 42, 43, 44, 45, 46, 47, 48, 49
sMASK = 50
sG3 = 66
sL2E, sSCL, sSPIN, sT2 = 68, 69, 70, 71
sKA = 72
sSTAMP = 72
sRG, sHH, s16K, sMP = 3, 4, 5, 6
sLP, sLD, sFL = 94, 95, 96
sHIM = sG3 + 1

NVGPR = 168
vLANE, vL16, vG, vL16B = 0, 1, 2, 3
vXR, vTR, vPADB, vOOFF = 4, 6, 7, 8
vA0, vA1, vA2, vA3 = 9, 10, 11, 12
vSL, vXRH = 13, 13
ACC = [16, 32, 48]
T0 = 152

E = Emitter()
lblc = [0]
def newlabel(p):
    lblc[0] += 1
    return f"L_{p}_{lblc[0]}"

def stamp(E, idx, fine=False):
    if OPT["stamps"] and (idx == 0 or bool(OPT["fine"]) == fine):
        E(f"s_memrealtime {sr(sSTAMP + 2 * idx, 2)}")

def srd(E, d, lo, nbytes):
    E(f"s_mov_b32 s{d}, s{lo}")
    E(f"s_and_b32 s{d+1}, s{lo+1}, 0xffff")
    E(f"s_mov_b32 s{d+2}, {nbytes}")
    E(f"s_mov_b32 s{d+3}, 0x20000")

def dual_reduce(a, b, t, op):
    return [
        f"v_permlane32_swap_b32 v{a}, v{b}",
        f"{op} v{a}, v{a}, v{b}",
        f"v_mov_b32 v{t}, v{a}",
        f"v_permlane16_swap_b32 v{a}, v{t}",
        f"{op} v{a}, v{a}, v{t}",
        f"v_mov_b32 v{b}, v{a}",
        f"v_permlane32_swap_b32 v{a}, v{b}",
    ]

def round_pairs(src, dst, n, tmp):
    out = []
    for i in range(0, n, 2):
        out.append(f"v_cvt_pk_bf16_f32 v{tmp + i // 2}, v{src + i}, v{src + i + 1}")
    for i in range(0, n, 2):
        out.append(f"v_lshlrev_b32 v{dst + i}, 16, v{tmp + i // 2}")
        out.append(f"v_and_b32 v{dst + i + 1}, s{sHIM}, v{tmp + i // 2}")
    return out

def pack_op(acc, dst, zero_pad=True):
    out = [f"v_cvt_pk_bf16_f32 v{dst + i}, v{acc + 2 * i}, v{acc + 2 * i + 1}" for i in range(4)]
    if zero_pad:
        out += [f"v_cndmask_b32 v{dst + 2}, v{dst + 2}, 0, {sr(sG3, 2)}", f"v_cndmask_b32 v{dst + 3}, v{dst + 3}, 0, {sr(sG3, 2)}"]
    return out

def interleave_front(mm, rd):
    out = []
    n = max(1, (len(mm) * 3) // 4)
    j = 0
    for i, x in enumerate(mm):
        tgt = min(len(rd), ((i + 1) * len(rd) + n - 1) // n)
        while j < tgt:
            out.append(rd[j]); j += 1
        out.append(x)
    out += rd[j:]
    return out

def vadd_imm(reg, delta):
    if delta == 0:
        return []
    return [f"v_add_u32 v{reg}, {delta & 0xffffffff:#x}, v{reg}"]

def lstamp(E, i):
    if OPT["ldst"]:
        E(f"s_memrealtime {sr(54 + 2 * i, 2)}")

def prologue(E):
    E("s_cmp_ge_u32 s2, 256")
    E("s_cbranch_scc1 L_end")
    lstamp(E, 0)
    if OPT["cpf"]:
        NS = OPT["cpf"] if OPT["cpf"] > 1 else 6
        E("s_getpc_b64 s[98:99]")
        E.raw("L_pc0:")
        E(f"v_cmp_gt_u32 vcc, 64, v0")
        E(f"s_lshr_b32 s{sT0}, s2, 3")
        E(f"s_mul_i32 s{sT1}, s{sT0}, 43")
        E(f"s_lshr_b32 s{sT1}, s{sT1}, 8")
        E(f"s_mul_i32 s{sT1}, s{sT1}, 6")
        E(f"s_sub_u32 s{sT0}, s{sT0}, s{sT1}")
        for j in range(32):
            assert (j * 43) >> 8 == j // 6
        E(f"s_lshl_b32 s{sT0}, s{sT0}, 13")
        E(f"v_lshl_add_u32 v{T0 + 2}, v0, 7, s{sT0}")
        E(f"v_cmp_gt_u32 s[100:101], s97, v{T0 + 2}") if False else None
        E(f"v_min_u32 v{T0 + 2}, (L_end - L_pc0) & 0xffffff80, v{T0 + 2}")
        E(f"s_cbranch_vccz L_pc1")
        E(f"global_load_dword v15, v{T0 + 2}, s[98:99]")
        E.raw("L_pc1:")
        E.vmq = []
    if OPT["dbgspan"]:
        E("s_memrealtime s[94:95]")
    E(f"s_load_dwordx16 {sr(sKA, 16)}, s[0:1], 0")
    E(f"s_load_dwordx4 {sr(sKA + 16, 4)}, s[0:1], 64")
    E(f"s_load_dwordx2 {sr(sKA + 20, 2)}, s[0:1], 80")
    E(f"v_lshrrev_b32 v{T0}, 6, v0")
    E(f"v_and_b32 v{vLANE}, 63, v0")
    E(f"v_readfirstlane_b32 s{sWV}, v{T0}")
    E(f"s_and_b32 s{sT0}, s2, 7")
    E(f"s_lshr_b32 s{sJ}, s2, 3")
    E(f"s_lshr_b32 s{sBR}, s{sJ}, 4")
    E(f"s_xor_b32 s{sBR}, s{sBR}, 1")
    E(f"s_and_b32 s{sRB}, s{sT0}, 3")
    E(f"s_lshl_b32 s{sRB}, s{sRB}, 2")
    E(f"s_bfe_u32 s{sT1}, s{sJ}, 0x20002")
    E(f"s_add_u32 s{sRB}, s{sRB}, s{sT1}")
    E(f"s_lshr_b32 s{sHP}, s{sT0}, 2")
    E(f"s_lshl_b32 s{sHP}, s{sHP}, 2")
    E(f"s_and_b32 s{sT1}, s{sJ}, 3")
    E(f"s_add_u32 s{sHP}, s{sHP}, s{sT1}")
    E(f"s_mul_i32 s{sT1}, s{sJ}, 37")
    E(f"s_lshr_b32 s{sT1}, s{sT1}, 8")
    E(f"s_lshl_b32 s{sT}, s{sT0}, 2")
    E(f"s_add_u32 s{sT}, s{sT}, s{sT1}")
    E(f"s_mul_i32 s{sT1}, s{sT1}, 7")
    E(f"s_sub_u32 s{sCT}, s{sJ}, s{sT1}")
    E(f"s_lshr_b32 s{sRG}, s{sWV}, 1")
    E(f"s_and_b32 s{sHH}, s{sWV}, 1")
    E(f"v_and_b32 v{vL16}, 15, v{vLANE}")
    E(f"v_lshrrev_b32 v{vG}, 4, v{vLANE}")
    E(f"v_lshlrev_b32 v{vL16B}, 4, v{vLANE}")
    E(f"s_mov_b32 s{sG3}, 0")
    E(f"s_mov_b32 s{sG3+1}, 0xffff0000")
    E(f"s_mov_b32 s{sL2E}, {LOG2E:#x}")
    E(f"s_mov_b32 s{sSCL}, {SCALE:#x}")

def srds(E):
    E.force_wait(lgkm=0)
    K = sKA
    srd(E, SX, K + 0, 2048 * 896)
    E(f"s_cmp_eq_u32 s{sBR}, 0")
    E(f"s_cselect_b32 s{sT0}, s{K+2}, s{K+8}")
    E(f"s_cselect_b32 s{sT1}, s{K+3}, s{K+9}")
    srd(E, SW, sT0, 448 * 2688)

def srds2(E):
    K = sKA
    E(f"s_mov_b32 s{sT2}, 25088")
    E(f"s_cmp_eq_u32 s{sBR}, 0")
    E(f"s_cselect_b32 s{sT0}, s{K+14}, s{K+10}")
    E(f"s_cselect_b32 s{sT1}, s{K+15}, s{K+11}")
    E(f"s_cselect_b32 s{sT2}, 896, s{sT2}")
    E(f"s_mov_b32 s{SAUX}, s{sT0}")
    E(f"s_and_b32 s{SAUX+1}, s{sT1}, 0xffff")
    E(f"s_mov_b32 s{SAUX+2}, s{sT2}")
    E(f"s_mov_b32 s{SAUX+3}, 0x20000")
    srd(E, SWS, K + 20, WS_BYTES)
    srd(E, SWOA, K + 4, 448 * 896)
    srd(E, SWOB, K + 12, 448 * 896)
    srd(E, SOUT, K + 16, 2048 * 896)
    srd(E, SDBG, K + 18, 256)

def stamps_init(E):
    if OPT["stamps"]:
        stamp(E, 0)
        for i in range(1, 15):
            E(f"s_mov_b64 {sr(sSTAMP + 2 * i, 2)}, 0")

def prefetch(E, sJ=sJ):
    K = sKA
    SP = sMASK + 2
    t0, t1, t2, t3 = T0, T0 + 1, T0 + 2, T0 + 3
    Lx = newlabel("pfx"); Ld = newlabel("pfd")
    E(f"s_cmp_ge_u32 s{sWV}, 6")
    E.flush_haz()
    E(f"s_cbranch_scc1 {Lx}")
    E(f"s_cmp_lt_u32 s{sWV}, 3")
    E(f"s_cselect_b32 s{sT0}, s{K+2}, s{K+8}")
    E(f"s_cselect_b32 s{sT1}, s{K+3}, s{K+9}")
    E(f"s_cselect_b32 s{sT2}, 0, 3")
    srd(E, SP, sT0, 448 * 2688)
    E(f"s_sub_u32 s{sT2}, s{sWV}, s{sT2}")
    E(f"s_lshl_b32 s{sT2}, s{sT2}, 6")
    E(f"v_add_u32 v{t0}, s{sT2}, v{vLANE}")
    E(f"v_mul_u32_u24 v{t1}, 5462, v{t0}")
    E(f"v_lshrrev_b32 v{t1}, 16, v{t1}")
    E(f"v_mul_u32_u24 v{t2}, 12, v{t1}")
    E(f"v_sub_u32 v{t2}, v{t0}, v{t2}")
    E(f"v_lshrrev_b32 v{t3}, 2, v{t2}")
    E(f"v_and_b32 v{t2}, 3, v{t2}")
    E(f"s_mul_i32 s{sT2}, s{sJ}, 14")
    E(f"v_add_u32 v{t1}, s{sT2}, v{t1}")
    E(f"v_mul_u32_u24 v{t1}, 2688, v{t1}")
    E(f"v_mul_u32_u24 v{t3}, 896, v{t3}")
    E(f"v_lshl_add_u32 v{t2}, v{t2}, 7, v{t3}")
    E(f"s_lshr_b32 s{sT2}, s{sHP}, 2")
    E(f"s_mul_i32 s{sT2}, s{sT2}, 384")
    E(f"v_add3_u32 v{t1}, v{t1}, v{t2}, s{sT2}")
    E(f"v_mov_b32 v{t2}, 0x1000000")
    E(f"v_cmp_gt_u32 vcc, 168, v{t0}")
    E(f"v_cndmask_b32 v{t1}, v{t2}, v{t1}, vcc")
    E(f"buffer_load_dword v15, v{t1}, {sr(SP, 4)}, 0 offen")
    E.flush_haz()
    E(f"s_branch {Ld}")
    E.label(Lx)
    E(f"s_sub_u32 s{sT2}, s{sWV}, 6")
    E(f"s_lshl_b32 s{sT2}, s{sT2}, 6")
    E(f"v_add_u32 v{t0}, s{sT2}, v{vLANE}")
    E(f"s_mul_i32 s{sT2}, s{sJ}, 112")
    E(f"s_lshr_b32 s{sT1}, s{sRB}, 2")
    E(f"s_mul_i32 s{sT1}, s{sT1}, 3584")
    E(f"s_add_u32 s{sT2}, s{sT2}, s{sT1}")
    E(f"v_add_u32 v{t1}, s{sT2}, v{t0}")
    E(f"v_lshlrev_b32 v{t1}, 7, v{t1}")
    E(f"v_mov_b32 v{t2}, 0x1000000")
    E(f"v_cmp_gt_u32 vcc, 112, v{t0}")
    E(f"v_cndmask_b32 v{t1}, v{t2}, v{t1}, vcc")
    E(f"buffer_load_dword v15, v{t1}, {sr(SX, 4)}, 0 offen")
    E.label(Ld)
    E.vmq = [{"dst": set(), "tag": "PF"}]

def prefetch2(E, t0, t1, dst):
    Ld = newlabel("p2d"); Lb = newlabel("p2b")
    E(f"s_and_b32 s{sT0}, s{sWV}, 3")
    E(f"s_lshl_b32 s{sT0}, s{sT0}, 6")
    E(f"v_add_u32 v{t0}, s{sT0}, v{vLANE}")
    E(f"s_and_b32 s{sT0}, s{sJ}, 15")
    E(f"s_mul_i32 s{sT0}, s{sT0}, 196")
    E(f"v_add_u32 v{t1}, s{sT0}, v{t0}")
    E(f"v_lshlrev_b32 v{t1}, 7, v{t1}")
    E(f"v_cmp_gt_u32 vcc, 196, v{t0}")
    E(f"v_mov_b32 v{t0}, 0x1000000")
    E(f"v_cndmask_b32 v{t1}, v{t0}, v{t1}, vcc")
    E(f"s_cmp_ge_u32 s{sWV}, 4")
    E.flush_haz()
    E(f"s_cbranch_scc1 {Lb}")
    E(f"buffer_load_dword v{dst}, v{t1}, {sr(SWOA, 4)}, 0 offen")
    E(f"s_branch {Ld}")
    E.label(Lb)
    E(f"buffer_load_dword v{dst}, v{t1}, {sr(SWOB, 4)}, 0 offen")
    E.label(Ld)

def flag_store(E, val, t0, t1, base=0):
    if OPT["noflag"]:
        return
    if OPT["atom"]:
        E(f"s_lshl_b32 s{sT0}, s{sRB}, 2")
        E(f"v_mov_b32 v{t0}, s{sT0}")
        E(f"v_mov_b32 v{t1}, 1")
        E("s_mov_b64 exec, 1")
        E(f"buffer_atomic_add v{t1}, v{t0}, {sr(SDBG, 4)}, 0 offen offset:{base} sc1")
        E("s_mov_b64 exec, -1")
        return
    E(f"s_lshl_b32 s{sT0}, s{sRB}, 3")
    E(f"s_add_u32 s{sT0}, s{sT0}, s{sHP}")
    if base:
        E(f"s_add_u32 s{sT0}, s{sT0}, {base}")
    E(f"v_mov_b32 v{t0}, s{sT0}")
    E(f"v_mov_b32 v{t1}, {val}")
    E("s_mov_b64 exec, 1")
    E(f"buffer_store_byte v{t1}, v{t0}, {sr(SDBG, 4)}, 0 offen sc1")
    E("s_mov_b64 exec, -1")

def spin_tail(E, L, Ld, sleep=2):
    E(f"s_cbranch_vccz {Ld}")
    E(f"s_add_u32 s{sSPIN}, s{sSPIN}, 1")
    E(f"s_cmp_lt_u32 s{sSPIN}, {SPIN_MAX}")
    E(f"s_cbranch_scc0 {Ld}")
    E(f"s_sleep {sleep}")
    E(f"s_branch {L}")
    E.label(Ld)

def flags_wait_all(E, t0, t1, base=0):
    if OPT["noflag"]:
        return
    L = newlabel("fl"); Ld = newlabel("fld")
    E(f"v_and_b32 v{t0}, {15 if OPT['atom'] else 31}, v{vLANE}")
    E(f"v_lshlrev_b32 v{t0}, 2, v{t0}")
    E(f"s_mov_b32 s{sSPIN}, 0")
    E(f"s_mov_b32 s{sT1}, {'8' if OPT['atom'] else '0x01010101'}")
    E.label(L)
    E(f"buffer_load_dword v{t1}, v{t0}, {sr(SDBG, 4)}, 0 offen offset:{base} sc1")
    E.force_wait(vm=0)
    E(f"v_cmp_ne_u32 vcc, s{sT1}, v{t1}")
    spin_tail(E, L, Ld, sleep=40)

def check_regs(E, regs, tmp):
    rs = list(regs)
    E(f"v_max_u32 v{tmp}, v{rs[0]}, v{rs[1]}")
    rest = rs[2:]
    while len(rest) >= 2:
        E(f"v_max3_u32 v{tmp}, v{tmp}, v{rest[0]}, v{rest[1]}"); rest = rest[2:]
    if rest:
        E(f"v_max_u32 v{tmp}, v{tmp}, v{rest[0]}")
    E(f"v_cmp_eq_u32 vcc, -1, v{tmp}")

def poll_loop(E, loads, regs, name, tmp, pre_issued=False):
    L = newlabel(name); Lc = newlabel(name + "c"); Ld = newlabel(name + "d")
    E(f"s_mov_b32 s{sSPIN}, 0")
    if pre_issued:
        E.flush_haz()
        E(f"s_branch {Lc}")
    E.label(L)
    E(loads)
    E.label(Lc)
    E.force_wait(vm=0)
    check_regs(E, regs, tmp)
    spin_tail(E, L, Ld, sleep=OPT["psleep"])

def cons_setup(E, br):
    t0, t1, t2 = T0, T0 + 1, T0 + 2
    E(f"v_bfe_u32 v{t0}, v{vLANE}, 2, 2")
    E(f"v_and_b32 v{t1}, 3, v{vLANE}")
    E(f"v_lshlrev_b32 v{t2}, 3, v{vG}")
    E(f"v_lshl_add_u32 v{t2}, v{t0}, 1, v{t2}")
    E(f"v_mul_u32_u24 v{t2}, 112, v{t2}")
    E(f"v_lshl_add_u32 v{vTR}, v{t1}, 3, v{t2}")
    E(f"s_mul_i32 s{sT0}, s{sHH}, 56")
    E(f"v_add_u32 v{vTR}, s{sT0}, v{vTR}")
    E(f"v_lshrrev_b32 v{t0}, 1, v{vL16}")
    E(f"v_xor_b32 v{t0}, v{t0}, v{vG}")
    E(f"v_lshlrev_b32 v{t0}, 4, v{t0}")
    E(f"v_lshl_add_u32 v{t0}, v{vL16}, 7, v{t0}")
    E(f"s_lshl_b32 s{sT0}, s{sRG}, 12")
    E(f"v_add_u32 v{vXR}, s{sT0}, v{t0}")
    E(f"v_xor_b32 v{vXR+1}, 64, v{vXR}")
    E(f"s_lshl_b32 s{sT0}, s{sRB}, 3")
    E(f"s_lshl_b32 s{sT1}, s{sRG}, 1")
    E(f"s_add_u32 s{sT0}, s{sT0}, s{sT1}")
    E(f"s_lshl_b32 s{sT0}, s{sT0}, 4")
    E(f"s_lshl_b32 s{sT1}, s{sHP}, 1")
    E(f"s_add_u32 s{sT0}, s{sT0}, s{sT1}")
    E(f"s_add_u32 s{sT0}, s{sT0}, s{sHH}")
    E(f"s_lshl_b32 s{sT0}, s{sT0}, 10")
    E(f"s_lshl_b32 s{sT1}, s{sBR}, 21")
    E(f"s_add_u32 s{sT0}, s{sT0}, s{sT1}")
    E(f"v_add_u32 v{vOOFF}, s{sT0}, v{vL16B}")
    E(f"s_mov_b32 s{s16K}, 16384")

def ostore(reg, u):
    return f"buffer_store_dwordx4 {vr(reg, 4)}, v{vOOFF}, {sr(SWS, 4)}, {'0' if u == 0 else 's' + str(s16K)} offen sc1"

class Cons:
    def __init__(self, E, br, stages, buf0, bufsz, nbuf, halo=False, HACC=None):
        self.E, self.br, self.stages = E, br, stages
        self.buf0, self.bufsz, self.nbuf, self.halo, self.HACC = buf0, bufsz, nbuf, halo, HACC
        self.cur_base = 0
        self.ks = 0; self.pending = []
        self.nbar = 0
        self.prebar = None

    def parts(self, s, tt, buf):
        st = self.stages[s]; m = st["m"]; t = 2 * m + tt
        first = t == 0
        B0 = self.buf0 + self.bufsz * buf
        rd, mm = [], []
        xr = [B0, B0 + 4]
        for u in range(2):
            rd.append(f"ds_read_b128 {vr(xr[u], 4)}, v{vXR + tt} offset:{2048 * u}")
        wb = B0 + 8
        if self.halo:
            hx = B0 + 8; wb = B0 + 12
            rd.append(f"ds_read_b128 {vr(hx, 4)}, v{vXR + tt} offset:16384")
        elif self.br == "A":
            wb = B0 + 12
        for k, seg in enumerate(st["segs"]):
            si = SEGI[seg]
            tr = not (self.br == "A" and seg == "V")
            for c in range(2):
                wf = wb + 8 * k + 4 * c
                for j in range(2):
                    rd.append(f"ds_read_b64_tr_b16 {vr(wf + 2 * j, 2)}, v{vTR} offset:{woff(self.br, k) + 3584 * tt + 112 * j + 32 * c}")
                for u in range(2):
                    acc = ACC[si] + 8 * u + 4 * c
                    a_, b_ = (vr(wf, 4), vr(xr[u], 4)) if tr else (vr(xr[u], 4), vr(wf, 4))
                    mm.append(f"v_mfma_f32_16x16x32_bf16 {vr(acc, 4)}, {a_}, {b_}, {'0' if first else vr(acc, 4)}")
                if self.halo and seg != "Q":
                    acc = self.HACC + 8 * si + 4 * c
                    a_, b_ = (vr(wf, 4), vr(hx, 4)) if tr else (vr(hx, 4), vr(wf, 4))
                    mm.append(f"v_mfma_f32_16x16x32_bf16 {vr(acc, 4)}, {a_}, {b_}, {'0' if first else vr(acc, 4)}")
        if OPT["no_comp"] == 1:
            return [], []
        if OPT["no_comp"] == 2:
            return rd, []
        if OPT["no_comp"] == 3:
            return [], mm
        return rd, mm

    def run_loop(self, hooks):
        E = self.E
        SS = A_SS
        nacc = list(range(ACC[0], ACC[0] + 48)) + (list(range(self.HACC, self.HACC + 16)) if self.halo else [])
        for r in nacc:
            E(f"v_mov_b32 v{r}, 0")
        B1 = self.buf0 + self.bufsz
        for r in range(B1, B1 + self.bufsz):
            E(f"v_mov_b32 v{r}, 0")
        E(f"s_mov_b32 s{sLP}, 0")
        E(f"s_mov_b32 s{sLD}, 0")
        rd0, mm0 = self.parts(1, 0, 0)
        rd1, mm1 = self.parts(1, 1, 1)
        L = newlabel("gl")
        def body(real):
            nlead = OPT["lead"]
            E(mm1[:nlead])
            for st_, fn in hooks.items():
                Lh = newlabel("gh")
                E(f"s_cmp_lg_u32 s{sLP}, {st_}")
                E(f"s_cbranch_scc1 {Lh}")
                sv_l, sv_v = list(E.lgq), list(E.vmq)
                hz = (dict(E.w_mfma), dict(E.mfma_dst_range), dict(E.r_mfmaC), dict(E.w_valu))
                p0 = E.pos
                fn(E)
                E.wait(lgkm=0)
                E.flush_haz()
                E.out.append(Lh + ":")
                E.lgq, E.vmq = sv_l, sv_v
                E.w_mfma, E.mfma_dst_range, E.r_mfmaC, E.w_valu = hz
                E.pos = p0
            E.barrier(lgkm0=False)
            for r in (vXR, vXR + 1, vTR):
                E(f"v_add_u32 v{r}, s{sLD}, v{r}")
            E(interleave_front(mm1[nlead:], rd0))
            E(f"s_add_u32 s{sLP}, s{sLP}, 1")
            E(f"s_mov_b32 s{sLD}, {SS}")
            E(f"s_cmp_eq_u32 s{sLP}, 4")
            E(f"s_cselect_b32 s{sLD}, {(-3 * SS) & 0xffffffff:#x}, s{sLD}")
            E(interleave_front(mm0, rd1))
            E(f"s_cmp_lt_u32 s{sLP}, 7")
            E(f"s_cbranch_scc1 {L}")
        E.flush_haz()
        n0, i0 = len(E.out), E.nins
        body(False); body(False)
        del E.out[n0:]; E.nins = i0
        st0 = [sorted(e["dst"]) for e in E.lgq]
        E.out.append(L + ":")
        body(True)
        assert st0 == [sorted(e["dst"]) for e in E.lgq], "loop tracker state is not a fixpoint"
        E(mm1)

    def run(self, s0, s1):
        E = self.E
        prev = []
        for ks in range(2 * s0, 2 * s1 + 2):
            s, tt = divmod(ks, 2)
            pre = []
            if tt == 0:
                nlead = min(OPT["lead"], len(prev))
                E(prev[:nlead]); prev = prev[nlead:]
                if self.prebar:
                    self.prebar(E, s)
                E.barrier(lgkm0=False)
                self.nbar += 1
                if self.nbar <= 14:
                    stamp(E, self.nbar, fine=True)
                if OPT["stamps"] and OPT["fine"] and self.nbar in (2, 7):
                    E(f"s_memtime {sr(sSTAMP + 2 * (12 if self.nbar == 2 else 13), 2)}")
                d = self.stages[s]["base"] - self.cur_base
                self.cur_base = self.stages[s]["base"]
                for r in (vXR, vXR + 1, vTR):
                    E(vadd_imm(r, d))
            rd, mm = self.parts(s, tt, ks % 2)
            if prev:
                E(interleave_front(prev, rd))
            else:
                E(rd)
            prev = mm
        E(prev)

vL2E = 162
ONES = 164
def phi_path(si, outreg, tmps, WP):
    streams = []
    for u in range(2):
        T = tmps[u]
        P = ACC[si] + 8 * u
        op, pk, Ep, Em = T, T, P, T + 4
        mx, mn, mx1, mn1 = T + 12, T + 13, T + 14, T + 15
        t = T
        O = outreg + 8 * u
        o = []
        o += pack_op(P, op)
        for ft in range(2):
            o.append(f"v_mfma_f32_16x16x32_bf16 {vr(P + 4 * ft, 4)}, {vr(WP + 4 * ft, 4)}, {vr(op, 4)}, 0")
        o += round_pairs(P, P, 8, pk)
        o.append(f"v_max3_f32 v{mx}, v{P}, v{P+1}, v{P+2}")
        o.append(f"v_min3_f32 v{mn}, v{P}, v{P+1}, v{P+2}")
        o.append(f"v_max3_f32 v{mx}, v{mx}, v{P+3}, v{P+4}")
        o.append(f"v_min3_f32 v{mn}, v{mn}, v{P+3}, v{P+4}")
        o.append(f"v_max3_f32 v{mx}, v{mx}, v{P+5}, v{P+6}")
        o.append(f"v_min3_f32 v{mn}, v{mn}, v{P+5}, v{P+6}")
        o.append(f"v_max_f32 v{mx}, v{mx}, v{P+7}")
        o.append(f"v_max_f32 v{mn}, -v{mn}, -v{P+7}")
        o += dual_reduce(mx, mn, t, "v_max_f32")
        o.append(f"v_mul_f32 v{mx}, s{sL2E}, v{mx}")
        o.append(f"v_mul_f32 v{mn}, s{sL2E}, v{mn}")
        o.append(f"v_add_f32 v{mx1}, v{mx}, v{vPADB}")
        o.append(f"v_add_f32 v{mn1}, v{mn}, v{vPADB}")
        for i in (range(8) if not OPT["pkfma"] else []):
            o.append(f"v_fma_f32 v{Em+i}, -v{P+i}, s{sL2E}, -v{mn if i < 4 else mn1}")
            o.append(f"v_fma_f32 v{Ep+i}, v{P+i}, s{sL2E}, -v{mx if i < 4 else mx1}")
        for i in (range(0, 8, 2) if OPT["pkfma"] else []):
            mm_ = vr(mx if i < 4 else mx1, 2)
            if OPT["pkfma"] == 2:
                o.append(f"v_pk_fma_f32 {vr(Em+i, 2)}, {vr(P+i, 2)}, {vr(vL2E, 2)}, {mm_} op_sel:[0,0,1] op_sel_hi:[1,1,1] neg_lo:[1,0,1] neg_hi:[1,0,1]")
                o.append(f"v_pk_fma_f32 {vr(Ep+i, 2)}, {vr(P+i, 2)}, {vr(vL2E, 2)}, {mm_} op_sel_hi:[1,1,0] neg_lo:[0,0,1] neg_hi:[0,0,1]")
                continue
            o.append(f"v_pk_fma_f32 {vr(Em+i, 2)}, {vr(P+i, 2)}, {sr(sL2E, 2)}, {mm_} op_sel:[0,0,1] op_sel_hi:[1,0,1] neg_lo:[1,0,1] neg_hi:[1,0,1]")
            o.append(f"v_pk_fma_f32 {vr(Ep+i, 2)}, {vr(P+i, 2)}, {sr(sL2E, 2)}, {mm_} op_sel_hi:[1,0,0] neg_lo:[0,0,1] neg_hi:[0,0,1]")
        for i in range(8):
            o.append(f"v_exp_f32 v{Ep+i}, v{Ep+i}")
            o.append(f"v_exp_f32 v{Em+i}, v{Em+i}")
        if OPT["mfsum"]:
            for i in range(4):
                o.append(f"v_cvt_pk_bf16_f32 v{O + i}, v{Ep + 2 * i}, v{Ep + 2 * i + 1}")
                o.append(f"v_cvt_pk_bf16_f32 v{O + 4 + i}, v{Em + 2 * i}, v{Em + 2 * i + 1}")
            SP, SM = T, T + 12
            o.append(f"v_mfma_f32_16x16x32_bf16 {vr(SP, 4)}, {vr(ONES, 4)}, {vr(O, 4)}, 0")
            o.append(f"v_mfma_f32_16x16x32_bf16 {vr(SM, 4)}, {vr(ONES, 4)}, {vr(O + 4, 4)}, 0")
            sp, sm = SP, SM
        else:
            sp, sm = mx1, mn1
            o.append(f"v_add_f32 v{sp}, v{Ep}, v{Ep+1}")
            o.append(f"v_add_f32 v{sm}, v{Em}, v{Em+1}")
            for i in range(2, 8):
                o.append(f"v_add_f32 v{sp}, v{sp}, v{Ep+i}")
                o.append(f"v_add_f32 v{sm}, v{sm}, v{Em+i}")
            o += dual_reduce(sp, sm, t, "v_add_f32")
        o.append(f"v_rcp_f32 v{sp}, v{sp}")
        o.append(f"v_rcp_f32 v{sm}, v{sm}")
        for i in range(8):
            o.append(f"v_mul_f32 v{Ep+i}, v{Ep+i}, v{sp}")
            o.append(f"v_mul_f32 v{Em+i}, v{Em+i}, v{sm}")
        for i in range(4):
            o.append(f"v_cvt_pk_bf16_f32 v{O + i}, v{Ep + 2 * i}, v{Ep + 2 * i + 1}")
            o.append(f"v_cvt_pk_bf16_f32 v{O + 4 + i}, v{Em + 2 * i}, v{Em + 2 * i + 1}")
        streams.append(o)
    k = OPT["stag"]
    if k:
        a_, b_ = streams
        head = interleave(a_[:8], b_[:8]); a_, b_ = a_[8:], b_[8:]
        return head + a_[:k] + interleave(a_[k:], b_[:len(b_) - k]) + b_[len(b_) - k:]
    return interleave(streams[0], streams[1])

def cons_B(E):
    WP, PHI, BUF = 64, 72, 88
    cons_setup(E, "B")
    srds(E); srds2(E)
    if OPT["sbar"]:
        E.barrier()
    if OPT["pf"] and not OPT["pfA"]:
        prefetch(E)
    stamps_init(E)
    ones = PHI
    for i in range(4):
        E(f"v_mov_b32 v{ones + i}, -1")
        E(f"v_mov_b32 v{ONES + i}, 0x3f803f80")
    E(f"v_mov_b32 v{vL2E}, s{sL2E}"); E(f"v_mov_b32 v{vL2E + 1}, s{sL2E}")
    vKV = 14
    E(f"s_lshl_b32 s{sT0}, s{sHP}, 4")
    E(f"s_add_u32 s{sT0}, s{sT0}, s{sRB}")
    E(f"s_lshl_b32 s{sT0}, s{sT0}, 3")
    E(f"s_add_u32 s{sT0}, s{sT0}, s{sWV}")
    E(f"s_lshl_b32 s{sT0}, s{sT0}, 10")
    E(f"s_add_u32 s{sT0}, s{sT0}, {WS_KVP}")
    E(f"v_add_u32 v{vKV}, s{sT0}, v{vL16B}")
    E(f"v_mov_b32 v{vPADB}, 0")
    E(f"v_mov_b32 v{T0}, 0x7149f2ca")
    E(f"v_cndmask_b32 v{vPADB}, v{vPADB}, v{T0}, {sr(sG3, 2)}")
    E(f"s_lshl_b32 s{sT2}, s{sRG}, 5")
    E(f"v_add_u32 v{vSL}, s{sT2}, v{vL16}")
    E(f"v_mul_u32_u24 v{vA0}, {PHI_STRIDE}, v{vSL}")
    E(f"v_lshl_add_u32 v{vA0}, v{vG}, 3, v{vA0}")
    E(f"s_lshl_b32 s{sT2}, s{sHH}, 7")
    E(f"v_add_u32 v{vA0}, s{sT2}, v{vA0}")
    E(f"v_mul_u32_u24 v{vA1}, {V_STRIDE}, v{vSL}")
    E(f"v_lshl_add_u32 v{vA1}, v{vG}, 3, v{vA1}")
    E(f"s_mul_i32 s{sT0}, s{sHH}, {VB[1] - VB[0]}")
    E(f"s_add_u32 s{sT0}, s{sT0}, {VB[0]}")
    E(f"v_add_u32 v{vA1}, s{sT0}, v{vA1}")
    t0, t1 = T0, T0 + 1
    E(f"v_and_b32 v{t0}, 1, v{vG}")
    E(f"v_lshlrev_b32 v{t0}, 4, v{t0}")
    E(f"v_bfe_u32 v{t1}, v{vLANE}, 2, 2")
    E(f"v_lshl_add_u32 v{t0}, v{t1}, 2, v{t0}")
    E(f"v_lshrrev_b32 v{t1}, 1, v{vG}")
    E(f"v_lshl_add_u32 v{t0}, v{t1}, 1, v{t0}")
    E(f"v_and_b32 v{t1}, 3, v{vLANE}")
    E(f"v_lshlrev_b32 v{t1}, 3, v{t1}")
    E(f"s_lshr_b32 s{sT0}, s{sWV}, 1")
    E(f"s_lshl_b32 s{sT0}, s{sT0}, 6")
    E(f"v_mul_u32_u24 v{vA2}, {PHI_STRIDE}, v{t0}")
    E(f"v_add3_u32 v{vA2}, v{vA2}, v{t1}, s{sT0}")
    E(f"s_lshr_b32 s{sT0}, s{sWV}, 2")
    E(f"s_mul_i32 s{sT0}, s{sT0}, {VB[1] - VB[0]}")
    E(f"s_add_u32 s{sT0}, s{sT0}, {VB[0]}")
    E(f"s_and_b32 s{sT1}, s{sWV}, 1")
    E(f"s_lshl_b32 s{sT1}, s{sT1}, 5")
    E(f"s_add_u32 s{sT0}, s{sT0}, s{sT1}")
    E(f"v_mul_u32_u24 v{vA3}, {V_STRIDE}, v{t0}")
    E(f"v_add3_u32 v{vA3}, v{vA3}, v{t1}, s{sT0}")
    w1, w2 = T0 + 8, T0 + 9
    E(f"v_bfe_u32 v{t0}, v{vLANE}, 2, 2")
    E(f"v_lshl_add_u32 v{t0}, v{vG}, 2, v{t0}")
    E(f"v_mul_u32_u24 v{t0}, 56, v{t0}")
    E(f"s_mul_i32 s{sT2}, s{sHH}, 1568")
    E(f"s_add_u32 s{sT2}, s{sT2}, {B_WPH}")
    E(f"v_add_u32 v{t0}, s{sT2}, v{t0}")
    E(f"v_and_b32 v{t1}, 3, v{vLANE}")
    E(f"v_min_u32 v{w2}, 2, v{t1}")
    E(f"v_lshl_add_u32 v{w1}, v{t1}, 3, v{t0}")
    E(f"v_lshl_add_u32 v{w2}, v{w2}, 3, v{t0}")
    C = Cons(E, "B", B_STAGES, BUF, 32, 2)
    def prebar(E, s):
        if s == 3:
            for ft in range(2):
                for j in range(2):
                    E(f"ds_read_b64_tr_b16 {vr(WP + 4 * ft + 2 * j, 2)}, v{w1 if ft == 0 else w2} offset:{896 * j + 32 * ft}")
            for ft in range(2):
                for i in (2, 3):
                    r = WP + 4 * ft + i
                    E(f"v_cndmask_b32 v{r}, v{r}, 0, {sr(sG3, 2)}")
    C.prebar = prebar
    if OPT["loops"]:
        C.run_loop({3: lambda E: prebar(E, 3)})
    else:
        C.run(0, 6)
    stamp(E, 1)
    SCR = BUF + 32
    vp0 = T0
    F = [f"v_mov_b32 v{vp0 + 8}, 0x3f80"]
    for u in range(2):
        vp = vp0 + 4 * u
        F += pack_op(ACC[1] + 8 * u, vp, zero_pad=False)
        F.append(f"v_cndmask_b32 v{vp + 2}, v{vp + 2}, v{vp0 + 8}, {sr(sG3, 2)}")
        F.append(f"v_cndmask_b32 v{vp + 3}, v{vp + 3}, 0, {sr(sG3, 2)}")
    for u in range(2):
        for dt in range(2):
            F.append(f"ds_write_b64 v{vA1}, {vr(vp0 + 4 * u + 2 * dt, 2)} offset:{16 * V_STRIDE * u + 32 * dt}")
    body = phi_path(0, PHI, [SCR, SCR + 16], WP)
    E(body[:16]); E(F); E(body[16:])
    for u in range(2):
        for sg in range(2):
            for ft in range(2):
                E(f"ds_write_b64 v{vA0}, {vr(PHI + 8 * u + 4 * sg + 2 * ft, 2)} offset:{PHI_BASE + 16 * PHI_STRIDE * u + 64 * sg + 32 * ft}")
    stamp(E, 3)
    E.barrier()
    KA, KB_, KD = ACC[0], SCR, SCR + 16
    for ks in range(4):
        for j in range(2):
            E(f"ds_read_b64_tr_b16 {vr(KB_ + 4 * ks + 2 * j, 2)}, v{vA3} offset:{(32 * ks + j) * V_STRIDE}")
        for ft in range(2):
            for j in range(2):
                E(f"ds_read_b64_tr_b16 {vr(KA + 8 * ks + 4 * ft + 2 * j, 2)}, v{vA2} offset:{PHI_BASE + (32 * ks + j) * PHI_STRIDE + 32 * ft}")
        if ks >= 1:
            for ft in range(2):
                cin = "0" if ks == 1 else vr(KD + 4 * ft, 4)
                E(f"v_mfma_f32_16x16x32_bf16 {vr(KD + 4 * ft, 4)}, {vr(KA + 8 * (ks - 1) + 4 * ft, 4)}, {vr(KB_ + 4 * (ks - 1), 4)}, {cin}")
    for ft in range(2):
        E(f"v_mfma_f32_16x16x32_bf16 {vr(KD + 4 * ft, 4)}, {vr(KA + 24 + 4 * ft, 4)}, {vr(KB_ + 12, 4)}, {vr(KD + 4 * ft, 4)}")
    kp = T0
    E(pack_op(KD, kp, zero_pad=False))
    for i in range(4):
        E(f"v_min_u32 v{kp + i}, -2, v{kp + i}")
    E(f"buffer_store_dwordx4 {vr(kp, 4)}, v{vKV}, {sr(SWS, 4)}, 0 offen sc1")
    stamp(E, 4)
    E.barrier()
    G = BUF
    E(f"s_lshl_b32 s{sT0}, s{sHP}, 17")
    E(f"s_lshl_b32 s{sT1}, s{sWV}, 10")
    E(f"s_add_u32 s{sT0}, s{sT0}, s{sT1}")
    E(f"s_add_u32 s{sT0}, s{sT0}, {WS_KVP}")
    E(f"v_add_u32 v{vA1}, s{sT0}, v{vL16B}")
    loads = []
    for p in range(16):
        loads.append(f"s_mov_b32 s{sT0}, {8192 * p}")
        loads.append(f"buffer_load_dwordx4 {vr(G + 4 * p, 4)}, v{vA1}, {sr(SWS, 4)}, s{sT0} offen sc1")
    body = phi_path(2, PHI, [ACC[0], ACC[1]], WP)
    h = len(body) * OPT["gat"] // 100
    E(body[:h])
    E.barrier()
    stamp(E, 5)
    E(loads)
    E(body[h:])
    E(p3_setup(E))
    stamp(E, 6)
    SEL = T0 + 2
    SUM = ACC[0]
    t0_, t1_ = ACC[0] + 8, ACC[0] + 9
    E(f"v_lshrrev_b32 v{t0_}, 2, v{vL16}")
    E(f"v_cmp_eq_u32 vcc, v{t0_}, v{vG}")
    E(f"v_and_b32 v{t0_}, 1, v{vL16}")
    E(f"v_lshlrev_b32 v{t0_}, 4, v{t0_}")
    E(f"v_mov_b32 v{t1_}, 0x3f80")
    E(f"v_lshlrev_b32 v{t0_}, v{t0_}, v{t1_}")
    E(f"v_cndmask_b32 v{t0_}, 0, v{t0_}, vcc")
    E(f"v_and_b32 v{t1_}, 2, v{vL16}")
    E(f"v_cmp_eq_u32 vcc, 0, v{t1_}")
    for r in (SEL, SEL + 1, SEL + 4, SEL + 5):
        E(f"v_mov_b32 v{r}, 0")
    E(f"v_cndmask_b32 v{SEL + 2}, 0, v{t0_}, vcc")
    E(f"v_cndmask_b32 v{SEL + 3}, v{t0_}, 0, vcc")
    L = newlabel("kv"); Lc = newlabel("kvc"); Ld = newlabel("kvd")
    E(f"s_mov_b32 s{sSPIN}, 0")
    saved = list(E.vmq)
    E.flush_haz()
    E(f"s_branch {Lc}")
    E.label(L)
    E.vmq = []
    E(loads)
    E.label(Lc)
    chk = T0
    for p in range(16):
        g4 = G + 4 * p
        E(f"v_mfma_f32_16x16x32_bf16 {vr(SUM, 4)}, {vr(SEL + 2, 4)}, {vr(g4, 4)}, {'0' if p == 0 else vr(SUM, 4)}")
        E(f"v_mfma_f32_16x16x32_bf16 {vr(SUM + 4, 4)}, {vr(SEL, 4)}, {vr(g4, 4)}, {'0' if p == 0 else vr(SUM + 4, 4)}")
        if p == 0:
            E(f"v_max_u32 v{chk}, v{g4}, v{g4 + 1}")
        else:
            E(f"v_max3_u32 v{chk}, v{chk}, v{g4}, v{g4 + 1}")
        E(f"v_max3_u32 v{chk}, v{chk}, v{g4 + 2}, v{g4 + 3}")
    E(f"v_cmp_eq_u32 vcc, -1, v{chk}")
    spin_tail(E, L, Ld)
    stamp(E, 7)
    kf = ACC[0] + 8
    E(pack_op(SUM, kf, zero_pad=False))
    E(f"s_lshl_b32 s{sT0}, s{sWV}, 10")
    E(f"s_add_u32 s{sT0}, s{sT0}, {KVF}")
    E(f"v_add_u32 v{vA1}, s{sT0}, v{vL16B}")
    E(f"ds_write_b128 v{vA1}, {vr(kf, 4)}")
    E(f"s_lshl_b32 s{sT0}, s{sHH}, 12")
    E(f"s_add_u32 s{sT0}, s{sT0}, {KVF}")
    E(f"v_add_u32 v{vA1}, s{sT0}, v{vL16B}")
    E(f"v_lshlrev_b32 v{vA2}, 8, v{vG}")
    E(f"s_add_u32 s{sT0}, s{sT0}, {12 * 16}")
    E(f"v_add_u32 v{vA2}, s{sT0}, v{vA2}")
    E.barrier()
    KF, ZF, NUM = BUF, BUF + 16, BUF + 24
    for w in range(4):
        E(f"ds_read_b128 {vr(KF + 4 * w, 4)}, v{vA1} offset:{1024 * w}")
    for sg in range(2):
        E(f"ds_read_b128 {vr(ZF + 4 * sg, 4)}, v{vA2} offset:{1024 * (2 * sg + 1)}")
    pre_a = p3_loads(0)[0]
    for u in range(2):
        for dt in range(2):
            for sg in range(2):
                d = NUM + 12 * u + 4 * dt
                E(f"v_mfma_f32_16x16x32_bf16 {vr(d, 4)}, {vr(KF + 4 * (2 * sg + dt), 4)}, {vr(PHI + 8 * u + 4 * sg, 4)}, {'0' if sg == 0 else vr(d, 4)}")
        for sg in range(2):
            d = NUM + 12 * u + 8
            E(f"v_mfma_f32_16x16x32_bf16 {vr(d, 4)}, {vr(ZF + 4 * sg, 4)}, {vr(PHI + 8 * u + 4 * sg, 4)}, {'0' if sg == 0 else vr(d, 4)}")
    if OPT["prea"] == 0:
        E(pre_a)
    st = []
    for u in range(2):
        n = NUM + 12 * u; dn = n + 8
        t = BUF + 48 + 8 * u
        o = []
        o += round_pairs(n, n, 8, t)
        o.append(f"v_cvt_pk_bf16_f32 v{t + 4}, v{dn}, v{dn}")
        o.append(f"v_lshlrev_b32 v{dn}, 16, v{t + 4}")
        o.append(f"v_add_f32 v{dn}, 0x358637bd, v{dn}")
        o.append(f"v_cvt_pk_bf16_f32 v{t + 4}, v{dn}, v{dn}")
        o.append(f"v_lshlrev_b32 v{dn}, 16, v{t + 4}")
        o.append(f"v_rcp_f32 v{dn}, v{dn}")
        for i in range(8):
            o.append(f"v_mul_f32 v{n + i}, v{n + i}, v{dn}")
        o += pack_op(n, t)
        for i in range(4):
            o.append(f"v_min_u32 v{t + i}, -2, v{t + i}")
        o.append(ostore(t, u))
        st.append(o)
    E(interleave(st[0], st[1]))
    if OPT["prea"] == 1:
        E(pre_a)
    stamp(E, 8)

def att_masks():
    ms = []
    for tile in range(2):
        for i in range(4):
            m = 0
            for lane in range(64):
                q, g = lane & 15, lane >> 4
                d = q - (4 * g + i) + (16 if tile == 0 else 0)
                if 0 <= d <= 14 and d % 2 == 0:
                    m |= 1 << lane
            ms.append(m)
    return ms

def cons_A(E, halo):
    HACC, BUF = 64, 80
    cons_setup(E, "A")
    srds(E); srds2(E)
    ones = T0 + 4
    for i in range(4):
        E(f"v_mov_b32 v{ones + i}, -1")
    E(f"s_lshl_b32 s{sT0}, s{sHP}, 4")
    E(f"s_add_u32 s{sT0}, s{sT0}, s{sRB}")
    E(f"s_lshl_b32 s{sT0}, s{sT0}, 3")
    E(f"s_add_u32 s{sT0}, s{sT0}, s{sWV}")
    E(f"s_lshl_b32 s{sT0}, s{sT0}, 10")
    E(f"s_add_u32 s{sT0}, s{sT0}, {WS_KVP}")
    E(f"v_add_u32 v{vA0}, s{sT0}, v{vL16B}")
    E(f"buffer_store_dwordx4 {vr(ones, 4)}, v{vA0}, {sr(SWS, 4)}, 0 offen sc1")
    if OPT["sbar"]:
        E.barrier()
    if OPT["pf"] and not OPT["pfA"]:
        prefetch(E)
    elif OPT["pf"]:
        E(f"s_and_b32 s{sMP}, s{sJ}, 15")
        prefetch(E, sMP)
        E(f"s_add_u32 s{sMP}, s{sMP}, 16")
        prefetch(E, sMP)
    stamps_init(E)
    ms = att_masks()
    for i, m in enumerate(ms):
        E(f"s_mov_b32 s{sMASK + 2 * i}, {m & 0xffffffff:#x}")
        E(f"s_mov_b32 s{sMASK + 2 * i + 1}, {m >> 32:#x}")
    E(f"s_lshl_b32 s{sT0}, s{sWV}, 11")
    E(f"s_add_u32 s{sT0}, s{sT0}, {A_EXCH}")
    E(f"v_add_u32 v{vA1}, s{sT0}, v{vL16B}")
    E(f"v_lshl_add_u32 v{vA2}, v{vLANE}, 3, s{sT0}")
    C = Cons(E, "A", A_STAGES, BUF, 36, 2, halo=halo, HACC=HACC)
    def fl(E, base):
        Lf = newlabel("fs")
        E(f"s_cmp_lg_u32 s{sWV}, 0")
        E.flush_haz()
        E(f"s_cbranch_scc1 {Lf}")
        flag_store(E, 1, T0, T0 + 1, base)
        E.label(Lf)
    def prebar(E, s):
        if s == OPT["fk"]:
            E.force_wait(vm=0 if OPT["fk"] else 1)
        if s == OPT["fk"] + 1 and halo:
            fl(E, 0)
        if s in (1, 2):
            E(f"s_mov_b32 s{sT0}, {WS_OB + 16384 * (s - 1)}")
            E(f"buffer_store_dwordx4 {vr(ones, 4)}, v{vOOFF}, {sr(SWS, 4)}, s{sT0} offen sc1")
            E(ostore(ones, s - 1))
        if s == 3 and OPT["pf2"]:
            sv = list(E.vmq); prefetch2(E, T0, T0 + 1, 15); E.vmq = sv
        if s == OPT["fo"]:
            E.force_wait(vm=0)
        if s == OPT["fo"] + 1 and halo:
            fl(E, 128)
    C.prebar = prebar
    if OPT["loops"]:
        C.run_loop({k: (lambda E, k=k: prebar(E, k)) for k in ((0, 1, 2, 5, 6) if halo else (0, 1, 2, 5))})
    else:
        C.run(0, 6)
    stamp(E, 1)
    KT, VV = BUF, BUF + 12
    for u in range(2):
        E(pack_op(ACC[0] + 8 * u, KT + 4 + 4 * u))
        for dt in range(2):
            a = ACC[1] + 8 * u + 4 * dt
            d = VV + 8 * u + 4 * dt + 2
            E(f"v_cvt_pk_bf16_f32 v{d}, v{a}, v{a + 1}")
            E(f"v_cvt_pk_bf16_f32 v{d + 1}, v{a + 2}, v{a + 3}")
            if u == 0:
                E(f"v_mov_b32 v{d + 6}, v{d}")
                E(f"v_mov_b32 v{d + 7}, v{d + 1}")
    E.barrier()
    E(f"ds_write_b128 v{vA1}, {vr(KT + 8, 4)} offset:4096")
    for dt in range(2):
        E(f"ds_write_b64 v{vA2}, {vr(VV + 8 + 4 * dt + 2, 2)} offset:{4096 + 1024 + 512 * dt}")
    if halo:
        E(pack_op(HACC, KT))
        for dt in range(2):
            a = HACC + 8 + 4 * dt
            d = VV + 4 * dt
            E(f"v_cvt_pk_bf16_f32 v{d}, v{a}, v{a + 1}")
            E(f"v_cvt_pk_bf16_f32 v{d + 1}, v{a + 2}, v{a + 3}")
        E(f"s_cmp_eq_u32 s{sRB}, 0")
        E(f"s_cselect_b64 {sr(sMP, 2)}, 0, -1")
    T = BUF + 28
    NEG = T0 + 8
    E(f"v_mov_b32 v{NEG}, 0xf149f2ca")
    MX = [T0, T0 + 1]; SM = [T0 + 2, T0 + 3]; tt = T0 + 4
    pre0, pre, mid, post = [], [], [], []
    for u in range(2):
        B_ = T + 20 * u
        qo, L, pk, P = B_, B_ + 4, B_ + 12, B_ + 16
        O = ACC[1] + 8 * u
        pre0 += pack_op(ACC[2] + 8 * u, qo)
        o = []
        o.append(f"v_mfma_f32_16x16x32_bf16 {vr(L + 4, 4)}, {vr(KT + 4 * u + 4, 4)}, {vr(qo, 4)}, 0")
        o.append(f"v_mfma_f32_16x16x32_bf16 {vr(L, 4)}, {vr(KT + 4 * u, 4)}, {vr(qo, 4)}, 0")
        o += round_pairs(L, L, 8, pk)
        for i in range(8):
            o.append(f"v_mul_f32 v{L + i}, s{sSCL}, v{L + i}")
        o += round_pairs(L, L, 8, pk)
        for i in range(8):
            o.append(f"v_cndmask_b32 v{L + i}, v{NEG}, v{L + i}, {sr(sMASK + 2 * i, 2)}")
        if halo and u == 0:
            for i in range(4):
                o.append(f"v_cndmask_b32 v{L + i}, v{NEG}, v{L + i}, {sr(sMP, 2)}")
        mx = MX[u]
        o.append(f"v_max3_f32 v{mx}, v{L}, v{L+1}, v{L+2}")
        o.append(f"v_max3_f32 v{mx}, v{mx}, v{L+3}, v{L+4}")
        o.append(f"v_max3_f32 v{mx}, v{mx}, v{L+5}, v{L+6}")
        o.append(f"v_max_f32 v{mx}, v{mx}, v{L+7}")
        pre.append(o)
        o = []
        o.append(f"v_mul_f32 v{mx}, s{sL2E}, v{mx}")
        for i in range(8):
            o.append(f"v_fma_f32 v{L + i}, v{L + i}, s{sL2E}, -v{mx}")
        for i in range(8):
            o.append(f"v_exp_f32 v{L + i}, v{L + i}")
        sm = SM[u]
        o.append(f"v_add_f32 v{sm}, v{L}, v{L + 1}")
        for i in range(2, 8):
            o.append(f"v_add_f32 v{sm}, v{sm}, v{L + i}")
        mid.append(o)
        o = []
        o.append(f"v_rcp_f32 v{sm}, v{sm}")
        for i in range(8):
            o.append(f"v_mul_f32 v{L + i}, v{L + i}, v{sm}")
        for i in range(4):
            o.append(f"v_cvt_pk_bf16_f32 v{P + i}, v{L + 2 * i}, v{L + 2 * i + 1}")
        for dt in range(2):
            o.append(f"v_mfma_f32_16x16x32_bf16 {vr(O + 4 * dt, 4)}, {vr(VV + 8 * u + 4 * dt, 4)}, {vr(P, 4)}, 0")
        o += pack_op(O, qo)
        for i in range(4):
            o.append(f"v_min_u32 v{qo + i}, -2, v{qo + i}")
        o.append(ostore(qo, u))
        post.append(o)
    E(pre0)
    E.barrier()
    if not halo:
        E(f"ds_read_b128 {vr(KT, 4)}, v{vA1}")
        for dt in range(2):
            E(f"ds_read_b64 {vr(VV + 4 * dt, 2)}, v{vA2} offset:{1024 + 512 * dt}")
    E(interleave(pre[1], pre[0]))
    E(dual_reduce(MX[0], MX[1], tt, "v_max_f32"))
    E(interleave(mid[0], mid[1]))
    E(dual_reduce(SM[0], SM[1], tt, "v_add_f32"))
    E(interleave(post[0], post[1]))
    stamp(E, 8)
    E.barrier()
    E(p3_setup(E))

def loader(E, br, last):
    stages = A_STAGES if br == "A" else B_STAGES
    vX, vW0, vW1, vH0, vH1, vWO, vGX, vGF, vGOFF = 4, 5, 6, 7, 8, 9, 10, 12, 13
    t0, t1, t2, t3 = T0, T0 + 1, T0 + 2, T0 + 3
    sL = sRG
    if OPT["prio"]:
        E("s_setprio 3")
    E(f"s_sub_u32 s{sL}, s{sWV}, 8")
    E(f"v_lshrrev_b32 v{t0}, 3, v{vLANE}")
    E(f"v_bfe_u32 v{t1}, v{vLANE}, 4, 2")
    E(f"s_lshl_b32 s{sT1}, s{sHH}, 2")
    E(f"v_or_b32 v{t1}, s{sT1}, v{t1}")
    E(f"v_and_b32 v{t2}, 7, v{vLANE}")
    E(f"v_xor_b32 v{t1}, v{t1}, v{t2}")
    E(f"s_lshl_b32 s{sT0}, s{sRB}, 7")
    E(f"s_lshl_b32 s{sT1}, s{sL}, 3")
    E(f"s_add_u32 s{sT0}, s{sT0}, s{sT1}")
    E(f"v_add_u32 v{t0}, s{sT0}, v{t0}")
    E(f"v_mul_u32_u24 v{vX}, 896, v{t0}")
    E(f"v_lshl_add_u32 v{vX}, v{t1}, 4, v{vX}")
    for pi, vw in enumerate((vW0, vW1)):
        if last and pi == 1:
            break
        E(f"s_lshl_b32 s{sT1}, s{sL}, 6")
        if pi:
            E(f"s_add_u32 s{sT1}, s{sT1}, 256")
        E(f"v_add_u32 v{t0}, s{sT1}, v{vLANE}")
        E(f"v_mul_u32_u24 v{t1}, 9363, v{t0}")
        E(f"v_lshrrev_b32 v{t1}, 16, v{t1}")
        E(f"v_mul_u32_u24 v{t2}, 7, v{t1}")
        E(f"v_sub_u32 v{t2}, v{t0}, v{t2}")
        E(f"v_and_b32 v{t0}, 0x38, v{t1}")
        E(f"v_and_b32 v{t3}, 1, v{t1}")
        E(f"v_lshl_add_u32 v{t0}, v{t3}, 2, v{t0}")
        E(f"v_bfe_u32 v{t3}, v{t1}, 1, 2")
        E(f"v_add_u32 v{t0}, v{t0}, v{t3}")
        E(f"v_mul_u32_u24 v{vw}, 2688, v{t0}")
        E(f"v_lshl_add_u32 v{vw}, v{t2}, 4, v{vw}")
        E(f"s_mul_i32 s{sT1}, s{sHP}, 112")
        E(f"v_add_u32 v{vw}, s{sT1}, v{vw}")
    E(f"s_lshl_b32 s{sM0}, s{sL}, 10")
    if last and br == "A":
        E(f"v_subrev_u32 v{vH1}, {32 * 896}, v{vX}")
        E(f"v_xor_b32 v{vH0}, 64, v{vX}")
        E(f"v_subrev_u32 v{vH0}, {40 * 896}, v{vH0}")
    srds(E)
    lstamp(E, 1)
    def issue(s):
        if OPT["no_load"]:
            return
        st = stages[s]; m = st["m"]; base = st["base"]
        for i in range(4):
            E(f"s_add_u32 m0, s{sM0}, {base + 4096 * i}")
            E(f"s_mov_b32 s{sT0}, {128 * m + 28672 * i}")
            E(f"buffer_load_dwordx4 v{vX}, {sr(SX, 4)}, s{sT0} offen lds", tag=f"S{s}")
        for k, seg in enumerate(st["segs"]):
            for pi, vw in enumerate((vW0, vW1)):
                if last and pi == 1:
                    break
                E(f"s_add_u32 m0, s{sM0}, {base + woff(br, k) + 4096 * pi}")
                E(f"s_mov_b32 s{sT0}, {m * 64 * 2688 + SEGCOL[seg] * 896}")
                E(f"buffer_load_dwordx4 v{vw}, {sr(SW, 4)}, s{sT0} offen lds", tag=f"S{s}")
        if last and br == "A":
            for n2, vh in enumerate((vH0, vH1)):
                E(f"s_mov_b32 m0, {base + 16384 + 1024 * n2}")
                E(f"s_mov_b32 s{sT0}, {128 * m}")
                E(f"buffer_load_dwordx4 v{vh}, {sr(SX, 4)}, s{sT0} offen lds", tag=f"S{s}")
    nxt = 0
    issue(0); nxt = 1
    if OPT["sbar"] == 1:
        E.barrier()
    lstamp(E, 2)
    srds2(E)
    stamps_init(E)
    if last:
        if br == "B":
            E(f"s_mul_i32 s{sT1}, s{sHP}, 3136")
            E(f"v_add_u32 v{t0}, s{sT1}, v{vL16B}")
            for i in range(4):
                E(f"s_mov_b32 m0, {B_WPH + 1024 * i}")
                E(f"s_mov_b32 s{sT0}, {1024 * i}")
                E(f"buffer_load_dwordx4 v{t0}, {sr(SAUX, 4)}, s{sT0} offen lds", tag="S1")
        else:
            E(f"s_mov_b32 m0, {A_GATE}")
            E(f"buffer_load_dwordx4 v{vL16B}, {sr(SAUX, 4)}, 0 offen lds", tag="S0")
    while nxt < OPT["ahead"]:
        issue(nxt); nxt += 1
    if OPT["sbar"] == 2:
        E.barrier()
    lstamp(E, 3)
    E(f"v_lshrrev_b32 v{vWO}, 3, v{vLANE}")
    E(f"v_bfe_u32 v{t1}, v{vLANE}, 4, 2")
    E(f"v_lshlrev_b32 v{t1}, 1, v{t1}")
    E(f"v_and_b32 v{t2}, 7, v{vLANE}")
    E(f"v_xor_b32 v{t1}, v{t1}, v{t2}")
    E(f"v_mul_u32_u24 v{vWO}, 896, v{vWO}")
    E(f"v_lshl_add_u32 v{vWO}, v{t1}, 4, v{vWO}")
    E(f"s_lshl_b32 s{sT1}, s{sCT}, 7")
    E(f"s_mul_i32 s{sT2}, s{sL}, {8 * 896}")
    E(f"s_add_u32 s{sT1}, s{sT1}, s{sT2}")
    E(f"s_cmp_ge_u32 s{sJ}, 28")
    E(f"s_cselect_b32 s{sT1}, 0x1000000, s{sT1}")
    E(f"v_add_u32 v{vWO}, s{sT1}, v{vWO}")
    def wo(b2):
        for i in range(14):
            E(f"s_add_u32 m0, s{sM0}, {(WOB_BASE if b2 else WOA_BASE) + i * 4096}")
            E(f"s_mov_b32 s{sT0}, {i * 32 * 896}")
            E(f"buffer_load_dwordx4 v{vWO}, {sr(SWOA if b2 == 0 else SWOB, 4)}, s{sT0} offen lds", tag=f"WO{b2}")
        if last:
            E(f"s_mov_b32 m0, {(WOB_BASE if b2 else WOA_BASE) + 57344}")
            E(f"s_mov_b32 s{sT0}, {448 * 896}")
            E(f"buffer_load_dwordx4 v{vWO}, {sr(SWOA if b2 == 0 else SWOB, 4)}, s{sT0} offen lds", tag=f"WO{b2}")
    gate = last and br == "A"
    if gate:
        E(f"v_lshrrev_b32 v{t0}, 1, v{vL16}")
        E(f"v_xor_b32 v{t0}, v{t0}, v{vG}")
        E(f"v_lshlrev_b32 v{t0}, 4, v{t0}")
        E(f"v_lshl_add_u32 v{t0}, v{vL16}, 7, v{t0}")
        E(f"s_lshl_b32 s{sT0}, s{sHP}, 11")
        E(f"v_add_u32 v{vGX}, s{sT0}, v{t0}")
        E(f"v_xor_b32 v{vGX + 1}, 64, v{vGX}")
        E(f"v_lshlrev_b32 v{vGF}, 4, v{vG}")
        E(f"v_add_u32 v{vGF}, {A_GATE}, v{vGF}")
        E(f"s_lshl_b32 s{sT0}, s{sRB}, 7")
        E(f"s_lshl_b32 s{sT1}, s{sHP}, 4")
        E(f"s_add_u32 s{sT0}, s{sT0}, s{sT1}")
        E(f"s_lshl_b32 s{sT0}, s{sT0}, 2")
        E(f"s_add_u32 s{sT0}, s{sT0}, {WS_G}")
        E(f"v_lshl_add_u32 v{vGOFF}, v{vLANE}, 2, s{sT0}")
        E(f"v_mov_b32 v{t0}, {WS_BYTES}")
        E(f"v_cmp_gt_u32 vcc, 16, v{vLANE}")
        E(f"v_cndmask_b32 v{vGOFF}, v{t0}, v{vGOFF}, vcc")
        E(f"v_mov_b32 v{t1}, -1")
        E(f"buffer_store_dword v{t1}, v{vGOFF}, {sr(SWS, 4)}, 0 offen sc1", tag="GCLR")
    GL, GB = 16, 20
    cur = 0
    cleared = [False]
    def clears():
        on = 40
        for i in range(4):
            E(f"v_mov_b32 v{on + i}, -1")
        E(f"s_lshl_b32 s{sT0}, s{sRB}, 3")
        E(f"s_lshl_b32 s{sT1}, s{sL}, 1")
        E(f"s_add_u32 s{sT0}, s{sT0}, s{sT1}")
        E(f"s_lshl_b32 s{sT0}, s{sT0}, 4")
        E(f"s_lshl_b32 s{sT1}, s{sHP}, 1")
        E(f"s_add_u32 s{sT0}, s{sT0}, s{sT1}")
        E(f"s_lshl_b32 s{sT0}, s{sT0}, 10")
        E(f"s_lshl_b32 s{sT1}, s{sBR}, 21")
        E(f"s_add_u32 s{sT0}, s{sT0}, s{sT1}")
        E(f"v_add_u32 v{t2}, s{sT0}, v{vL16B}")
        E(f"s_mov_b32 s{sT1}, 16384")
        if br == "B":
            E(f"s_lshl_b32 s{sT0}, s{sHP}, 4")
            E(f"s_add_u32 s{sT0}, s{sT0}, s{sRB}")
            E(f"s_lshl_b32 s{sT0}, s{sT0}, 2")
            E(f"s_add_u32 s{sT0}, s{sT0}, s{sL}")
            E(f"s_lshl_b32 s{sT0}, s{sT0}, 11")
            E(f"s_add_u32 s{sT0}, s{sT0}, {WS_KVP}")
            E(f"v_add_u32 v{t3}, s{sT0}, v{vL16B}")
            for i in range(2):
                E(f"buffer_store_dwordx4 {vr(on, 4)}, v{t3}, {sr(SWS, 4)}, 0 offen offset:{1024 * i} sc1", tag="CLR")
        for u in range(2):
            for i in range(2):
                E(f"buffer_store_dwordx4 {vr(on, 4)}, v{t2}, {sr(SWS, 4)}, {'0' if u == 0 else 's' + str(sT1)} offen offset:{1024 * i} sc1", tag="CLR")
    def step(s):
        nonlocal nxt, cur
        E.wait_tag(f"S{s}")
        if s == 0:
            lstamp(E, 4)
        if gate and s == OPT["fo"]:
            E.wait_tag("GCLR")
        E.barrier(lgkm0=True)
        if s == 0:
            lstamp(E, 5)
        if gate:
            d = stages[s]["base"] - cur; cur = stages[s]["base"]
            E(vadd_imm(vGX, d)); E(vadd_imm(vGX + 1, d))
            m = stages[s]["m"]
            for tt in range(2):
                E(f"ds_read_b128 {vr(GB + 8 * tt, 4)}, v{vGX + tt}")
                E(f"ds_read_b128 {vr(GB + 8 * tt + 4, 4)}, v{vGF} offset:{64 * (2 * m + tt)}")
        while nxt < len(stages) and stages[nxt]["after"] <= s and nxt <= s + OPT["ahead"]:
            issue(nxt); nxt += 1
        if gate:
            m = stages[s]["m"]
            for tt in range(2):
                E(f"v_mfma_f32_16x16x32_bf16 {vr(GL, 4)}, {vr(GB + 8 * tt + 4, 4)}, {vr(GB + 8 * tt, 4)}, {'0' if (m == 0 and tt == 0) else vr(GL, 4)}")
    if br == "A":
        for s in range(7):
            step(s)
        if gate:
            g = GL
            E(f"v_cvt_pk_bf16_f32 v{g + 1}, v{g}, v{g}")
            E(f"v_lshlrev_b32 v{g}, 16, v{g + 1}")
            E(f"v_mul_f32 v{g}, s{sL2E}, v{g}")
            E(f"v_exp_f32 v{g}, -v{g}")
            E(f"v_add_f32 v{g}, 1.0, v{g}")
            E(f"v_rcp_f32 v{g}, v{g}")
            E(f"v_cvt_pk_bf16_f32 v{g + 1}, v{g}, v{g}")
            E(f"v_lshlrev_b32 v{g}, 16, v{g + 1}")
            E.wait_tag("GCLR")
            E(f"buffer_store_dword v{g}, v{vGOFF}, {sr(SWS, 4)}, 0 offen sc1")
        E.barrier()
        E.barrier()
        E.barrier()
        wo(0); wo(1)
        if last:
            flags_wait_all(E, t0, t1, 128)
    else:
        for s in range(7):
            step(s)
        if last:
            flags_wait_all(E, t0, t1)
        E.barrier()
        E.barrier()
        wo(0)
        if OPT["wobe"]:
            wo(1)
        if last and OPT["fo"] < 5:
            flags_wait_all(E, t0, t1, 128)
        E.barrier()
        if last and OPT["fo"] >= 5:
            flags_wait_all(E, t0, t1, 128)
        E.barrier()
    E(f"s_cmp_ge_u32 s{sJ}, 28")
    E.flush_haz()
    E("s_cbranch_scc1 L_end")
    E.wait_tag("WO0")
    E.barrier()
    if br == "B" and not OPT["wobe"]:
        wo(1)
    E.force_wait(vm=0)
    E.barrier()
    if OPT["ldst"] and not last:
        Lz = newlabel("ls")
        E(f"s_cmp_lg_u32 s{sWV}, 8")
        E(f"s_cbranch_scc1 {Lz}")
        E.force_wait(vm=0, lgkm=0)
        E(f"s_lshl_b32 s{sT0}, s2, 7")
        E(f"s_add_u32 s{sT0}, s{sT0}, {WS_ST}")
        E(f"v_mov_b32 v20, s{sT0}")
        E("s_mov_b64 exec, 1")
        for i in range(6):
            E(f"v_mov_b32 v22, s{54 + 2 * i}")
            E(f"v_mov_b32 v23, s{54 + 2 * i + 1}")
            E(f"buffer_store_dwordx2 v[22:23], v20, {sr(SWS, 4)}, 0 offen offset:{8 * i}")
            E.force_wait(vm=0)
        E.label(Lz)
    E("s_branch L_end")

def p3_setup(E):
    rt, kh = sP3, sP3 + 1
    t0, t1, t2 = T0 + 8, T0 + 9, T0 + 1
    o = []
    o.append(f"s_and_b32 s{rt}, s{sWV}, 3")
    o.append(f"s_lshr_b32 s{kh}, s{sWV}, 2")
    o.append(f"s_lshl_b32 s{sT2}, s{sT}, 2")
    o.append(f"s_add_u32 s{sT2}, s{sT2}, s{rt}")
    o.append(f"s_lshl_b32 s{sP3 + 2}, s{sT2}, 14")
    o.append(f"s_lshl_b32 s{sP3 + 3}, s{kh}, 13")
    o.append(f"s_add_u32 s{sP3 + 2}, s{sP3 + 2}, s{sP3 + 3}")
    o.append(f"v_add_u32 v{pOF}, s{sP3 + 2}, v{vL16B}")
    o.append(f"s_lshl_b32 s{sT2}, s{sT2}, 4")
    o.append(f"v_add_u32 v{pROW}, s{sT2}, v{vL16}")
    o.append(f"v_bfe_u32 v{t0}, v{vLANE}, 2, 2")
    o.append(f"v_lshl_add_u32 v{t0}, v{vG}, 2, v{t0}")
    o.append(f"v_bfe_u32 v{t1}, v{t0}, 1, 2")
    o.append(f"v_and_b32 v{t2}, 3, v{vLANE}")
    o.append(f"v_lshlrev_b32 v{t2}, 3, v{t2}")
    o.append(f"v_lshl_add_u32 v{t2}, v{t0}, 7, v{t2}")
    o.append(f"s_mul_i32 s{sT2}, s{kh}, 28672")
    o.append(f"s_add_u32 s{sT2}, s{sT2}, {WOA_BASE}")
    o.append(f"v_add_u32 v{t2}, s{sT2}, v{t2}")
    o.append(f"s_lshl_b32 s{sT2}, s{kh}, 1")
    o.append(f"v_xor_b32 v{t1}, s{sT2}, v{t1}")
    for c in range(4):
        o.append(f"v_xor_b32 v{t0}, {c}, v{t1}")
        o.append(f"v_lshl_add_u32 v{pWO + c}, v{t0}, 5, v{t2}")
    o.append(f"v_add_u32 v7, 4096, v{pOF}")
    o.append(f"v_lshlrev_b32 v9, 2, v{pROW}")
    o.append(f"v_add_u32 v9, {WS_G}, v9")
    return o

sP3 = sMASK
pOF, pROW, pWO = 4, 5, 12
def p3_loads(br):
    of = 16 + 32 * br
    loads = [f"s_mov_b32 s{sT2}, {WS_OB if br else 0}"]
    for hl in range(8):
        loads.append(f"buffer_load_dwordx4 {vr(of + 4 * hl, 4)}, v{pOF if hl < 4 else 7}, {sr(SWS, 4)}, s{sT2} offen offset:{1024 * (hl & 3)} sc1")
    regs = list(range(of, of + 32))
    if br == 0:
        loads.append(f"buffer_load_dword v6, v9, {sr(SWS, 4)}, 0 offen sc1")
        regs.append(6)
    return loads, regs

def phase3(E):
    E.label("L_p3")
    E.vmq = []; E.lgq = []
    E(f"s_cmp_ge_u32 s{sJ}, 28")
    E("s_cbranch_scc1 L_fin")
    rt, kh = sP3, sP3 + 1
    vROW, vGV, vWO = pROW, 6, pWO
    vOF0, vOF1, vGA, vXO, vXP, vOUT = pOF, 7, 9, 8, 10, 11
    TMP = 144
    OF, AC, WF = 16, [80, 96], 112
    loads_for = p3_loads
    def gemm(br):
        of = OF + 32 * br
        prev = []
        for hl in range(8):
            wf = WF + 16 * (hl & 1)
            rd = []
            for c in range(4):
                for j in range(2):
                    rd.append(f"ds_read_b64_tr_b16 {vr(wf + 4 * c + 2 * j, 2)}, v{vWO + (c ^ (2 * (hl & 1)))} offset:{3584 * hl + 2048 * j}")
            E(interleave_front(prev, rd) if prev else rd)
            prev = []
            for c in (2, 3, 0, 1):
                acc = AC[br] + 4 * c
                prev.append(f"v_mfma_f32_16x16x32_bf16 {vr(acc, 4)}, {vr(wf + 4 * c, 4)}, {vr(of + 4 * hl, 4)}, {'0' if hl == 0 else vr(acc, 4)}")
        E(prev)
    E.barrier()
    stamp(E, 9)
    la, ra = loads_for(0)
    Lsk = newlabel("p3a")
    E(f"s_cmp_lg_u32 s{sBR}, 0")
    E.flush_haz()
    E(f"s_cbranch_scc1 {Lsk}")
    E(la)
    E.label(Lsk)
    E(f"s_lshl_b32 s{sT0}, s{sWV}, 12")
    E(f"s_add_u32 s{sT0}, s{sT0}, {XB3}")
    E(f"v_add_u32 v{vXO}, s{sT0}, v{vL16B}")
    E(f"s_xor_b32 s{sT0}, s{sWV}, 4")
    E(f"s_lshl_b32 s{sT0}, s{sT0}, 12")
    E(f"s_add_u32 s{sT0}, s{sT0}, {XB3}")
    E(f"v_add_u32 v{vXP}, s{sT0}, v{vL16B}")
    E(f"v_mul_u32_u24 v{vOUT}, 896, v{vROW}")
    E(f"v_lshl_add_u32 v{vOUT}, v{vG}, 3, v{vOUT}")
    E(f"s_lshl_b32 s{sT0}, s{sCT}, 7")
    E(f"s_lshl_b32 s{sT1}, s{kh}, 6")
    E(f"s_add_u32 s{sT0}, s{sT0}, s{sT1}")
    E(f"v_add_u32 v{vOUT}, s{sT0}, v{vOUT}")
    poll_loop(E, la, ra, "o", TMP, pre_issued=True)
    stamp(E, 10)
    if OPT["bearly"]:
        E(loads_for(1)[0])
    gemm(0)
    for i in range(2):
        E(f"ds_write_b128 v{vXO}, {vr(AC[0] + 8 + 4 * i, 4)} offset:{1024 * i}")
    stamp(E, 11)
    lb, rb_ = loads_for(1)
    if not OPT["sent"] and not OPT["bearly"]:
        E(lb)
    for c in range(4):
        E(vadd_imm(vWO + c, WOB_BASE - WOA_BASE))
    E.barrier()
    RA, T1, tp, omg = OF, OF + 8, OF + 16, OF + 24
    for i in range(2):
        E(f"ds_read_b128 {vr(RA + 4 * i, 4)}, v{vXP} offset:{1024 * i}")
    E(f"v_sub_f32 v{omg}, 1.0, v{vGV}")
    if OPT["round_final"]:
        E(f"v_cvt_pk_bf16_f32 v{omg + 1}, v{omg}, v{omg}")
        E(f"v_lshlrev_b32 v{omg}, 16, v{omg + 1}")
    for i in range(8):
        E(f"v_add_f32 v{T1 + i}, v{AC[0] + i}, v{RA + i}")
    if OPT["round_final"]:
        E(round_pairs(T1, T1, 8, tp))
    for i in range(8):
        E(f"v_mul_f32 v{T1 + i}, v{T1 + i}, v{vGV}")
    if OPT["round_final"]:
        E(round_pairs(T1, T1, 8, tp))
    if OPT["sent"]:
        vS = TMP + 2
        E(f"v_and_b32 v{vS}, 7, v{vLANE}")
        E(f"v_lshlrev_b32 v{vS}, 10, v{vS}")
        E(f"s_add_u32 s{sT0}, s{sP3 + 2}, {WS_OB + 1020}")
        E(f"v_add_u32 v{vS}, s{sT0}, v{vS}")
        Ls = newlabel("sn"); Lsd = newlabel("snd")
        E(f"s_mov_b32 s{sSPIN}, 0")
        E.label(Ls)
        E(f"buffer_load_dword v{TMP + 3}, v{vS}, {sr(SWS, 4)}, 0 offen sc1")
        E.force_wait(vm=0)
        E(f"v_cmp_eq_u32 vcc, -1, v{TMP + 3}")
        spin_tail(E, Ls, Lsd, sleep=OPT["sent"])
        poll_loop(E, lb, rb_, "o", TMP)
        stamp(E, 12)
        gemm(1)
    elif not OPT["prog"]:
        poll_loop(E, lb, rb_, "o", TMP, pre_issued=True)
        stamp(E, 12)
        gemm(1)
    else:
        of = OF + 32
        sMK = sP3 + 2
        for i in range(16):
            E(f"v_mov_b32 v{AC[1] + i}, 0")
        E(f"s_mov_b32 s{sMK}, 15")
        E(f"s_mov_b32 s{sSPIN}, 0")
        L = newlabel("pb"); Lc = newlabel("pbc"); Ld = newlabel("pbd")
        E.wait(lgkm=0)
        E.flush_haz()
        E(f"s_branch {Lc}")
        E.label(L)
        for pr in range(4):
            Ls = newlabel("pbl")
            E(f"s_bitcmp1_b32 s{sMK}, {pr}")
            E(f"s_cbranch_scc0 {Ls}")
            E(lb[1 + 2 * pr]); E(lb[2 + 2 * pr])
            E.out.append(Ls + ":")
        E.label(Lc)
        E.force_wait(vm=0)
        for pr in range(4):
            Ls = newlabel("pbk")
            g8 = of + 8 * pr
            E(f"s_bitcmp1_b32 s{sMK}, {pr}")
            E(f"s_cbranch_scc0 {Ls}")
            E(f"v_max3_u32 v{TMP}, v{g8}, v{g8 + 1}, v{g8 + 2}")
            E(f"v_max3_u32 v{TMP + 1}, v{g8 + 3}, v{g8 + 4}, v{g8 + 5}")
            E(f"v_max3_u32 v{TMP}, v{TMP}, v{g8 + 6}, v{g8 + 7}")
            E(f"v_max_u32 v{TMP}, v{TMP}, v{TMP + 1}")
            E(f"v_cmp_eq_u32 vcc, -1, v{TMP}")
            E(f"s_cbranch_vccnz {Ls}")
            for h2 in range(2):
                hl = 2 * pr + h2
                wf = WF + 16 * h2
                for c in range(4):
                    for j in range(2):
                        E(f"ds_read_b64_tr_b16 {vr(wf + 4 * c + 2 * j, 2)}, v{vWO + (c ^ (2 * (hl & 1)))} offset:{3584 * hl + 2048 * j}")
            for h2 in range(2):
                hl = 2 * pr + h2
                wf = WF + 16 * h2
                for c in (2, 3, 0, 1):
                    acc = AC[1] + 4 * c
                    E(f"v_mfma_f32_16x16x32_bf16 {vr(acc, 4)}, {vr(wf + 4 * c, 4)}, {vr(of + 4 * hl, 4)}, {vr(acc, 4)}")
            E(f"s_bitset0_b32 s{sMK}, {pr}")
            assert not E.lgq
            E.out.append(Ls + ":")
        E(f"s_cmp_eq_u32 s{sMK}, 0")
        E(f"s_cbranch_scc1 {Ld}")
        E(f"s_add_u32 s{sSPIN}, s{sSPIN}, 1")
        E(f"s_cmp_lt_u32 s{sSPIN}, {SPIN_MAX}")
        E(f"s_cbranch_scc0 {Ld}")
        E(f"s_branch {L}")
        E.out.append(Ld + ":")
        E.nop(9); E.clear_haz()
        stamp(E, 12)
    for i in range(2):
        E(f"ds_write_b128 v{vXO}, {vr(AC[1] + 8 + 4 * i, 4)} offset:{2048 + 1024 * i}")
    stamp(E, 13)
    E.barrier()
    for i in range(2):
        E(f"ds_read_b128 {vr(RA + 4 * i, 4)}, v{vXP} offset:{2048 + 1024 * i}")
    KB = AC[1]
    for i in range(8):
        E(f"v_add_f32 v{KB + i}, v{KB + i}, v{RA + i}")
    if OPT["round_final"]:
        E(round_pairs(KB, KB, 8, tp))
        for i in range(8):
            E(f"v_mul_f32 v{KB + i}, v{KB + i}, v{omg}")
        E(round_pairs(KB, KB, 8, tp))
        for i in range(8):
            E(f"v_add_f32 v{T1 + i}, v{T1 + i}, v{KB + i}")
    else:
        for i in range(8):
            E(f"v_fmac_f32 v{T1 + i}, v{KB + i}, v{omg}")
    for i in range(4):
        E(f"v_cvt_pk_bf16_f32 v{tp + i}, v{T1 + 2 * i}, v{T1 + 2 * i + 1}")
    for i in range(2):
        E(f"buffer_store_dwordx2 {vr(tp + 2 * i, 2)}, v{vOUT}, {sr(SOUT, 4)}, 0 offen offset:{32 * i} {OPT['outpol']}")
    stamp(E, 14)
    E.label("L_fin")
    if OPT["dbgspan"]:
        Lz = newlabel("sp")
        E(f"s_cmp_lg_u32 s{sWV}, 0")
        E(f"s_cbranch_scc1 {Lz}")
        E.force_wait(vm=0)
        E("s_memrealtime s[96:97]")
        E.force_wait(lgkm=0)
        E("s_not_b32 s94, s94")
        E("v_mov_b32 v144, s96")
        E("v_mov_b32 v145, s94")
        E("v_mov_b32 v146, 0")
        E("s_mov_b64 exec, 1")
        E(f"buffer_atomic_umax v144, v146, {sr(SDBG, 4)}, 0 offen")
        E(f"buffer_atomic_umax v145, v146, {sr(SDBG, 4)}, 0 offen offset:4")
        E("s_not_b32 s94, s94")
        E("v_mov_b32 v145, s94")
        E(f"buffer_atomic_umax v145, v146, {sr(SDBG, 4)}, 0 offen offset:8")
        E("s_mov_b64 exec, -1")
        E.label(Lz)
    if OPT["stamps"]:
        Lz = newlabel("st")
        E(f"s_cmp_lg_u32 s{sWV}, 0")
        E(f"s_cbranch_scc1 {Lz}")
        E.force_wait(vm=0, lgkm=0)
        E(f"s_lshl_b32 s{sT0}, s2, 7")
        E(f"s_add_u32 s{sT0}, s{sT0}, {WS_ST}")
        E(f"v_mov_b32 v{vA0}, s{sT0}")
        E("s_mov_b64 exec, 1")
        for i in range(15):
            E(f"v_mov_b32 v{TMP}, s{sSTAMP + 2 * i}")
            E(f"v_mov_b32 v{TMP + 1}, s{sSTAMP + 2 * i + 1}")
            E(f"buffer_store_dwordx2 {vr(TMP, 2)}, v{vA0}, {sr(SWS, 4)}, 0 offen offset:{8 * i}")
            E.force_wait(vm=0)
        E.label(Lz)

def main():
    hdr = open("cdna_kernels/" + NAME + ".s.ref").read().split("; Override launch geometry")[0]
    E.raw(hdr.rstrip())
    E.raw(f"; @launch grid=(256,1,1) block=(768,1,1) lds={LDS_BYTES}")
    E.raw('.amdgcn_target "amdgcn-amd-amdhsa--gfx950"')
    E.raw(".text")
    E.raw(f".globl {NAME}_kernel")
    E.raw(".p2align 8")
    E.raw(f".type {NAME}_kernel,@function")
    E.raw(f"{NAME}_kernel:")
    prologue(E)
    E(f"s_cmp_lt_u32 s{sWV}, 8")
    E.flush_haz()
    E("s_cbranch_scc1 L_cons")
    E(f"s_cmp_eq_u32 s{sWV}, 11")
    E("s_cbranch_scc1 L_ld3")
    E(f"s_cmp_eq_u32 s{sBR}, 0")
    E("s_cbranch_scc1 L_A_ld")
    for name, fn in (("L_B_ld", lambda: loader(E, "B", False)), ("L_ld3", None), ("L_B_ld3", lambda: loader(E, "B", True)),
                     ("L_A_ld", lambda: loader(E, "A", False)), ("L_A_ld3", lambda: loader(E, "A", True))):
        E.label(name); E.vmq = []; E.lgq = []
        if fn is None:
            E(f"s_cmp_eq_u32 s{sBR}, 0")
            E("s_cbranch_scc1 L_A_ld3")
        else:
            fn()
    E.label("L_cons")
    E(f"s_cmp_eq_u32 s{sBR}, 0")
    E("s_cbranch_scc0 L_B_main")
    E(f"s_cmp_lt_u32 s{sWV}, 2")
    E("s_cbranch_scc1 L_A_halo")
    for name, fn in (("L_A_main", lambda: cons_A(E, False)), ("L_A_halo", lambda: cons_A(E, True)), ("L_B_main", lambda: cons_B(E))):
        E.label(name); E.vmq = []; E.lgq = []
        fn()
        E.wait(lgkm=0)
        E.flush_haz()
        E("s_branch L_p3")
    phase3(E)
    E.label("L_end")
    E("s_endpgm")
    E.raw('.section .rodata,"a"')
    E.raw(".p2align 6")
    E.raw(f".amdhsa_kernel {NAME}_kernel")
    E.raw(f"  .amdhsa_next_free_vgpr {NVGPR}")
    E.raw("  .amdhsa_next_free_sgpr 102")
    E.raw(f"  .amdhsa_accum_offset {NVGPR}")
    E.raw("  .amdhsa_group_segment_fixed_size 0")
    E.raw("  .amdhsa_kernarg_size 88")
    E.raw("  .amdhsa_user_sgpr_count 2")
    E.raw("  .amdhsa_user_sgpr_kernarg_segment_ptr 1")
    E.raw("  .amdhsa_system_sgpr_workgroup_id_x 1")
    E.raw(".end_amdhsa_kernel")
    txt = E.text()
    import re
    mx = max(int(x) for x in re.findall(r"\bv\[?(\d+)", txt) + re.findall(r"\bv\[\d+:(\d+)\]", txt))
    assert mx < NVGPR, mx
    open(sys.argv[1], "w").write(txt)
    print("instructions:", E.nins, "max vgpr", mx)

main()
```

```python
import sys, struct, math
from asmlib import *

NAME = "gated_mix__sliding_local_dilated__linear_kernel_hedgehog__prompt"
OPT = dict(stamps=0, fine=0, round_final=1, pf=1, flag_at=5, ahead=2, nov=4, fill=5, mfsum=0, prio=1, pkfma=2, gat=90, no_comp=0, no_load=0, no_clr=0, lead=2, dbgspan=0, pf2=0, prog=0, ldst=0, pfA=0, atom=0, fk=0, psleep=2, sent=0, noflag=0, sbar=2, prea=1, outpol="", stag=0, fo=5, bearly=0, wobe=0, cpf=0, loops=0, warm=0, secl=120, disp=1)
for a in sys.argv[2:]:
    k, v = a.split("=")
    OPT[k] = int(v) if v.lstrip("-").isdigit() else v

LDS_BYTES = 163840
PHI_STRIDE, V_STRIDE = 264, 72
WS_OA, WS_OB, WS_KVP, WS_G, WS_ST = 0, 2 << 20, 4 << 20, 5 << 20, 8 << 20
WS_BYTES = 16 << 20
SPIN_MAX = 30000
SEGCOL = {"Q": 0, "K": 1, "V": 2}
SEGI = {"K": 0, "V": 1, "Q": 2}
WOA_BASE, WOB_BASE, XB3 = 58368, 0, 116736
B_SS = 39936
B_STAGES = [dict(m=m, segs=["K", "V", "Q"], base=B_SS * (m % 4)) for m in range(7)]
for i, st in enumerate(B_STAGES):
    prev = [j for j in range(i) if B_STAGES[j]["base"] == st["base"]]
    st["after"] = (prev[-1] + 2) if prev else -1
B_WPH = 159744
PHI_BASE = 0
VB = [128 * PHI_STRIDE, 128 * PHI_STRIDE + 128 * V_STRIDE]
KVF = 143360
A_SS = 39936
A_STAGES = [dict(m=m, segs=["K", "V", "Q"], base=A_SS * (m % 4)) for m in range(7)]
for i, st in enumerate(A_STAGES):
    prev = [j for j in range(i) if A_STAGES[j]["base"] == st["base"]]
    st["after"] = (prev[-1] + 2) if prev else -1
A_GATE = 159744
A_EXCH = XB3
def woff(br, k):
    return 18432 + 7168 * k

def f2u(x): return struct.unpack("<I", struct.pack("<f", x))[0]
LOG2E = f2u(1.4426950408889634)
SCALE = f2u(28 ** -0.5)

SX, SW, SWS, SDBG, SAUX, SWOA, SWOB, SOUT = 8, 12, 16, 20, 24, 28, 32, 36
sRB, sHP, sBR, sWV, sT, sCT, sJ, sT0, sT1, sM0 = 40, 41, 42, 43, 44, 45, 46, 47, 48, 49
sMASK = 50
sG3 = 66
sL2E, sSCL, sSPIN, sT2 = 68, 69, 70, 71
sKA = 72
sSTAMP = 72
sRG, sHH, s16K, sMP = 3, 4, 5, 6
sLP, sLD, sFL = 94, 95, 96
sHIM = sG3 + 1

NVGPR = 168
vLANE, vL16, vG, vL16B = 0, 1, 2, 3
vXR, vTR, vPADB, vOOFF = 4, 6, 7, 8
vA0, vA1, vA2, vA3 = 9, 10, 11, 12
vSL, vXRH = 13, 13
ACC = [16, 32, 48]
T0 = 152

E = Emitter()
lblc = [0]
def newlabel(p):
    lblc[0] += 1
    return f"L_{p}_{lblc[0]}"

class Warm:
    active = None
    secs = {}
    last = 0
    @classmethod
    def begin(cls, E, region):
        if not OPT["warm"]:
            return
        cls.active = region
        cls.secs.setdefault(region, [])
        cls.open(E)
    @classmethod
    def open(cls, E):
        L = newlabel("ws")
        cls.secs[cls.active].append(L)
        E.out.append(L + ":")
        cls.last = E.nins
    @classmethod
    def close(cls, E):
        E._put(f"s_cmp_eq_u32 s{sFL}, 1")
        E._put(f"s_cbranch_scc1 L_warm_ret")
    @classmethod
    def cut(cls, E, force=False):
        if cls.active and (force or E.nins - cls.last >= OPT["secl"]):
            cls.close(E); cls.open(E)
    @classmethod
    def end(cls, E):
        if cls.active:
            cls.close(E); cls.active = None

_orig_barrier = Emitter.barrier
def _barrier(self, lgkm0=True):
    if Warm.active:
        if lgkm0:
            self.wait(lgkm=0)
        Warm.close(self)
        self._put("s_barrier")
        Warm.open(self)
    else:
        _orig_barrier(self, lgkm0)
Emitter.barrier = _barrier
_orig_call = Emitter.__call__
def _call(self, text, tag=None):
    _orig_call(self, text, tag)
    if Warm.active and isinstance(text, str) and text.startswith(("v_exp_f32", "v_mfma", "v_cvt_pk", "ds_read", "v_mul_f32")):
        Warm.cut(self)
Emitter.__call__ = _call

def warm_up(E, regions):
    if not OPT["warm"]:
        return
    E.flush_haz()
    E.out.append("@@WARM " + ",".join(regions))

def stamp(E, idx, fine=False):
    if OPT["stamps"] and (idx == 0 or bool(OPT["fine"]) == fine):
        E(f"s_memrealtime {sr(sSTAMP + 2 * idx, 2)}")

def srd(E, d, lo, nbytes):
    E(f"s_mov_b32 s{d}, s{lo}")
    E(f"s_and_b32 s{d+1}, s{lo+1}, 0xffff")
    E(f"s_mov_b32 s{d+2}, {nbytes}")
    E(f"s_mov_b32 s{d+3}, 0x20000")

def dual_reduce(a, b, t, op):
    return [
        f"v_permlane32_swap_b32 v{a}, v{b}",
        f"{op} v{a}, v{a}, v{b}",
        f"v_mov_b32 v{t}, v{a}",
        f"v_permlane16_swap_b32 v{a}, v{t}",
        f"{op} v{a}, v{a}, v{t}",
        f"v_mov_b32 v{b}, v{a}",
        f"v_permlane32_swap_b32 v{a}, v{b}",
    ]

def round_pairs(src, dst, n, tmp):
    out = []
    for i in range(0, n, 2):
        out.append(f"v_cvt_pk_bf16_f32 v{tmp + i // 2}, v{src + i}, v{src + i + 1}")
    for i in range(0, n, 2):
        out.append(f"v_lshlrev_b32 v{dst + i}, 16, v{tmp + i // 2}")
        out.append(f"v_and_b32 v{dst + i + 1}, s{sHIM}, v{tmp + i // 2}")
    return out

def pack_op(acc, dst, zero_pad=True):
    out = [f"v_cvt_pk_bf16_f32 v{dst + i}, v{acc + 2 * i}, v{acc + 2 * i + 1}" for i in range(4)]
    if zero_pad:
        out += [f"v_cndmask_b32 v{dst + 2}, v{dst + 2}, 0, {sr(sG3, 2)}", f"v_cndmask_b32 v{dst + 3}, v{dst + 3}, 0, {sr(sG3, 2)}"]
    return out

def interleave_front(mm, rd):
    out = []
    n = max(1, (len(mm) * 3) // 4)
    j = 0
    for i, x in enumerate(mm):
        tgt = min(len(rd), ((i + 1) * len(rd) + n - 1) // n)
        while j < tgt:
            out.append(rd[j]); j += 1
        out.append(x)
    out += rd[j:]
    return out

def vadd_imm(reg, delta):
    if delta == 0:
        return []
    return [f"v_add_u32 v{reg}, {delta & 0xffffffff:#x}, v{reg}"]

def lstamp(E, i):
    if OPT["ldst"]:
        E(f"s_memrealtime {sr(54 + 2 * i, 2)}")

def prologue(E):
    E("s_cmp_ge_u32 s2, 256")
    E("s_cbranch_scc1 L_end")
    lstamp(E, 0)
    if OPT["cpf"]:
        NS = OPT["cpf"] if OPT["cpf"] > 1 else 6
        E("s_getpc_b64 s[98:99]")
        E.raw("L_pc0:")
        E(f"v_cmp_gt_u32 vcc, 64, v0")
        E(f"s_lshr_b32 s{sT0}, s2, 3")
        E(f"s_mul_i32 s{sT1}, s{sT0}, 43")
        E(f"s_lshr_b32 s{sT1}, s{sT1}, 8")
        E(f"s_mul_i32 s{sT1}, s{sT1}, 6")
        E(f"s_sub_u32 s{sT0}, s{sT0}, s{sT1}")
        for j in range(32):
            assert (j * 43) >> 8 == j // 6
        E(f"s_lshl_b32 s{sT0}, s{sT0}, 13")
        E(f"v_lshl_add_u32 v{T0 + 2}, v0, 7, s{sT0}")
        E(f"v_cmp_gt_u32 s[100:101], s97, v{T0 + 2}") if False else None
        E(f"v_min_u32 v{T0 + 2}, (L_end - L_pc0) & 0xffffff80, v{T0 + 2}")
        E(f"s_cbranch_vccz L_pc1")
        E(f"global_load_dword v15, v{T0 + 2}, s[98:99]")
        E.raw("L_pc1:")
        E.vmq = []
    if OPT["dbgspan"]:
        E("s_memrealtime s[94:95]")
    E(f"s_load_dwordx16 {sr(sKA, 16)}, s[0:1], 0")
    E(f"s_load_dwordx4 {sr(sKA + 16, 4)}, s[0:1], 64")
    E(f"s_load_dwordx2 {sr(sKA + 20, 2)}, s[0:1], 80")
    E(f"v_lshrrev_b32 v{T0}, 6, v0")
    E(f"v_and_b32 v{vLANE}, 63, v0")
    E(f"v_readfirstlane_b32 s{sWV}, v{T0}")
    E(f"s_and_b32 s{sT0}, s2, 7")
    E(f"s_lshr_b32 s{sJ}, s2, 3")
    E(f"s_lshr_b32 s{sBR}, s{sJ}, 4")
    E(f"s_xor_b32 s{sBR}, s{sBR}, 1")
    E(f"s_and_b32 s{sRB}, s{sT0}, 3")
    E(f"s_lshl_b32 s{sRB}, s{sRB}, 2")
    E(f"s_bfe_u32 s{sT1}, s{sJ}, 0x20002")
    E(f"s_add_u32 s{sRB}, s{sRB}, s{sT1}")
    E(f"s_lshr_b32 s{sHP}, s{sT0}, 2")
    E(f"s_lshl_b32 s{sHP}, s{sHP}, 2")
    E(f"s_and_b32 s{sT1}, s{sJ}, 3")
    E(f"s_add_u32 s{sHP}, s{sHP}, s{sT1}")
    E(f"s_mul_i32 s{sT1}, s{sJ}, 37")
    E(f"s_lshr_b32 s{sT1}, s{sT1}, 8")
    E(f"s_lshl_b32 s{sT}, s{sT0}, 2")
    E(f"s_add_u32 s{sT}, s{sT}, s{sT1}")
    E(f"s_mul_i32 s{sT1}, s{sT1}, 7")
    E(f"s_sub_u32 s{sCT}, s{sJ}, s{sT1}")
    E(f"s_lshr_b32 s{sRG}, s{sWV}, 1")
    E(f"s_and_b32 s{sHH}, s{sWV}, 1")
    E(f"v_and_b32 v{vL16}, 15, v{vLANE}")
    E(f"v_lshrrev_b32 v{vG}, 4, v{vLANE}")
    E(f"v_lshlrev_b32 v{vL16B}, 4, v{vLANE}")
    E(f"s_mov_b32 s{sFL}, 0")
    E(f"s_mov_b32 s{sG3}, 0")
    E(f"s_mov_b32 s{sG3+1}, 0xffff0000")
    E(f"s_mov_b32 s{sL2E}, {LOG2E:#x}")
    E(f"s_mov_b32 s{sSCL}, {SCALE:#x}")

def srds(E):
    E.force_wait(lgkm=0)
    K = sKA
    srd(E, SX, K + 0, 2048 * 896)
    E(f"s_cmp_eq_u32 s{sBR}, 0")
    E(f"s_cselect_b32 s{sT0}, s{K+2}, s{K+8}")
    E(f"s_cselect_b32 s{sT1}, s{K+3}, s{K+9}")
    srd(E, SW, sT0, 448 * 2688)

def srds2(E):
    K = sKA
    E(f"s_mov_b32 s{sT2}, 25088")
    E(f"s_cmp_eq_u32 s{sBR}, 0")
    E(f"s_cselect_b32 s{sT0}, s{K+14}, s{K+10}")
    E(f"s_cselect_b32 s{sT1}, s{K+15}, s{K+11}")
    E(f"s_cselect_b32 s{sT2}, 896, s{sT2}")
    E(f"s_mov_b32 s{SAUX}, s{sT0}")
    E(f"s_and_b32 s{SAUX+1}, s{sT1}, 0xffff")
    E(f"s_mov_b32 s{SAUX+2}, s{sT2}")
    E(f"s_mov_b32 s{SAUX+3}, 0x20000")
    srd(E, SWS, K + 20, WS_BYTES)
    srd(E, SWOA, K + 4, 448 * 896)
    srd(E, SWOB, K + 12, 448 * 896)
    srd(E, SOUT, K + 16, 2048 * 896)
    srd(E, SDBG, K + 18, 256)

def stamps_init(E):
    if OPT["stamps"]:
        stamp(E, 0)
        for i in range(1, 15):
            E(f"s_mov_b64 {sr(sSTAMP + 2 * i, 2)}, 0")

def prefetch(E, sJ=sJ):
    K = sKA
    SP = sMASK + 2
    t0, t1, t2, t3 = T0, T0 + 1, T0 + 2, T0 + 3
    Lx = newlabel("pfx"); Ld = newlabel("pfd")
    E(f"s_cmp_ge_u32 s{sWV}, 6")
    E.flush_haz()
    E(f"s_cbranch_scc1 {Lx}")
    E(f"s_cmp_lt_u32 s{sWV}, 3")
    E(f"s_cselect_b32 s{sT0}, s{K+2}, s{K+8}")
    E(f"s_cselect_b32 s{sT1}, s{K+3}, s{K+9}")
    E(f"s_cselect_b32 s{sT2}, 0, 3")
    srd(E, SP, sT0, 448 * 2688)
    E(f"s_sub_u32 s{sT2}, s{sWV}, s{sT2}")
    E(f"s_lshl_b32 s{sT2}, s{sT2}, 6")
    E(f"v_add_u32 v{t0}, s{sT2}, v{vLANE}")
    E(f"v_mul_u32_u24 v{t1}, 5462, v{t0}")
    E(f"v_lshrrev_b32 v{t1}, 16, v{t1}")
    E(f"v_mul_u32_u24 v{t2}, 12, v{t1}")
    E(f"v_sub_u32 v{t2}, v{t0}, v{t2}")
    E(f"v_lshrrev_b32 v{t3}, 2, v{t2}")
    E(f"v_and_b32 v{t2}, 3, v{t2}")
    E(f"s_mul_i32 s{sT2}, s{sJ}, 14")
    E(f"v_add_u32 v{t1}, s{sT2}, v{t1}")
    E(f"v_mul_u32_u24 v{t1}, 2688, v{t1}")
    E(f"v_mul_u32_u24 v{t3}, 896, v{t3}")
    E(f"v_lshl_add_u32 v{t2}, v{t2}, 7, v{t3}")
    E(f"s_lshr_b32 s{sT2}, s{sHP}, 2")
    E(f"s_mul_i32 s{sT2}, s{sT2}, 384")
    E(f"v_add3_u32 v{t1}, v{t1}, v{t2}, s{sT2}")
    E(f"v_mov_b32 v{t2}, 0x1000000")
    E(f"v_cmp_gt_u32 vcc, 168, v{t0}")
    E(f"v_cndmask_b32 v{t1}, v{t2}, v{t1}, vcc")
    E(f"buffer_load_dword v15, v{t1}, {sr(SP, 4)}, 0 offen")
    E.flush_haz()
    E(f"s_branch {Ld}")
    E.label(Lx)
    E(f"s_sub_u32 s{sT2}, s{sWV}, 6")
    E(f"s_lshl_b32 s{sT2}, s{sT2}, 6")
    E(f"v_add_u32 v{t0}, s{sT2}, v{vLANE}")
    E(f"s_mul_i32 s{sT2}, s{sJ}, 112")
    E(f"s_lshr_b32 s{sT1}, s{sRB}, 2")
    E(f"s_mul_i32 s{sT1}, s{sT1}, 3584")
    E(f"s_add_u32 s{sT2}, s{sT2}, s{sT1}")
    E(f"v_add_u32 v{t1}, s{sT2}, v{t0}")
    E(f"v_lshlrev_b32 v{t1}, 7, v{t1}")
    E(f"v_mov_b32 v{t2}, 0x1000000")
    E(f"v_cmp_gt_u32 vcc, 112, v{t0}")
    E(f"v_cndmask_b32 v{t1}, v{t2}, v{t1}, vcc")
    E(f"buffer_load_dword v15, v{t1}, {sr(SX, 4)}, 0 offen")
    E.label(Ld)
    E.vmq = [{"dst": set(), "tag": "PF"}]

def prefetch2(E, t0, t1, dst):
    Ld = newlabel("p2d"); Lb = newlabel("p2b")
    E(f"s_and_b32 s{sT0}, s{sWV}, 3")
    E(f"s_lshl_b32 s{sT0}, s{sT0}, 6")
    E(f"v_add_u32 v{t0}, s{sT0}, v{vLANE}")
    E(f"s_and_b32 s{sT0}, s{sJ}, 15")
    E(f"s_mul_i32 s{sT0}, s{sT0}, 196")
    E(f"v_add_u32 v{t1}, s{sT0}, v{t0}")
    E(f"v_lshlrev_b32 v{t1}, 7, v{t1}")
    E(f"v_cmp_gt_u32 vcc, 196, v{t0}")
    E(f"v_mov_b32 v{t0}, 0x1000000")
    E(f"v_cndmask_b32 v{t1}, v{t0}, v{t1}, vcc")
    E(f"s_cmp_ge_u32 s{sWV}, 4")
    E.flush_haz()
    E(f"s_cbranch_scc1 {Lb}")
    E(f"buffer_load_dword v{dst}, v{t1}, {sr(SWOA, 4)}, 0 offen")
    E(f"s_branch {Ld}")
    E.label(Lb)
    E(f"buffer_load_dword v{dst}, v{t1}, {sr(SWOB, 4)}, 0 offen")
    E.label(Ld)

def flag_store(E, val, t0, t1, base=0):
    if OPT["noflag"]:
        return
    if OPT["atom"]:
        E(f"s_lshl_b32 s{sT0}, s{sRB}, 2")
        E(f"v_mov_b32 v{t0}, s{sT0}")
        E(f"v_mov_b32 v{t1}, 1")
        E("s_mov_b64 exec, 1")
        E(f"buffer_atomic_add v{t1}, v{t0}, {sr(SDBG, 4)}, 0 offen offset:{base} sc1")
        E("s_mov_b64 exec, -1")
        return
    E(f"s_lshl_b32 s{sT0}, s{sRB}, 3")
    E(f"s_add_u32 s{sT0}, s{sT0}, s{sHP}")
    if base:
        E(f"s_add_u32 s{sT0}, s{sT0}, {base}")
    E(f"v_mov_b32 v{t0}, s{sT0}")
    E(f"v_mov_b32 v{t1}, {val}")
    E("s_mov_b64 exec, 1")
    E(f"buffer_store_byte v{t1}, v{t0}, {sr(SDBG, 4)}, 0 offen sc1")
    E("s_mov_b64 exec, -1")

def spin_tail(E, L, Ld, sleep=2):
    E(f"s_cbranch_vccz {Ld}")
    E(f"s_add_u32 s{sSPIN}, s{sSPIN}, 1")
    E(f"s_cmp_lt_u32 s{sSPIN}, {SPIN_MAX}")
    E(f"s_cbranch_scc0 {Ld}")
    E(f"s_sleep {sleep}")
    E(f"s_branch {L}")
    E.label(Ld)

def flags_wait_all(E, t0, t1, base=0):
    if OPT["noflag"]:
        return
    L = newlabel("fl"); Ld = newlabel("fld")
    E(f"v_and_b32 v{t0}, {15 if OPT['atom'] else 31}, v{vLANE}")
    E(f"v_lshlrev_b32 v{t0}, 2, v{t0}")
    E(f"s_mov_b32 s{sSPIN}, 0")
    E(f"s_mov_b32 s{sT1}, {'8' if OPT['atom'] else '0x01010101'}")
    E.label(L)
    E(f"buffer_load_dword v{t1}, v{t0}, {sr(SDBG, 4)}, 0 offen offset:{base} sc1")
    E.force_wait(vm=0)
    E(f"v_cmp_ne_u32 vcc, s{sT1}, v{t1}")
    spin_tail(E, L, Ld, sleep=40)

def check_regs(E, regs, tmp):
    rs = list(regs)
    E(f"v_max_u32 v{tmp}, v{rs[0]}, v{rs[1]}")
    rest = rs[2:]
    while len(rest) >= 2:
        E(f"v_max3_u32 v{tmp}, v{tmp}, v{rest[0]}, v{rest[1]}"); rest = rest[2:]
    if rest:
        E(f"v_max_u32 v{tmp}, v{tmp}, v{rest[0]}")
    E(f"v_cmp_eq_u32 vcc, -1, v{tmp}")

def poll_loop(E, loads, regs, name, tmp, pre_issued=False):
    L = newlabel(name); Lc = newlabel(name + "c"); Ld = newlabel(name + "d")
    E(f"s_mov_b32 s{sSPIN}, 0")
    if pre_issued:
        E.flush_haz()
        E(f"s_branch {Lc}")
    E.label(L)
    E(loads)
    E.label(Lc)
    E.force_wait(vm=0)
    check_regs(E, regs, tmp)
    spin_tail(E, L, Ld, sleep=OPT["psleep"])

def cons_setup(E, br):
    t0, t1, t2 = T0, T0 + 1, T0 + 2
    E(f"v_bfe_u32 v{t0}, v{vLANE}, 2, 2")
    E(f"v_and_b32 v{t1}, 3, v{vLANE}")
    E(f"v_lshlrev_b32 v{t2}, 3, v{vG}")
    E(f"v_lshl_add_u32 v{t2}, v{t0}, 1, v{t2}")
    E(f"v_mul_u32_u24 v{t2}, 112, v{t2}")
    E(f"v_lshl_add_u32 v{vTR}, v{t1}, 3, v{t2}")
    E(f"s_mul_i32 s{sT0}, s{sHH}, 56")
    E(f"v_add_u32 v{vTR}, s{sT0}, v{vTR}")
    E(f"v_lshrrev_b32 v{t0}, 1, v{vL16}")
    E(f"v_xor_b32 v{t0}, v{t0}, v{vG}")
    E(f"v_lshlrev_b32 v{t0}, 4, v{t0}")
    E(f"v_lshl_add_u32 v{t0}, v{vL16}, 7, v{t0}")
    E(f"s_lshl_b32 s{sT0}, s{sRG}, 12")
    E(f"v_add_u32 v{vXR}, s{sT0}, v{t0}")
    E(f"v_xor_b32 v{vXR+1}, 64, v{vXR}")
    E(f"s_lshl_b32 s{sT0}, s{sRB}, 3")
    E(f"s_lshl_b32 s{sT1}, s{sRG}, 1")
    E(f"s_add_u32 s{sT0}, s{sT0}, s{sT1}")
    E(f"s_lshl_b32 s{sT0}, s{sT0}, 4")
    E(f"s_lshl_b32 s{sT1}, s{sHP}, 1")
    E(f"s_add_u32 s{sT0}, s{sT0}, s{sT1}")
    E(f"s_add_u32 s{sT0}, s{sT0}, s{sHH}")
    E(f"s_lshl_b32 s{sT0}, s{sT0}, 10")
    E(f"s_lshl_b32 s{sT1}, s{sBR}, 21")
    E(f"s_add_u32 s{sT0}, s{sT0}, s{sT1}")
    E(f"v_add_u32 v{vOOFF}, s{sT0}, v{vL16B}")
    E(f"s_mov_b32 s{s16K}, 16384")

def ostore(reg, u):
    return f"buffer_store_dwordx4 {vr(reg, 4)}, v{vOOFF}, {sr(SWS, 4)}, {'0' if u == 0 else 's' + str(s16K)} offen sc1"

class Cons:
    def __init__(self, E, br, stages, buf0, bufsz, nbuf, halo=False, HACC=None):
        self.E, self.br, self.stages = E, br, stages
        self.buf0, self.bufsz, self.nbuf, self.halo, self.HACC = buf0, bufsz, nbuf, halo, HACC
        self.cur_base = 0
        self.ks = 0; self.pending = []
        self.nbar = 0
        self.prebar = None

    def parts(self, s, tt, buf):
        st = self.stages[s]; m = st["m"]; t = 2 * m + tt
        first = t == 0
        B0 = self.buf0 + self.bufsz * buf
        rd, mm = [], []
        xr = [B0, B0 + 4]
        for u in range(2):
            rd.append(f"ds_read_b128 {vr(xr[u], 4)}, v{vXR + tt} offset:{2048 * u}")
        wb = B0 + 8
        if self.halo:
            hx = B0 + 8; wb = B0 + 12
            rd.append(f"ds_read_b128 {vr(hx, 4)}, v{vXR + tt} offset:16384")
        elif self.br == "A":
            wb = B0 + 12
        for k, seg in enumerate(st["segs"]):
            si = SEGI[seg]
            tr = not (self.br == "A" and seg == "V")
            for c in range(2):
                wf = wb + 8 * k + 4 * c
                for j in range(2):
                    rd.append(f"ds_read_b64_tr_b16 {vr(wf + 2 * j, 2)}, v{vTR} offset:{woff(self.br, k) + 3584 * tt + 112 * j + 32 * c}")
                for u in range(2):
                    acc = ACC[si] + 8 * u + 4 * c
                    a_, b_ = (vr(wf, 4), vr(xr[u], 4)) if tr else (vr(xr[u], 4), vr(wf, 4))
                    mm.append(f"v_mfma_f32_16x16x32_bf16 {vr(acc, 4)}, {a_}, {b_}, {'0' if first else vr(acc, 4)}")
                if self.halo and seg != "Q":
                    acc = self.HACC + 8 * si + 4 * c
                    a_, b_ = (vr(wf, 4), vr(hx, 4)) if tr else (vr(hx, 4), vr(wf, 4))
                    mm.append(f"v_mfma_f32_16x16x32_bf16 {vr(acc, 4)}, {a_}, {b_}, {'0' if first else vr(acc, 4)}")
        if OPT["no_comp"] == 1:
            return [], []
        if OPT["no_comp"] == 2:
            return rd, []
        if OPT["no_comp"] == 3:
            return [], mm
        return rd, mm

    def run_loop(self, hooks):
        E = self.E
        SS = A_SS
        nacc = list(range(ACC[0], ACC[0] + 48)) + (list(range(self.HACC, self.HACC + 16)) if self.halo else [])
        for r in nacc:
            E(f"v_mov_b32 v{r}, 0")
        B1 = self.buf0 + self.bufsz
        for r in range(B1, B1 + self.bufsz):
            E(f"v_mov_b32 v{r}, 0")
        E(f"s_mov_b32 s{sLP}, 0")
        E(f"s_mov_b32 s{sLD}, 0")
        rd0, mm0 = self.parts(1, 0, 0)
        rd1, mm1 = self.parts(1, 1, 1)
        L = newlabel("gl")
        def body(real):
            nlead = OPT["lead"]
            E(mm1[:nlead])
            for st_, fn in hooks.items():
                Lh = newlabel("gh")
                E(f"s_cmp_lg_u32 s{sLP}, {st_}")
                E(f"s_cbranch_scc1 {Lh}")
                sv_l, sv_v = list(E.lgq), list(E.vmq)
                hz = (dict(E.w_mfma), dict(E.mfma_dst_range), dict(E.r_mfmaC), dict(E.w_valu))
                p0 = E.pos
                fn(E)
                E.wait(lgkm=0)
                E.flush_haz()
                E.out.append(Lh + ":")
                E.lgq, E.vmq = sv_l, sv_v
                E.w_mfma, E.mfma_dst_range, E.r_mfmaC, E.w_valu = hz
                E.pos = p0
            E.barrier(lgkm0=False)
            for r in (vXR, vXR + 1, vTR):
                E(f"v_add_u32 v{r}, s{sLD}, v{r}")
            E(interleave_front(mm1[nlead:], rd0))
            E(f"s_add_u32 s{sLP}, s{sLP}, 1")
            E(f"s_mov_b32 s{sLD}, {SS}")
            E(f"s_cmp_eq_u32 s{sLP}, 4")
            E(f"s_cselect_b32 s{sLD}, {(-3 * SS) & 0xffffffff:#x}, s{sLD}")
            E(interleave_front(mm0, rd1))
            E(f"s_cmp_lt_u32 s{sLP}, 7")
            E(f"s_cbranch_scc1 {L}")
        E.flush_haz()
        n0, i0 = len(E.out), E.nins
        body(False); body(False)
        del E.out[n0:]; E.nins = i0
        st0 = [sorted(e["dst"]) for e in E.lgq]
        E.out.append(L + ":")
        body(True)
        assert st0 == [sorted(e["dst"]) for e in E.lgq], "loop tracker state is not a fixpoint"
        E(mm1)

    def run(self, s0, s1):
        E = self.E
        prev = []
        for ks in range(2 * s0, 2 * s1 + 2):
            s, tt = divmod(ks, 2)
            pre = []
            if tt == 0:
                nlead = min(OPT["lead"], len(prev))
                E(prev[:nlead]); prev = prev[nlead:]
                if self.prebar:
                    self.prebar(E, s)
                E.barrier(lgkm0=False)
                self.nbar += 1
                if self.nbar <= 14:
                    stamp(E, self.nbar, fine=True)
                if OPT["stamps"] and OPT["fine"] and self.nbar in (2, 7):
                    E(f"s_memtime {sr(sSTAMP + 2 * (12 if self.nbar == 2 else 13), 2)}")
                d = self.stages[s]["base"] - self.cur_base
                self.cur_base = self.stages[s]["base"]
                for r in (vXR, vXR + 1, vTR):
                    E(vadd_imm(r, d))
            rd, mm = self.parts(s, tt, ks % 2)
            if prev:
                E(interleave_front(prev, rd))
            else:
                E(rd)
            prev = mm
        E(prev)

vL2E = 162
ONES = 164
def phi_path(si, outreg, tmps, WP):
    streams = []
    for u in range(2):
        T = tmps[u]
        P = ACC[si] + 8 * u
        op, pk, Ep, Em = T, T, P, T + 4
        mx, mn, mx1, mn1 = T + 12, T + 13, T + 14, T + 15
        t = T
        O = outreg + 8 * u
        o = []
        o += pack_op(P, op)
        for ft in range(2):
            o.append(f"v_mfma_f32_16x16x32_bf16 {vr(P + 4 * ft, 4)}, {vr(WP + 4 * ft, 4)}, {vr(op, 4)}, 0")
        o += round_pairs(P, P, 8, pk)
        o.append(f"v_max3_f32 v{mx}, v{P}, v{P+1}, v{P+2}")
        o.append(f"v_min3_f32 v{mn}, v{P}, v{P+1}, v{P+2}")
        o.append(f"v_max3_f32 v{mx}, v{mx}, v{P+3}, v{P+4}")
        o.append(f"v_min3_f32 v{mn}, v{mn}, v{P+3}, v{P+4}")
        o.append(f"v_max3_f32 v{mx}, v{mx}, v{P+5}, v{P+6}")
        o.append(f"v_min3_f32 v{mn}, v{mn}, v{P+5}, v{P+6}")
        o.append(f"v_max_f32 v{mx}, v{mx}, v{P+7}")
        o.append(f"v_max_f32 v{mn}, -v{mn}, -v{P+7}")
        o += dual_reduce(mx, mn, t, "v_max_f32")
        o.append(f"v_mul_f32 v{mx}, s{sL2E}, v{mx}")
        o.append(f"v_mul_f32 v{mn}, s{sL2E}, v{mn}")
        o.append(f"v_add_f32 v{mx1}, v{mx}, v{vPADB}")
        o.append(f"v_add_f32 v{mn1}, v{mn}, v{vPADB}")
        for i in (range(8) if not OPT["pkfma"] else []):
            o.append(f"v_fma_f32 v{Em+i}, -v{P+i}, s{sL2E}, -v{mn if i < 4 else mn1}")
            o.append(f"v_fma_f32 v{Ep+i}, v{P+i}, s{sL2E}, -v{mx if i < 4 else mx1}")
        for i in (range(0, 8, 2) if OPT["pkfma"] else []):
            mm_ = vr(mx if i < 4 else mx1, 2)
            if OPT["pkfma"] == 2:
                o.append(f"v_pk_fma_f32 {vr(Em+i, 2)}, {vr(P+i, 2)}, {vr(vL2E, 2)}, {mm_} op_sel:[0,0,1] op_sel_hi:[1,1,1] neg_lo:[1,0,1] neg_hi:[1,0,1]")
                o.append(f"v_pk_fma_f32 {vr(Ep+i, 2)}, {vr(P+i, 2)}, {vr(vL2E, 2)}, {mm_} op_sel_hi:[1,1,0] neg_lo:[0,0,1] neg_hi:[0,0,1]")
                continue
            o.append(f"v_pk_fma_f32 {vr(Em+i, 2)}, {vr(P+i, 2)}, {sr(sL2E, 2)}, {mm_} op_sel:[0,0,1] op_sel_hi:[1,0,1] neg_lo:[1,0,1] neg_hi:[1,0,1]")
            o.append(f"v_pk_fma_f32 {vr(Ep+i, 2)}, {vr(P+i, 2)}, {sr(sL2E, 2)}, {mm_} op_sel_hi:[1,0,0] neg_lo:[0,0,1] neg_hi:[0,0,1]")
        for i in range(8):
            o.append(f"v_exp_f32 v{Ep+i}, v{Ep+i}")
            o.append(f"v_exp_f32 v{Em+i}, v{Em+i}")
        if OPT["mfsum"]:
            for i in range(4):
                o.append(f"v_cvt_pk_bf16_f32 v{O + i}, v{Ep + 2 * i}, v{Ep + 2 * i + 1}")
                o.append(f"v_cvt_pk_bf16_f32 v{O + 4 + i}, v{Em + 2 * i}, v{Em + 2 * i + 1}")
            SP, SM = T, T + 12
            o.append(f"v_mfma_f32_16x16x32_bf16 {vr(SP, 4)}, {vr(ONES, 4)}, {vr(O, 4)}, 0")
            o.append(f"v_mfma_f32_16x16x32_bf16 {vr(SM, 4)}, {vr(ONES, 4)}, {vr(O + 4, 4)}, 0")
            sp, sm = SP, SM
        else:
            sp, sm = mx1, mn1
            o.append(f"v_add_f32 v{sp}, v{Ep}, v{Ep+1}")
            o.append(f"v_add_f32 v{sm}, v{Em}, v{Em+1}")
            for i in range(2, 8):
                o.append(f"v_add_f32 v{sp}, v{sp}, v{Ep+i}")
                o.append(f"v_add_f32 v{sm}, v{sm}, v{Em+i}")
            o += dual_reduce(sp, sm, t, "v_add_f32")
        o.append(f"v_rcp_f32 v{sp}, v{sp}")
        o.append(f"v_rcp_f32 v{sm}, v{sm}")
        for i in range(8):
            o.append(f"v_mul_f32 v{Ep+i}, v{Ep+i}, v{sp}")
            o.append(f"v_mul_f32 v{Em+i}, v{Em+i}, v{sm}")
        for i in range(4):
            o.append(f"v_cvt_pk_bf16_f32 v{O + i}, v{Ep + 2 * i}, v{Ep + 2 * i + 1}")
            o.append(f"v_cvt_pk_bf16_f32 v{O + 4 + i}, v{Em + 2 * i}, v{Em + 2 * i + 1}")
        streams.append(o)
    k = OPT["stag"]
    if k:
        a_, b_ = streams
        head = interleave(a_[:8], b_[:8]); a_, b_ = a_[8:], b_[8:]
        return head + a_[:k] + interleave(a_[k:], b_[:len(b_) - k]) + b_[len(b_) - k:]
    return interleave(streams[0], streams[1])

def cons_B(E):
    WP, PHI, BUF = 64, 72, 88
    srds(E); srds2(E)
    warm_up(E, ["B", "P3"])
    cons_setup(E, "B")
    if OPT["sbar"]:
        E.barrier()
    if OPT["pf"] and not OPT["pfA"]:
        prefetch(E)
    stamps_init(E)
    ones = PHI
    for i in range(4):
        E(f"v_mov_b32 v{ones + i}, -1")
        E(f"v_mov_b32 v{ONES + i}, 0x3f803f80")
    E(f"v_mov_b32 v{vL2E}, s{sL2E}"); E(f"v_mov_b32 v{vL2E + 1}, s{sL2E}")
    vKV = 14
    E(f"s_lshl_b32 s{sT0}, s{sHP}, 4")
    E(f"s_add_u32 s{sT0}, s{sT0}, s{sRB}")
    E(f"s_lshl_b32 s{sT0}, s{sT0}, 3")
    E(f"s_add_u32 s{sT0}, s{sT0}, s{sWV}")
    E(f"s_lshl_b32 s{sT0}, s{sT0}, 10")
    E(f"s_add_u32 s{sT0}, s{sT0}, {WS_KVP}")
    E(f"v_add_u32 v{vKV}, s{sT0}, v{vL16B}")
    E(f"v_mov_b32 v{vPADB}, 0")
    E(f"v_mov_b32 v{T0}, 0x7149f2ca")
    E(f"v_cndmask_b32 v{vPADB}, v{vPADB}, v{T0}, {sr(sG3, 2)}")
    E(f"s_lshl_b32 s{sT2}, s{sRG}, 5")
    E(f"v_add_u32 v{vSL}, s{sT2}, v{vL16}")
    E(f"v_mul_u32_u24 v{vA0}, {PHI_STRIDE}, v{vSL}")
    E(f"v_lshl_add_u32 v{vA0}, v{vG}, 3, v{vA0}")
    E(f"s_lshl_b32 s{sT2}, s{sHH}, 7")
    E(f"v_add_u32 v{vA0}, s{sT2}, v{vA0}")
    E(f"v_mul_u32_u24 v{vA1}, {V_STRIDE}, v{vSL}")
    E(f"v_lshl_add_u32 v{vA1}, v{vG}, 3, v{vA1}")
    E(f"s_mul_i32 s{sT0}, s{sHH}, {VB[1] - VB[0]}")
    E(f"s_add_u32 s{sT0}, s{sT0}, {VB[0]}")
    E(f"v_add_u32 v{vA1}, s{sT0}, v{vA1}")
    t0, t1 = T0, T0 + 1
    E(f"v_and_b32 v{t0}, 1, v{vG}")
    E(f"v_lshlrev_b32 v{t0}, 4, v{t0}")
    E(f"v_bfe_u32 v{t1}, v{vLANE}, 2, 2")
    E(f"v_lshl_add_u32 v{t0}, v{t1}, 2, v{t0}")
    E(f"v_lshrrev_b32 v{t1}, 1, v{vG}")
    E(f"v_lshl_add_u32 v{t0}, v{t1}, 1, v{t0}")
    E(f"v_and_b32 v{t1}, 3, v{vLANE}")
    E(f"v_lshlrev_b32 v{t1}, 3, v{t1}")
    E(f"s_lshr_b32 s{sT0}, s{sWV}, 1")
    E(f"s_lshl_b32 s{sT0}, s{sT0}, 6")
    E(f"v_mul_u32_u24 v{vA2}, {PHI_STRIDE}, v{t0}")
    E(f"v_add3_u32 v{vA2}, v{vA2}, v{t1}, s{sT0}")
    E(f"s_lshr_b32 s{sT0}, s{sWV}, 2")
    E(f"s_mul_i32 s{sT0}, s{sT0}, {VB[1] - VB[0]}")
    E(f"s_add_u32 s{sT0}, s{sT0}, {VB[0]}")
    E(f"s_and_b32 s{sT1}, s{sWV}, 1")
    E(f"s_lshl_b32 s{sT1}, s{sT1}, 5")
    E(f"s_add_u32 s{sT0}, s{sT0}, s{sT1}")
    E(f"v_mul_u32_u24 v{vA3}, {V_STRIDE}, v{t0}")
    E(f"v_add3_u32 v{vA3}, v{vA3}, v{t1}, s{sT0}")
    w1, w2 = T0 + 8, T0 + 9
    E(f"v_bfe_u32 v{t0}, v{vLANE}, 2, 2")
    E(f"v_lshl_add_u32 v{t0}, v{vG}, 2, v{t0}")
    E(f"v_mul_u32_u24 v{t0}, 56, v{t0}")
    E(f"s_mul_i32 s{sT2}, s{sHH}, 1568")
    E(f"s_add_u32 s{sT2}, s{sT2}, {B_WPH}")
    E(f"v_add_u32 v{t0}, s{sT2}, v{t0}")
    E(f"v_and_b32 v{t1}, 3, v{vLANE}")
    E(f"v_min_u32 v{w2}, 2, v{t1}")
    E(f"v_lshl_add_u32 v{w1}, v{t1}, 3, v{t0}")
    E(f"v_lshl_add_u32 v{w2}, v{w2}, 3, v{t0}")
    C = Cons(E, "B", B_STAGES, BUF, 32, 2)
    def prebar(E, s):
        if s == 3:
            for ft in range(2):
                for j in range(2):
                    E(f"ds_read_b64_tr_b16 {vr(WP + 4 * ft + 2 * j, 2)}, v{w1 if ft == 0 else w2} offset:{896 * j + 32 * ft}")
            for ft in range(2):
                for i in (2, 3):
                    r = WP + 4 * ft + i
                    E(f"v_cndmask_b32 v{r}, v{r}, 0, {sr(sG3, 2)}")
    C.prebar = prebar
    if OPT["loops"]:
        C.run_loop({3: lambda E: prebar(E, 3)})
    else:
        C.run(0, 6)
    stamp(E, 1)
    Warm.begin(E, "B")
    SCR = BUF + 32
    vp0 = T0
    F = [f"v_mov_b32 v{vp0 + 8}, 0x3f80"]
    for u in range(2):
        vp = vp0 + 4 * u
        F += pack_op(ACC[1] + 8 * u, vp, zero_pad=False)
        F.append(f"v_cndmask_b32 v{vp + 2}, v{vp + 2}, v{vp0 + 8}, {sr(sG3, 2)}")
        F.append(f"v_cndmask_b32 v{vp + 3}, v{vp + 3}, 0, {sr(sG3, 2)}")
    for u in range(2):
        for dt in range(2):
            F.append(f"ds_write_b64 v{vA1}, {vr(vp0 + 4 * u + 2 * dt, 2)} offset:{16 * V_STRIDE * u + 32 * dt}")
    body = phi_path(0, PHI, [SCR, SCR + 16], WP)
    E(body[:16]); E(F); E(body[16:])
    for u in range(2):
        for sg in range(2):
            for ft in range(2):
                E(f"ds_write_b64 v{vA0}, {vr(PHI + 8 * u + 4 * sg + 2 * ft, 2)} offset:{PHI_BASE + 16 * PHI_STRIDE * u + 64 * sg + 32 * ft}")
    stamp(E, 3)
    E.barrier()
    KA, KB_, KD = ACC[0], SCR, SCR + 16
    for ks in range(4):
        for j in range(2):
            E(f"ds_read_b64_tr_b16 {vr(KB_ + 4 * ks + 2 * j, 2)}, v{vA3} offset:{(32 * ks + j) * V_STRIDE}")
        for ft in range(2):
            for j in range(2):
                E(f"ds_read_b64_tr_b16 {vr(KA + 8 * ks + 4 * ft + 2 * j, 2)}, v{vA2} offset:{PHI_BASE + (32 * ks + j) * PHI_STRIDE + 32 * ft}")
        if ks >= 1:
            for ft in range(2):
                cin = "0" if ks == 1 else vr(KD + 4 * ft, 4)
                E(f"v_mfma_f32_16x16x32_bf16 {vr(KD + 4 * ft, 4)}, {vr(KA + 8 * (ks - 1) + 4 * ft, 4)}, {vr(KB_ + 4 * (ks - 1), 4)}, {cin}")
    for ft in range(2):
        E(f"v_mfma_f32_16x16x32_bf16 {vr(KD + 4 * ft, 4)}, {vr(KA + 24 + 4 * ft, 4)}, {vr(KB_ + 12, 4)}, {vr(KD + 4 * ft, 4)}")
    kp = T0
    E(pack_op(KD, kp, zero_pad=False))
    for i in range(4):
        E(f"v_min_u32 v{kp + i}, -2, v{kp + i}")
    E(f"buffer_store_dwordx4 {vr(kp, 4)}, v{vKV}, {sr(SWS, 4)}, 0 offen sc1")
    stamp(E, 4)
    E.barrier()
    G = BUF
    E(f"s_lshl_b32 s{sT0}, s{sHP}, 17")
    E(f"s_lshl_b32 s{sT1}, s{sWV}, 10")
    E(f"s_add_u32 s{sT0}, s{sT0}, s{sT1}")
    E(f"s_add_u32 s{sT0}, s{sT0}, {WS_KVP}")
    E(f"v_add_u32 v{vA1}, s{sT0}, v{vL16B}")
    loads = []
    for p in range(16):
        loads.append(f"s_mov_b32 s{sT0}, {8192 * p}")
        loads.append(f"buffer_load_dwordx4 {vr(G + 4 * p, 4)}, v{vA1}, {sr(SWS, 4)}, s{sT0} offen sc1")
    body = phi_path(2, PHI, [ACC[0], ACC[1]], WP)
    h = len(body) * OPT["gat"] // 100
    E(body[:h])
    E.barrier()
    stamp(E, 5)
    E(loads)
    E(body[h:])
    E(p3_setup(E))
    stamp(E, 6)
    SEL = T0 + 2
    SUM = ACC[0]
    t0_, t1_ = ACC[0] + 8, ACC[0] + 9
    E(f"v_lshrrev_b32 v{t0_}, 2, v{vL16}")
    E(f"v_cmp_eq_u32 vcc, v{t0_}, v{vG}")
    E(f"v_and_b32 v{t0_}, 1, v{vL16}")
    E(f"v_lshlrev_b32 v{t0_}, 4, v{t0_}")
    E(f"v_mov_b32 v{t1_}, 0x3f80")
    E(f"v_lshlrev_b32 v{t0_}, v{t0_}, v{t1_}")
    E(f"v_cndmask_b32 v{t0_}, 0, v{t0_}, vcc")
    E(f"v_and_b32 v{t1_}, 2, v{vL16}")
    E(f"v_cmp_eq_u32 vcc, 0, v{t1_}")
    for r in (SEL, SEL + 1, SEL + 4, SEL + 5):
        E(f"v_mov_b32 v{r}, 0")
    E(f"v_cndmask_b32 v{SEL + 2}, 0, v{t0_}, vcc")
    E(f"v_cndmask_b32 v{SEL + 3}, v{t0_}, 0, vcc")
    L = newlabel("kv"); Lc = newlabel("kvc"); Ld = newlabel("kvd")
    E(f"s_mov_b32 s{sSPIN}, 0")
    saved = list(E.vmq)
    E.flush_haz()
    E(f"s_branch {Lc}")
    E.label(L)
    E.vmq = []
    E(loads)
    E.label(Lc)
    chk = T0
    for p in range(16):
        g4 = G + 4 * p
        E(f"v_mfma_f32_16x16x32_bf16 {vr(SUM, 4)}, {vr(SEL + 2, 4)}, {vr(g4, 4)}, {'0' if p == 0 else vr(SUM, 4)}")
        E(f"v_mfma_f32_16x16x32_bf16 {vr(SUM + 4, 4)}, {vr(SEL, 4)}, {vr(g4, 4)}, {'0' if p == 0 else vr(SUM + 4, 4)}")
        if p == 0:
            E(f"v_max_u32 v{chk}, v{g4}, v{g4 + 1}")
        else:
            E(f"v_max3_u32 v{chk}, v{chk}, v{g4}, v{g4 + 1}")
        E(f"v_max3_u32 v{chk}, v{chk}, v{g4 + 2}, v{g4 + 3}")
    E(f"v_cmp_eq_u32 vcc, -1, v{chk}")
    spin_tail(E, L, Ld)
    stamp(E, 7)
    kf = ACC[0] + 8
    E(pack_op(SUM, kf, zero_pad=False))
    E(f"s_lshl_b32 s{sT0}, s{sWV}, 10")
    E(f"s_add_u32 s{sT0}, s{sT0}, {KVF}")
    E(f"v_add_u32 v{vA1}, s{sT0}, v{vL16B}")
    E(f"ds_write_b128 v{vA1}, {vr(kf, 4)}")
    E(f"s_lshl_b32 s{sT0}, s{sHH}, 12")
    E(f"s_add_u32 s{sT0}, s{sT0}, {KVF}")
    E(f"v_add_u32 v{vA1}, s{sT0}, v{vL16B}")
    E(f"v_lshlrev_b32 v{vA2}, 8, v{vG}")
    E(f"s_add_u32 s{sT0}, s{sT0}, {12 * 16}")
    E(f"v_add_u32 v{vA2}, s{sT0}, v{vA2}")
    E.barrier()
    KF, ZF, NUM = BUF, BUF + 16, BUF + 24
    for w in range(4):
        E(f"ds_read_b128 {vr(KF + 4 * w, 4)}, v{vA1} offset:{1024 * w}")
    for sg in range(2):
        E(f"ds_read_b128 {vr(ZF + 4 * sg, 4)}, v{vA2} offset:{1024 * (2 * sg + 1)}")
    pre_a = p3_loads(0)[0]
    for u in range(2):
        for dt in range(2):
            for sg in range(2):
                d = NUM + 12 * u + 4 * dt
                E(f"v_mfma_f32_16x16x32_bf16 {vr(d, 4)}, {vr(KF + 4 * (2 * sg + dt), 4)}, {vr(PHI + 8 * u + 4 * sg, 4)}, {'0' if sg == 0 else vr(d, 4)}")
        for sg in range(2):
            d = NUM + 12 * u + 8
            E(f"v_mfma_f32_16x16x32_bf16 {vr(d, 4)}, {vr(ZF + 4 * sg, 4)}, {vr(PHI + 8 * u + 4 * sg, 4)}, {'0' if sg == 0 else vr(d, 4)}")
    if OPT["prea"] == 0:
        E(pre_a)
    st = []
    for u in range(2):
        n = NUM + 12 * u; dn = n + 8
        t = BUF + 48 + 8 * u
        o = []
        o += round_pairs(n, n, 8, t)
        o.append(f"v_cvt_pk_bf16_f32 v{t + 4}, v{dn}, v{dn}")
        o.append(f"v_lshlrev_b32 v{dn}, 16, v{t + 4}")
        o.append(f"v_add_f32 v{dn}, 0x358637bd, v{dn}")
        o.append(f"v_cvt_pk_bf16_f32 v{t + 4}, v{dn}, v{dn}")
        o.append(f"v_lshlrev_b32 v{dn}, 16, v{t + 4}")
        o.append(f"v_rcp_f32 v{dn}, v{dn}")
        for i in range(8):
            o.append(f"v_mul_f32 v{n + i}, v{n + i}, v{dn}")
        o += pack_op(n, t)
        for i in range(4):
            o.append(f"v_min_u32 v{t + i}, -2, v{t + i}")
        o.append(ostore(t, u))
        st.append(o)
    E(interleave(st[0], st[1]))
    if OPT["prea"] == 1:
        E(pre_a)
    stamp(E, 8)
    Warm.end(E)

def att_masks():
    ms = []
    for tile in range(2):
        for i in range(4):
            m = 0
            for lane in range(64):
                q, g = lane & 15, lane >> 4
                d = q - (4 * g + i) + (16 if tile == 0 else 0)
                if 0 <= d <= 14 and d % 2 == 0:
                    m |= 1 << lane
            ms.append(m)
    return ms

def cons_A(E, halo):
    HACC, BUF = 64, 80
    srds(E); srds2(E)
    warm_up(E, ["P3"])
    cons_setup(E, "A")
    ones = T0 + 4
    for i in range(4):
        E(f"v_mov_b32 v{ones + i}, -1")
    E(f"s_lshl_b32 s{sT0}, s{sHP}, 4")
    E(f"s_add_u32 s{sT0}, s{sT0}, s{sRB}")
    E(f"s_lshl_b32 s{sT0}, s{sT0}, 3")
    E(f"s_add_u32 s{sT0}, s{sT0}, s{sWV}")
    E(f"s_lshl_b32 s{sT0}, s{sT0}, 10")
    E(f"s_add_u32 s{sT0}, s{sT0}, {WS_KVP}")
    E(f"v_add_u32 v{vA0}, s{sT0}, v{vL16B}")
    E(f"buffer_store_dwordx4 {vr(ones, 4)}, v{vA0}, {sr(SWS, 4)}, 0 offen sc1")
    if OPT["sbar"]:
        E.barrier()
    if OPT["pf"] and not OPT["pfA"]:
        prefetch(E)
    elif OPT["pf"]:
        E(f"s_and_b32 s{sMP}, s{sJ}, 15")
        prefetch(E, sMP)
        E(f"s_add_u32 s{sMP}, s{sMP}, 16")
        prefetch(E, sMP)
    stamps_init(E)
    ms = att_masks()
    for i, m in enumerate(ms):
        E(f"s_mov_b32 s{sMASK + 2 * i}, {m & 0xffffffff:#x}")
        E(f"s_mov_b32 s{sMASK + 2 * i + 1}, {m >> 32:#x}")
    E(f"s_lshl_b32 s{sT0}, s{sWV}, 11")
    E(f"s_add_u32 s{sT0}, s{sT0}, {A_EXCH}")
    E(f"v_add_u32 v{vA1}, s{sT0}, v{vL16B}")
    E(f"v_lshl_add_u32 v{vA2}, v{vLANE}, 3, s{sT0}")
    C = Cons(E, "A", A_STAGES, BUF, 36, 2, halo=halo, HACC=HACC)
    def fl(E, base):
        Lf = newlabel("fs")
        E(f"s_cmp_lg_u32 s{sWV}, 0")
        E.flush_haz()
        E(f"s_cbranch_scc1 {Lf}")
        flag_store(E, 1, T0, T0 + 1, base)
        E.label(Lf)
    def prebar(E, s):
        if s == OPT["fk"]:
            E.force_wait(vm=0 if OPT["fk"] else 1)
        if s == OPT["fk"] + 1 and halo:
            fl(E, 0)
        if s in (1, 2):
            E(f"s_mov_b32 s{sT0}, {WS_OB + 16384 * (s - 1)}")
            E(f"buffer_store_dwordx4 {vr(ones, 4)}, v{vOOFF}, {sr(SWS, 4)}, s{sT0} offen sc1")
            E(ostore(ones, s - 1))
        if s == 3 and OPT["pf2"]:
            sv = list(E.vmq); prefetch2(E, T0, T0 + 1, 15); E.vmq = sv
        if s == OPT["fo"]:
            E.force_wait(vm=0)
        if s == OPT["fo"] + 1 and halo:
            fl(E, 128)
    C.prebar = prebar
    if OPT["loops"]:
        C.run_loop({k: (lambda E, k=k: prebar(E, k)) for k in ((0, 1, 2, 5, 6) if halo else (0, 1, 2, 5))})
    else:
        C.run(0, 6)
    stamp(E, 1)
    KT, VV = BUF, BUF + 12
    for u in range(2):
        E(pack_op(ACC[0] + 8 * u, KT + 4 + 4 * u))
        for dt in range(2):
            a = ACC[1] + 8 * u + 4 * dt
            d = VV + 8 * u + 4 * dt + 2
            E(f"v_cvt_pk_bf16_f32 v{d}, v{a}, v{a + 1}")
            E(f"v_cvt_pk_bf16_f32 v{d + 1}, v{a + 2}, v{a + 3}")
            if u == 0:
                E(f"v_mov_b32 v{d + 6}, v{d}")
                E(f"v_mov_b32 v{d + 7}, v{d + 1}")
    E.barrier()
    E(f"ds_write_b128 v{vA1}, {vr(KT + 8, 4)} offset:4096")
    for dt in range(2):
        E(f"ds_write_b64 v{vA2}, {vr(VV + 8 + 4 * dt + 2, 2)} offset:{4096 + 1024 + 512 * dt}")
    if halo:
        E(pack_op(HACC, KT))
        for dt in range(2):
            a = HACC + 8 + 4 * dt
            d = VV + 4 * dt
            E(f"v_cvt_pk_bf16_f32 v{d}, v{a}, v{a + 1}")
            E(f"v_cvt_pk_bf16_f32 v{d + 1}, v{a + 2}, v{a + 3}")
        E(f"s_cmp_eq_u32 s{sRB}, 0")
        E(f"s_cselect_b64 {sr(sMP, 2)}, 0, -1")
    T = BUF + 28
    NEG = T0 + 8
    E(f"v_mov_b32 v{NEG}, 0xf149f2ca")
    MX = [T0, T0 + 1]; SM = [T0 + 2, T0 + 3]; tt = T0 + 4
    pre0, pre, mid, post = [], [], [], []
    for u in range(2):
        B_ = T + 20 * u
        qo, L, pk, P = B_, B_ + 4, B_ + 12, B_ + 16
        O = ACC[1] + 8 * u
        pre0 += pack_op(ACC[2] + 8 * u, qo)
        o = []
        o.append(f"v_mfma_f32_16x16x32_bf16 {vr(L + 4, 4)}, {vr(KT + 4 * u + 4, 4)}, {vr(qo, 4)}, 0")
        o.append(f"v_mfma_f32_16x16x32_bf16 {vr(L, 4)}, {vr(KT + 4 * u, 4)}, {vr(qo, 4)}, 0")
        o += round_pairs(L, L, 8, pk)
        for i in range(8):
            o.append(f"v_mul_f32 v{L + i}, s{sSCL}, v{L + i}")
        o += round_pairs(L, L, 8, pk)
        for i in range(8):
            o.append(f"v_cndmask_b32 v{L + i}, v{NEG}, v{L + i}, {sr(sMASK + 2 * i, 2)}")
        if halo and u == 0:
            for i in range(4):
                o.append(f"v_cndmask_b32 v{L + i}, v{NEG}, v{L + i}, {sr(sMP, 2)}")
        mx = MX[u]
        o.append(f"v_max3_f32 v{mx}, v{L}, v{L+1}, v{L+2}")
        o.append(f"v_max3_f32 v{mx}, v{mx}, v{L+3}, v{L+4}")
        o.append(f"v_max3_f32 v{mx}, v{mx}, v{L+5}, v{L+6}")
        o.append(f"v_max_f32 v{mx}, v{mx}, v{L+7}")
        pre.append(o)
        o = []
        o.append(f"v_mul_f32 v{mx}, s{sL2E}, v{mx}")
        for i in range(8):
            o.append(f"v_fma_f32 v{L + i}, v{L + i}, s{sL2E}, -v{mx}")
        for i in range(8):
            o.append(f"v_exp_f32 v{L + i}, v{L + i}")
        sm = SM[u]
        o.append(f"v_add_f32 v{sm}, v{L}, v{L + 1}")
        for i in range(2, 8):
            o.append(f"v_add_f32 v{sm}, v{sm}, v{L + i}")
        mid.append(o)
        o = []
        o.append(f"v_rcp_f32 v{sm}, v{sm}")
        for i in range(8):
            o.append(f"v_mul_f32 v{L + i}, v{L + i}, v{sm}")
        for i in range(4):
            o.append(f"v_cvt_pk_bf16_f32 v{P + i}, v{L + 2 * i}, v{L + 2 * i + 1}")
        for dt in range(2):
            o.append(f"v_mfma_f32_16x16x32_bf16 {vr(O + 4 * dt, 4)}, {vr(VV + 8 * u + 4 * dt, 4)}, {vr(P, 4)}, 0")
        o += pack_op(O, qo)
        for i in range(4):
            o.append(f"v_min_u32 v{qo + i}, -2, v{qo + i}")
        o.append(ostore(qo, u))
        post.append(o)
    E(pre0)
    E.barrier()
    if not halo:
        E(f"ds_read_b128 {vr(KT, 4)}, v{vA1}")
        for dt in range(2):
            E(f"ds_read_b64 {vr(VV + 4 * dt, 2)}, v{vA2} offset:{1024 + 512 * dt}")
    E(interleave(pre[1], pre[0]))
    E(dual_reduce(MX[0], MX[1], tt, "v_max_f32"))
    E(interleave(mid[0], mid[1]))
    E(dual_reduce(SM[0], SM[1], tt, "v_add_f32"))
    E(interleave(post[0], post[1]))
    stamp(E, 8)
    E.barrier()
    E(p3_setup(E))

def loader(E, br, last):
    stages = A_STAGES if br == "A" else B_STAGES
    vX, vW0, vW1, vH0, vH1, vWO, vGX, vGF, vGOFF = 4, 5, 6, 7, 8, 9, 10, 12, 13
    t0, t1, t2, t3 = T0, T0 + 1, T0 + 2, T0 + 3
    sL = sRG
    if OPT["prio"]:
        E("s_setprio 3")
    E(f"s_sub_u32 s{sL}, s{sWV}, 8")
    E(f"v_lshrrev_b32 v{t0}, 3, v{vLANE}")
    E(f"v_bfe_u32 v{t1}, v{vLANE}, 4, 2")
    E(f"s_lshl_b32 s{sT1}, s{sHH}, 2")
    E(f"v_or_b32 v{t1}, s{sT1}, v{t1}")
    E(f"v_and_b32 v{t2}, 7, v{vLANE}")
    E(f"v_xor_b32 v{t1}, v{t1}, v{t2}")
    E(f"s_lshl_b32 s{sT0}, s{sRB}, 7")
    E(f"s_lshl_b32 s{sT1}, s{sL}, 3")
    E(f"s_add_u32 s{sT0}, s{sT0}, s{sT1}")
    E(f"v_add_u32 v{t0}, s{sT0}, v{t0}")
    E(f"v_mul_u32_u24 v{vX}, 896, v{t0}")
    E(f"v_lshl_add_u32 v{vX}, v{t1}, 4, v{vX}")
    for pi, vw in enumerate((vW0, vW1)):
        if last and pi == 1:
            break
        E(f"s_lshl_b32 s{sT1}, s{sL}, 6")
        if pi:
            E(f"s_add_u32 s{sT1}, s{sT1}, 256")
        E(f"v_add_u32 v{t0}, s{sT1}, v{vLANE}")
        E(f"v_mul_u32_u24 v{t1}, 9363, v{t0}")
        E(f"v_lshrrev_b32 v{t1}, 16, v{t1}")
        E(f"v_mul_u32_u24 v{t2}, 7, v{t1}")
        E(f"v_sub_u32 v{t2}, v{t0}, v{t2}")
        E(f"v_and_b32 v{t0}, 0x38, v{t1}")
        E(f"v_and_b32 v{t3}, 1, v{t1}")
        E(f"v_lshl_add_u32 v{t0}, v{t3}, 2, v{t0}")
        E(f"v_bfe_u32 v{t3}, v{t1}, 1, 2")
        E(f"v_add_u32 v{t0}, v{t0}, v{t3}")
        E(f"v_mul_u32_u24 v{vw}, 2688, v{t0}")
        E(f"v_lshl_add_u32 v{vw}, v{t2}, 4, v{vw}")
        E(f"s_mul_i32 s{sT1}, s{sHP}, 112")
        E(f"v_add_u32 v{vw}, s{sT1}, v{vw}")
    E(f"s_lshl_b32 s{sM0}, s{sL}, 10")
    if last and br == "A":
        E(f"v_subrev_u32 v{vH1}, {32 * 896}, v{vX}")
        E(f"v_xor_b32 v{vH0}, 64, v{vX}")
        E(f"v_subrev_u32 v{vH0}, {40 * 896}, v{vH0}")
    srds(E)
    lstamp(E, 1)
    def issue(s):
        if OPT["no_load"]:
            return
        st = stages[s]; m = st["m"]; base = st["base"]
        for i in range(4):
            E(f"s_add_u32 m0, s{sM0}, {base + 4096 * i}")
            E(f"s_mov_b32 s{sT0}, {128 * m + 28672 * i}")
            E(f"buffer_load_dwordx4 v{vX}, {sr(SX, 4)}, s{sT0} offen lds", tag=f"S{s}")
        for k, seg in enumerate(st["segs"]):
            for pi, vw in enumerate((vW0, vW1)):
                if last and pi == 1:
                    break
                E(f"s_add_u32 m0, s{sM0}, {base + woff(br, k) + 4096 * pi}")
                E(f"s_mov_b32 s{sT0}, {m * 64 * 2688 + SEGCOL[seg] * 896}")
                E(f"buffer_load_dwordx4 v{vw}, {sr(SW, 4)}, s{sT0} offen lds", tag=f"S{s}")
        if last and br == "A":
            for n2, vh in enumerate((vH0, vH1)):
                E(f"s_mov_b32 m0, {base + 16384 + 1024 * n2}")
                E(f"s_mov_b32 s{sT0}, {128 * m}")
                E(f"buffer_load_dwordx4 v{vh}, {sr(SX, 4)}, s{sT0} offen lds", tag=f"S{s}")
    nxt = 0
    issue(0); nxt = 1
    if OPT["sbar"] == 1:
        E.barrier()
    lstamp(E, 2)
    srds2(E)
    stamps_init(E)
    if last:
        if br == "B":
            E(f"s_mul_i32 s{sT1}, s{sHP}, 3136")
            E(f"v_add_u32 v{t0}, s{sT1}, v{vL16B}")
            for i in range(4):
                E(f"s_mov_b32 m0, {B_WPH + 1024 * i}")
                E(f"s_mov_b32 s{sT0}, {1024 * i}")
                E(f"buffer_load_dwordx4 v{t0}, {sr(SAUX, 4)}, s{sT0} offen lds", tag="S1")
        else:
            E(f"s_mov_b32 m0, {A_GATE}")
            E(f"buffer_load_dwordx4 v{vL16B}, {sr(SAUX, 4)}, 0 offen lds", tag="S0")
    while nxt < OPT["ahead"]:
        issue(nxt); nxt += 1
    if OPT["sbar"] == 2:
        E.barrier()
    lstamp(E, 3)
    E(f"v_lshrrev_b32 v{vWO}, 3, v{vLANE}")
    E(f"v_bfe_u32 v{t1}, v{vLANE}, 4, 2")
    E(f"v_lshlrev_b32 v{t1}, 1, v{t1}")
    E(f"v_and_b32 v{t2}, 7, v{vLANE}")
    E(f"v_xor_b32 v{t1}, v{t1}, v{t2}")
    E(f"v_mul_u32_u24 v{vWO}, 896, v{vWO}")
    E(f"v_lshl_add_u32 v{vWO}, v{t1}, 4, v{vWO}")
    E(f"s_lshl_b32 s{sT1}, s{sCT}, 7")
    E(f"s_mul_i32 s{sT2}, s{sL}, {8 * 896}")
    E(f"s_add_u32 s{sT1}, s{sT1}, s{sT2}")
    E(f"s_cmp_ge_u32 s{sJ}, 28")
    E(f"s_cselect_b32 s{sT1}, 0x1000000, s{sT1}")
    E(f"v_add_u32 v{vWO}, s{sT1}, v{vWO}")
    def wo(b2):
        for i in range(14):
            E(f"s_add_u32 m0, s{sM0}, {(WOB_BASE if b2 else WOA_BASE) + i * 4096}")
            E(f"s_mov_b32 s{sT0}, {i * 32 * 896}")
            E(f"buffer_load_dwordx4 v{vWO}, {sr(SWOA if b2 == 0 else SWOB, 4)}, s{sT0} offen lds", tag=f"WO{b2}")
        if last:
            E(f"s_mov_b32 m0, {(WOB_BASE if b2 else WOA_BASE) + 57344}")
            E(f"s_mov_b32 s{sT0}, {448 * 896}")
            E(f"buffer_load_dwordx4 v{vWO}, {sr(SWOA if b2 == 0 else SWOB, 4)}, s{sT0} offen lds", tag=f"WO{b2}")
    gate = last and br == "A"
    if gate:
        E(f"v_lshrrev_b32 v{t0}, 1, v{vL16}")
        E(f"v_xor_b32 v{t0}, v{t0}, v{vG}")
        E(f"v_lshlrev_b32 v{t0}, 4, v{t0}")
        E(f"v_lshl_add_u32 v{t0}, v{vL16}, 7, v{t0}")
        E(f"s_lshl_b32 s{sT0}, s{sHP}, 11")
        E(f"v_add_u32 v{vGX}, s{sT0}, v{t0}")
        E(f"v_xor_b32 v{vGX + 1}, 64, v{vGX}")
        E(f"v_lshlrev_b32 v{vGF}, 4, v{vG}")
        E(f"v_add_u32 v{vGF}, {A_GATE}, v{vGF}")
        E(f"s_lshl_b32 s{sT0}, s{sRB}, 7")
        E(f"s_lshl_b32 s{sT1}, s{sHP}, 4")
        E(f"s_add_u32 s{sT0}, s{sT0}, s{sT1}")
        E(f"s_lshl_b32 s{sT0}, s{sT0}, 2")
        E(f"s_add_u32 s{sT0}, s{sT0}, {WS_G}")
        E(f"v_lshl_add_u32 v{vGOFF}, v{vLANE}, 2, s{sT0}")
        E(f"v_mov_b32 v{t0}, {WS_BYTES}")
        E(f"v_cmp_gt_u32 vcc, 16, v{vLANE}")
        E(f"v_cndmask_b32 v{vGOFF}, v{t0}, v{vGOFF}, vcc")
        E(f"v_mov_b32 v{t1}, -1")
        E(f"buffer_store_dword v{t1}, v{vGOFF}, {sr(SWS, 4)}, 0 offen sc1", tag="GCLR")
    GL, GB = 16, 20
    cur = 0
    cleared = [False]
    def clears():
        on = 40
        for i in range(4):
            E(f"v_mov_b32 v{on + i}, -1")
        E(f"s_lshl_b32 s{sT0}, s{sRB}, 3")
        E(f"s_lshl_b32 s{sT1}, s{sL}, 1")
        E(f"s_add_u32 s{sT0}, s{sT0}, s{sT1}")
        E(f"s_lshl_b32 s{sT0}, s{sT0}, 4")
        E(f"s_lshl_b32 s{sT1}, s{sHP}, 1")
        E(f"s_add_u32 s{sT0}, s{sT0}, s{sT1}")
        E(f"s_lshl_b32 s{sT0}, s{sT0}, 10")
        E(f"s_lshl_b32 s{sT1}, s{sBR}, 21")
        E(f"s_add_u32 s{sT0}, s{sT0}, s{sT1}")
        E(f"v_add_u32 v{t2}, s{sT0}, v{vL16B}")
        E(f"s_mov_b32 s{sT1}, 16384")
        if br == "B":
            E(f"s_lshl_b32 s{sT0}, s{sHP}, 4")
            E(f"s_add_u32 s{sT0}, s{sT0}, s{sRB}")
            E(f"s_lshl_b32 s{sT0}, s{sT0}, 2")
            E(f"s_add_u32 s{sT0}, s{sT0}, s{sL}")
            E(f"s_lshl_b32 s{sT0}, s{sT0}, 11")
            E(f"s_add_u32 s{sT0}, s{sT0}, {WS_KVP}")
            E(f"v_add_u32 v{t3}, s{sT0}, v{vL16B}")
            for i in range(2):
                E(f"buffer_store_dwordx4 {vr(on, 4)}, v{t3}, {sr(SWS, 4)}, 0 offen offset:{1024 * i} sc1", tag="CLR")
        for u in range(2):
            for i in range(2):
                E(f"buffer_store_dwordx4 {vr(on, 4)}, v{t2}, {sr(SWS, 4)}, {'0' if u == 0 else 's' + str(sT1)} offen offset:{1024 * i} sc1", tag="CLR")
    def step(s):
        nonlocal nxt, cur
        E.wait_tag(f"S{s}")
        if s == 0:
            lstamp(E, 4)
        if gate and s == OPT["fo"]:
            E.wait_tag("GCLR")
        E.barrier(lgkm0=True)
        if s == 0:
            lstamp(E, 5)
        if gate:
            d = stages[s]["base"] - cur; cur = stages[s]["base"]
            E(vadd_imm(vGX, d)); E(vadd_imm(vGX + 1, d))
            m = stages[s]["m"]
            for tt in range(2):
                E(f"ds_read_b128 {vr(GB + 8 * tt, 4)}, v{vGX + tt}")
                E(f"ds_read_b128 {vr(GB + 8 * tt + 4, 4)}, v{vGF} offset:{64 * (2 * m + tt)}")
        while nxt < len(stages) and stages[nxt]["after"] <= s and nxt <= s + OPT["ahead"]:
            issue(nxt); nxt += 1
        if gate:
            m = stages[s]["m"]
            for tt in range(2):
                E(f"v_mfma_f32_16x16x32_bf16 {vr(GL, 4)}, {vr(GB + 8 * tt + 4, 4)}, {vr(GB + 8 * tt, 4)}, {'0' if (m == 0 and tt == 0) else vr(GL, 4)}")
    if br == "A":
        for s in range(7):
            step(s)
        if gate:
            g = GL
            E(f"v_cvt_pk_bf16_f32 v{g + 1}, v{g}, v{g}")
            E(f"v_lshlrev_b32 v{g}, 16, v{g + 1}")
            E(f"v_mul_f32 v{g}, s{sL2E}, v{g}")
            E(f"v_exp_f32 v{g}, -v{g}")
            E(f"v_add_f32 v{g}, 1.0, v{g}")
            E(f"v_rcp_f32 v{g}, v{g}")
            E(f"v_cvt_pk_bf16_f32 v{g + 1}, v{g}, v{g}")
            E(f"v_lshlrev_b32 v{g}, 16, v{g + 1}")
            E.wait_tag("GCLR")
            E(f"buffer_store_dword v{g}, v{vGOFF}, {sr(SWS, 4)}, 0 offen sc1")
        E.barrier()
        E.barrier()
        E.barrier()
        wo(0); wo(1)
        if last:
            flags_wait_all(E, t0, t1, 128)
    else:
        for s in range(7):
            step(s)
        if last:
            flags_wait_all(E, t0, t1)
        E.barrier()
        E.barrier()
        wo(0)
        if OPT["wobe"]:
            wo(1)
        if last and OPT["fo"] < 5:
            flags_wait_all(E, t0, t1, 128)
        E.barrier()
        if last and OPT["fo"] >= 5:
            flags_wait_all(E, t0, t1, 128)
        E.barrier()
    E(f"s_cmp_ge_u32 s{sJ}, 28")
    E.flush_haz()
    E("s_cbranch_scc1 L_end")
    E.wait_tag("WO0")
    E.barrier()
    if br == "B" and not OPT["wobe"]:
        wo(1)
    E.force_wait(vm=0)
    E.barrier()
    if OPT["ldst"] and not last:
        Lz = newlabel("ls")
        E(f"s_cmp_lg_u32 s{sWV}, 8")
        E(f"s_cbranch_scc1 {Lz}")
        E.force_wait(vm=0, lgkm=0)
        E(f"s_lshl_b32 s{sT0}, s2, 7")
        E(f"s_add_u32 s{sT0}, s{sT0}, {WS_ST}")
        E(f"v_mov_b32 v20, s{sT0}")
        E("s_mov_b64 exec, 1")
        for i in range(6):
            E(f"v_mov_b32 v22, s{54 + 2 * i}")
            E(f"v_mov_b32 v23, s{54 + 2 * i + 1}")
            E(f"buffer_store_dwordx2 v[22:23], v20, {sr(SWS, 4)}, 0 offen offset:{8 * i}")
            E.force_wait(vm=0)
        E.label(Lz)
    E("s_branch L_end")

def p3_setup(E):
    rt, kh = sP3, sP3 + 1
    t0, t1, t2 = T0 + 8, T0 + 9, T0 + 1
    o = []
    o.append(f"s_and_b32 s{rt}, s{sWV}, 3")
    o.append(f"s_lshr_b32 s{kh}, s{sWV}, 2")
    o.append(f"s_lshl_b32 s{sT2}, s{sT}, 2")
    o.append(f"s_add_u32 s{sT2}, s{sT2}, s{rt}")
    o.append(f"s_lshl_b32 s{sP3 + 2}, s{sT2}, 14")
    o.append(f"s_lshl_b32 s{sP3 + 3}, s{kh}, 13")
    o.append(f"s_add_u32 s{sP3 + 2}, s{sP3 + 2}, s{sP3 + 3}")
    o.append(f"v_add_u32 v{pOF}, s{sP3 + 2}, v{vL16B}")
    o.append(f"s_lshl_b32 s{sT2}, s{sT2}, 4")
    o.append(f"v_add_u32 v{pROW}, s{sT2}, v{vL16}")
    o.append(f"v_bfe_u32 v{t0}, v{vLANE}, 2, 2")
    o.append(f"v_lshl_add_u32 v{t0}, v{vG}, 2, v{t0}")
    o.append(f"v_bfe_u32 v{t1}, v{t0}, 1, 2")
    o.append(f"v_and_b32 v{t2}, 3, v{vLANE}")
    o.append(f"v_lshlrev_b32 v{t2}, 3, v{t2}")
    o.append(f"v_lshl_add_u32 v{t2}, v{t0}, 7, v{t2}")
    o.append(f"s_mul_i32 s{sT2}, s{kh}, 28672")
    o.append(f"s_add_u32 s{sT2}, s{sT2}, {WOA_BASE}")
    o.append(f"v_add_u32 v{t2}, s{sT2}, v{t2}")
    o.append(f"s_lshl_b32 s{sT2}, s{kh}, 1")
    o.append(f"v_xor_b32 v{t1}, s{sT2}, v{t1}")
    for c in range(4):
        o.append(f"v_xor_b32 v{t0}, {c}, v{t1}")
        o.append(f"v_lshl_add_u32 v{pWO + c}, v{t0}, 5, v{t2}")
    o.append(f"v_add_u32 v7, 4096, v{pOF}")
    o.append(f"v_lshlrev_b32 v9, 2, v{pROW}")
    o.append(f"v_add_u32 v9, {WS_G}, v9")
    return o

sP3 = sMASK
pOF, pROW, pWO = 4, 5, 12
def p3_loads(br):
    of = 16 + 32 * br
    loads = [f"s_mov_b32 s{sT2}, {WS_OB if br else 0}"]
    for hl in range(8):
        loads.append(f"buffer_load_dwordx4 {vr(of + 4 * hl, 4)}, v{pOF if hl < 4 else 7}, {sr(SWS, 4)}, s{sT2} offen offset:{1024 * (hl & 3)} sc1")
    regs = list(range(of, of + 32))
    if br == 0:
        loads.append(f"buffer_load_dword v6, v9, {sr(SWS, 4)}, 0 offen sc1")
        regs.append(6)
    return loads, regs

def phase3(E):
    E.label("L_p3")
    E.vmq = []; E.lgq = []
    E(f"s_cmp_ge_u32 s{sJ}, 28")
    E("s_cbranch_scc1 L_fin")
    rt, kh = sP3, sP3 + 1
    vROW, vGV, vWO = pROW, 6, pWO
    vOF0, vOF1, vGA, vXO, vXP, vOUT = pOF, 7, 9, 8, 10, 11
    TMP = 144
    OF, AC, WF = 16, [80, 96], 112
    loads_for = p3_loads
    def gemm(br):
        of = OF + 32 * br
        prev = []
        for hl in range(8):
            wf = WF + 16 * (hl & 1)
            rd = []
            for c in range(4):
                for j in range(2):
                    rd.append(f"ds_read_b64_tr_b16 {vr(wf + 4 * c + 2 * j, 2)}, v{vWO + (c ^ (2 * (hl & 1)))} offset:{3584 * hl + 2048 * j}")
            E(interleave_front(prev, rd) if prev else rd)
            prev = []
            for c in (2, 3, 0, 1):
                acc = AC[br] + 4 * c
                prev.append(f"v_mfma_f32_16x16x32_bf16 {vr(acc, 4)}, {vr(wf + 4 * c, 4)}, {vr(of + 4 * hl, 4)}, {'0' if hl == 0 else vr(acc, 4)}")
        E(prev)
    E.barrier()
    Warm.begin(E, "P3")
    stamp(E, 9)
    la, ra = loads_for(0)
    Lsk = newlabel("p3a")
    E(f"s_cmp_lg_u32 s{sBR}, 0")
    E.flush_haz()
    E(f"s_cbranch_scc1 {Lsk}")
    E(la)
    E.label(Lsk)
    E(f"s_lshl_b32 s{sT0}, s{sWV}, 12")
    E(f"s_add_u32 s{sT0}, s{sT0}, {XB3}")
    E(f"v_add_u32 v{vXO}, s{sT0}, v{vL16B}")
    E(f"s_xor_b32 s{sT0}, s{sWV}, 4")
    E(f"s_lshl_b32 s{sT0}, s{sT0}, 12")
    E(f"s_add_u32 s{sT0}, s{sT0}, {XB3}")
    E(f"v_add_u32 v{vXP}, s{sT0}, v{vL16B}")
    E(f"v_mul_u32_u24 v{vOUT}, 896, v{vROW}")
    E(f"v_lshl_add_u32 v{vOUT}, v{vG}, 3, v{vOUT}")
    E(f"s_lshl_b32 s{sT0}, s{sCT}, 7")
    E(f"s_lshl_b32 s{sT1}, s{kh}, 6")
    E(f"s_add_u32 s{sT0}, s{sT0}, s{sT1}")
    E(f"v_add_u32 v{vOUT}, s{sT0}, v{vOUT}")
    poll_loop(E, la, ra, "o", TMP, pre_issued=True)
    stamp(E, 10)
    if OPT["bearly"]:
        E(loads_for(1)[0])
    gemm(0)
    for i in range(2):
        E(f"ds_write_b128 v{vXO}, {vr(AC[0] + 8 + 4 * i, 4)} offset:{1024 * i}")
    stamp(E, 11)
    lb, rb_ = loads_for(1)
    if not OPT["sent"] and not OPT["bearly"]:
        E(lb)
    for c in range(4):
        E(vadd_imm(vWO + c, WOB_BASE - WOA_BASE))
    E.barrier()
    RA, T1, tp, omg = OF, OF + 8, OF + 16, OF + 24
    for i in range(2):
        E(f"ds_read_b128 {vr(RA + 4 * i, 4)}, v{vXP} offset:{1024 * i}")
    E(f"v_sub_f32 v{omg}, 1.0, v{vGV}")
    if OPT["round_final"]:
        E(f"v_cvt_pk_bf16_f32 v{omg + 1}, v{omg}, v{omg}")
        E(f"v_lshlrev_b32 v{omg}, 16, v{omg + 1}")
    for i in range(8):
        E(f"v_add_f32 v{T1 + i}, v{AC[0] + i}, v{RA + i}")
    if OPT["round_final"]:
        E(round_pairs(T1, T1, 8, tp))
    for i in range(8):
        E(f"v_mul_f32 v{T1 + i}, v{T1 + i}, v{vGV}")
    if OPT["round_final"]:
        E(round_pairs(T1, T1, 8, tp))
    if OPT["sent"]:
        vS = TMP + 2
        E(f"v_and_b32 v{vS}, 7, v{vLANE}")
        E(f"v_lshlrev_b32 v{vS}, 10, v{vS}")
        E(f"s_add_u32 s{sT0}, s{sP3 + 2}, {WS_OB + 1020}")
        E(f"v_add_u32 v{vS}, s{sT0}, v{vS}")
        Ls = newlabel("sn"); Lsd = newlabel("snd")
        E(f"s_mov_b32 s{sSPIN}, 0")
        E.label(Ls)
        E(f"buffer_load_dword v{TMP + 3}, v{vS}, {sr(SWS, 4)}, 0 offen sc1")
        E.force_wait(vm=0)
        E(f"v_cmp_eq_u32 vcc, -1, v{TMP + 3}")
        spin_tail(E, Ls, Lsd, sleep=OPT["sent"])
        poll_loop(E, lb, rb_, "o", TMP)
        stamp(E, 12)
        gemm(1)
    elif not OPT["prog"]:
        poll_loop(E, lb, rb_, "o", TMP, pre_issued=True)
        stamp(E, 12)
        gemm(1)
    else:
        of = OF + 32
        sMK = sP3 + 2
        for i in range(16):
            E(f"v_mov_b32 v{AC[1] + i}, 0")
        E(f"s_mov_b32 s{sMK}, 15")
        E(f"s_mov_b32 s{sSPIN}, 0")
        L = newlabel("pb"); Lc = newlabel("pbc"); Ld = newlabel("pbd")
        E.wait(lgkm=0)
        E.flush_haz()
        E(f"s_branch {Lc}")
        E.label(L)
        for pr in range(4):
            Ls = newlabel("pbl")
            E(f"s_bitcmp1_b32 s{sMK}, {pr}")
            E(f"s_cbranch_scc0 {Ls}")
            E(lb[1 + 2 * pr]); E(lb[2 + 2 * pr])
            E.out.append(Ls + ":")
        E.label(Lc)
        E.force_wait(vm=0)
        for pr in range(4):
            Ls = newlabel("pbk")
            g8 = of + 8 * pr
            E(f"s_bitcmp1_b32 s{sMK}, {pr}")
            E(f"s_cbranch_scc0 {Ls}")
            E(f"v_max3_u32 v{TMP}, v{g8}, v{g8 + 1}, v{g8 + 2}")
            E(f"v_max3_u32 v{TMP + 1}, v{g8 + 3}, v{g8 + 4}, v{g8 + 5}")
            E(f"v_max3_u32 v{TMP}, v{TMP}, v{g8 + 6}, v{g8 + 7}")
            E(f"v_max_u32 v{TMP}, v{TMP}, v{TMP + 1}")
            E(f"v_cmp_eq_u32 vcc, -1, v{TMP}")
            E(f"s_cbranch_vccnz {Ls}")
            for h2 in range(2):
                hl = 2 * pr + h2
                wf = WF + 16 * h2
                for c in range(4):
                    for j in range(2):
                        E(f"ds_read_b64_tr_b16 {vr(wf + 4 * c + 2 * j, 2)}, v{vWO + (c ^ (2 * (hl & 1)))} offset:{3584 * hl + 2048 * j}")
            for h2 in range(2):
                hl = 2 * pr + h2
                wf = WF + 16 * h2
                for c in (2, 3, 0, 1):
                    acc = AC[1] + 4 * c
                    E(f"v_mfma_f32_16x16x32_bf16 {vr(acc, 4)}, {vr(wf + 4 * c, 4)}, {vr(of + 4 * hl, 4)}, {vr(acc, 4)}")
            E(f"s_bitset0_b32 s{sMK}, {pr}")
            assert not E.lgq
            E.out.append(Ls + ":")
        E(f"s_cmp_eq_u32 s{sMK}, 0")
        E(f"s_cbranch_scc1 {Ld}")
        E(f"s_add_u32 s{sSPIN}, s{sSPIN}, 1")
        E(f"s_cmp_lt_u32 s{sSPIN}, {SPIN_MAX}")
        E(f"s_cbranch_scc0 {Ld}")
        E(f"s_branch {L}")
        E.out.append(Ld + ":")
        E.nop(9); E.clear_haz()
        stamp(E, 12)
    for i in range(2):
        E(f"ds_write_b128 v{vXO}, {vr(AC[1] + 8 + 4 * i, 4)} offset:{2048 + 1024 * i}")
    stamp(E, 13)
    E.barrier()
    for i in range(2):
        E(f"ds_read_b128 {vr(RA + 4 * i, 4)}, v{vXP} offset:{2048 + 1024 * i}")
    KB = AC[1]
    for i in range(8):
        E(f"v_add_f32 v{KB + i}, v{KB + i}, v{RA + i}")
    if OPT["round_final"]:
        E(round_pairs(KB, KB, 8, tp))
        for i in range(8):
            E(f"v_mul_f32 v{KB + i}, v{KB + i}, v{omg}")
        E(round_pairs(KB, KB, 8, tp))
        for i in range(8):
            E(f"v_add_f32 v{T1 + i}, v{T1 + i}, v{KB + i}")
    else:
        for i in range(8):
            E(f"v_fmac_f32 v{T1 + i}, v{KB + i}, v{omg}")
    for i in range(4):
        E(f"v_cvt_pk_bf16_f32 v{tp + i}, v{T1 + 2 * i}, v{T1 + 2 * i + 1}")
    for i in range(2):
        E(f"buffer_store_dwordx2 {vr(tp + 2 * i, 2)}, v{vOUT}, {sr(SOUT, 4)}, 0 offen offset:{32 * i} {OPT['outpol']}")
    stamp(E, 14)
    Warm.end(E)
    E.label("L_fin")
    if OPT["dbgspan"]:
        Lz = newlabel("sp")
        E(f"s_cmp_lg_u32 s{sWV}, 0")
        E(f"s_cbranch_scc1 {Lz}")
        E.force_wait(vm=0)
        E("s_memrealtime s[96:97]")
        E.force_wait(lgkm=0)
        E("s_not_b32 s94, s94")
        E("v_mov_b32 v144, s96")
        E("v_mov_b32 v145, s94")
        E("v_mov_b32 v146, 0")
        E("s_mov_b64 exec, 1")
        E(f"buffer_atomic_umax v144, v146, {sr(SDBG, 4)}, 0 offen")
        E(f"buffer_atomic_umax v145, v146, {sr(SDBG, 4)}, 0 offen offset:4")
        E("s_not_b32 s94, s94")
        E("v_mov_b32 v145, s94")
        E(f"buffer_atomic_umax v145, v146, {sr(SDBG, 4)}, 0 offen offset:8")
        E("s_mov_b64 exec, -1")
        E.label(Lz)
    if OPT["stamps"]:
        Lz = newlabel("st")
        E(f"s_cmp_lg_u32 s{sWV}, 0")
        E(f"s_cbranch_scc1 {Lz}")
        E.force_wait(vm=0, lgkm=0)
        E(f"s_lshl_b32 s{sT0}, s2, 7")
        E(f"s_add_u32 s{sT0}, s{sT0}, {WS_ST}")
        E(f"v_mov_b32 v{vA0}, s{sT0}")
        E("s_mov_b64 exec, 1")
        for i in range(15):
            E(f"v_mov_b32 v{TMP}, s{sSTAMP + 2 * i}")
            E(f"v_mov_b32 v{TMP + 1}, s{sSTAMP + 2 * i + 1}")
            E(f"buffer_store_dwordx2 {vr(TMP, 2)}, v{vA0}, {sr(SWS, 4)}, 0 offen offset:{8 * i}")
            E.force_wait(vm=0)
        E.label(Lz)

def main():
    hdr = open("cdna_kernels/" + NAME + ".s.ref").read().split("; Override launch geometry")[0]
    E.raw(hdr.rstrip())
    E.raw(f"; @launch grid=(256,1,1) block=(768,1,1) lds={LDS_BYTES}")
    E.raw('.amdgcn_target "amdgcn-amd-amdhsa--gfx950"')
    E.raw(".text")
    E.raw(f".globl {NAME}_kernel")
    E.raw(".p2align 8")
    E.raw(f".type {NAME}_kernel,@function")
    E.raw(f"{NAME}_kernel:")
    prologue(E)
    E(f"s_cmp_eq_u32 s{sBR}, 0")
    E.flush_haz()
    E("s_cbranch_scc1 L_dA")
    E(f"s_cmp_lt_u32 s{sWV}, 8")
    E("s_cbranch_scc1 L_B_main")
    E(f"s_cmp_eq_u32 s{sWV}, 11")
    E("s_cbranch_scc1 L_B_ld3")
    E("s_branch L_B_ld")
    E.label("L_dA")
    E(f"s_cmp_lt_u32 s{sWV}, 2")
    E("s_cbranch_scc1 L_A_halo")
    E(f"s_cmp_lt_u32 s{sWV}, 8")
    E("s_cbranch_scc1 L_A_main")
    E(f"s_cmp_eq_u32 s{sWV}, 11")
    E("s_cbranch_scc1 L_A_ld3")
    E("s_branch L_A_ld")
    for name, fn in (("L_B_ld", lambda: loader(E, "B", False)), ("L_B_ld3", lambda: loader(E, "B", True)),
                     ("L_A_ld", lambda: loader(E, "A", False)), ("L_A_ld3", lambda: loader(E, "A", True))):
        E.label(name); E.vmq = []; E.lgq = []
        fn()
    for name, fn in (("L_A_main", lambda: cons_A(E, False)), ("L_A_halo", lambda: cons_A(E, True)), ("L_B_main", lambda: cons_B(E))):
        E.label(name); E.vmq = []; E.lgq = []
        fn()
        E.wait(lgkm=0)
        E.flush_haz()
        if name != "L_B_main":
            E("s_branch L_p3")
    phase3(E)
    E.label("L_end")
    E("s_endpgm")
    E.raw('.section .rodata,"a"')
    E.raw(".p2align 6")
    E.raw(f".amdhsa_kernel {NAME}_kernel")
    E.raw(f"  .amdhsa_next_free_vgpr {NVGPR}")
    E.raw("  .amdhsa_next_free_sgpr 102")
    E.raw(f"  .amdhsa_accum_offset {NVGPR}")
    E.raw("  .amdhsa_group_segment_fixed_size 0")
    E.raw("  .amdhsa_kernarg_size 88")
    E.raw("  .amdhsa_user_sgpr_count 2")
    E.raw("  .amdhsa_user_sgpr_kernarg_segment_ptr 1")
    E.raw("  .amdhsa_system_sgpr_workgroup_id_x 1")
    E.raw(".end_amdhsa_kernel")
    if OPT["warm"]:
        out = []; sites = []
        for ln in E.out:
            if ln.startswith("@@WARM "):
                labs = [l for r in ln[7:].split(",") for l in Warm.secs[r]]
                k = len(sites); sites.append(k)
                out.append(f"    s_mov_b32 s{sLD}, {k}")
                for r in range(4, 16):
                    out.append(f"    v_mov_b32 v{r}, 0")
                out.append(f"    s_mov_b32 s{s16K}, 0")
                out.append(f"    s_mov_b32 s{sFL}, 1")
                out.append(f"    s_mov_b32 s{sLP}, s{sWV}")
                out.append("    s_mov_b64 exec, 0")
                out.append(f"L_wl_{k}:")
                for i, l in enumerate(labs):
                    out.append(f"    s_cmp_eq_u32 s{sLP}, {i}")
                    out.append(f"    s_cbranch_scc1 {l}")
                out.append(f"    s_branch L_wd_{k}")
                out.append(f"L_wr_{k}:")
                out.append(f"    s_add_u32 s{sLP}, s{sLP}, 8")
                out.append(f"    s_branch L_wl_{k}")
                out.append(f"L_wd_{k}:")
                out.append("    s_mov_b64 exec, -1")
                out.append(f"    s_mov_b32 s{sFL}, 0")
                out.append("    s_waitcnt vmcnt(0) lgkmcnt(0)")
                out.append("    s_nop 15")
            elif ln == "L_end:":
                out.append("    s_branch L_end")
                out.append("L_warm_ret:")
                for k in range(3):
                    out.append(f"    s_cmp_eq_u32 s{sLD}, {k}")
                    out.append(f"    s_cbranch_scc1 L_wr_{k}")
                out.append(ln)
            else:
                out.append(ln)
        assert len(sites) == 3
        E.out = out
        print({r: len(v) for r, v in Warm.secs.items()})
    txt = E.text()
    import re
    mx = max(int(x) for x in re.findall(r"\bv\[?(\d+)", txt) + re.findall(r"\bv\[\d+:(\d+)\]", txt))
    assert mx < NVGPR, mx
    open(sys.argv[1], "w").write(txt)
    print("instructions:", E.nins, "max vgpr", mx)

main()
```

```python
import sys, struct, math
from asmlib import *

NAME = "gated_mix__sliding_local_dilated__linear_kernel_hedgehog__prompt"
OPT = dict(stamps=0, fine=0, round_final=1, pf=1, flag_at=5, ahead=2, nov=4, fill=5, mfsum=0, prio=1, pkfma=2, gat=90, no_comp=0, no_load=0, no_clr=0, lead=2, dbgspan=0, pf2=0, prog=0, ldst=0, pfA=0, atom=0, fk=0, psleep=2, sent=0, noflag=0, sbar=2, prea=1, outpol="", stag=0, fo=5, bearly=0, wobe=0, cpf=0, loops=0, warm=0, secl=120, disp=1, ldfirst=1)
for a in sys.argv[2:]:
    k, v = a.split("=")
    OPT[k] = int(v) if v.lstrip("-").isdigit() else v

LDS_BYTES = 163840
PHI_STRIDE, V_STRIDE = 264, 72
WS_OA, WS_OB, WS_KVP, WS_G, WS_ST = 0, 2 << 20, 4 << 20, 5 << 20, 8 << 20
WS_BYTES = 16 << 20
SPIN_MAX = 30000
SEGCOL = {"Q": 0, "K": 1, "V": 2}
SEGI = {"K": 0, "V": 1, "Q": 2}
WOA_BASE, WOB_BASE, XB3 = 58368, 0, 116736
B_SS = 39936
B_STAGES = [dict(m=m, segs=["K", "V", "Q"], base=B_SS * (m % 4)) for m in range(7)]
for i, st in enumerate(B_STAGES):
    prev = [j for j in range(i) if B_STAGES[j]["base"] == st["base"]]
    st["after"] = (prev[-1] + 2) if prev else -1
B_WPH = 159744
PHI_BASE = 0
VB = [128 * PHI_STRIDE, 128 * PHI_STRIDE + 128 * V_STRIDE]
KVF = 143360
A_SS = 39936
A_STAGES = [dict(m=m, segs=["K", "V", "Q"], base=A_SS * (m % 4)) for m in range(7)]
for i, st in enumerate(A_STAGES):
    prev = [j for j in range(i) if A_STAGES[j]["base"] == st["base"]]
    st["after"] = (prev[-1] + 2) if prev else -1
A_GATE = 159744
A_EXCH = XB3
def woff(br, k):
    return 18432 + 7168 * k

def f2u(x): return struct.unpack("<I", struct.pack("<f", x))[0]
LOG2E = f2u(1.4426950408889634)
SCALE = f2u(28 ** -0.5)

SX, SW, SWS, SDBG, SAUX, SWOA, SWOB, SOUT = 8, 12, 16, 20, 24, 28, 32, 36
sRB, sHP, sBR, sWV, sT, sCT, sJ, sT0, sT1, sM0 = 40, 41, 42, 43, 44, 45, 46, 47, 48, 49
sMASK = 50
sG3 = 66
sL2E, sSCL, sSPIN, sT2 = 68, 69, 70, 71
sKA = 72
sSTAMP = 72
sRG, sHH, s16K, sMP = 3, 4, 5, 6
sLP, sLD, sFL = 94, 95, 96
sHIM = sG3 + 1

NVGPR = 168
vLANE, vL16, vG, vL16B = 0, 1, 2, 3
vXR, vTR, vPADB, vOOFF = 4, 6, 7, 8
vA0, vA1, vA2, vA3 = 9, 10, 11, 12
vSL, vXRH = 13, 13
ACC = [16, 32, 48]
T0 = 152

E = Emitter()
lblc = [0]
def newlabel(p):
    lblc[0] += 1
    return f"L_{p}_{lblc[0]}"

class Warm:
    active = None
    secs = {}
    last = 0
    @classmethod
    def begin(cls, E, region):
        if not OPT["warm"]:
            return
        cls.active = region
        cls.secs.setdefault(region, [])
        cls.open(E)
    @classmethod
    def open(cls, E):
        L = newlabel("ws")
        cls.secs[cls.active].append(L)
        E.out.append(L + ":")
        cls.last = E.nins
    @classmethod
    def close(cls, E):
        E._put(f"s_cmp_eq_u32 s{sFL}, 1")
        E._put(f"s_cbranch_scc1 L_warm_ret")
    @classmethod
    def cut(cls, E, force=False):
        if cls.active and (force or E.nins - cls.last >= OPT["secl"]):
            cls.close(E); cls.open(E)
    @classmethod
    def end(cls, E):
        if cls.active:
            cls.close(E); cls.active = None

_orig_barrier = Emitter.barrier
def _barrier(self, lgkm0=True):
    if Warm.active:
        if lgkm0:
            self.wait(lgkm=0)
        Warm.close(self)
        self._put("s_barrier")
        Warm.open(self)
    else:
        _orig_barrier(self, lgkm0)
Emitter.barrier = _barrier
_orig_call = Emitter.__call__
def _call(self, text, tag=None):
    _orig_call(self, text, tag)
    if Warm.active and isinstance(text, str) and text.startswith(("v_exp_f32", "v_mfma", "v_cvt_pk", "ds_read", "v_mul_f32")):
        Warm.cut(self)
Emitter.__call__ = _call

def warm_up(E, regions):
    if not OPT["warm"]:
        return
    E.flush_haz()
    E.out.append("@@WARM " + ",".join(regions))

def stamp(E, idx, fine=False):
    if OPT["stamps"] and (idx == 0 or bool(OPT["fine"]) == fine):
        E(f"s_memrealtime {sr(sSTAMP + 2 * idx, 2)}")

def srd(E, d, lo, nbytes):
    E(f"s_mov_b32 s{d}, s{lo}")
    E(f"s_and_b32 s{d+1}, s{lo+1}, 0xffff")
    E(f"s_mov_b32 s{d+2}, {nbytes}")
    E(f"s_mov_b32 s{d+3}, 0x20000")

def dual_reduce(a, b, t, op):
    return [
        f"v_permlane32_swap_b32 v{a}, v{b}",
        f"{op} v{a}, v{a}, v{b}",
        f"v_mov_b32 v{t}, v{a}",
        f"v_permlane16_swap_b32 v{a}, v{t}",
        f"{op} v{a}, v{a}, v{t}",
        f"v_mov_b32 v{b}, v{a}",
        f"v_permlane32_swap_b32 v{a}, v{b}",
    ]

def round_pairs(src, dst, n, tmp):
    out = []
    for i in range(0, n, 2):
        out.append(f"v_cvt_pk_bf16_f32 v{tmp + i // 2}, v{src + i}, v{src + i + 1}")
    for i in range(0, n, 2):
        out.append(f"v_lshlrev_b32 v{dst + i}, 16, v{tmp + i // 2}")
        out.append(f"v_and_b32 v{dst + i + 1}, s{sHIM}, v{tmp + i // 2}")
    return out

def pack_op(acc, dst, zero_pad=True):
    out = [f"v_cvt_pk_bf16_f32 v{dst + i}, v{acc + 2 * i}, v{acc + 2 * i + 1}" for i in range(4)]
    if zero_pad:
        out += [f"v_cndmask_b32 v{dst + 2}, v{dst + 2}, 0, {sr(sG3, 2)}", f"v_cndmask_b32 v{dst + 3}, v{dst + 3}, 0, {sr(sG3, 2)}"]
    return out

def interleave_front(mm, rd):
    out = []
    n = max(1, (len(mm) * 3) // 4)
    j = 0
    for i, x in enumerate(mm):
        tgt = min(len(rd), ((i + 1) * len(rd) + n - 1) // n)
        while j < tgt:
            out.append(rd[j]); j += 1
        out.append(x)
    out += rd[j:]
    return out

def vadd_imm(reg, delta):
    if delta == 0:
        return []
    return [f"v_add_u32 v{reg}, {delta & 0xffffffff:#x}, v{reg}"]

def lstamp(E, i):
    if OPT["ldst"]:
        E(f"s_memrealtime {sr(54 + 2 * i, 2)}")

def prologue(E):
    E("s_cmp_ge_u32 s2, 256")
    E("s_cbranch_scc1 L_end")
    lstamp(E, 0)
    if OPT["cpf"]:
        NS = OPT["cpf"] if OPT["cpf"] > 1 else 6
        E("s_getpc_b64 s[98:99]")
        E.raw("L_pc0:")
        E(f"v_cmp_gt_u32 vcc, 64, v0")
        E(f"s_lshr_b32 s{sT0}, s2, 3")
        E(f"s_mul_i32 s{sT1}, s{sT0}, 43")
        E(f"s_lshr_b32 s{sT1}, s{sT1}, 8")
        E(f"s_mul_i32 s{sT1}, s{sT1}, 6")
        E(f"s_sub_u32 s{sT0}, s{sT0}, s{sT1}")
        for j in range(32):
            assert (j * 43) >> 8 == j // 6
        E(f"s_lshl_b32 s{sT0}, s{sT0}, 13")
        E(f"v_lshl_add_u32 v{T0 + 2}, v0, 7, s{sT0}")
        E(f"v_cmp_gt_u32 s[100:101], s97, v{T0 + 2}") if False else None
        E(f"v_min_u32 v{T0 + 2}, (L_end - L_pc0) & 0xffffff80, v{T0 + 2}")
        E(f"s_cbranch_vccz L_pc1")
        E(f"global_load_dword v15, v{T0 + 2}, s[98:99]")
        E.raw("L_pc1:")
        E.vmq = []
    if OPT["dbgspan"]:
        E("s_memrealtime s[94:95]")
    E(f"s_load_dwordx16 {sr(sKA, 16)}, s[0:1], 0")
    E(f"s_load_dwordx4 {sr(sKA + 16, 4)}, s[0:1], 64")
    E(f"s_load_dwordx2 {sr(sKA + 20, 2)}, s[0:1], 80")
    E(f"v_lshrrev_b32 v{T0}, 6, v0")
    E(f"v_and_b32 v{vLANE}, 63, v0")
    E(f"v_readfirstlane_b32 s{sWV}, v{T0}")
    if OPT["ldfirst"]:
        E(f"s_add_u32 s{sWV}, s{sWV}, 8")
        E(f"s_cmp_ge_u32 s{sWV}, 12")
        E(f"s_cselect_b32 s{sT1}, 12, 0")
        E(f"s_sub_u32 s{sWV}, s{sWV}, s{sT1}")
    E(f"s_and_b32 s{sT0}, s2, 7")
    E(f"s_lshr_b32 s{sJ}, s2, 3")
    E(f"s_lshr_b32 s{sBR}, s{sJ}, 4")
    E(f"s_xor_b32 s{sBR}, s{sBR}, 1")
    E(f"s_and_b32 s{sRB}, s{sT0}, 3")
    E(f"s_lshl_b32 s{sRB}, s{sRB}, 2")
    E(f"s_bfe_u32 s{sT1}, s{sJ}, 0x20002")
    E(f"s_add_u32 s{sRB}, s{sRB}, s{sT1}")
    E(f"s_lshr_b32 s{sHP}, s{sT0}, 2")
    E(f"s_lshl_b32 s{sHP}, s{sHP}, 2")
    E(f"s_and_b32 s{sT1}, s{sJ}, 3")
    E(f"s_add_u32 s{sHP}, s{sHP}, s{sT1}")
    E(f"s_mul_i32 s{sT1}, s{sJ}, 37")
    E(f"s_lshr_b32 s{sT1}, s{sT1}, 8")
    E(f"s_lshl_b32 s{sT}, s{sT0}, 2")
    E(f"s_add_u32 s{sT}, s{sT}, s{sT1}")
    E(f"s_mul_i32 s{sT1}, s{sT1}, 7")
    E(f"s_sub_u32 s{sCT}, s{sJ}, s{sT1}")
    E(f"s_lshr_b32 s{sRG}, s{sWV}, 1")
    E(f"s_and_b32 s{sHH}, s{sWV}, 1")
    E(f"v_and_b32 v{vL16}, 15, v{vLANE}")
    E(f"v_lshrrev_b32 v{vG}, 4, v{vLANE}")
    E(f"v_lshlrev_b32 v{vL16B}, 4, v{vLANE}")
    E(f"s_mov_b32 s{sFL}, 0")
    E(f"s_mov_b32 s{sG3}, 0")
    E(f"s_mov_b32 s{sG3+1}, 0xffff0000")
    E(f"s_mov_b32 s{sL2E}, {LOG2E:#x}")
    E(f"s_mov_b32 s{sSCL}, {SCALE:#x}")

def srds(E):
    E.force_wait(lgkm=0)
    K = sKA
    srd(E, SX, K + 0, 2048 * 896)
    E(f"s_cmp_eq_u32 s{sBR}, 0")
    E(f"s_cselect_b32 s{sT0}, s{K+2}, s{K+8}")
    E(f"s_cselect_b32 s{sT1}, s{K+3}, s{K+9}")
    srd(E, SW, sT0, 448 * 2688)

def srds2(E):
    K = sKA
    E(f"s_mov_b32 s{sT2}, 25088")
    E(f"s_cmp_eq_u32 s{sBR}, 0")
    E(f"s_cselect_b32 s{sT0}, s{K+14}, s{K+10}")
    E(f"s_cselect_b32 s{sT1}, s{K+15}, s{K+11}")
    E(f"s_cselect_b32 s{sT2}, 896, s{sT2}")
    E(f"s_mov_b32 s{SAUX}, s{sT0}")
    E(f"s_and_b32 s{SAUX+1}, s{sT1}, 0xffff")
    E(f"s_mov_b32 s{SAUX+2}, s{sT2}")
    E(f"s_mov_b32 s{SAUX+3}, 0x20000")
    srd(E, SWS, K + 20, WS_BYTES)
    srd(E, SWOA, K + 4, 448 * 896)
    srd(E, SWOB, K + 12, 448 * 896)
    srd(E, SOUT, K + 16, 2048 * 896)
    srd(E, SDBG, K + 18, 256)

def stamps_init(E):
    if OPT["stamps"]:
        stamp(E, 0)
        for i in range(1, 15):
            E(f"s_mov_b64 {sr(sSTAMP + 2 * i, 2)}, 0")

def prefetch(E, sJ=sJ):
    K = sKA
    SP = sMASK + 2
    t0, t1, t2, t3 = T0, T0 + 1, T0 + 2, T0 + 3
    Lx = newlabel("pfx"); Ld = newlabel("pfd")
    E(f"s_cmp_ge_u32 s{sWV}, 6")
    E.flush_haz()
    E(f"s_cbranch_scc1 {Lx}")
    E(f"s_cmp_lt_u32 s{sWV}, 3")
    E(f"s_cselect_b32 s{sT0}, s{K+2}, s{K+8}")
    E(f"s_cselect_b32 s{sT1}, s{K+3}, s{K+9}")
    E(f"s_cselect_b32 s{sT2}, 0, 3")
    srd(E, SP, sT0, 448 * 2688)
    E(f"s_sub_u32 s{sT2}, s{sWV}, s{sT2}")
    E(f"s_lshl_b32 s{sT2}, s{sT2}, 6")
    E(f"v_add_u32 v{t0}, s{sT2}, v{vLANE}")
    E(f"v_mul_u32_u24 v{t1}, 5462, v{t0}")
    E(f"v_lshrrev_b32 v{t1}, 16, v{t1}")
    E(f"v_mul_u32_u24 v{t2}, 12, v{t1}")
    E(f"v_sub_u32 v{t2}, v{t0}, v{t2}")
    E(f"v_lshrrev_b32 v{t3}, 2, v{t2}")
    E(f"v_and_b32 v{t2}, 3, v{t2}")
    E(f"s_mul_i32 s{sT2}, s{sJ}, 14")
    E(f"v_add_u32 v{t1}, s{sT2}, v{t1}")
    E(f"v_mul_u32_u24 v{t1}, 2688, v{t1}")
    E(f"v_mul_u32_u24 v{t3}, 896, v{t3}")
    E(f"v_lshl_add_u32 v{t2}, v{t2}, 7, v{t3}")
    E(f"s_lshr_b32 s{sT2}, s{sHP}, 2")
    E(f"s_mul_i32 s{sT2}, s{sT2}, 384")
    E(f"v_add3_u32 v{t1}, v{t1}, v{t2}, s{sT2}")
    E(f"v_mov_b32 v{t2}, 0x1000000")
    E(f"v_cmp_gt_u32 vcc, 168, v{t0}")
    E(f"v_cndmask_b32 v{t1}, v{t2}, v{t1}, vcc")
    E(f"buffer_load_dword v15, v{t1}, {sr(SP, 4)}, 0 offen")
    E.flush_haz()
    E(f"s_branch {Ld}")
    E.label(Lx)
    E(f"s_sub_u32 s{sT2}, s{sWV}, 6")
    E(f"s_lshl_b32 s{sT2}, s{sT2}, 6")
    E(f"v_add_u32 v{t0}, s{sT2}, v{vLANE}")
    E(f"s_mul_i32 s{sT2}, s{sJ}, 112")
    E(f"s_lshr_b32 s{sT1}, s{sRB}, 2")
    E(f"s_mul_i32 s{sT1}, s{sT1}, 3584")
    E(f"s_add_u32 s{sT2}, s{sT2}, s{sT1}")
    E(f"v_add_u32 v{t1}, s{sT2}, v{t0}")
    E(f"v_lshlrev_b32 v{t1}, 7, v{t1}")
    E(f"v_mov_b32 v{t2}, 0x1000000")
    E(f"v_cmp_gt_u32 vcc, 112, v{t0}")
    E(f"v_cndmask_b32 v{t1}, v{t2}, v{t1}, vcc")
    E(f"buffer_load_dword v15, v{t1}, {sr(SX, 4)}, 0 offen")
    E.label(Ld)
    E.vmq = [{"dst": set(), "tag": "PF"}]

def prefetch2(E, t0, t1, dst):
    Ld = newlabel("p2d"); Lb = newlabel("p2b")
    E(f"s_and_b32 s{sT0}, s{sWV}, 3")
    E(f"s_lshl_b32 s{sT0}, s{sT0}, 6")
    E(f"v_add_u32 v{t0}, s{sT0}, v{vLANE}")
    E(f"s_and_b32 s{sT0}, s{sJ}, 15")
    E(f"s_mul_i32 s{sT0}, s{sT0}, 196")
    E(f"v_add_u32 v{t1}, s{sT0}, v{t0}")
    E(f"v_lshlrev_b32 v{t1}, 7, v{t1}")
    E(f"v_cmp_gt_u32 vcc, 196, v{t0}")
    E(f"v_mov_b32 v{t0}, 0x1000000")
    E(f"v_cndmask_b32 v{t1}, v{t0}, v{t1}, vcc")
    E(f"s_cmp_ge_u32 s{sWV}, 4")
    E.flush_haz()
    E(f"s_cbranch_scc1 {Lb}")
    E(f"buffer_load_dword v{dst}, v{t1}, {sr(SWOA, 4)}, 0 offen")
    E(f"s_branch {Ld}")
    E.label(Lb)
    E(f"buffer_load_dword v{dst}, v{t1}, {sr(SWOB, 4)}, 0 offen")
    E.label(Ld)

def flag_store(E, val, t0, t1, base=0):
    if OPT["noflag"]:
        return
    if OPT["atom"]:
        E(f"s_lshl_b32 s{sT0}, s{sRB}, 2")
        E(f"v_mov_b32 v{t0}, s{sT0}")
        E(f"v_mov_b32 v{t1}, 1")
        E("s_mov_b64 exec, 1")
        E(f"buffer_atomic_add v{t1}, v{t0}, {sr(SDBG, 4)}, 0 offen offset:{base} sc1")
        E("s_mov_b64 exec, -1")
        return
    E(f"s_lshl_b32 s{sT0}, s{sRB}, 3")
    E(f"s_add_u32 s{sT0}, s{sT0}, s{sHP}")
    if base:
        E(f"s_add_u32 s{sT0}, s{sT0}, {base}")
    E(f"v_mov_b32 v{t0}, s{sT0}")
    E(f"v_mov_b32 v{t1}, {val}")
    E("s_mov_b64 exec, 1")
    E(f"buffer_store_byte v{t1}, v{t0}, {sr(SDBG, 4)}, 0 offen sc1")
    E("s_mov_b64 exec, -1")

def spin_tail(E, L, Ld, sleep=2):
    E(f"s_cbranch_vccz {Ld}")
    E(f"s_add_u32 s{sSPIN}, s{sSPIN}, 1")
    E(f"s_cmp_lt_u32 s{sSPIN}, {SPIN_MAX}")
    E(f"s_cbranch_scc0 {Ld}")
    E(f"s_sleep {sleep}")
    E(f"s_branch {L}")
    E.label(Ld)

def flags_wait_all(E, t0, t1, base=0):
    if OPT["noflag"]:
        return
    L = newlabel("fl"); Ld = newlabel("fld")
    E(f"v_and_b32 v{t0}, {15 if OPT['atom'] else 31}, v{vLANE}")
    E(f"v_lshlrev_b32 v{t0}, 2, v{t0}")
    E(f"s_mov_b32 s{sSPIN}, 0")
    E(f"s_mov_b32 s{sT1}, {'8' if OPT['atom'] else '0x01010101'}")
    E.label(L)
    E(f"buffer_load_dword v{t1}, v{t0}, {sr(SDBG, 4)}, 0 offen offset:{base} sc1")
    E.force_wait(vm=0)
    E(f"v_cmp_ne_u32 vcc, s{sT1}, v{t1}")
    spin_tail(E, L, Ld, sleep=40)

def check_regs(E, regs, tmp):
    rs = list(regs)
    E(f"v_max_u32 v{tmp}, v{rs[0]}, v{rs[1]}")
    rest = rs[2:]
    while len(rest) >= 2:
        E(f"v_max3_u32 v{tmp}, v{tmp}, v{rest[0]}, v{rest[1]}"); rest = rest[2:]
    if rest:
        E(f"v_max_u32 v{tmp}, v{tmp}, v{rest[0]}")
    E(f"v_cmp_eq_u32 vcc, -1, v{tmp}")

def poll_loop(E, loads, regs, name, tmp, pre_issued=False):
    L = newlabel(name); Lc = newlabel(name + "c"); Ld = newlabel(name + "d")
    E(f"s_mov_b32 s{sSPIN}, 0")
    if pre_issued:
        E.flush_haz()
        E(f"s_branch {Lc}")
    E.label(L)
    E(loads)
    E.label(Lc)
    E.force_wait(vm=0)
    check_regs(E, regs, tmp)
    spin_tail(E, L, Ld, sleep=OPT["psleep"])

def cons_setup(E, br):
    t0, t1, t2 = T0, T0 + 1, T0 + 2
    E(f"v_bfe_u32 v{t0}, v{vLANE}, 2, 2")
    E(f"v_and_b32 v{t1}, 3, v{vLANE}")
    E(f"v_lshlrev_b32 v{t2}, 3, v{vG}")
    E(f"v_lshl_add_u32 v{t2}, v{t0}, 1, v{t2}")
    E(f"v_mul_u32_u24 v{t2}, 112, v{t2}")
    E(f"v_lshl_add_u32 v{vTR}, v{t1}, 3, v{t2}")
    E(f"s_mul_i32 s{sT0}, s{sHH}, 56")
    E(f"v_add_u32 v{vTR}, s{sT0}, v{vTR}")
    E(f"v_lshrrev_b32 v{t0}, 1, v{vL16}")
    E(f"v_xor_b32 v{t0}, v{t0}, v{vG}")
    E(f"v_lshlrev_b32 v{t0}, 4, v{t0}")
    E(f"v_lshl_add_u32 v{t0}, v{vL16}, 7, v{t0}")
    E(f"s_lshl_b32 s{sT0}, s{sRG}, 12")
    E(f"v_add_u32 v{vXR}, s{sT0}, v{t0}")
    E(f"v_xor_b32 v{vXR+1}, 64, v{vXR}")
    E(f"s_lshl_b32 s{sT0}, s{sRB}, 3")
    E(f"s_lshl_b32 s{sT1}, s{sRG}, 1")
    E(f"s_add_u32 s{sT0}, s{sT0}, s{sT1}")
    E(f"s_lshl_b32 s{sT0}, s{sT0}, 4")
    E(f"s_lshl_b32 s{sT1}, s{sHP}, 1")
    E(f"s_add_u32 s{sT0}, s{sT0}, s{sT1}")
    E(f"s_add_u32 s{sT0}, s{sT0}, s{sHH}")
    E(f"s_lshl_b32 s{sT0}, s{sT0}, 10")
    E(f"s_lshl_b32 s{sT1}, s{sBR}, 21")
    E(f"s_add_u32 s{sT0}, s{sT0}, s{sT1}")
    E(f"v_add_u32 v{vOOFF}, s{sT0}, v{vL16B}")
    E(f"s_mov_b32 s{s16K}, 16384")

def ostore(reg, u):
    return f"buffer_store_dwordx4 {vr(reg, 4)}, v{vOOFF}, {sr(SWS, 4)}, {'0' if u == 0 else 's' + str(s16K)} offen sc1"

class Cons:
    def __init__(self, E, br, stages, buf0, bufsz, nbuf, halo=False, HACC=None):
        self.E, self.br, self.stages = E, br, stages
        self.buf0, self.bufsz, self.nbuf, self.halo, self.HACC = buf0, bufsz, nbuf, halo, HACC
        self.cur_base = 0
        self.ks = 0; self.pending = []
        self.nbar = 0
        self.prebar = None

    def parts(self, s, tt, buf):
        st = self.stages[s]; m = st["m"]; t = 2 * m + tt
        first = t == 0
        B0 = self.buf0 + self.bufsz * buf
        rd, mm = [], []
        xr = [B0, B0 + 4]
        for u in range(2):
            rd.append(f"ds_read_b128 {vr(xr[u], 4)}, v{vXR + tt} offset:{2048 * u}")
        wb = B0 + 8
        if self.halo:
            hx = B0 + 8; wb = B0 + 12
            rd.append(f"ds_read_b128 {vr(hx, 4)}, v{vXR + tt} offset:16384")
        elif self.br == "A":
            wb = B0 + 12
        for k, seg in enumerate(st["segs"]):
            si = SEGI[seg]
            tr = not (self.br == "A" and seg == "V")
            for c in range(2):
                wf = wb + 8 * k + 4 * c
                for j in range(2):
                    rd.append(f"ds_read_b64_tr_b16 {vr(wf + 2 * j, 2)}, v{vTR} offset:{woff(self.br, k) + 3584 * tt + 112 * j + 32 * c}")
                for u in range(2):
                    acc = ACC[si] + 8 * u + 4 * c
                    a_, b_ = (vr(wf, 4), vr(xr[u], 4)) if tr else (vr(xr[u], 4), vr(wf, 4))
                    mm.append(f"v_mfma_f32_16x16x32_bf16 {vr(acc, 4)}, {a_}, {b_}, {'0' if first else vr(acc, 4)}")
                if self.halo and seg != "Q":
                    acc = self.HACC + 8 * si + 4 * c
                    a_, b_ = (vr(wf, 4), vr(hx, 4)) if tr else (vr(hx, 4), vr(wf, 4))
                    mm.append(f"v_mfma_f32_16x16x32_bf16 {vr(acc, 4)}, {a_}, {b_}, {'0' if first else vr(acc, 4)}")
        if OPT["no_comp"] == 1:
            return [], []
        if OPT["no_comp"] == 2:
            return rd, []
        if OPT["no_comp"] == 3:
            return [], mm
        return rd, mm

    def run_loop(self, hooks):
        E = self.E
        SS = A_SS
        nacc = list(range(ACC[0], ACC[0] + 48)) + (list(range(self.HACC, self.HACC + 16)) if self.halo else [])
        for r in nacc:
            E(f"v_mov_b32 v{r}, 0")
        B1 = self.buf0 + self.bufsz
        for r in range(B1, B1 + self.bufsz):
            E(f"v_mov_b32 v{r}, 0")
        E(f"s_mov_b32 s{sLP}, 0")
        E(f"s_mov_b32 s{sLD}, 0")
        rd0, mm0 = self.parts(1, 0, 0)
        rd1, mm1 = self.parts(1, 1, 1)
        L = newlabel("gl")
        def body(real):
            nlead = OPT["lead"]
            E(mm1[:nlead])
            for st_, fn in hooks.items():
                Lh = newlabel("gh")
                E(f"s_cmp_lg_u32 s{sLP}, {st_}")
                E(f"s_cbranch_scc1 {Lh}")
                sv_l, sv_v = list(E.lgq), list(E.vmq)
                hz = (dict(E.w_mfma), dict(E.mfma_dst_range), dict(E.r_mfmaC), dict(E.w_valu))
                p0 = E.pos
                fn(E)
                E.wait(lgkm=0)
                E.flush_haz()
                E.out.append(Lh + ":")
                E.lgq, E.vmq = sv_l, sv_v
                E.w_mfma, E.mfma_dst_range, E.r_mfmaC, E.w_valu = hz
                E.pos = p0
            E.barrier(lgkm0=False)
            for r in (vXR, vXR + 1, vTR):
                E(f"v_add_u32 v{r}, s{sLD}, v{r}")
            E(interleave_front(mm1[nlead:], rd0))
            E(f"s_add_u32 s{sLP}, s{sLP}, 1")
            E(f"s_mov_b32 s{sLD}, {SS}")
            E(f"s_cmp_eq_u32 s{sLP}, 4")
            E(f"s_cselect_b32 s{sLD}, {(-3 * SS) & 0xffffffff:#x}, s{sLD}")
            E(interleave_front(mm0, rd1))
            E(f"s_cmp_lt_u32 s{sLP}, 7")
            E(f"s_cbranch_scc1 {L}")
        E.flush_haz()
        n0, i0 = len(E.out), E.nins
        body(False); body(False)
        del E.out[n0:]; E.nins = i0
        st0 = [sorted(e["dst"]) for e in E.lgq]
        E.out.append(L + ":")
        body(True)
        assert st0 == [sorted(e["dst"]) for e in E.lgq], "loop tracker state is not a fixpoint"
        E(mm1)

    def run(self, s0, s1):
        E = self.E
        prev = []
        for ks in range(2 * s0, 2 * s1 + 2):
            s, tt = divmod(ks, 2)
            pre = []
            if tt == 0:
                nlead = min(OPT["lead"], len(prev))
                E(prev[:nlead]); prev = prev[nlead:]
                if self.prebar:
                    self.prebar(E, s)
                E.barrier(lgkm0=False)
                self.nbar += 1
                if self.nbar <= 14:
                    stamp(E, self.nbar, fine=True)
                if OPT["stamps"] and OPT["fine"] and self.nbar in (2, 7):
                    E(f"s_memtime {sr(sSTAMP + 2 * (12 if self.nbar == 2 else 13), 2)}")
                d = self.stages[s]["base"] - self.cur_base
                self.cur_base = self.stages[s]["base"]
                for r in (vXR, vXR + 1, vTR):
                    E(vadd_imm(r, d))
            rd, mm = self.parts(s, tt, ks % 2)
            if prev:
                E(interleave_front(prev, rd))
            else:
                E(rd)
            prev = mm
        E(prev)

vL2E = 162
ONES = 164
def phi_path(si, outreg, tmps, WP):
    streams = []
    for u in range(2):
        T = tmps[u]
        P = ACC[si] + 8 * u
        op, pk, Ep, Em = T, T, P, T + 4
        mx, mn, mx1, mn1 = T + 12, T + 13, T + 14, T + 15
        t = T
        O = outreg + 8 * u
        o = []
        o += pack_op(P, op)
        for ft in range(2):
            o.append(f"v_mfma_f32_16x16x32_bf16 {vr(P + 4 * ft, 4)}, {vr(WP + 4 * ft, 4)}, {vr(op, 4)}, 0")
        o += round_pairs(P, P, 8, pk)
        o.append(f"v_max3_f32 v{mx}, v{P}, v{P+1}, v{P+2}")
        o.append(f"v_min3_f32 v{mn}, v{P}, v{P+1}, v{P+2}")
        o.append(f"v_max3_f32 v{mx}, v{mx}, v{P+3}, v{P+4}")
        o.append(f"v_min3_f32 v{mn}, v{mn}, v{P+3}, v{P+4}")
        o.append(f"v_max3_f32 v{mx}, v{mx}, v{P+5}, v{P+6}")
        o.append(f"v_min3_f32 v{mn}, v{mn}, v{P+5}, v{P+6}")
        o.append(f"v_max_f32 v{mx}, v{mx}, v{P+7}")
        o.append(f"v_max_f32 v{mn}, -v{mn}, -v{P+7}")
        o += dual_reduce(mx, mn, t, "v_max_f32")
        o.append(f"v_mul_f32 v{mx}, s{sL2E}, v{mx}")
        o.append(f"v_mul_f32 v{mn}, s{sL2E}, v{mn}")
        o.append(f"v_add_f32 v{mx1}, v{mx}, v{vPADB}")
        o.append(f"v_add_f32 v{mn1}, v{mn}, v{vPADB}")
        for i in (range(8) if not OPT["pkfma"] else []):
            o.append(f"v_fma_f32 v{Em+i}, -v{P+i}, s{sL2E}, -v{mn if i < 4 else mn1}")
            o.append(f"v_fma_f32 v{Ep+i}, v{P+i}, s{sL2E}, -v{mx if i < 4 else mx1}")
        for i in (range(0, 8, 2) if OPT["pkfma"] else []):
            mm_ = vr(mx if i < 4 else mx1, 2)
            if OPT["pkfma"] == 2:
                o.append(f"v_pk_fma_f32 {vr(Em+i, 2)}, {vr(P+i, 2)}, {vr(vL2E, 2)}, {mm_} op_sel:[0,0,1] op_sel_hi:[1,1,1] neg_lo:[1,0,1] neg_hi:[1,0,1]")
                o.append(f"v_pk_fma_f32 {vr(Ep+i, 2)}, {vr(P+i, 2)}, {vr(vL2E, 2)}, {mm_} op_sel_hi:[1,1,0] neg_lo:[0,0,1] neg_hi:[0,0,1]")
                continue
            o.append(f"v_pk_fma_f32 {vr(Em+i, 2)}, {vr(P+i, 2)}, {sr(sL2E, 2)}, {mm_} op_sel:[0,0,1] op_sel_hi:[1,0,1] neg_lo:[1,0,1] neg_hi:[1,0,1]")
            o.append(f"v_pk_fma_f32 {vr(Ep+i, 2)}, {vr(P+i, 2)}, {sr(sL2E, 2)}, {mm_} op_sel_hi:[1,0,0] neg_lo:[0,0,1] neg_hi:[0,0,1]")
        for i in range(8):
            o.append(f"v_exp_f32 v{Ep+i}, v{Ep+i}")
            o.append(f"v_exp_f32 v{Em+i}, v{Em+i}")
        if OPT["mfsum"]:
            for i in range(4):
                o.append(f"v_cvt_pk_bf16_f32 v{O + i}, v{Ep + 2 * i}, v{Ep + 2 * i + 1}")
                o.append(f"v_cvt_pk_bf16_f32 v{O + 4 + i}, v{Em + 2 * i}, v{Em + 2 * i + 1}")
            SP, SM = T, T + 12
            o.append(f"v_mfma_f32_16x16x32_bf16 {vr(SP, 4)}, {vr(ONES, 4)}, {vr(O, 4)}, 0")
            o.append(f"v_mfma_f32_16x16x32_bf16 {vr(SM, 4)}, {vr(ONES, 4)}, {vr(O + 4, 4)}, 0")
            sp, sm = SP, SM
        else:
            sp, sm = mx1, mn1
            o.append(f"v_add_f32 v{sp}, v{Ep}, v{Ep+1}")
            o.append(f"v_add_f32 v{sm}, v{Em}, v{Em+1}")
            for i in range(2, 8):
                o.append(f"v_add_f32 v{sp}, v{sp}, v{Ep+i}")
                o.append(f"v_add_f32 v{sm}, v{sm}, v{Em+i}")
            o += dual_reduce(sp, sm, t, "v_add_f32")
        o.append(f"v_rcp_f32 v{sp}, v{sp}")
        o.append(f"v_rcp_f32 v{sm}, v{sm}")
        for i in range(8):
            o.append(f"v_mul_f32 v{Ep+i}, v{Ep+i}, v{sp}")
            o.append(f"v_mul_f32 v{Em+i}, v{Em+i}, v{sm}")
        for i in range(4):
            o.append(f"v_cvt_pk_bf16_f32 v{O + i}, v{Ep + 2 * i}, v{Ep + 2 * i + 1}")
            o.append(f"v_cvt_pk_bf16_f32 v{O + 4 + i}, v{Em + 2 * i}, v{Em + 2 * i + 1}")
        streams.append(o)
    k = OPT["stag"]
    if k:
        a_, b_ = streams
        head = interleave(a_[:8], b_[:8]); a_, b_ = a_[8:], b_[8:]
        return head + a_[:k] + interleave(a_[k:], b_[:len(b_) - k]) + b_[len(b_) - k:]
    return interleave(streams[0], streams[1])

def cons_B(E):
    WP, PHI, BUF = 64, 72, 88
    srds(E); srds2(E)
    warm_up(E, ["B", "P3"])
    cons_setup(E, "B")
    if OPT["sbar"]:
        E.barrier()
    if OPT["pf"] and not OPT["pfA"]:
        prefetch(E)
    stamps_init(E)
    ones = PHI
    for i in range(4):
        E(f"v_mov_b32 v{ones + i}, -1")
        E(f"v_mov_b32 v{ONES + i}, 0x3f803f80")
    E(f"v_mov_b32 v{vL2E}, s{sL2E}"); E(f"v_mov_b32 v{vL2E + 1}, s{sL2E}")
    vKV = 14
    E(f"s_lshl_b32 s{sT0}, s{sHP}, 4")
    E(f"s_add_u32 s{sT0}, s{sT0}, s{sRB}")
    E(f"s_lshl_b32 s{sT0}, s{sT0}, 3")
    E(f"s_add_u32 s{sT0}, s{sT0}, s{sWV}")
    E(f"s_lshl_b32 s{sT0}, s{sT0}, 10")
    E(f"s_add_u32 s{sT0}, s{sT0}, {WS_KVP}")
    E(f"v_add_u32 v{vKV}, s{sT0}, v{vL16B}")
    E(f"v_mov_b32 v{vPADB}, 0")
    E(f"v_mov_b32 v{T0}, 0x7149f2ca")
    E(f"v_cndmask_b32 v{vPADB}, v{vPADB}, v{T0}, {sr(sG3, 2)}")
    E(f"s_lshl_b32 s{sT2}, s{sRG}, 5")
    E(f"v_add_u32 v{vSL}, s{sT2}, v{vL16}")
    E(f"v_mul_u32_u24 v{vA0}, {PHI_STRIDE}, v{vSL}")
    E(f"v_lshl_add_u32 v{vA0}, v{vG}, 3, v{vA0}")
    E(f"s_lshl_b32 s{sT2}, s{sHH}, 7")
    E(f"v_add_u32 v{vA0}, s{sT2}, v{vA0}")
    E(f"v_mul_u32_u24 v{vA1}, {V_STRIDE}, v{vSL}")
    E(f"v_lshl_add_u32 v{vA1}, v{vG}, 3, v{vA1}")
    E(f"s_mul_i32 s{sT0}, s{sHH}, {VB[1] - VB[0]}")
    E(f"s_add_u32 s{sT0}, s{sT0}, {VB[0]}")
    E(f"v_add_u32 v{vA1}, s{sT0}, v{vA1}")
    t0, t1 = T0, T0 + 1
    E(f"v_and_b32 v{t0}, 1, v{vG}")
    E(f"v_lshlrev_b32 v{t0}, 4, v{t0}")
    E(f"v_bfe_u32 v{t1}, v{vLANE}, 2, 2")
    E(f"v_lshl_add_u32 v{t0}, v{t1}, 2, v{t0}")
    E(f"v_lshrrev_b32 v{t1}, 1, v{vG}")
    E(f"v_lshl_add_u32 v{t0}, v{t1}, 1, v{t0}")
    E(f"v_and_b32 v{t1}, 3, v{vLANE}")
    E(f"v_lshlrev_b32 v{t1}, 3, v{t1}")
    E(f"s_lshr_b32 s{sT0}, s{sWV}, 1")
    E(f"s_lshl_b32 s{sT0}, s{sT0}, 6")
    E(f"v_mul_u32_u24 v{vA2}, {PHI_STRIDE}, v{t0}")
    E(f"v_add3_u32 v{vA2}, v{vA2}, v{t1}, s{sT0}")
    E(f"s_lshr_b32 s{sT0}, s{sWV}, 2")
    E(f"s_mul_i32 s{sT0}, s{sT0}, {VB[1] - VB[0]}")
    E(f"s_add_u32 s{sT0}, s{sT0}, {VB[0]}")
    E(f"s_and_b32 s{sT1}, s{sWV}, 1")
    E(f"s_lshl_b32 s{sT1}, s{sT1}, 5")
    E(f"s_add_u32 s{sT0}, s{sT0}, s{sT1}")
    E(f"v_mul_u32_u24 v{vA3}, {V_STRIDE}, v{t0}")
    E(f"v_add3_u32 v{vA3}, v{vA3}, v{t1}, s{sT0}")
    w1, w2 = T0 + 8, T0 + 9
    E(f"v_bfe_u32 v{t0}, v{vLANE}, 2, 2")
    E(f"v_lshl_add_u32 v{t0}, v{vG}, 2, v{t0}")
    E(f"v_mul_u32_u24 v{t0}, 56, v{t0}")
    E(f"s_mul_i32 s{sT2}, s{sHH}, 1568")
    E(f"s_add_u32 s{sT2}, s{sT2}, {B_WPH}")
    E(f"v_add_u32 v{t0}, s{sT2}, v{t0}")
    E(f"v_and_b32 v{t1}, 3, v{vLANE}")
    E(f"v_min_u32 v{w2}, 2, v{t1}")
    E(f"v_lshl_add_u32 v{w1}, v{t1}, 3, v{t0}")
    E(f"v_lshl_add_u32 v{w2}, v{w2}, 3, v{t0}")
    C = Cons(E, "B", B_STAGES, BUF, 32, 2)
    def prebar(E, s):
        if s == 3:
            for ft in range(2):
                for j in range(2):
                    E(f"ds_read_b64_tr_b16 {vr(WP + 4 * ft + 2 * j, 2)}, v{w1 if ft == 0 else w2} offset:{896 * j + 32 * ft}")
            for ft in range(2):
                for i in (2, 3):
                    r = WP + 4 * ft + i
                    E(f"v_cndmask_b32 v{r}, v{r}, 0, {sr(sG3, 2)}")
    C.prebar = prebar
    if OPT["loops"]:
        C.run_loop({3: lambda E: prebar(E, 3)})
    else:
        C.run(0, 6)
    stamp(E, 1)
    Warm.begin(E, "B")
    SCR = BUF + 32
    vp0 = T0
    F = [f"v_mov_b32 v{vp0 + 8}, 0x3f80"]
    for u in range(2):
        vp = vp0 + 4 * u
        F += pack_op(ACC[1] + 8 * u, vp, zero_pad=False)
        F.append(f"v_cndmask_b32 v{vp + 2}, v{vp + 2}, v{vp0 + 8}, {sr(sG3, 2)}")
        F.append(f"v_cndmask_b32 v{vp + 3}, v{vp + 3}, 0, {sr(sG3, 2)}")
    for u in range(2):
        for dt in range(2):
            F.append(f"ds_write_b64 v{vA1}, {vr(vp0 + 4 * u + 2 * dt, 2)} offset:{16 * V_STRIDE * u + 32 * dt}")
    body = phi_path(0, PHI, [SCR, SCR + 16], WP)
    E(body[:16]); E(F); E(body[16:])
    for u in range(2):
        for sg in range(2):
            for ft in range(2):
                E(f"ds_write_b64 v{vA0}, {vr(PHI + 8 * u + 4 * sg + 2 * ft, 2)} offset:{PHI_BASE + 16 * PHI_STRIDE * u + 64 * sg + 32 * ft}")
    stamp(E, 3)
    E.barrier()
    KA, KB_, KD = ACC[0], SCR, SCR + 16
    for ks in range(4):
        for j in range(2):
            E(f"ds_read_b64_tr_b16 {vr(KB_ + 4 * ks + 2 * j, 2)}, v{vA3} offset:{(32 * ks + j) * V_STRIDE}")
        for ft in range(2):
            for j in range(2):
                E(f"ds_read_b64_tr_b16 {vr(KA + 8 * ks + 4 * ft + 2 * j, 2)}, v{vA2} offset:{PHI_BASE + (32 * ks + j) * PHI_STRIDE + 32 * ft}")
        if ks >= 1:
            for ft in range(2):
                cin = "0" if ks == 1 else vr(KD + 4 * ft, 4)
                E(f"v_mfma_f32_16x16x32_bf16 {vr(KD + 4 * ft, 4)}, {vr(KA + 8 * (ks - 1) + 4 * ft, 4)}, {vr(KB_ + 4 * (ks - 1), 4)}, {cin}")
    for ft in range(2):
        E(f"v_mfma_f32_16x16x32_bf16 {vr(KD + 4 * ft, 4)}, {vr(KA + 24 + 4 * ft, 4)}, {vr(KB_ + 12, 4)}, {vr(KD + 4 * ft, 4)}")
    kp = T0
    E(pack_op(KD, kp, zero_pad=False))
    for i in range(4):
        E(f"v_min_u32 v{kp + i}, -2, v{kp + i}")
    E(f"buffer_store_dwordx4 {vr(kp, 4)}, v{vKV}, {sr(SWS, 4)}, 0 offen sc1")
    stamp(E, 4)
    E.barrier()
    G = BUF
    E(f"s_lshl_b32 s{sT0}, s{sHP}, 17")
    E(f"s_lshl_b32 s{sT1}, s{sWV}, 10")
    E(f"s_add_u32 s{sT0}, s{sT0}, s{sT1}")
    E(f"s_add_u32 s{sT0}, s{sT0}, {WS_KVP}")
    E(f"v_add_u32 v{vA1}, s{sT0}, v{vL16B}")
    loads = []
    for p in range(16):
        loads.append(f"s_mov_b32 s{sT0}, {8192 * p}")
        loads.append(f"buffer_load_dwordx4 {vr(G + 4 * p, 4)}, v{vA1}, {sr(SWS, 4)}, s{sT0} offen sc1")
    body = phi_path(2, PHI, [ACC[0], ACC[1]], WP)
    h = len(body) * OPT["gat"] // 100
    E(body[:h])
    E.barrier()
    stamp(E, 5)
    E(loads)
    E(body[h:])
    E(p3_setup(E))
    stamp(E, 6)
    SEL = T0 + 2
    SUM = ACC[0]
    t0_, t1_ = ACC[0] + 8, ACC[0] + 9
    E(f"v_lshrrev_b32 v{t0_}, 2, v{vL16}")
    E(f"v_cmp_eq_u32 vcc, v{t0_}, v{vG}")
    E(f"v_and_b32 v{t0_}, 1, v{vL16}")
    E(f"v_lshlrev_b32 v{t0_}, 4, v{t0_}")
    E(f"v_mov_b32 v{t1_}, 0x3f80")
    E(f"v_lshlrev_b32 v{t0_}, v{t0_}, v{t1_}")
    E(f"v_cndmask_b32 v{t0_}, 0, v{t0_}, vcc")
    E(f"v_and_b32 v{t1_}, 2, v{vL16}")
    E(f"v_cmp_eq_u32 vcc, 0, v{t1_}")
    for r in (SEL, SEL + 1, SEL + 4, SEL + 5):
        E(f"v_mov_b32 v{r}, 0")
    E(f"v_cndmask_b32 v{SEL + 2}, 0, v{t0_}, vcc")
    E(f"v_cndmask_b32 v{SEL + 3}, v{t0_}, 0, vcc")
    L = newlabel("kv"); Lc = newlabel("kvc"); Ld = newlabel("kvd")
    E(f"s_mov_b32 s{sSPIN}, 0")
    saved = list(E.vmq)
    E.flush_haz()
    E(f"s_branch {Lc}")
    E.label(L)
    E.vmq = []
    E(loads)
    E.label(Lc)
    chk = T0
    for p in range(16):
        g4 = G + 4 * p
        E(f"v_mfma_f32_16x16x32_bf16 {vr(SUM, 4)}, {vr(SEL + 2, 4)}, {vr(g4, 4)}, {'0' if p == 0 else vr(SUM, 4)}")
        E(f"v_mfma_f32_16x16x32_bf16 {vr(SUM + 4, 4)}, {vr(SEL, 4)}, {vr(g4, 4)}, {'0' if p == 0 else vr(SUM + 4, 4)}")
        if p == 0:
            E(f"v_max_u32 v{chk}, v{g4}, v{g4 + 1}")
        else:
            E(f"v_max3_u32 v{chk}, v{chk}, v{g4}, v{g4 + 1}")
        E(f"v_max3_u32 v{chk}, v{chk}, v{g4 + 2}, v{g4 + 3}")
    E(f"v_cmp_eq_u32 vcc, -1, v{chk}")
    spin_tail(E, L, Ld)
    stamp(E, 7)
    kf = ACC[0] + 8
    E(pack_op(SUM, kf, zero_pad=False))
    E(f"s_lshl_b32 s{sT0}, s{sWV}, 10")
    E(f"s_add_u32 s{sT0}, s{sT0}, {KVF}")
    E(f"v_add_u32 v{vA1}, s{sT0}, v{vL16B}")
    E(f"ds_write_b128 v{vA1}, {vr(kf, 4)}")
    E(f"s_lshl_b32 s{sT0}, s{sHH}, 12")
    E(f"s_add_u32 s{sT0}, s{sT0}, {KVF}")
    E(f"v_add_u32 v{vA1}, s{sT0}, v{vL16B}")
    E(f"v_lshlrev_b32 v{vA2}, 8, v{vG}")
    E(f"s_add_u32 s{sT0}, s{sT0}, {12 * 16}")
    E(f"v_add_u32 v{vA2}, s{sT0}, v{vA2}")
    E.barrier()
    KF, ZF, NUM = BUF, BUF + 16, BUF + 24
    for w in range(4):
        E(f"ds_read_b128 {vr(KF + 4 * w, 4)}, v{vA1} offset:{1024 * w}")
    for sg in range(2):
        E(f"ds_read_b128 {vr(ZF + 4 * sg, 4)}, v{vA2} offset:{1024 * (2 * sg + 1)}")
    pre_a = p3_loads(0)[0]
    for u in range(2):
        for dt in range(2):
            for sg in range(2):
                d = NUM + 12 * u + 4 * dt
                E(f"v_mfma_f32_16x16x32_bf16 {vr(d, 4)}, {vr(KF + 4 * (2 * sg + dt), 4)}, {vr(PHI + 8 * u + 4 * sg, 4)}, {'0' if sg == 0 else vr(d, 4)}")
        for sg in range(2):
            d = NUM + 12 * u + 8
            E(f"v_mfma_f32_16x16x32_bf16 {vr(d, 4)}, {vr(ZF + 4 * sg, 4)}, {vr(PHI + 8 * u + 4 * sg, 4)}, {'0' if sg == 0 else vr(d, 4)}")
    if OPT["prea"] == 0:
        E(pre_a)
    st = []
    for u in range(2):
        n = NUM + 12 * u; dn = n + 8
        t = BUF + 48 + 8 * u
        o = []
        o += round_pairs(n, n, 8, t)
        o.append(f"v_cvt_pk_bf16_f32 v{t + 4}, v{dn}, v{dn}")
        o.append(f"v_lshlrev_b32 v{dn}, 16, v{t + 4}")
        o.append(f"v_add_f32 v{dn}, 0x358637bd, v{dn}")
        o.append(f"v_cvt_pk_bf16_f32 v{t + 4}, v{dn}, v{dn}")
        o.append(f"v_lshlrev_b32 v{dn}, 16, v{t + 4}")
        o.append(f"v_rcp_f32 v{dn}, v{dn}")
        for i in range(8):
            o.append(f"v_mul_f32 v{n + i}, v{n + i}, v{dn}")
        o += pack_op(n, t)
        for i in range(4):
            o.append(f"v_min_u32 v{t + i}, -2, v{t + i}")
        o.append(ostore(t, u))
        st.append(o)
    E(interleave(st[0], st[1]))
    if OPT["prea"] == 1:
        E(pre_a)
    stamp(E, 8)
    Warm.end(E)

def att_masks():
    ms = []
    for tile in range(2):
        for i in range(4):
            m = 0
            for lane in range(64):
                q, g = lane & 15, lane >> 4
                d = q - (4 * g + i) + (16 if tile == 0 else 0)
                if 0 <= d <= 14 and d % 2 == 0:
                    m |= 1 << lane
            ms.append(m)
    return ms

def cons_A(E, halo):
    HACC, BUF = 64, 80
    srds(E); srds2(E)
    warm_up(E, ["P3"])
    cons_setup(E, "A")
    ones = T0 + 4
    for i in range(4):
        E(f"v_mov_b32 v{ones + i}, -1")
    E(f"s_lshl_b32 s{sT0}, s{sHP}, 4")
    E(f"s_add_u32 s{sT0}, s{sT0}, s{sRB}")
    E(f"s_lshl_b32 s{sT0}, s{sT0}, 3")
    E(f"s_add_u32 s{sT0}, s{sT0}, s{sWV}")
    E(f"s_lshl_b32 s{sT0}, s{sT0}, 10")
    E(f"s_add_u32 s{sT0}, s{sT0}, {WS_KVP}")
    E(f"v_add_u32 v{vA0}, s{sT0}, v{vL16B}")
    E(f"buffer_store_dwordx4 {vr(ones, 4)}, v{vA0}, {sr(SWS, 4)}, 0 offen sc1")
    if OPT["sbar"]:
        E.barrier()
    if OPT["pf"] and not OPT["pfA"]:
        prefetch(E)
    elif OPT["pf"]:
        E(f"s_and_b32 s{sMP}, s{sJ}, 15")
        prefetch(E, sMP)
        E(f"s_add_u32 s{sMP}, s{sMP}, 16")
        prefetch(E, sMP)
    stamps_init(E)
    ms = att_masks()
    for i, m in enumerate(ms):
        E(f"s_mov_b32 s{sMASK + 2 * i}, {m & 0xffffffff:#x}")
        E(f"s_mov_b32 s{sMASK + 2 * i + 1}, {m >> 32:#x}")
    E(f"s_lshl_b32 s{sT0}, s{sWV}, 11")
    E(f"s_add_u32 s{sT0}, s{sT0}, {A_EXCH}")
    E(f"v_add_u32 v{vA1}, s{sT0}, v{vL16B}")
    E(f"v_lshl_add_u32 v{vA2}, v{vLANE}, 3, s{sT0}")
    C = Cons(E, "A", A_STAGES, BUF, 36, 2, halo=halo, HACC=HACC)
    def fl(E, base):
        Lf = newlabel("fs")
        E(f"s_cmp_lg_u32 s{sWV}, 0")
        E.flush_haz()
        E(f"s_cbranch_scc1 {Lf}")
        flag_store(E, 1, T0, T0 + 1, base)
        E.label(Lf)
    def prebar(E, s):
        if s == OPT["fk"]:
            E.force_wait(vm=0 if OPT["fk"] else 1)
        if s == OPT["fk"] + 1 and halo:
            fl(E, 0)
        if s in (1, 2):
            E(f"s_mov_b32 s{sT0}, {WS_OB + 16384 * (s - 1)}")
            E(f"buffer_store_dwordx4 {vr(ones, 4)}, v{vOOFF}, {sr(SWS, 4)}, s{sT0} offen sc1")
            E(ostore(ones, s - 1))
        if s == 3 and OPT["pf2"]:
            sv = list(E.vmq); prefetch2(E, T0, T0 + 1, 15); E.vmq = sv
        if s == OPT["fo"]:
            E.force_wait(vm=0)
        if s == OPT["fo"] + 1 and halo:
            fl(E, 128)
    C.prebar = prebar
    if OPT["loops"]:
        C.run_loop({k: (lambda E, k=k: prebar(E, k)) for k in ((0, 1, 2, 5, 6) if halo else (0, 1, 2, 5))})
    else:
        C.run(0, 6)
    stamp(E, 1)
    KT, VV = BUF, BUF + 12
    for u in range(2):
        E(pack_op(ACC[0] + 8 * u, KT + 4 + 4 * u))
        for dt in range(2):
            a = ACC[1] + 8 * u + 4 * dt
            d = VV + 8 * u + 4 * dt + 2
            E(f"v_cvt_pk_bf16_f32 v{d}, v{a}, v{a + 1}")
            E(f"v_cvt_pk_bf16_f32 v{d + 1}, v{a + 2}, v{a + 3}")
            if u == 0:
                E(f"v_mov_b32 v{d + 6}, v{d}")
                E(f"v_mov_b32 v{d + 7}, v{d + 1}")
    E.barrier()
    E(f"ds_write_b128 v{vA1}, {vr(KT + 8, 4)} offset:4096")
    for dt in range(2):
        E(f"ds_write_b64 v{vA2}, {vr(VV + 8 + 4 * dt + 2, 2)} offset:{4096 + 1024 + 512 * dt}")
    if halo:
        E(pack_op(HACC, KT))
        for dt in range(2):
            a = HACC + 8 + 4 * dt
            d = VV + 4 * dt
            E(f"v_cvt_pk_bf16_f32 v{d}, v{a}, v{a + 1}")
            E(f"v_cvt_pk_bf16_f32 v{d + 1}, v{a + 2}, v{a + 3}")
        E(f"s_cmp_eq_u32 s{sRB}, 0")
        E(f"s_cselect_b64 {sr(sMP, 2)}, 0, -1")
    T = BUF + 28
    NEG = T0 + 8
    E(f"v_mov_b32 v{NEG}, 0xf149f2ca")
    MX = [T0, T0 + 1]; SM = [T0 + 2, T0 + 3]; tt = T0 + 4
    pre0, pre, mid, post = [], [], [], []
    for u in range(2):
        B_ = T + 20 * u
        qo, L, pk, P = B_, B_ + 4, B_ + 12, B_ + 16
        O = ACC[1] + 8 * u
        pre0 += pack_op(ACC[2] + 8 * u, qo)
        o = []
        o.append(f"v_mfma_f32_16x16x32_bf16 {vr(L + 4, 4)}, {vr(KT + 4 * u + 4, 4)}, {vr(qo, 4)}, 0")
        o.append(f"v_mfma_f32_16x16x32_bf16 {vr(L, 4)}, {vr(KT + 4 * u, 4)}, {vr(qo, 4)}, 0")
        o += round_pairs(L, L, 8, pk)
        for i in range(8):
            o.append(f"v_mul_f32 v{L + i}, s{sSCL}, v{L + i}")
        o += round_pairs(L, L, 8, pk)
        for i in range(8):
            o.append(f"v_cndmask_b32 v{L + i}, v{NEG}, v{L + i}, {sr(sMASK + 2 * i, 2)}")
        if halo and u == 0:
            for i in range(4):
                o.append(f"v_cndmask_b32 v{L + i}, v{NEG}, v{L + i}, {sr(sMP, 2)}")
        mx = MX[u]
        o.append(f"v_max3_f32 v{mx}, v{L}, v{L+1}, v{L+2}")
        o.append(f"v_max3_f32 v{mx}, v{mx}, v{L+3}, v{L+4}")
        o.append(f"v_max3_f32 v{mx}, v{mx}, v{L+5}, v{L+6}")
        o.append(f"v_max_f32 v{mx}, v{mx}, v{L+7}")
        pre.append(o)
        o = []
        o.append(f"v_mul_f32 v{mx}, s{sL2E}, v{mx}")
        for i in range(8):
            o.append(f"v_fma_f32 v{L + i}, v{L + i}, s{sL2E}, -v{mx}")
        for i in range(8):
            o.append(f"v_exp_f32 v{L + i}, v{L + i}")
        sm = SM[u]
        o.append(f"v_add_f32 v{sm}, v{L}, v{L + 1}")
        for i in range(2, 8):
            o.append(f"v_add_f32 v{sm}, v{sm}, v{L + i}")
        mid.append(o)
        o = []
        o.append(f"v_rcp_f32 v{sm}, v{sm}")
        for i in range(8):
            o.append(f"v_mul_f32 v{L + i}, v{L + i}, v{sm}")
        for i in range(4):
            o.append(f"v_cvt_pk_bf16_f32 v{P + i}, v{L + 2 * i}, v{L + 2 * i + 1}")
        for dt in range(2):
            o.append(f"v_mfma_f32_16x16x32_bf16 {vr(O + 4 * dt, 4)}, {vr(VV + 8 * u + 4 * dt, 4)}, {vr(P, 4)}, 0")
        o += pack_op(O, qo)
        for i in range(4):
            o.append(f"v_min_u32 v{qo + i}, -2, v{qo + i}")
        o.append(ostore(qo, u))
        post.append(o)
    E(pre0)
    E.barrier()
    if not halo:
        E(f"ds_read_b128 {vr(KT, 4)}, v{vA1}")
        for dt in range(2):
            E(f"ds_read_b64 {vr(VV + 4 * dt, 2)}, v{vA2} offset:{1024 + 512 * dt}")
    E(interleave(pre[1], pre[0]))
    E(dual_reduce(MX[0], MX[1], tt, "v_max_f32"))
    E(interleave(mid[0], mid[1]))
    E(dual_reduce(SM[0], SM[1], tt, "v_add_f32"))
    E(interleave(post[0], post[1]))
    stamp(E, 8)
    E.barrier()
    E(p3_setup(E))

def loader(E, br, last):
    stages = A_STAGES if br == "A" else B_STAGES
    vX, vW0, vW1, vH0, vH1, vWO, vGX, vGF, vGOFF = 4, 5, 6, 7, 8, 9, 10, 12, 13
    t0, t1, t2, t3 = T0, T0 + 1, T0 + 2, T0 + 3
    sL = sRG
    if OPT["prio"]:
        E("s_setprio 3")
    E(f"s_sub_u32 s{sL}, s{sWV}, 8")
    E(f"v_lshrrev_b32 v{t0}, 3, v{vLANE}")
    E(f"v_bfe_u32 v{t1}, v{vLANE}, 4, 2")
    E(f"s_lshl_b32 s{sT1}, s{sHH}, 2")
    E(f"v_or_b32 v{t1}, s{sT1}, v{t1}")
    E(f"v_and_b32 v{t2}, 7, v{vLANE}")
    E(f"v_xor_b32 v{t1}, v{t1}, v{t2}")
    E(f"s_lshl_b32 s{sT0}, s{sRB}, 7")
    E(f"s_lshl_b32 s{sT1}, s{sL}, 3")
    E(f"s_add_u32 s{sT0}, s{sT0}, s{sT1}")
    E(f"v_add_u32 v{t0}, s{sT0}, v{t0}")
    E(f"v_mul_u32_u24 v{vX}, 896, v{t0}")
    E(f"v_lshl_add_u32 v{vX}, v{t1}, 4, v{vX}")
    for pi, vw in enumerate((vW0, vW1)):
        if last and pi == 1:
            break
        E(f"s_lshl_b32 s{sT1}, s{sL}, 6")
        if pi:
            E(f"s_add_u32 s{sT1}, s{sT1}, 256")
        E(f"v_add_u32 v{t0}, s{sT1}, v{vLANE}")
        E(f"v_mul_u32_u24 v{t1}, 9363, v{t0}")
        E(f"v_lshrrev_b32 v{t1}, 16, v{t1}")
        E(f"v_mul_u32_u24 v{t2}, 7, v{t1}")
        E(f"v_sub_u32 v{t2}, v{t0}, v{t2}")
        E(f"v_and_b32 v{t0}, 0x38, v{t1}")
        E(f"v_and_b32 v{t3}, 1, v{t1}")
        E(f"v_lshl_add_u32 v{t0}, v{t3}, 2, v{t0}")
        E(f"v_bfe_u32 v{t3}, v{t1}, 1, 2")
        E(f"v_add_u32 v{t0}, v{t0}, v{t3}")
        E(f"v_mul_u32_u24 v{vw}, 2688, v{t0}")
        E(f"v_lshl_add_u32 v{vw}, v{t2}, 4, v{vw}")
        E(f"s_mul_i32 s{sT1}, s{sHP}, 112")
        E(f"v_add_u32 v{vw}, s{sT1}, v{vw}")
    E(f"s_lshl_b32 s{sM0}, s{sL}, 10")
    if last and br == "A":
        E(f"v_subrev_u32 v{vH1}, {32 * 896}, v{vX}")
        E(f"v_xor_b32 v{vH0}, 64, v{vX}")
        E(f"v_subrev_u32 v{vH0}, {40 * 896}, v{vH0}")
    srds(E)
    lstamp(E, 1)
    def issue(s):
        if OPT["no_load"]:
            return
        st = stages[s]; m = st["m"]; base = st["base"]
        for i in range(4):
            E(f"s_add_u32 m0, s{sM0}, {base + 4096 * i}")
            E(f"s_mov_b32 s{sT0}, {128 * m + 28672 * i}")
            E(f"buffer_load_dwordx4 v{vX}, {sr(SX, 4)}, s{sT0} offen lds", tag=f"S{s}")
        for k, seg in enumerate(st["segs"]):
            for pi, vw in enumerate((vW0, vW1)):
                if last and pi == 1:
                    break
                E(f"s_add_u32 m0, s{sM0}, {base + woff(br, k) + 4096 * pi}")
                E(f"s_mov_b32 s{sT0}, {m * 64 * 2688 + SEGCOL[seg] * 896}")
                E(f"buffer_load_dwordx4 v{vw}, {sr(SW, 4)}, s{sT0} offen lds", tag=f"S{s}")
        if last and br == "A":
            for n2, vh in enumerate((vH0, vH1)):
                E(f"s_mov_b32 m0, {base + 16384 + 1024 * n2}")
                E(f"s_mov_b32 s{sT0}, {128 * m}")
                E(f"buffer_load_dwordx4 v{vh}, {sr(SX, 4)}, s{sT0} offen lds", tag=f"S{s}")
    nxt = 0
    issue(0); nxt = 1
    if OPT["sbar"] == 1:
        E.barrier()
    lstamp(E, 2)
    srds2(E)
    stamps_init(E)
    if last:
        if br == "B":
            E(f"s_mul_i32 s{sT1}, s{sHP}, 3136")
            E(f"v_add_u32 v{t0}, s{sT1}, v{vL16B}")
            for i in range(4):
                E(f"s_mov_b32 m0, {B_WPH + 1024 * i}")
                E(f"s_mov_b32 s{sT0}, {1024 * i}")
                E(f"buffer_load_dwordx4 v{t0}, {sr(SAUX, 4)}, s{sT0} offen lds", tag="S1")
        else:
            E(f"s_mov_b32 m0, {A_GATE}")
            E(f"buffer_load_dwordx4 v{vL16B}, {sr(SAUX, 4)}, 0 offen lds", tag="S0")
    while nxt < OPT["ahead"]:
        issue(nxt); nxt += 1
    if OPT["sbar"] == 2:
        E.barrier()
    lstamp(E, 3)
    E(f"v_lshrrev_b32 v{vWO}, 3, v{vLANE}")
    E(f"v_bfe_u32 v{t1}, v{vLANE}, 4, 2")
    E(f"v_lshlrev_b32 v{t1}, 1, v{t1}")
    E(f"v_and_b32 v{t2}, 7, v{vLANE}")
    E(f"v_xor_b32 v{t1}, v{t1}, v{t2}")
    E(f"v_mul_u32_u24 v{vWO}, 896, v{vWO}")
    E(f"v_lshl_add_u32 v{vWO}, v{t1}, 4, v{vWO}")
    E(f"s_lshl_b32 s{sT1}, s{sCT}, 7")
    E(f"s_mul_i32 s{sT2}, s{sL}, {8 * 896}")
    E(f"s_add_u32 s{sT1}, s{sT1}, s{sT2}")
    E(f"s_cmp_ge_u32 s{sJ}, 28")
    E(f"s_cselect_b32 s{sT1}, 0x1000000, s{sT1}")
    E(f"v_add_u32 v{vWO}, s{sT1}, v{vWO}")
    def wo(b2):
        for i in range(14):
            E(f"s_add_u32 m0, s{sM0}, {(WOB_BASE if b2 else WOA_BASE) + i * 4096}")
            E(f"s_mov_b32 s{sT0}, {i * 32 * 896}")
            E(f"buffer_load_dwordx4 v{vWO}, {sr(SWOA if b2 == 0 else SWOB, 4)}, s{sT0} offen lds", tag=f"WO{b2}")
        if last:
            E(f"s_mov_b32 m0, {(WOB_BASE if b2 else WOA_BASE) + 57344}")
            E(f"s_mov_b32 s{sT0}, {448 * 896}")
            E(f"buffer_load_dwordx4 v{vWO}, {sr(SWOA if b2 == 0 else SWOB, 4)}, s{sT0} offen lds", tag=f"WO{b2}")
    gate = last and br == "A"
    if gate:
        E(f"v_lshrrev_b32 v{t0}, 1, v{vL16}")
        E(f"v_xor_b32 v{t0}, v{t0}, v{vG}")
        E(f"v_lshlrev_b32 v{t0}, 4, v{t0}")
        E(f"v_lshl_add_u32 v{t0}, v{vL16}, 7, v{t0}")
        E(f"s_lshl_b32 s{sT0}, s{sHP}, 11")
        E(f"v_add_u32 v{vGX}, s{sT0}, v{t0}")
        E(f"v_xor_b32 v{vGX + 1}, 64, v{vGX}")
        E(f"v_lshlrev_b32 v{vGF}, 4, v{vG}")
        E(f"v_add_u32 v{vGF}, {A_GATE}, v{vGF}")
        E(f"s_lshl_b32 s{sT0}, s{sRB}, 7")
        E(f"s_lshl_b32 s{sT1}, s{sHP}, 4")
        E(f"s_add_u32 s{sT0}, s{sT0}, s{sT1}")
        E(f"s_lshl_b32 s{sT0}, s{sT0}, 2")
        E(f"s_add_u32 s{sT0}, s{sT0}, {WS_G}")
        E(f"v_lshl_add_u32 v{vGOFF}, v{vLANE}, 2, s{sT0}")
        E(f"v_mov_b32 v{t0}, {WS_BYTES}")
        E(f"v_cmp_gt_u32 vcc, 16, v{vLANE}")
        E(f"v_cndmask_b32 v{vGOFF}, v{t0}, v{vGOFF}, vcc")
        E(f"v_mov_b32 v{t1}, -1")
        E(f"buffer_store_dword v{t1}, v{vGOFF}, {sr(SWS, 4)}, 0 offen sc1", tag="GCLR")
    GL, GB = 16, 20
    cur = 0
    cleared = [False]
    def clears():
        on = 40
        for i in range(4):
            E(f"v_mov_b32 v{on + i}, -1")
        E(f"s_lshl_b32 s{sT0}, s{sRB}, 3")
        E(f"s_lshl_b32 s{sT1}, s{sL}, 1")
        E(f"s_add_u32 s{sT0}, s{sT0}, s{sT1}")
        E(f"s_lshl_b32 s{sT0}, s{sT0}, 4")
        E(f"s_lshl_b32 s{sT1}, s{sHP}, 1")
        E(f"s_add_u32 s{sT0}, s{sT0}, s{sT1}")
        E(f"s_lshl_b32 s{sT0}, s{sT0}, 10")
        E(f"s_lshl_b32 s{sT1}, s{sBR}, 21")
        E(f"s_add_u32 s{sT0}, s{sT0}, s{sT1}")
        E(f"v_add_u32 v{t2}, s{sT0}, v{vL16B}")
        E(f"s_mov_b32 s{sT1}, 16384")
        if br == "B":
            E(f"s_lshl_b32 s{sT0}, s{sHP}, 4")
            E(f"s_add_u32 s{sT0}, s{sT0}, s{sRB}")
            E(f"s_lshl_b32 s{sT0}, s{sT0}, 2")
            E(f"s_add_u32 s{sT0}, s{sT0}, s{sL}")
            E(f"s_lshl_b32 s{sT0}, s{sT0}, 11")
            E(f"s_add_u32 s{sT0}, s{sT0}, {WS_KVP}")
            E(f"v_add_u32 v{t3}, s{sT0}, v{vL16B}")
            for i in range(2):
                E(f"buffer_store_dwordx4 {vr(on, 4)}, v{t3}, {sr(SWS, 4)}, 0 offen offset:{1024 * i} sc1", tag="CLR")
        for u in range(2):
            for i in range(2):
                E(f"buffer_store_dwordx4 {vr(on, 4)}, v{t2}, {sr(SWS, 4)}, {'0' if u == 0 else 's' + str(sT1)} offen offset:{1024 * i} sc1", tag="CLR")
    def step(s):
        nonlocal nxt, cur
        E.wait_tag(f"S{s}")
        if s == 0:
            lstamp(E, 4)
        if gate and s == OPT["fo"]:
            E.wait_tag("GCLR")
        E.barrier(lgkm0=True)
        if s == 0:
            lstamp(E, 5)
        if gate:
            d = stages[s]["base"] - cur; cur = stages[s]["base"]
            E(vadd_imm(vGX, d)); E(vadd_imm(vGX + 1, d))
            m = stages[s]["m"]
            for tt in range(2):
                E(f"ds_read_b128 {vr(GB + 8 * tt, 4)}, v{vGX + tt}")
                E(f"ds_read_b128 {vr(GB + 8 * tt + 4, 4)}, v{vGF} offset:{64 * (2 * m + tt)}")
        while nxt < len(stages) and stages[nxt]["after"] <= s and nxt <= s + OPT["ahead"]:
            issue(nxt); nxt += 1
        if gate:
            m = stages[s]["m"]
            for tt in range(2):
                E(f"v_mfma_f32_16x16x32_bf16 {vr(GL, 4)}, {vr(GB + 8 * tt + 4, 4)}, {vr(GB + 8 * tt, 4)}, {'0' if (m == 0 and tt == 0) else vr(GL, 4)}")
    if br == "A":
        for s in range(7):
            step(s)
        if gate:
            g = GL
            E(f"v_cvt_pk_bf16_f32 v{g + 1}, v{g}, v{g}")
            E(f"v_lshlrev_b32 v{g}, 16, v{g + 1}")
            E(f"v_mul_f32 v{g}, s{sL2E}, v{g}")
            E(f"v_exp_f32 v{g}, -v{g}")
            E(f"v_add_f32 v{g}, 1.0, v{g}")
            E(f"v_rcp_f32 v{g}, v{g}")
            E(f"v_cvt_pk_bf16_f32 v{g + 1}, v{g}, v{g}")
            E(f"v_lshlrev_b32 v{g}, 16, v{g + 1}")
            E.wait_tag("GCLR")
            E(f"buffer_store_dword v{g}, v{vGOFF}, {sr(SWS, 4)}, 0 offen sc1")
        E.barrier()
        E.barrier()
        E.barrier()
        wo(0); wo(1)
        if last:
            flags_wait_all(E, t0, t1, 128)
    else:
        for s in range(7):
            step(s)
        if last:
            flags_wait_all(E, t0, t1)
        E.barrier()
        E.barrier()
        wo(0)
        if OPT["wobe"]:
            wo(1)
        if last and OPT["fo"] < 5:
            flags_wait_all(E, t0, t1, 128)
        E.barrier()
        if last and OPT["fo"] >= 5:
            flags_wait_all(E, t0, t1, 128)
        E.barrier()
    E(f"s_cmp_ge_u32 s{sJ}, 28")
    E.flush_haz()
    E("s_cbranch_scc1 L_end")
    E.wait_tag("WO0")
    E.barrier()
    if br == "B" and not OPT["wobe"]:
        wo(1)
    E.force_wait(vm=0)
    E.barrier()
    if OPT["ldst"] and not last:
        Lz = newlabel("ls")
        E(f"s_cmp_lg_u32 s{sWV}, 8")
        E(f"s_cbranch_scc1 {Lz}")
        E.force_wait(vm=0, lgkm=0)
        E(f"s_lshl_b32 s{sT0}, s2, 7")
        E(f"s_add_u32 s{sT0}, s{sT0}, {WS_ST}")
        E(f"v_mov_b32 v20, s{sT0}")
        E("s_mov_b64 exec, 1")
        for i in range(6):
            E(f"v_mov_b32 v22, s{54 + 2 * i}")
            E(f"v_mov_b32 v23, s{54 + 2 * i + 1}")
            E(f"buffer_store_dwordx2 v[22:23], v20, {sr(SWS, 4)}, 0 offen offset:{8 * i}")
            E.force_wait(vm=0)
        E.label(Lz)
    E("s_branch L_end")

def p3_setup(E):
    rt, kh = sP3, sP3 + 1
    t0, t1, t2 = T0 + 8, T0 + 9, T0 + 1
    o = []
    o.append(f"s_and_b32 s{rt}, s{sWV}, 3")
    o.append(f"s_lshr_b32 s{kh}, s{sWV}, 2")
    o.append(f"s_lshl_b32 s{sT2}, s{sT}, 2")
    o.append(f"s_add_u32 s{sT2}, s{sT2}, s{rt}")
    o.append(f"s_lshl_b32 s{sP3 + 2}, s{sT2}, 14")
    o.append(f"s_lshl_b32 s{sP3 + 3}, s{kh}, 13")
    o.append(f"s_add_u32 s{sP3 + 2}, s{sP3 + 2}, s{sP3 + 3}")
    o.append(f"v_add_u32 v{pOF}, s{sP3 + 2}, v{vL16B}")
    o.append(f"s_lshl_b32 s{sT2}, s{sT2}, 4")
    o.append(f"v_add_u32 v{pROW}, s{sT2}, v{vL16}")
    o.append(f"v_bfe_u32 v{t0}, v{vLANE}, 2, 2")
    o.append(f"v_lshl_add_u32 v{t0}, v{vG}, 2, v{t0}")
    o.append(f"v_bfe_u32 v{t1}, v{t0}, 1, 2")
    o.append(f"v_and_b32 v{t2}, 3, v{vLANE}")
    o.append(f"v_lshlrev_b32 v{t2}, 3, v{t2}")
    o.append(f"v_lshl_add_u32 v{t2}, v{t0}, 7, v{t2}")
    o.append(f"s_mul_i32 s{sT2}, s{kh}, 28672")
    o.append(f"s_add_u32 s{sT2}, s{sT2}, {WOA_BASE}")
    o.append(f"v_add_u32 v{t2}, s{sT2}, v{t2}")
    o.append(f"s_lshl_b32 s{sT2}, s{kh}, 1")
    o.append(f"v_xor_b32 v{t1}, s{sT2}, v{t1}")
    for c in range(4):
        o.append(f"v_xor_b32 v{t0}, {c}, v{t1}")
        o.append(f"v_lshl_add_u32 v{pWO + c}, v{t0}, 5, v{t2}")
    o.append(f"v_add_u32 v7, 4096, v{pOF}")
    o.append(f"v_lshlrev_b32 v9, 2, v{pROW}")
    o.append(f"v_add_u32 v9, {WS_G}, v9")
    return o

sP3 = sMASK
pOF, pROW, pWO = 4, 5, 12
def p3_loads(br):
    of = 16 + 32 * br
    loads = [f"s_mov_b32 s{sT2}, {WS_OB if br else 0}"]
    for hl in range(8):
        loads.append(f"buffer_load_dwordx4 {vr(of + 4 * hl, 4)}, v{pOF if hl < 4 else 7}, {sr(SWS, 4)}, s{sT2} offen offset:{1024 * (hl & 3)} sc1")
    regs = list(range(of, of + 32))
    if br == 0:
        loads.append(f"buffer_load_dword v6, v9, {sr(SWS, 4)}, 0 offen sc1")
        regs.append(6)
    return loads, regs

def phase3(E):
    E.label("L_p3")
    E.vmq = []; E.lgq = []
    E(f"s_cmp_ge_u32 s{sJ}, 28")
    E("s_cbranch_scc1 L_fin")
    rt, kh = sP3, sP3 + 1
    vROW, vGV, vWO = pROW, 6, pWO
    vOF0, vOF1, vGA, vXO, vXP, vOUT = pOF, 7, 9, 8, 10, 11
    TMP = 144
    OF, AC, WF = 16, [80, 96], 112
    loads_for = p3_loads
    def gemm(br):
        of = OF + 32 * br
        prev = []
        for hl in range(8):
            wf = WF + 16 * (hl & 1)
            rd = []
            for c in range(4):
                for j in range(2):
                    rd.append(f"ds_read_b64_tr_b16 {vr(wf + 4 * c + 2 * j, 2)}, v{vWO + (c ^ (2 * (hl & 1)))} offset:{3584 * hl + 2048 * j}")
            E(interleave_front(prev, rd) if prev else rd)
            prev = []
            for c in (2, 3, 0, 1):
                acc = AC[br] + 4 * c
                prev.append(f"v_mfma_f32_16x16x32_bf16 {vr(acc, 4)}, {vr(wf + 4 * c, 4)}, {vr(of + 4 * hl, 4)}, {'0' if hl == 0 else vr(acc, 4)}")
        E(prev)
    E.barrier()
    Warm.begin(E, "P3")
    stamp(E, 9)
    la, ra = loads_for(0)
    Lsk = newlabel("p3a")
    E(f"s_cmp_lg_u32 s{sBR}, 0")
    E.flush_haz()
    E(f"s_cbranch_scc1 {Lsk}")
    E(la)
    E.label(Lsk)
    E(f"s_lshl_b32 s{sT0}, s{sWV}, 12")
    E(f"s_add_u32 s{sT0}, s{sT0}, {XB3}")
    E(f"v_add_u32 v{vXO}, s{sT0}, v{vL16B}")
    E(f"s_xor_b32 s{sT0}, s{sWV}, 4")
    E(f"s_lshl_b32 s{sT0}, s{sT0}, 12")
    E(f"s_add_u32 s{sT0}, s{sT0}, {XB3}")
    E(f"v_add_u32 v{vXP}, s{sT0}, v{vL16B}")
    E(f"v_mul_u32_u24 v{vOUT}, 896, v{vROW}")
    E(f"v_lshl_add_u32 v{vOUT}, v{vG}, 3, v{vOUT}")
    E(f"s_lshl_b32 s{sT0}, s{sCT}, 7")
    E(f"s_lshl_b32 s{sT1}, s{kh}, 6")
    E(f"s_add_u32 s{sT0}, s{sT0}, s{sT1}")
    E(f"v_add_u32 v{vOUT}, s{sT0}, v{vOUT}")
    poll_loop(E, la, ra, "o", TMP, pre_issued=True)
    stamp(E, 10)
    if OPT["bearly"]:
        E(loads_for(1)[0])
    gemm(0)
    for i in range(2):
        E(f"ds_write_b128 v{vXO}, {vr(AC[0] + 8 + 4 * i, 4)} offset:{1024 * i}")
    stamp(E, 11)
    lb, rb_ = loads_for(1)
    if not OPT["sent"] and not OPT["bearly"]:
        E(lb)
    for c in range(4):
        E(vadd_imm(vWO + c, WOB_BASE - WOA_BASE))
    E.barrier()
    RA, T1, tp, omg = OF, OF + 8, OF + 16, OF + 24
    for i in range(2):
        E(f"ds_read_b128 {vr(RA + 4 * i, 4)}, v{vXP} offset:{1024 * i}")
    E(f"v_sub_f32 v{omg}, 1.0, v{vGV}")
    if OPT["round_final"]:
        E(f"v_cvt_pk_bf16_f32 v{omg + 1}, v{omg}, v{omg}")
        E(f"v_lshlrev_b32 v{omg}, 16, v{omg + 1}")
    for i in range(8):
        E(f"v_add_f32 v{T1 + i}, v{AC[0] + i}, v{RA + i}")
    if OPT["round_final"]:
        E(round_pairs(T1, T1, 8, tp))
    for i in range(8):
        E(f"v_mul_f32 v{T1 + i}, v{T1 + i}, v{vGV}")
    if OPT["round_final"]:
        E(round_pairs(T1, T1, 8, tp))
    if OPT["sent"]:
        vS = TMP + 2
        E(f"v_and_b32 v{vS}, 7, v{vLANE}")
        E(f"v_lshlrev_b32 v{vS}, 10, v{vS}")
        E(f"s_add_u32 s{sT0}, s{sP3 + 2}, {WS_OB + 1020}")
        E(f"v_add_u32 v{vS}, s{sT0}, v{vS}")
        Ls = newlabel("sn"); Lsd = newlabel("snd")
        E(f"s_mov_b32 s{sSPIN}, 0")
        E.label(Ls)
        E(f"buffer_load_dword v{TMP + 3}, v{vS}, {sr(SWS, 4)}, 0 offen sc1")
        E.force_wait(vm=0)
        E(f"v_cmp_eq_u32 vcc, -1, v{TMP + 3}")
        spin_tail(E, Ls, Lsd, sleep=OPT["sent"])
        poll_loop(E, lb, rb_, "o", TMP)
        stamp(E, 12)
        gemm(1)
    elif not OPT["prog"]:
        poll_loop(E, lb, rb_, "o", TMP, pre_issued=True)
        stamp(E, 12)
        gemm(1)
    else:
        of = OF + 32
        sMK = sP3 + 2
        for i in range(16):
            E(f"v_mov_b32 v{AC[1] + i}, 0")
        E(f"s_mov_b32 s{sMK}, 15")
        E(f"s_mov_b32 s{sSPIN}, 0")
        L = newlabel("pb"); Lc = newlabel("pbc"); Ld = newlabel("pbd")
        E.wait(lgkm=0)
        E.flush_haz()
        E(f"s_branch {Lc}")
        E.label(L)
        for pr in range(4):
            Ls = newlabel("pbl")
            E(f"s_bitcmp1_b32 s{sMK}, {pr}")
            E(f"s_cbranch_scc0 {Ls}")
            E(lb[1 + 2 * pr]); E(lb[2 + 2 * pr])
            E.out.append(Ls + ":")
        E.label(Lc)
        E.force_wait(vm=0)
        for pr in range(4):
            Ls = newlabel("pbk")
            g8 = of + 8 * pr
            E(f"s_bitcmp1_b32 s{sMK}, {pr}")
            E(f"s_cbranch_scc0 {Ls}")
            E(f"v_max3_u32 v{TMP}, v{g8}, v{g8 + 1}, v{g8 + 2}")
            E(f"v_max3_u32 v{TMP + 1}, v{g8 + 3}, v{g8 + 4}, v{g8 + 5}")
            E(f"v_max3_u32 v{TMP}, v{TMP}, v{g8 + 6}, v{g8 + 7}")
            E(f"v_max_u32 v{TMP}, v{TMP}, v{TMP + 1}")
            E(f"v_cmp_eq_u32 vcc, -1, v{TMP}")
            E(f"s_cbranch_vccnz {Ls}")
            for h2 in range(2):
                hl = 2 * pr + h2
                wf = WF + 16 * h2
                for c in range(4):
                    for j in range(2):
                        E(f"ds_read_b64_tr_b16 {vr(wf + 4 * c + 2 * j, 2)}, v{vWO + (c ^ (2 * (hl & 1)))} offset:{3584 * hl + 2048 * j}")
            for h2 in range(2):
                hl = 2 * pr + h2
                wf = WF + 16 * h2
                for c in (2, 3, 0, 1):
                    acc = AC[1] + 4 * c
                    E(f"v_mfma_f32_16x16x32_bf16 {vr(acc, 4)}, {vr(wf + 4 * c, 4)}, {vr(of + 4 * hl, 4)}, {vr(acc, 4)}")
            E(f"s_bitset0_b32 s{sMK}, {pr}")
            assert not E.lgq
            E.out.append(Ls + ":")
        E(f"s_cmp_eq_u32 s{sMK}, 0")
        E(f"s_cbranch_scc1 {Ld}")
        E(f"s_add_u32 s{sSPIN}, s{sSPIN}, 1")
        E(f"s_cmp_lt_u32 s{sSPIN}, {SPIN_MAX}")
        E(f"s_cbranch_scc0 {Ld}")
        E(f"s_branch {L}")
        E.out.append(Ld + ":")
        E.nop(9); E.clear_haz()
        stamp(E, 12)
    for i in range(2):
        E(f"ds_write_b128 v{vXO}, {vr(AC[1] + 8 + 4 * i, 4)} offset:{2048 + 1024 * i}")
    stamp(E, 13)
    E.barrier()
    for i in range(2):
        E(f"ds_read_b128 {vr(RA + 4 * i, 4)}, v{vXP} offset:{2048 + 1024 * i}")
    KB = AC[1]
    for i in range(8):
        E(f"v_add_f32 v{KB + i}, v{KB + i}, v{RA + i}")
    if OPT["round_final"]:
        E(round_pairs(KB, KB, 8, tp))
        for i in range(8):
            E(f"v_mul_f32 v{KB + i}, v{KB + i}, v{omg}")
        E(round_pairs(KB, KB, 8, tp))
        for i in range(8):
            E(f"v_add_f32 v{T1 + i}, v{T1 + i}, v{KB + i}")
    else:
        for i in range(8):
            E(f"v_fmac_f32 v{T1 + i}, v{KB + i}, v{omg}")
    for i in range(4):
        E(f"v_cvt_pk_bf16_f32 v{tp + i}, v{T1 + 2 * i}, v{T1 + 2 * i + 1}")
    for i in range(2):
        E(f"buffer_store_dwordx2 {vr(tp + 2 * i, 2)}, v{vOUT}, {sr(SOUT, 4)}, 0 offen offset:{32 * i} {OPT['outpol']}")
    stamp(E, 14)
    Warm.end(E)
    E.label("L_fin")
    if OPT["dbgspan"]:
        Lz = newlabel("sp")
        E(f"s_cmp_lg_u32 s{sWV}, 0")
        E(f"s_cbranch_scc1 {Lz}")
        E.force_wait(vm=0)
        E("s_memrealtime s[96:97]")
        E.force_wait(lgkm=0)
        E("s_not_b32 s94, s94")
        E("v_mov_b32 v144, s96")
        E("v_mov_b32 v145, s94")
        E("v_mov_b32 v146, 0")
        E("s_mov_b64 exec, 1")
        E(f"buffer_atomic_umax v144, v146, {sr(SDBG, 4)}, 0 offen")
        E(f"buffer_atomic_umax v145, v146, {sr(SDBG, 4)}, 0 offen offset:4")
        E("s_not_b32 s94, s94")
        E("v_mov_b32 v145, s94")
        E(f"buffer_atomic_umax v145, v146, {sr(SDBG, 4)}, 0 offen offset:8")
        E("s_mov_b64 exec, -1")
        E.label(Lz)
    if OPT["stamps"]:
        Lz = newlabel("st")
        E(f"s_cmp_lg_u32 s{sWV}, 0")
        E(f"s_cbranch_scc1 {Lz}")
        E.force_wait(vm=0, lgkm=0)
        E(f"s_lshl_b32 s{sT0}, s2, 7")
        E(f"s_add_u32 s{sT0}, s{sT0}, {WS_ST}")
        E(f"v_mov_b32 v{vA0}, s{sT0}")
        E("s_mov_b64 exec, 1")
        for i in range(15):
            E(f"v_mov_b32 v{TMP}, s{sSTAMP + 2 * i}")
            E(f"v_mov_b32 v{TMP + 1}, s{sSTAMP + 2 * i + 1}")
            E(f"buffer_store_dwordx2 {vr(TMP, 2)}, v{vA0}, {sr(SWS, 4)}, 0 offen offset:{8 * i}")
            E.force_wait(vm=0)
        E.label(Lz)

def main():
    hdr = open("cdna_kernels/" + NAME + ".s.ref").read().split("; Override launch geometry")[0]
    E.raw(hdr.rstrip())
    E.raw(f"; @launch grid=(256,1,1) block=(768,1,1) lds={LDS_BYTES}")
    E.raw('.amdgcn_target "amdgcn-amd-amdhsa--gfx950"')
    E.raw(".text")
    E.raw(f".globl {NAME}_kernel")
    E.raw(".p2align 8")
    E.raw(f".type {NAME}_kernel,@function")
    E.raw(f"{NAME}_kernel:")
    prologue(E)
    E(f"s_cmp_eq_u32 s{sBR}, 0")
    E.flush_haz()
    E("s_cbranch_scc1 L_dA")
    E(f"s_cmp_lt_u32 s{sWV}, 8")
    E("s_cbranch_scc1 L_B_main")
    E(f"s_cmp_eq_u32 s{sWV}, 11")
    E("s_cbranch_scc1 L_B_ld3")
    E("s_branch L_B_ld")
    E.label("L_dA")
    E(f"s_cmp_lt_u32 s{sWV}, 2")
    E("s_cbranch_scc1 L_A_halo")
    E(f"s_cmp_lt_u32 s{sWV}, 8")
    E("s_cbranch_scc1 L_A_main")
    E(f"s_cmp_eq_u32 s{sWV}, 11")
    E("s_cbranch_scc1 L_A_ld3")
    E("s_branch L_A_ld")
    for name, fn in (("L_B_ld", lambda: loader(E, "B", False)), ("L_B_ld3", lambda: loader(E, "B", True)),
                     ("L_A_ld", lambda: loader(E, "A", False)), ("L_A_ld3", lambda: loader(E, "A", True))):
        E.label(name); E.vmq = []; E.lgq = []
        fn()
    for name, fn in (("L_A_main", lambda: cons_A(E, False)), ("L_A_halo", lambda: cons_A(E, True)), ("L_B_main", lambda: cons_B(E))):
        E.label(name); E.vmq = []; E.lgq = []
        fn()
        E.wait(lgkm=0)
        E.flush_haz()
        if name != "L_B_main":
            E("s_branch L_p3")
    phase3(E)
    E.label("L_end")
    E("s_endpgm")
    E.raw('.section .rodata,"a"')
    E.raw(".p2align 6")
    E.raw(f".amdhsa_kernel {NAME}_kernel")
    E.raw(f"  .amdhsa_next_free_vgpr {NVGPR}")
    E.raw("  .amdhsa_next_free_sgpr 102")
    E.raw(f"  .amdhsa_accum_offset {NVGPR}")
    E.raw("  .amdhsa_group_segment_fixed_size 0")
    E.raw("  .amdhsa_kernarg_size 88")
    E.raw("  .amdhsa_user_sgpr_count 2")
    E.raw("  .amdhsa_user_sgpr_kernarg_segment_ptr 1")
    E.raw("  .amdhsa_system_sgpr_workgroup_id_x 1")
    E.raw(".end_amdhsa_kernel")
    if OPT["warm"]:
        out = []; sites = []
        for ln in E.out:
            if ln.startswith("@@WARM "):
                labs = [l for r in ln[7:].split(",") for l in Warm.secs[r]]
                k = len(sites); sites.append(k)
                out.append(f"    s_mov_b32 s{sLD}, {k}")
                for r in range(4, 16):
                    out.append(f"    v_mov_b32 v{r}, 0")
                out.append(f"    s_mov_b32 s{s16K}, 0")
                out.append(f"    s_mov_b32 s{sFL}, 1")
                out.append(f"    s_mov_b32 s{sLP}, s{sWV}")
                out.append("    s_mov_b64 exec, 0")
                out.append(f"L_wl_{k}:")
                for i, l in enumerate(labs):
                    out.append(f"    s_cmp_eq_u32 s{sLP}, {i}")
                    out.append(f"    s_cbranch_scc1 {l}")
                out.append(f"    s_branch L_wd_{k}")
                out.append(f"L_wr_{k}:")
                out.append(f"    s_add_u32 s{sLP}, s{sLP}, 8")
                out.append(f"    s_branch L_wl_{k}")
                out.append(f"L_wd_{k}:")
                out.append("    s_mov_b64 exec, -1")
                out.append(f"    s_mov_b32 s{sFL}, 0")
                out.append("    s_waitcnt vmcnt(0) lgkmcnt(0)")
                out.append("    s_nop 15")
            elif ln == "L_end:":
                out.append("    s_branch L_end")
                out.append("L_warm_ret:")
                for k in range(3):
                    out.append(f"    s_cmp_eq_u32 s{sLD}, {k}")
                    out.append(f"    s_cbranch_scc1 L_wr_{k}")
                out.append(ln)
            else:
                out.append(ln)
        assert len(sites) == 3
        E.out = out
        print({r: len(v) for r, v in Warm.secs.items()})
    txt = E.text()
    import re
    mx = max(int(x) for x in re.findall(r"\bv\[?(\d+)", txt) + re.findall(r"\bv\[\d+:(\d+)\]", txt))
    assert mx < NVGPR, mx
    open(sys.argv[1], "w").write(txt)
    print("instructions:", E.nins, "max vgpr", mx)

main()
```
